```python
import torch

def _softmax(x, axis=-1):
    return torch.softmax(x, dim=axis)
def _gelu(x):
    return torch.nn.functional.gelu(x, approximate="tanh")
def _silu(x):
    return torch.nn.functional.silu(x)
def _sigmoid(x):
    return torch.sigmoid(x)
def _layernorm(x, axis=-1, eps=1e-5):
    m = x.mean(dim=axis, keepdim=True)
    v = x.var(dim=axis, keepdim=True, unbiased=False)
    return (x - m) / torch.sqrt(v + eps)
def _scatter_add(tgt, idx, src, axis=0):
    return tgt.clone().index_add_(axis, idx, src)
def _segment_sum(src, seg, n):
    out = torch.zeros((n,) + src.shape[1:], dtype=src.dtype)
    return out.index_add_(0, seg, src)
def _pad(x, pw):
    flat = tuple(v for pair in reversed(pw) for v in pair)
    return torch.nn.functional.pad(x, flat)

kernel_name = 'parallel_sum__linear_attn_block__mixer_channel_mlp__prompt'

def setup_inputs():

    _w = (lambda a: (lambda t: t.to(torch.bfloat16) if t.is_floating_point() else t)(torch.as_tensor(a)))
    def _A_setup():
        B, S, D = 1, 2048, 640
        return {
            "x": _w((lambda *s: torch.randn(*s, dtype=torch.bfloat16) * 0.05)(B, S, D)),
            "wqkv": _w((lambda *s: torch.randn(*s, dtype=torch.bfloat16) * 0.1)(D, 3 * D)),
            "wo": _w((lambda *s: torch.randn(*s, dtype=torch.bfloat16) * 0.05)(D, D)),
        }
    _A_in = _A_setup()

    def _B_setup():
        B, S, D, F = 1, 2048, 640, 1728
        return {
            "x": _w((lambda *s: torch.randn(*s, dtype=torch.bfloat16) * 0.05)(B, S, D)),
            "w1": _w((lambda *s: torch.randn(*s, dtype=torch.bfloat16) * 1.6)(D, F) * (D ** -0.5)),
            "b1": _w((lambda *s: torch.randn(*s, dtype=torch.bfloat16) * 0.8)(F)),
            "w2": _w((lambda *s: torch.randn(*s, dtype=torch.bfloat16) * 0.05)(F, D) * (F ** -0.5)),
            "b2": _w((lambda *s: torch.randn(*s, dtype=torch.bfloat16) * 0.05)(D)),
        }
    _B_in = _B_setup()

    return {
        "A_x": _A_in["x"],
        "A_wqkv": _A_in["wqkv"],
        "A_wo": _A_in["wo"],
        "B_x": _B_in["x"],
        "B_w1": _B_in["w1"],
        "B_b1": _B_in["b1"],
        "B_w2": _B_in["w2"],
        "B_b2": _B_in["b2"],
    }

def reference(A_x, A_wqkv, A_wo, B_x, B_w1, B_b1, B_w2, B_b2):
    def _A_ref(x, wqkv, wo):
        B, S, D = x.shape
        H = 32; Dh = D // H
        qkv = (lambda x, *d: x.permute(*d))((x @ wqkv).reshape(B, S, 3, H, Dh), 2, 0, 3, 1, 4)
        q, k, v = qkv[0], qkv[1], qkv[2]
        phi = lambda t: torch.where(t > 0, t + 1, torch.exp(t)) + 1e-6
        pq, pk = phi(q), phi(k)
        kv = torch.einsum("bhsd,bhse->bhde", pk, v)
        z = torch.einsum("bhsd->bhd", pk)
        num = torch.einsum("bhqd,bhde->bhqe", pq, kv)
        den = torch.einsum("bhqd,bhd->bhq", pq, z)[..., None] + 1e-6
        o = num / den
        return (lambda x, *d: x.permute(*d))(o, 0, 2, 1, 3).reshape(B, S, D) @ wo

    def _B_ref(x, w1, b1, w2, b2):
        y = _layernorm(x, axis=-1)
        h = _gelu(torch.einsum("bsd,df->bsf", y, w1) + b1)
        return torch.einsum("bsf,fd->bsd", h, w2) + b2

    x = A_x
    xn = _layernorm(x, axis=-1)
    return x + _A_ref(xn, A_wqkv, A_wo) + _B_ref(xn, B_w1, B_b1, B_w2, B_b2)
```

```python
import re


def R(kind, lo, n=1):
    return [(kind, lo + i) for i in range(n)]


def rng(kind, lo, n):
    return f"{kind}{lo}" if n == 1 else f"{kind}[{lo}:{lo + n - 1}]"


_REG = re.compile(r"^(-?)(?:abs\()?([vas])(?:(\d+)|\[(\d+):(\d+)\])\)?$")


def regs_of(op):
    op = op.strip()
    if op in ("vcc", "exec", "m0", "scc"):
        return [(op, 0)]
    if op in ("vcc_lo", "vcc_hi"):
        return [("vcc", 0)]
    if op in ("exec_lo", "exec_hi"):
        return [("exec", 0)]
    m = _REG.match(op)
    if not m:
        return []
    k = m.group(2)
    if m.group(3) is not None:
        return [(k, int(m.group(3)))]
    return R(k, int(m.group(4)), int(m.group(5)) - int(m.group(4)) + 1)


TRANS = ("v_exp_f32", "v_rcp_f32", "v_rsq_f32", "v_sqrt_f32", "v_log_f32")


class Ins:
    __slots__ = ("text", "kind", "rd", "wr", "q", "tok", "after", "cost", "passes", "srcc", "wide", "note", "ghost")

    def __init__(self, text, kind, rd=(), wr=(), q=None, after=(), passes=0, srcc=(), wide=False):
        self.text, self.kind = text, kind
        self.rd, self.wr = set(rd), set(wr)
        self.q = q
        self.tok = None
        self.after = list(after)
        self.passes = passes
        self.srcc = set(srcc)
        self.wide = wide
        self.cost = 2 if kind in ("trans", "mfma") else (0 if kind in ("label", "pseudo") else 1)
        self.note = ""
        self.ghost = False

    def __repr__(self):
        return self.text


def _split_ops(s):
    out, depth, cur = [], 0, ""
    for ch in s:
        if ch in "[(":
            depth += 1
        if ch in "])":
            depth -= 1
        if ch == "," and depth == 0:
            out.append(cur.strip())
            cur = ""
        else:
            cur += ch
    if cur.strip():
        out.append(cur.strip())
    return out


def ins(text, after=()):
    t = text.strip()
    if t.endswith(":"):
        return Ins(t, "label")
    sp = t.split(None, 1)
    op = sp[0]
    rest = sp[1] if len(sp) > 1 else ""
    ops = _split_ops(rest)
    mods = ""
    if ops:
        last = ops[-1].split(None, 1)
        if len(last) > 1:
            ops[-1], mods = last[0], last[1]
    allr = lambda xs: [r for x in xs for r in regs_of(x)]
    E = [("exec", 0)]
    if op.startswith("v_mfma"):
        passes = 8 if "32x32" in op else 4
        c = regs_of(ops[3])
        return Ins(t, "mfma", allr(ops[1:4]) + E, regs_of(ops[0]), after=after, passes=passes, srcc=c)
    if op.startswith("ds_"):
        if op.startswith("ds_read"):
            return Ins(t, "ds", allr(ops[1:]) + E, regs_of(ops[0]), q="lgkm", after=after)
        return Ins(t, "ds", allr(ops) + E, [], q="lgkm", after=after)
    if op.startswith("buffer_") or op.startswith("global_"):
        lds = " lds" in (" " + mods)
        if "load" in op and not lds:
            return Ins(t, "vmem", allr(ops[1:]) + E, regs_of(ops[0]), q="vm", after=after)
        if lds:
            return Ins(t, "dma", allr(ops) + E + [("m0", 0)], [], q="vm", after=after)
        wide = "x4" in op or "x3" in op
        return Ins(t, "vmem", allr(ops) + E, [], q="vm", after=after, wide=wide)
    if op.startswith("s_load") or op == "s_memtime" or op == "s_memrealtime":
        return Ins(t, "smem", allr(ops[1:]), regs_of(ops[0]), after=after)
    if op in ("s_waitcnt", "s_nop", "s_barrier", "s_endpgm", "s_setprio", "s_sleep"):
        return Ins(t, op[2:], after=after)
    if op.startswith("s_cbranch") or op == "s_branch":
        rd = []
        if "vcc" in op:
            rd = [("vcc", 0)]
        if "scc" in op:
            rd = [("scc", 0)]
        if "exec" in op:
            rd = E
        return Ins(t, "branch", rd, [], after=after)
    if op.startswith("s_cmp") or op.startswith("s_bitcmp"):
        return Ins(t, "salu", allr(ops), [("scc", 0)], after=after)
    if op.startswith("s_"):
        rd = allr(ops[1:])
        wr = regs_of(ops[0])
        if op in ("s_addk_i32", "s_mulk_i32"):
            rd += regs_of(ops[0])
        if op.startswith("s_cselect") or op in ("s_addc_u32", "s_subb_u32"):
            rd.append(("scc", 0))
        if not (op.startswith("s_mov") or op.startswith("s_mul") or op.startswith("s_cselect") or op.startswith("s_get")):
            wr = wr + [("scc", 0)]
        if "saveexec" in op:
            rd += E
            wr += E
        return Ins(t, "salu", rd, wr, after=after)
    if op.startswith("v_"):
        base = op.replace("_e32", "").replace("_e64", "").replace("_dpp", "").replace("_sdwa", "")
        kind = "trans" if base in TRANS else "valu"
        rd = allr(ops[1:]) + E
        wr = regs_of(ops[0])
        if base.startswith("v_fmac") or base.startswith("v_dot2c") or base.startswith("v_pk_fmac") or base == "v_writelane_b32":
            rd += regs_of(ops[0])
        if base.startswith("v_permlane"):
            rd = allr(ops) + E
            wr = allr(ops)
            kind = "perm"
        if base in ("v_add_co_u32", "v_sub_co_u32", "v_addc_co_u32"):
            wr = allr(ops[:2])
            rd = allr(ops[2:]) + E
        if "_dpp" in op:
            kind = "dpp"
            rd += regs_of(ops[0])
        if base in ("v_readfirstlane_b32", "v_readlane_b32"):
            kind = "rdlane"
        return Ins(t, kind, rd, wr, after=after)
    raise ValueError("unknown instruction: " + t)


VALUISH = ("valu", "trans", "perm", "dpp", "rdlane")


def need_states(p, c):
    n = 0
    isv = lambda s: {r for r in s if r[0] in "va" and len(r[0]) == 1}
    iss = lambda s: {r for r in s if r[0] == "s" or r[0] == "vcc"}
    if p.kind in VALUISH:
        pw = isv(p.wr)
        if pw:
            if c.kind == "mfma" and pw & c.rd:
                n = max(n, 2)
            if c.kind in ("perm", "dpp") and pw & c.rd:
                n = max(n, 2)
            if c.kind == "rdlane" and pw & c.rd:
                n = max(n, 1)
            if p.kind == "trans" and c.kind in VALUISH + ("mfma", "vmem", "ds") and pw & c.rd:
                n = max(n, 1 if c.kind != "mfma" else 2)
        ps = iss(p.wr)
        if ps:
            if c.kind in VALUISH and ps & c.rd:
                n = max(n, 4 if c.kind == "rdlane" else 2)
            if c.kind in ("vmem", "dma") and ps & c.rd:
                n = max(n, 5)
            if c.kind in ("salu", "branch", "smem") and ps & c.rd:
                n = max(n, 1)
    if p.kind == "mfma":
        big = p.passes == 8
        if c.kind == "mfma":
            ab = c.rd - c.srcc
            if p.wr & ab:
                n = max(n, 12 if big else 8)
            if p.wr & c.srcc and not (p.wr == c.srcc and p.passes == c.passes):
                n = max(n, 10 if big else 6)
            if p.wr & c.wr and not (p.wr == c.srcc and p.passes == c.passes):
                n = max(n, 12 if big else 8)
        elif p.wr & (c.rd | c.wr):
            n = max(n, 12 if big else 8)
        if c.kind in VALUISH + ("ds", "vmem") and p.srcc & c.wr:
            n = max(n, 7 if big else 3)
    if p.kind == "vmem" and p.wide and c.kind in VALUISH + ("mfma", "ds", "vmem") and isv(p.rd) & c.wr:
        n = max(n, 2)
    if p.kind == "salu" and ("m0", 0) in p.wr and c.kind == "dma":
        n = max(n, 1)
    return n


class Prog:
    def __init__(self):
        self.items = []

    def add(self, x, after=()):
        if isinstance(x, str):
            x = ins(x, after)
        self.items.append(x)
        return x

    def extend(self, xs):
        for x in xs:
            self.add(x)

    def wait(self, toks):
        p = Ins("", "pseudo", after=toks)
        self.items.append(p)
        return p

    def drain_point(self, vm=True, lgkm=True):
        return None


def finalize(items, vm_max=63, lg_max=15, stats=None):
    out = []
    queues = {"vm": [], "lgkm": []}
    pend = {}
    smem_pending = set()
    nwait = nnop = 0
    branch_at = {}
    taken = set()

    def states_since(p_index):
        n = 0
        for x in out[p_index + 1:]:
            if x.kind == "nop":
                n += int(x.text.split()[1]) + 1
            elif x.kind in ("label", "pseudo"):
                continue
            else:
                n += 1
        return n

    def emit_wait(cnt):
        nonlocal nwait
        parts = []
        for q in ("vm", "lgkm"):
            if q in cnt:
                n = cnt[q]
                done = queues[q][:len(queues[q]) - n]
                queues[q] = queues[q][len(queues[q]) - n:]
                for d in done:
                    for r in d.wr:
                        if pend.get(r) is d:
                            del pend[r]
                parts.append(f"{'vmcnt' if q == 'vm' else 'lgkmcnt'}({n})")
        out.append(ins("s_waitcnt " + " ".join(parts)))
        nwait += 1

    flat = []
    for x in items:
        flat.extend(x.items if isinstance(x, Bundle) else [x])
    for x in flat:
        if x.kind == "waitcnt" and x.ghost:
            out.append(x)
            continue
        if x.kind == "waitcnt":
            m = re.search(r"vmcnt\((\d+)\)", x.text)
            cnt = {}
            if m:
                cnt["vm"] = min(int(m.group(1)), len(queues["vm"]))
            m = re.search(r"lgkmcnt\((\d+)\)", x.text)
            if m:
                cnt["lgkm"] = min(int(m.group(1)), len(queues["lgkm"]))
                if int(m.group(1)) == 0:
                    smem_pending.clear()
            for q, n in cnt.items():
                done = queues[q][:len(queues[q]) - n]
                queues[q] = queues[q][len(queues[q]) - n:]
                for d in done:
                    for r in d.wr:
                        if pend.get(r) is d:
                            del pend[r]
            out.append(x)
            continue
        need = list(x.after)
        for r in x.rd | x.wr:
            if r in pend:
                need.append(pend[r])
            assert r not in smem_pending, f"scalar load result used without lgkmcnt(0): {x.text}"
        cnt = {}
        for d in need:
            q = d.q
            if d in queues[q]:
                n = len(queues[q]) - 1 - queues[q].index(d)
                cnt[q] = min(cnt.get(q, 1 << 30), n)
        if x.q == "vm" and len(queues["vm"]) >= vm_max:
            cnt["vm"] = min(cnt.get("vm", 1 << 30), vm_max - 1)
        if x.q == "lgkm" and len(queues["lgkm"]) >= lg_max:
            cnt["lgkm"] = min(cnt.get("lgkm", 1 << 30), lg_max - 1)
        if cnt:
            emit_wait(cnt)
        if x.kind == "pseudo":
            continue
        if x.kind not in ("label",):
            pad = 0
            work = [(len(out) - 1, 0)]
            while work:
                i, seen = work.pop()
                while i >= 0 and seen < 12:
                    p = out[i]
                    if p.kind == "label":
                        for j in branch_at.get(p.text[:-1], ()):
                            work.append((j, seen))
                        i -= 1
                        continue
                    if p.kind == "branch" and p.text.startswith("s_branch") and i != len(out) - 1 and out[i + 1].kind == "label" and (i, seen) not in taken:
                        pass
                    req = need_states(p, x)
                    if req > seen:
                        pad = max(pad, req - seen)
                    seen += (int(p.text.split()[1]) + 1) if p.kind == "nop" else 1
                    i -= 1
            if pad:
                out.append(ins(f"s_nop {pad - 1}"))
                nnop += pad
        out.append(x)
        if x.kind == "branch":
            branch_at.setdefault(x.text.split()[1], []).append(len(out) - 1)
        if x.q and not x.ghost:
            queues[x.q].append(x)
            for r in x.wr:
                pend[r] = x
        if x.kind == "smem":
            smem_pending.update(x.wr)
    if stats is not None:
        stats["waits"] = stats.get("waits", 0) + nwait
        stats["nops"] = stats.get("nops", 0) + nnop
    return out


def text_of(items):
    return "\n".join(("" if x.kind == "label" else "  ") + x.text for x in items if x.kind != "pseudo")


def merge(spine, sides, budget):
    out = []
    put = lambda it: out.extend(it.items) if isinstance(it, Bundle) else out.append(it)
    for n, st in enumerate(spine):
        for s in sides:
            if s.get("end") is not None and s["end"] <= n:
                while s["i"] < len(s["items"]):
                    put(s["items"][s["i"]])
                    s["i"] += 1
        out.extend(st.get("pre", []))
        if st.get("mfma") is not None:
            out.append(st["mfma"])
        out.extend(st.get("post", []))
        b = st.get("budget", budget) + st.get("carry", 0)
        for s in sides:
            if s["start"] > n:
                continue
            while s["i"] < len(s["items"]) and b >= min(s["items"][s["i"]].cost, 2):
                it = s["items"][s["i"]]
                b -= it.cost
                put(it)
                s["i"] += 1
            if b < 1:
                break
    for s in sides:
        while s["i"] < len(s["items"]):
            put(s["items"][s["i"]])
            s["i"] += 1
    return out


class Bundle:
    def __init__(self, items):
        self.items = list(items)
        self.cost = sum(x.cost for x in self.items)


def bundled(items):
    items = list(items)
    glue = [False] * len(items)
    flat = lambda x: x.items if isinstance(x, Bundle) else [x]
    for i, it in enumerate(items):
        for x in flat(it):
            if ("scc", 0) in x.rd:
                j = i - 1
                while j >= 0 and not any(("scc", 0) in y.wr for y in flat(it)[:flat(it).index(x)]):
                    glue[j + 1] = True
                    if any(("scc", 0) in y.wr for y in flat(items[j])):
                        break
                    j -= 1
            if x.kind == "label" and i > 0:
                glue[i] = True
    out = []
    for it, g in zip(items, glue):
        if g:
            prev = out.pop()
            out.append(Bundle(flat(prev) + flat(it)))
        else:
            out.append(it)
    return out


def side(items, start=0, end=None):
    return dict(items=bundled(items), start=start, end=end, i=0)
```

```python
from asmlib import *

def build_phase2(G):
    g = G.__dict__
    globals().update({k: v for k, v in g.items() if not k.startswith("__")})
    o = []
    a = lambda *t: o.extend(I(*t))
    sR2, sJ160, sBq, sBk, sE, sHA, sHB, sL6, sL9, sReg, sRow = 88, 89, 90, 91, 92, 93, 94, 95, 96, 97, 98
    vW2 = [2, 3, 4, 5, 6]
    vH = [7, 8, 9, 10]
    vTR2, vThr1, vThr3, vRW, vL16, vPar = 11, 12, 13, 14, 15, 18
    vRR = [19, 20, 21]
    vFo2, vB2o, vTw = 22, [23, 24, 25], 32
    vTr = [33, 34, 35]
    accA, accB = 48, 128
    T2 = 208
    XB = 208
    t0, t1, t2, t3 = 252, 253, 254, 255
    aw = lambda i, f: 20 * i + 4 * f
    ah = lambda n, t: 200 + 16 * (n % 3) + 4 * t
    REG = 40960
    a("s_barrier")
    a(f"s_and_b32 s{sT0}, s2, 1", f"s_lshl_b32 s{sT0}, s{sT0}, 3", f"s_and_b32 s{sT1}, s2, 4", f"s_add_u32 s{sT0}, s{sT0}, s{sT1}",
      f"s_bfe_u32 s{sT1}, s2, 0x20003", f"s_add_u32 s{sR2}, s{sT0}, s{sT1}",
      f"s_lshr_b32 s{sT1}, s2, 5", f"s_mul_i32 s{sJ160}, s{sT1}, 160",
      f"s_bfe_u32 s{sT2}, s2, 0x10001",
      f"s_lshl_b32 s{sE}, s{sT2}, 2", f"s_add_u32 s{sE}, s{sE}, s{sW}",
      f"s_lshr_b32 s{sT0}, s{sE}, 1", f"s_mul_i32 s{sBk}, s{sT0}, 14", f"s_cmp_eq_u32 s{sT0}, 3", f"s_cselect_b32 s{sT0}, 1, 0", f"s_sub_u32 s{sBk}, s{sBk}, s{sT0}",
      f"s_and_b32 s{sT0}, s{sW}, 1", f"s_mul_i32 s{sT1}, s{sT0}, 5", f"s_add_u32 s{sBq}, s{sBk}, s{sT1}", f"s_add_u32 s{sBq}, s{sBq}, 4",
      f"s_lshl_b32 s{sT0}, s{sT0}, 1", f"s_add_u32 s{sBk}, s{sBk}, s{sT0}",
      f"s_and_b32 s{sT0}, s{sE}, 5", f"s_cmp_eq_u32 s{sT0}, 5", f"s_cselect_b32 s{sL6}, {OOB}, 0",
      f"s_cmp_ge_u32 s{sE}, 4", f"s_cselect_b32 s{sL9}, {OOB}, 0",
      f"s_lshl_b32 s{sT0}, s{sR2}, 1", f"s_add_u32 s{sT1}, s{sT0}, s{sT2}",
      f"s_mul_i32 s{sHB}, s{sT1}, {4 * NB * 1024}", f"s_add_u32 s{sHB}, s{sHB}, {HB}",
      f"s_lshl_b32 s{sRow}, s{sT1}, 2", f"s_add_u32 s{sRow}, s{sRow}, s{sW}", f"s_mul_i32 s{sRow}, s{sRow}, {16 * LDX}", f"s_add_u32 s{sRow}, s{sRow}, s{sJ160}",
      f"s_xor_b32 s{sT1}, s{sT1}, 1", f"s_mul_i32 s{sHA}, s{sT1}, {4 * NB * 1024}", f"s_add_u32 s{sHA}, s{sHA}, {HB}",
      f"s_mul_i32 s{sReg}, s{sW}, {REG}")
    for i in range(5):
        a(f"v_add_u32 v{t0}, {64 * i}, v{vL}", f"v_mul_u32_u24 v{t1}, 6554, v{t0}", f"v_lshrrev_b32 v{t1}, 16, v{t1}",
          f"v_mul_u32_u24 v{t2}, 10, v{t1}", f"v_sub_u32 v{t2}, v{t0}, v{t2}", f"v_lshlrev_b32 v{t2}, 4, v{t2}",
          f"v_mul_u32_u24 v{vW2[i]}, {LDX}, v{t1}",
          f"v_add_u32 v{vW2[i]}, v{vW2[i]}, v{t2}")
        if i < 3:
            a(f"v_add_u32 v{vB2o[i]}, s{sJ160}, v{t2}", f"v_mul_u32_u24 v{vTr[i]}, 336, v{t1}", f"v_lshl_add_u32 v{vTr[i]}, v{t2}, 1, v{vTr[i]}", f"v_add_u32 v{vTr[i]}, s{sReg}, v{vTr[i]}")

    def wsoff(i):
        if i < 4 or i == 6:
            x = I(f"s_add_u32 s{sDw}, s{sBq}, {i if i < 4 else 4}")
        elif i < 6:
            x = I(f"s_add_u32 s{sDw}, s{sBk}, {i - 4}")
        else:
            x = I(f"s_add_u32 s{sDw}, s{sE}, {8 * (i - 7)}")
        x += I(f"s_mul_i32 s{sDw}, s{sDw}, {32 * LDX}", f"s_add_u32 s{sDw}, s{sDw}, s{sJ160}")
        if i in (6, 9):
            x += I(f"s_or_b32 s{sDw}, s{sDw}, s{sL6 if i == 6 else sL9}")
        return x

    wtok = {}

    def wdma(i, after=()):
        x = wsoff(i)
        wtok[i] = []
        for k in range(5):
            x += I(f"s_add_u32 m0, s{sReg}, {(i % 8) * 5120 + 1024 * k}")
            d = ins(f"buffer_load_dwordx4 v{vW2[k]}, {srd(SW2 if i < 7 else SWO)}, s{sDw} offen lds", after=after if k == 0 else ())
            x.append(d); wtok[i].append(d)
        return x

    o += wdma(0) + wdma(1)
    a(f"v_lshlrev_b32 v{vL16}, 4, v{vL}")
    for t in range(4):
        a(f"s_add_u32 s{sT0}, s{sW}, {t}", f"s_and_b32 s{sT0}, s{sT0}, 3", f"s_mul_i32 s{sT0}, s{sT0}, {NB * 1024}", f"v_add_u32 v{vH[t]}, s{sT0}, v{vL16}")
    a(f"v_lshrrev_b32 v{t0}, 5, v{vL}", f"v_lshlrev_b32 v{t0}, 4, v{t0}", f"v_bfe_u32 v{t1}, v{vL}, 4, 1", f"v_lshl_add_u32 v{t0}, v{t1}, 2, v{t0}",
      f"v_bfe_u32 v{t1}, v{vL}, 2, 2", f"v_add_u32 v{t0}, v{t0}, v{t1}", f"v_mul_u32_u24 v{t0}, 160, v{t0}", f"v_and_b32 v{t1}, 3, v{vL}",
      f"v_lshl_add_u32 v{t0}, v{t1}, 3, v{t0}", f"v_add_u32 v{vTR2}, s{sReg}, v{t0}")
    o += flag_addr_row(vRowF, sR2, t0, t1)
    o.append(poll_issue(vRowF))
    a(f"v_bfe_u32 v{t0}, v{vL}, 2, 1", f"v_add_u32 v{vThr1}, 1, v{t0}", f"v_add_u32 v{vThr3}, 3, v{t0}")
    a(f"v_add_u32 v{vRW}, s{sReg}, v{vL16}")
    for t in range(1, 4):
        a(f"s_sub_u32 s{sT0}, s{sW}, {t}", f"s_and_b32 s{sT0}, s{sT0}, 3", f"s_mul_i32 s{sT0}, s{sT0}, {REG}", f"s_add_u32 s{sT0}, s{sT0}, {5120 * t}",
          f"v_add_u32 v{vRR[t - 1]}, s{sT0}, v{vL16}")
    a(f"s_xor_b32 s{sT0}, s2, 2", f"s_lshl_b32 s{sT0}, s{sT0}, 7", f"s_lshl_b32 s{sT1}, s{sW}, 2", f"s_add_u32 s{sT0}, s{sT0}, s{sT1}", f"v_mov_b32 v{vPar}, s{sT0}")
    a(f"v_or_b32 v{vFo2}, v{vW2[2]}, v{vHiM}", f"v_and_b32 v{vFo2}, 0x7fffffff, v{vFo2}")
    a(f"v_and_b32 v{t0}, 15, v{vL}", f"v_mul_u32_u24 v{t0}, 336, v{t0}", f"v_lshrrev_b32 v{t1}, 4, v{vL}", f"v_lshl_add_u32 v{t0}, v{t1}, 4, v{t0}", f"v_add_u32 v{vTw}, s{sReg}, v{t0}")
    for i in range(2, 8):
        o += wdma(i)
    o += stamp("w2issued")

    def hload(n):
        i = n % 10
        base = sHA if n < 10 else sHB
        if i < 4 or i == 6:
            x = I(f"s_add_u32 s{sDx}, s{sBq}, {20 + (i if i < 4 else 4)}")
        elif i < 6:
            x = I(f"s_add_u32 s{sDx}, s{sBk}, {20 + i - 4}")
        else:
            x = I(f"s_add_u32 s{sDx}, s{sE}, {8 * (i - 7)}")
        x += I(f"s_lshl_b32 s{sDx}, s{sDx}, 10", f"s_add_u32 s{sDx}, s{sDx}, s{base}")
        if i in (6, 9):
            x += I(f"s_or_b32 s{sDx}, s{sDx}, s{sL6 if i == 6 else sL9}")
        pre = []
        if n == 0:
            pre = poll_check(vRowF, vthr=vThr1) + stamp("cp1")
        if n == 4:
            pre = poll_check(vRowF, level=3) + stamp("cp2")
        if n == 7:
            pre = poll_check(vRowF, vthr=vThr3) + stamp("cp3")
        x = pre + x
        for t in range(4):
            x += I(f"buffer_load_dwordx4 a[{ah(n, t)}:{ah(n, t) + 3}], v{vH[t]}, {srd(SWS)}, s{sDx} offen sc1")
        if n in (2, 5):
            x.append(poll_issue(vRowF))
        return x

    def trs(i):
        x = []
        for f in range(5):
            for h in range(2):
                r = aw(i, f) + 2 * h
                x.append(ins(f"ds_read_b64_tr_b16 a[{r}:{r + 1}], v{vTR2} offset:{(i % 8) * 5120 + 32 * f + 1280 * h}", after=wtok[i]))
        return x

    for n in range(3):
        o += hload(n)
    XR, BR = 208, 220
    for i in range(3):
        a(f"buffer_load_dwordx4 v[{XR + 4 * i}:{XR + 4 * i + 3}], v{vW2[i] if i < 2 else vFo2}, {srd(SX)}, s{sRow} offen")
        a(f"buffer_load_dwordx4 v[{BR + 4 * i}:{BR + 4 * i + 3}], v{vB2o[i]}, {srd(SB2)}, 0 offen")
    o += trs(0)

    def mfmas(n):
        i = n % 10
        A = accA if n < 10 else accB
        x = []
        for t in (1, 2, 3, 0):
            for f in range(5):
                d = A + 20 * t + 4 * f
                c = "0" if i == 0 else f"v[{d}:{d + 3}]"
                x.append(ins(f"v_mfma_f32_16x16x32_bf16 v[{d}:{d + 3}], a[{aw(i, f)}:{aw(i, f) + 3}], a[{ah(n, t)}:{ah(n, t) + 3}], {c}"))
        return x

    def reduce_write(A, off):
        x, tk = [], []
        for t in (1, 2, 3):
            for f in range(5):
                d = A + 20 * t + 4 * f
                w = ins(f"ds_write_b128 v{vRW}, v[{d}:{d + 3}] offset:{off + 5120 * t + 1024 * f}")
                x.append(w); tk.append(w)
        return x, tk

    def reduce_read(A, off):
        x = []
        for t in (1, 2, 3):
            for f in range(5):
                d = A + 20 * t + 4 * f
                x += I(f"ds_read_b128 v[{d}:{d + 3}], v{vRR[t - 1]} offset:{off + 1024 * f}")
        return x

    def reduce_add(A, pk):
        x = []
        for t in (1, 2, 3):
            for r in range(0, 20, 2 if pk else 1):
                if pk:
                    x += I(f"v_pk_add_f32 v[{A + r}:{A + r + 1}], v[{A + r}:{A + r + 1}], v[{A + 20 * t + r}:{A + 20 * t + r + 1}]")
                else:
                    x += I(f"v_add_f32 v{A + r}, v{A + r}, v{A + 20 * t + r}")
        return x

    spine, sides = [], []
    for n in range(20):
        ms = mfmas(n)
        base = len(spine)
        spine += [dict(pre=[], post=[], mfma=m) for m in ms]
        i = n % 10
        if n < 9:
            tr = trs(n + 1)
            for k, x in enumerate(tr):
                spine[base + 2 * k]["post"].append(x)
                spine[base + 2 * k]["budget"] = 0
            if n + 1 < 2 + 0:
                pass
        if n in (1, 2):
            spine[base]["post"] += wdma(n + 7)
        if n + 3 < 20:
            spine[base + 19]["post"] += hload(n + 3)
    wA, tkA = reduce_write(accA, 0)
    sides.append(side(wA, start=201, end=230))
    spine[230]["pre"].append(ins("s_barrier", after=tkA))
    xs = reduce_read(accA, 0) + reduce_add(accA, False)
    xs += I(f"s_lshl_b32 s{sT0}, s2, 2", f"s_add_u32 s{sT0}, s{sT0}, s{sW}", f"s_mul_i32 s{sT0}, s{sT0}, 5120", f"s_add_u32 s{sT0}, s{sT0}, {XCH}")
    xt = []
    for f in range(5):
        if f == 4:
            xs += I(f"s_add_u32 s{sT0}, s{sT0}, 4096")
        x = ins(f"buffer_store_dwordx4 v[{accA + 4 * f}:{accA + 4 * f + 3}], v{vL16}, {srd(SWS)}, s{sT0} offen offset:{(1024 * f) % 4096} sc1")
        xs.append(x); xt.append(x)
    sides.append(side(xs, start=231, end=300))
    sides.append(side(signal(5, xt), start=320, end=340))
    XF = accA + 24
    xb = []
    for i in range(3):
        for k in range(4):
            d = XF + 8 * i + 2 * k
            xb += I(f"v_lshlrev_b32 v{d}, 16, v{XR + 4 * i + k}", f"v_and_b32 v{d + 1}, 0xffff0000, v{XR + 4 * i + k}",
                    f"v_lshlrev_b32 v{t0}, 16, v{BR + 4 * i + k}", f"v_and_b32 v{t1}, 0xffff0000, v{BR + 4 * i + k}",
                    f"v_add_f32 v{d}, v{d}, v{t0}", f"v_add_f32 v{d + 1}, v{d + 1}, v{t1}")
    sides.append(side(xb, start=341, end=395))
    sides.append(side([poll_issue(vPar)], start=380, end=390))
    o += merge(spine, sides, 1.0)
    o += stamp("mfma2")
    wB, tkB = reduce_write(accB, 20480)
    o += wB
    o += poll_check(vPar, level=5)
    o += stamp("xch")
    PX = 232
    a(f"s_xor_b32 s{sT0}, s2, 2", f"s_lshl_b32 s{sT0}, s{sT0}, 2", f"s_add_u32 s{sT0}, s{sT0}, s{sW}", f"s_mul_i32 s{sT0}, s{sT0}, 5120", f"s_add_u32 s{sT0}, s{sT0}, {XCH}")
    for f in range(5):
        if f == 4:
            a(f"s_add_u32 s{sT0}, s{sT0}, 4096")
        a(f"buffer_load_dwordx4 v[{PX + 4 * f}:{PX + 4 * f + 3}], v{vL16}, {srd(SWS)}, s{sT0} offen offset:{(1024 * f) % 4096} sc1")
    o.append(ins("s_barrier", after=tkB))
    o += reduce_read(accB, 20480) + reduce_add(accB, True)
    for r in range(0, 20, 2):
        a(f"v_pk_add_f32 v[{accB + r}:{accB + r + 1}], v[{accB + r}:{accB + r + 1}], v[{PX + r}:{PX + r + 1}]")
    tw = []
    for f in range(5):
        x = ins(f"ds_write_b128 v{vTw}, v[{accB + 4 * f}:{accB + 4 * f + 3}] offset:{64 * f}")
        o.append(x); tw.append(x)
    FO = accB + 24
    for i in range(3):
        for h in range(2):
            o.append(ins(f"ds_read_b128 v[{FO + 8 * i + 4 * h}:{FO + 8 * i + 4 * h + 3}], v{vTr[i]} offset:{16 * h}"))
    for i in range(3):
        for k in range(4):
            d = FO + 8 * i + 2 * k
            a(f"v_pk_add_f32 v[{d}:{d + 1}], v[{d}:{d + 1}], v[{XF + 8 * i + 2 * k}:{XF + 8 * i + 2 * k + 1}]")
        for k in range(4):
            a(f"v_cvt_pk_bf16_f32 v{FO + 8 * i + k}, v{FO + 8 * i + 2 * k}, v{FO + 8 * i + 2 * k + 1}")
        a(f"buffer_store_dwordx4 v[{FO + 8 * i}:{FO + 8 * i + 3}], v{vW2[i] if i < 2 else vFo2}, {srd(SOUT)}, s{sRow} offen")
    return o
```

```python
import sys, os, struct
sys.path.insert(0, os.path.dirname(os.path.abspath(__file__)))
from asmlib import *

NAME = "parallel_sum__linear_attn_block__mixer_channel_mlp__prompt_kernel"
OPT = dict(stamp_stages=(0, 1, 2, 3, 4, 5, 6, 7, 8, 9, 11, 13, 15, 17, 19), prof=False, stop=None, budget=3.0, touch_code=True)

LDQ, LD1, LDX = 3840, 3456, 1280
FLAGS, STATS, CSUM, KVACC, XCH, HB, TS = 0x0, 0x8000, 0x10000, 0x60000, 0x80000, 0x800000, 0x1200000
WS_SIZE = 0x1400000
OOB = 0x40000000
NB = 74
WR = 0
XS = 81920
EX = 131072
SCR = 135168
LDS_SIZE = 163840
KVT, KVT_LD = XS, 328
AM, AM_LD = XS, 176
P_X, P_QKV, P_WO, P_BX, P_W1, P_B1, P_W2, P_B2 = 4, 6, 8, 10, 12, 14, 16, 18
P_OUT, P_DBG, P_WS = 20, 22, 24
SX, SQKV, SW1, SWO, SW2, SWS, SOUT, SB1, SB2, SDBG = 28, 32, 36, 40, 44, 48, 52, 56, 60, 64
sW, sR, sU, sG, sP, sUnit, sNonce, sWL = 68, 69, 70, 71, 72, 73, 74, 75
sXo, sKq, sH, sT0, sT1, sT2, sT3, sLast = 76, 77, 78, 79, 80, 81, 82, 83
sHst, sEps, sXw, sCnt = 84, 85, 86, 87
sDx, sDw = 100, 101
sA_lo, sA_hi, sB_lo, sB_hi, sLdA, sLdB, sOffA, sOffB, sMixA, sMixB, sBA, sBB = range(88, 100)
sU64 = 3
sTS = 26
srd = lambda b: f"s[{b}:{b + 3}]"
vL = 1
vX = [2, 3, 4, 5]
vXR = [6, 7, 8, 9]
vWq, vWm, vW1 = 10, 11, 12
vTRa, vTRb = 13, 14
vHst, vFl, vRowF, vColF = 15, 16, 17, 18
vEXr = 19
vKf, vKm, vKA, vKB, vAt = 20, 21, 22, 23, 24
vAM, vOl0, vOl1, vOw0, vOw1, vOw2 = 20, 21, 22, 23, 24, 25
vFd, vPoll, vLvl = 26, 27, 28
vHiM = 29
vRs1, vRl1, vA1, vA3, vIrs = 32, 33, 34, 35, 36
vXE = 40
ACC0 = 48
acc = lambda i: ACC0 + 16 * i
TMP = 176
aX = 0
aW = 160
NRING, LOOK = 8, 4

f2u = lambda f: struct.unpack("<I", struct.pack("<f", f))[0]
LOG2E = 1.4426950408889634
C1 = -2.0 * 0.7978845608028654 * LOG2E
C3 = C1 * 0.044715

slow_paths = []
_uid = [0]


def uid(p):
    _uid[0] += 1
    return f"L_{p}{_uid[0]}"


def I(*ts):
    return [ins(t) for t in ts]


ts_names = []


def stamp(name):
    if not OPT["prof"]:
        return []
    if name not in ts_names:
        ts_names.append(name)
    k = ts_names.index(name)
    op = "s_memrealtime" if name.startswith("rt") else "s_memtime"
    b = Bundle(I(f"{op} s[{sTS}:{sTS + 1}]", "s_waitcnt lgkmcnt(0)", f"v_writelane_b32 v31, s{sTS}, {k}"))
    b.cost = 0
    b.kind = "bundle"
    return [b]


def make_srd(b, ptr, nbytes):
    return I(f"s_mov_b32 s{b}, s{ptr}", f"s_mov_b32 s{b + 1}, s{ptr + 1}", f"s_mov_b32 s{b + 2}, {nbytes}", f"s_mov_b32 s{b + 3}, 0x20000")


def signal(level, toks):
    o = I(f"s_add_u32 s{sT3}, s{sNonce}, {level}", f"v_mov_b32 v{vFd}, s{sT3}")
    return [Bundle(o), ins(f"buffer_store_dword v{vFd}, v{vFl}, {srd(SWS)}, 0 offen sc1", after=toks)]


def poll_issue(vaddr, dst=vPoll):
    return ins(f"buffer_load_dword v{dst}, v{vaddr}, {srd(SWS)}, 0 offen sc1")


def poll_check(vaddr, vthr=None, level=None, dst=vPoll):
    slow, back = uid("slow"), uid("back")

    def test():
        o = []
        if vthr is None:
            o.append(Bundle(I(f"s_add_u32 s{sT3}, s{sNonce}, {level}", f"v_subrev_u32 v{vLvl}, s{sT3}, v{dst}")))
        else:
            o += I(f"v_subrev_u32 v{vLvl}, s{sNonce}, v{dst}", f"v_sub_u32 v{vLvl}, v{vLvl}, v{vthr}")
        o += I(f"v_cmp_lt_u32 vcc, 63, v{vLvl}")
        return o

    main = test() + I(f"s_cbranch_vccnz {slow}", f"{back}:")
    loop = uid("loop")
    sp = I(f"{slow}:", f"s_mov_b32 s{sCnt}, 40000", f"{loop}:", "s_sleep 1") + [poll_issue(vaddr, dst)] + I("s_waitcnt vmcnt(0)") + test()
    sp += I(f"s_cbranch_vccz {back}", f"s_sub_u32 s{sCnt}, s{sCnt}, 1", f"s_cmp_lg_u32 s{sCnt}, 0", f"s_cbranch_scc1 {loop}", f"s_branch {back}")
    slow_paths.append(sp)
    return main


def nonce_check(dst):
    slow, back, loop = uid("nslow"), uid("nback"), uid("nloop")
    main = I(f"v_readfirstlane_b32 s{sNonce}, v{dst}", f"s_cmp_eq_u32 s{sNonce}, 0", f"s_cbranch_scc1 {slow}", f"{back}:")
    sp = I(f"{slow}:", f"s_mov_b32 s{sCnt}, 40000", f"{loop}:", "s_sleep 1", f"v_mov_b32 v{dst}, 0",
           f"buffer_load_dword v{dst}, v{dst}, {srd(SDBG)}, 0 offen sc1", "s_waitcnt vmcnt(0)",
           f"v_readfirstlane_b32 s{sNonce}, v{dst}", f"s_cmp_lg_u32 s{sNonce}, 0", f"s_cbranch_scc1 {back}",
           f"s_sub_u32 s{sCnt}, s{sCnt}, 1", f"s_cmp_lg_u32 s{sCnt}, 0", f"s_cbranch_scc1 {loop}", f"s_branch {back}")
    slow_paths.append(sp)
    return main


def prologue():
    o = []
    a = lambda *t: o.extend(I(*t))
    a("s_cmp_ge_u32 s2, 256", "s_cbranch_scc1 L_end")
    a("s_load_dwordx16 s[4:19], s[0:1], 0", "s_load_dwordx4 s[20:23], s[0:1], 64", "s_load_dwordx2 s[24:25], s[0:1], 80")
    a(f"s_memrealtime s[{sNonce}:{sNonce + 1}]")
    if OPT["prof"]:
        a("v_mov_b32 v31, 0")
        o += stamp("start") + stamp("rt0")
    t0, t1, t2, t3 = TMP, TMP + 1, TMP + 2, TMP + 3
    a(f"v_lshrrev_b32 v{t0}, 6, v0", f"v_and_b32 v{vL}, 63, v0", f"v_readfirstlane_b32 s{sW}, v{t0}")
    a(f"s_and_b32 s{sT0}, s2, 1", f"s_lshl_b32 s{sT0}, s{sT0}, 3", f"s_bfe_u32 s{sT1}, s2, 0x30003", f"s_add_u32 s{sR}, s{sT0}, s{sT1}")
    a(f"s_bfe_u32 s{sT0}, s2, 0x20001",
      f"s_lshr_b32 s{sT1}, s2, 6",
      f"s_lshl_b32 s{sG}, s{sT0}, 2", f"s_add_u32 s{sG}, s{sG}, s{sT1}",
      f"s_lshr_b32 s{sP}, s{sT1}, 1",
      f"s_lshl_b32 s{sU}, s{sT0}, 1", f"s_add_u32 s{sU}, s{sU}, s{sP}",
      f"s_mul_i32 s{sUnit}, s{sT0}, 14", f"s_cmp_eq_u32 s{sT0}, 3", f"s_cselect_b32 s{sT2}, 1, 0", f"s_sub_u32 s{sUnit}, s{sUnit}, s{sT2}")
    a(f"v_lshrrev_b32 v{t0}, 3, v{vL}", f"v_lshrrev_b32 v{t1}, 4, v{vL}", f"v_and_b32 v{t2}, 7, v{vL}", f"v_xor_b32 v{t2}, v{t2}, v{t1}",
      f"v_lshlrev_b32 v{t2}, 4, v{t2}", f"v_mul_u32_u24 v{t0}, {LDX}, v{t0}", f"v_add_u32 v{vX[0]}, v{t0}, v{t2}",
      f"v_xor_b32 v{t2}, 64, v{t2}", f"v_add_u32 v{vX[1]}, v{t0}, v{t2}", f"v_add_u32 v{vX[1]}, {8 * LDX}, v{vX[1]}",
      f"v_add_u32 v{vX[2]}, {16 * LDX}, v{vX[0]}", f"v_add_u32 v{vX[3]}, {16 * LDX}, v{vX[1]}")
    a(f"s_lshl_b32 s{sT0}, s{sR}, 2", f"s_add_u32 s{sT0}, s{sT0}, s{sW}", f"s_mul_i32 s{sXo}, s{sT0}, {32 * LDX}")
    a(f"s_mul_i32 s{sXw}, s{sW}, 12288", f"s_add_u32 s{sXw}, s{sXw}, {XS}")
    a(f"v_lshrrev_b32 v{t0}, 2, v0", f"v_and_b32 v{t1}, 3, v{vL}", f"v_lshlrev_b32 v{t1}, 4, v{t1}",
      f"v_mul_u32_u24 v{vWq}, {LDQ}, v{t0}", f"v_mul_u32_u24 v{vW1}, {LD1}, v{t0}",
      f"v_add_u32 v{vW1}, v{vW1}, v{t1}", f"v_add_u32 v{vWq}, v{vWq}, v{t1}")
    a("s_waitcnt lgkmcnt(0)")
    a(f"s_or_b32 s{sT0}, s2, s{sW}", f"s_cmp_lg_u32 s{sT0}, 0", "s_cbranch_scc1 L_nn",
      f"s_max_u32 s{sT0}, s{sNonce}, 1", f"v_mov_b32 v{t0}, s{sT0}", f"v_mov_b32 v{t1}, 0",
      f"global_store_dword v{t1}, v{t0}, s[{P_DBG}:{P_DBG + 1}] sc1")
    o[-1].ghost = True
    a("L_nn:", f"s_lshl_b32 s{sWL}, s{sW}, 10")
    o += make_srd(SX, P_X, 2048 * LDX) + make_srd(SQKV, P_QKV, 640 * LDQ) + make_srd(SW1, P_W1, 640 * LD1)
    return o


def late_setup():
    o = []
    a = lambda *t: o.extend(I(*t))
    t0, t1, t2, t3 = TMP + 60, TMP + 61, TMP + 62, TMP + 63
    o += make_srd(SWS, P_WS, WS_SIZE) + make_srd(SDBG, P_DBG, 256) + make_srd(SB1, P_B1, 1728 * 2)
    o += make_srd(SWO, P_WO, 640 * LDX) + make_srd(SW2, P_W2, 1728 * LDX) + make_srd(SOUT, P_OUT, 2048 * LDX) + make_srd(SB2, P_B2, 1280)
    a(f"v_and_b32 v{t0}, 31, v{vL}", f"v_lshrrev_b32 v{t1}, 5, v{vL}", f"v_bfe_u32 v{t2}, v{vL}, 1, 3", f"v_xor_b32 v{t2}, v{t2}, v{t1}",
      f"v_lshlrev_b32 v{t2}, 4, v{t2}", f"v_lshl_add_u32 v{t2}, v{t0}, 7, v{t2}")
    for j in range(4):
        a(f"v_xor_b32 v{vXR[j]}, {32 * j}, v{t2}", f"v_add_u32 v{vXR[j]}, s{sXw}, v{vXR[j]}")
    a(f"v_bfe_u32 v{t2}, v{vL}, 2, 2", f"v_lshl_add_u32 v{t2}, v{t1}, 3, v{t2}", f"v_lshlrev_b32 v{t2}, 6, v{t2}",
      f"v_bfe_u32 v{t3}, v{vL}, 4, 1", f"v_lshl_add_u32 v{t2}, v{t3}, 5, v{t2}", f"v_and_b32 v{t3}, 3, v{vL}",
      f"v_lshl_add_u32 v{vTRa}, v{t3}, 3, v{t2}", f"v_add_u32 v{vTRb}, 0x10000, v{vTRa}")
    a(f"v_lshlrev_b32 v{vEXr}, 4, v{t0}", f"v_add_u32 v{vEXr}, {EX}, v{vEXr}")
    a(f"v_sub_u32 v{vHiM}, 0, v{t1}")
    a(f"v_bfe_u32 v{t2}, v{vL}, 4, 1", f"v_mul_u32_u24 v{t2}, {NB * 1024}, v{t2}", f"v_and_b32 v{t3}, 15, v{vL}",
      f"v_lshl_add_u32 v{t3}, v{t1}, 4, v{t3}", f"v_lshl_add_u32 v{vHst}, v{t3}, 4, v{t2}")
    a(f"s_lshl_b32 s{sT0}, s{sR}, 2", f"s_add_u32 s{sT0}, s{sT0}, s{sW}", f"s_mul_i32 s{sHst}, s{sT0}, {2 * NB * 1024}", f"s_add_u32 s{sHst}, s{sHst}, {HB}")
    a(f"s_lshl_b32 s{sT0}, s2, 7", f"s_lshl_b32 s{sT1}, s{sW}, 2", f"s_add_u32 s{sT0}, s{sT0}, s{sT1}",
      f"v_mov_b32 v{vFl}, {OOB}", f"v_writelane_b32 v{vFl}, s{sT0}, 0")
    o += flag_addr_row(vRowF, sR, t2, t3)
    a(f"s_mov_b32 s{sEps}, {f2u(1e-6)}")
    return o


def flag_addr_row(dst, sr, t2, t3):
    return I(f"s_lshr_b32 s{sT0}, s{sr}, 3", f"s_and_b32 s{sT1}, s{sr}, 7", f"s_lshl_b32 s{sT1}, s{sT1}, 3", f"s_add_u32 s{sT0}, s{sT0}, s{sT1}",
             f"v_lshrrev_b32 v{t2}, 4, v{vL}", f"v_lshlrev_b32 v{t2}, 1, v{t2}", f"v_bfe_u32 v{t3}, v{vL}, 2, 2", f"v_lshl_add_u32 v{t2}, v{t3}, 6, v{t2}",
             f"v_add_u32 v{t2}, s{sT0}, v{t2}", f"v_and_b32 v{t3}, 3, v{vL}", f"v_lshlrev_b32 v{t3}, 2, v{t3}", f"v_lshl_add_u32 v{dst}, v{t2}, 7, v{t3}")


def flag_addr_col(dst, sg, t2, t3):
    return I(f"s_lshr_b32 s{sT0}, s{sg}, 2", f"s_lshl_b32 s{sT0}, s{sT0}, 1", f"s_and_b32 s{sT1}, s{sg}, 3", f"s_lshl_b32 s{sT1}, s{sT1}, 6", f"s_add_u32 s{sT0}, s{sT0}, s{sT1}",
             f"v_lshrrev_b32 v{t2}, 5, v{vL}", f"v_bfe_u32 v{t3}, v{vL}, 2, 3", f"v_lshl_add_u32 v{t2}, v{t3}, 3, v{t2}",
             f"v_add_u32 v{t2}, s{sT0}, v{t2}", f"v_and_b32 v{t3}, 3, v{vL}", f"v_lshlrev_b32 v{t3}, 2, v{t3}", f"v_lshl_add_u32 v{dst}, v{t2}, 7, v{t3}")


ST, CS = TMP, TMP + 10


def s0_wave_params(kv):
    o = []
    done = uid("s0p")
    hcol = lambda i: [f"s_add_u32 s{sT0}, s{sU64}, {64 * i}"]
    if kv:
        tl = [("q", 0, 0), ("q", 64, 0), ("m", 0, 1248), ("q", 1280, 0), ("q", 1344, 0), ("h", 0, 0), ("h", 1, 0), ("d", 1, 0)]
    else:
        tl = [("h", 0, 0), ("h", 1, 0), ("h", 2, 0), ("h", 3, 0), ("l", 4, 0), ("q", 0, 0), ("q", 64, 0), ("m", 0, -32)]
    for w in range(4):
        nxt = uid("s0p")
        if w < 3:
            o += I(f"s_cmp_lg_u32 s{sW}, {w}", f"s_cbranch_scc1 {nxt}")
        for (k, v, mix), (lo, hi, ld, off, mx, sb) in zip(tl[2 * w:2 * w + 2], ((sA_lo, sA_hi, sLdA, sOffA, sMixA, sBA), (sB_lo, sB_hi, sLdB, sOffB, sMixB, sBB))):
            p = P_QKV if k in "qm" else P_W1
            o += I(f"s_mov_b32 s{lo}, s{p}", f"s_mov_b32 s{hi}, s{p + 1}", f"s_mov_b32 s{ld}, {LDQ if k in 'qm' else LD1}", f"s_mov_b32 s{mx}, {mix}")
            if k == "q":
                o += I(f"s_lshl_b32 s{sT0}, s{sP}, 5", f"s_add_u32 s{off}, s{sKq}, s{sT0}", f"s_add_u32 s{off}, s{off}, {v}", f"s_mov_b32 s{sb}, {OOB}")
            elif k == "m":
                o += I(f"s_lshl_b32 s{sT0}, s{sP}, 7", f"s_sub_u32 s{off}, s{sKq}, s{sT0}", f"s_add_u32 s{off}, s{off}, 128", f"s_mov_b32 s{sb}, {OOB}")
            elif k == "h":
                o += I(*hcol(v), f"s_mov_b32 s{off}, s{sT0}", f"s_mov_b32 s{sb}, s{sT0}")
            elif k == "d":
                o += I(*hcol(v), f"s_mov_b32 s{off}, s{sT0}", f"s_mov_b32 s{sb}, {OOB}")
            elif k == "l":
                o += I(*hcol(v), f"s_or_b32 s{sb}, s{sT0}, s{sLast}", f"s_cmp_eq_u32 s{sLast}, 0", f"s_cselect_b32 s{off}, s{sT0}, 0")
        if w < 3:
            o += I(f"s_branch {done}", f"{nxt}:")
    o += I(f"{done}:")
    return o


def s0_loads(kv):
    o = []
    a = lambda *t: o.extend(I(*t))
    t0, t1, t2, t3 = TMP + 40, TMP + 41, TMP + 42, TMP + 43
    a(f"s_lshl_b32 s{sT0}, s{sR}, 7", f"s_lshl_b32 s{sT1}, s{sG}, 3", f"s_add_u32 s{sT0}, s{sT0}, s{sT1}", f"s_lshl_b32 s{sT1}, s{sW}, 1",
      f"s_add_u32 s{sT2}, s{sT0}, s{sT1}", f"s_mul_i32 s{sT0}, s{sT2}, {LDX}",
      f"v_lshrrev_b32 v{t0}, 5, v{vL}", f"v_mul_u32_u24 v{t1}, {LDX}, v{t0}", f"v_and_b32 v{t2}, 31, v{vL}", f"v_lshl_add_u32 v{t1}, v{t2}, 3, v{t1}")
    for m in range(5):
        a(f"buffer_load_dwordx2 v[{ST + 2 * m}:{ST + 2 * m + 1}], v{t1}, {srd(SX)}, s{sT0} offen offset:{256 * m}")
    a(f"v_add_u32 v{t0}, s{sT2}, v{t0}", f"v_lshlrev_b32 v{t0}, 3, v{t0}", f"v_add_u32 v{t0}, {STATS}, v{t0}", f"v_cmp_eq_u32 vcc, 0, v{t2}",
      f"v_mov_b32 v{TMP + 44}, {OOB}", f"v_cndmask_b32 v{TMP + 44}, v{TMP + 44}, v{t0}, vcc")
    o += s0_wave_params(kv)
    ad, ld = TMP + 46, TMP + 48
    a(f"v_and_b32 v{t0}, 4, v{vL}", f"v_cmp_ne_u32 vcc, 0, v{t0}",
      f"v_mov_b32 v{ld}, s{sLdA}", f"v_mov_b32 v{t1}, s{sLdB}", f"v_cndmask_b32 v{ld}, v{ld}, v{t1}, vcc", f"v_mov_b32 v{ld + 1}, 0",
      f"v_mov_b32 v{t2}, s{sOffA}", f"v_mov_b32 v{t1}, s{sOffB}", f"v_cndmask_b32 v{t2}, v{t2}, v{t1}, vcc",
      f"v_mov_b32 v{t3}, s{sMixA}", f"v_mov_b32 v{t1}, s{sMixB}", f"v_cndmask_b32 v{t3}, v{t3}, v{t1}, vcc",
      f"v_mov_b32 v{ad}, s{sA_lo}", f"v_mov_b32 v{t1}, s{sB_lo}", f"v_cndmask_b32 v{ad}, v{ad}, v{t1}, vcc",
      f"v_mov_b32 v{ad + 1}, s{sA_hi}", f"v_mov_b32 v{t1}, s{sB_hi}", f"v_cndmask_b32 v{ad + 1}, v{ad + 1}, v{t1}, vcc",
      f"v_bfe_u32 v{t0}, v{vL}, 1, 1", f"v_mad_i32_i24 v{t2}, v{t0}, v{t3}, v{t2}",
      f"v_and_b32 v{t0}, 3, v{vL}", f"v_lshl_add_u32 v{t2}, v{t0}, 4, v{t2}",
      f"v_lshrrev_b32 v{t0}, 3, v{vL}", f"v_mul_u32_u24 v{t0}, 5, v{t0}", f"s_mul_i32 s{sT0}, s{sR}, 40", f"v_add_u32 v{t0}, s{sT0}, v{t0}",
      f"v_mad_u32_u24 v{t2}, v{t0}, v{ld}, v{t2}", f"v_mov_b32 v{t3}, 0",
      f"v_lshl_add_u64 v[{ad}:{ad + 1}], v[{t2}:{t3}], 0, v[{ad}:{ad + 1}]")
    for i in range(5):
        a(f"global_load_dwordx4 v[{CS + 4 * i}:{CS + 4 * i + 3}], v[{ad}:{ad + 1}], off")
        if i < 4:
            a(f"v_lshl_add_u64 v[{ad}:{ad + 1}], v[{ld}:{ld + 1}], 0, v[{ad}:{ad + 1}]")
    return o


def reduce32(x, t):
    o = []
    for n in (8, 4, 2, 1):
        o += I(f"v_add_f32_dpp v{x}, v{x}, v{x} row_ror:{n} row_mask:0xf bank_mask:0xf")
    o += I(f"v_mov_b32 v{t}, v{x}", f"v_permlane16_swap_b32 v{x}, v{t}", f"v_add_f32 v{x}, v{x}, v{t}")
    return o


def s0_produce(kv):
    o, toks = [], []
    a = lambda *t: o.extend(I(*t))
    U = TMP + 50
    s0, s1, t = TMP + 70, TMP + 71, TMP + 72
    for m in range(10):
        a(f"v_lshlrev_b32 v{U + 2 * m}, 16, v{ST + m}", f"v_and_b32 v{U + 2 * m + 1}, 0xffff0000, v{ST + m}")
    a(f"v_add_f32 v{s0}, v{U}, v{U + 1}", f"v_add_f32 v{s1}, v{U + 2}, v{U + 3}")
    for m in range(4, 20, 2):
        a(f"v_add_f32 v{s0}, v{s0}, v{U + m}", f"v_add_f32 v{s1}, v{s1}, v{U + m + 1}")
    a(f"v_add_f32 v{s0}, v{s0}, v{s1}")
    o += reduce32(s0, t)
    a(f"v_mul_f32 v{s0}, {f2u(1 / 640)}, v{s0}")
    for m in range(20):
        a(f"v_sub_f32 v{U + m}, v{U + m}, v{s0}")
    a(f"v_mul_f32 v{s1}, v{U}, v{U}", f"v_mul_f32 v{t}, v{U + 1}, v{U + 1}")
    for m in range(2, 20, 2):
        a(f"v_fmac_f32 v{s1}, v{U + m}, v{U + m}", f"v_fmac_f32 v{t}, v{U + m + 1}, v{U + m + 1}")
    a(f"v_add_f32 v{s1}, v{s1}, v{t}")
    o += reduce32(s1, t)
    a(f"v_mul_f32 v{s1}, {f2u(1 / 640)}, v{s1}")
    x = ins(f"buffer_store_dwordx2 v[{s0}:{s1}], v{TMP + 44}, {srd(SWS)}, 0 offen sc1")
    o.append(x); toks.append(x)
    A = U
    for i in range(5):
        for k in range(4):
            if i == 0:
                a(f"v_lshlrev_b32 v{A + 2 * k}, 16, v{CS + k}", f"v_and_b32 v{A + 2 * k + 1}, 0xffff0000, v{CS + k}")
            else:
                a(f"v_lshlrev_b32 v{A + 8}, 16, v{CS + 4 * i + k}", f"v_and_b32 v{A + 9}, 0xffff0000, v{CS + 4 * i + k}",
                  f"v_add_f32 v{A + 2 * k}, v{A + 2 * k}, v{A + 8}", f"v_add_f32 v{A + 2 * k + 1}, v{A + 2 * k + 1}, v{A + 9}")
    for i in range(4):
        a(f"v_permlane32_swap_b32 v{A + i}, v{A + i + 4}")
    for i in range(4):
        a(f"v_add_f32 v{A + i}, v{A + i}, v{A + i + 4}")
    for i in range(2):
        a(f"v_permlane16_swap_b32 v{A + i}, v{A + i + 2}")
    for i in range(2):
        a(f"v_add_f32 v{A + i}, v{A + i}, v{A + i + 2}")
    t0, t1 = A + 8, A + 9
    a(f"v_and_b32 v{t0}, 7, v{vL}", f"v_lshlrev_b32 v{t0}, 5, v{t0}", f"v_lshrrev_b32 v{t1}, 5, v{vL}", f"v_lshl_add_u32 v{t0}, v{t1}, 4, v{t0}",
      f"v_bfe_u32 v{t1}, v{vL}, 4, 1", f"v_lshl_add_u32 v{t0}, v{t1}, 3, v{t0}", f"v_bfe_u32 v{t1}, v{vL}, 3, 1", f"v_lshl_add_u32 v{t0}, v{t1}, 30, v{t0}",
      f"s_lshl_b32 s{sT0}, s{sG}, 4", f"s_add_u32 s{sT0}, s{sT0}, s{sR}", f"s_lshl_b32 s{sT0}, s{sT0}, 10", f"s_lshl_b32 s{sT1}, s{sW}, 8",
      f"s_add_u32 s{sT0}, s{sT0}, s{sT1}", f"s_add_u32 s{sT0}, s{sT0}, {CSUM}")
    for i in range(2):
        a(f"v_add_f32_dpp v{A + i}, v{A + i}, v{A + i} row_ror:8 row_mask:0xf bank_mask:0xf")
    x = ins(f"buffer_store_dwordx2 v[{A}:{A + 1}], v{t0}, {srd(SWS)}, s{sT0} offen sc1")
    o.append(x); toks.append(x)
    if kv:
        z = A + 12
        a(f"s_mul_i32 s{sT0}, s{sU}, 12288", f"s_add_u32 s{sT0}, s{sT0}, {KVACC}", f"s_cmp_eq_u32 s{sR}, 0", f"s_cselect_b32 s{sT0}, s{sT0}, {OOB}",
          f"v_lshlrev_b32 v{t1}, 4, v0")
        for k in range(4):
            a(f"v_mov_b32 v{z + k}, 0")
        for k in range(3):
            x = ins(f"buffer_store_dwordx4 v[{z}:{z + 3}], v{t1}, {srd(SWS)}, s{sT0} offen sc1")
            o.append(x); toks.append(x)
            if k < 2:
                a(f"s_add_u32 s{sT0}, s{sT0}, 4096")
    return o, toks


def s0_consume_issue():
    return [poll_issue(vRowF, TMP + 74), poll_issue(vColF, TMP + 75)]


def s0_consume_loads():
    o = stamp("prepoll") + poll_check(vRowF, level=1, dst=TMP + 74) + poll_check(vColF, level=1, dst=TMP + 75) + stamp("polled")
    a = lambda *t: o.extend(I(*t))
    t0, t1 = TMP + 40, TMP + 41
    a(f"v_and_b32 v{t0}, 31, v{vL}", f"v_lshlrev_b32 v{t0}, 3, v{t0}", f"s_lshl_b32 s{sT0}, s{sR}, 2", f"s_add_u32 s{sT0}, s{sT0}, s{sW}",
      f"s_lshl_b32 s{sT0}, s{sT0}, 8", f"s_add_u32 s{sT0}, s{sT0}, {STATS}",
      f"buffer_load_dwordx2 v[{TMP}:{TMP + 1}], v{t0}, {srd(SWS)}, s{sT0} offen sc1")
    a(f"v_lshrrev_b32 v{t0}, 4, v{vL}", f"v_lshlrev_b32 v{t0}, 10, v{t0}", f"v_and_b32 v{t1}, 15, v{vL}", f"v_lshl_add_u32 v{t0}, v{t1}, 4, v{t0}",
      f"s_lshl_b32 s{sT0}, s{sG}, 14", f"s_lshl_b32 s{sT1}, s{sW}, 8", f"s_add_u32 s{sT0}, s{sT0}, s{sT1}", f"s_add_u32 s{sT0}, s{sT0}, {CSUM}")
    for m in range(4):
        a(f"buffer_load_dwordx4 v[{TMP + 4 + 4 * m}:{TMP + 7 + 4 * m}], v{t0}, {srd(SWS)}, s{sT0} offen sc1")
        if m < 3:
            a(f"s_add_u32 s{sT0}, s{sT0}, 4096")
    p = TMP + 42
    a(f"v_lshlrev_b32 v{p}, 2, v{t1}", f"v_lshrrev_b32 v{t0}, 5, v{vL}", f"v_lshl_add_u32 v{p}, v{t0}, 1, v{p}", f"v_bfe_u32 v{t0}, v{vL}, 4, 1", f"v_add_u32 v{p}, v{p}, v{t0}",
      f"v_cmp_le_u32 vcc, 32, v{p}", f"v_mov_b32 v{t0}, s{sBA}", f"v_mov_b32 v{t1}, s{sBB}", f"v_cndmask_b32 v{t0}, v{t0}, v{t1}, vcc",
      f"v_and_b32 v{t1}, 31, v{p}", f"v_lshl_add_u32 v{t0}, v{t1}, 1, v{t0}",
      f"buffer_load_ushort v{TMP + 27}, v{t0}, {srd(SB1)}, 0 offen")
    return o


def s0_consume_math():
    o = []
    a = lambda *t: o.extend(I(*t))
    m, var = TMP, TMP + 1
    t0, t1, t2, t3 = TMP + 40, TMP + 41, TMP + 43, TMP + 44
    e5 = f2u(1e-5)
    a(f"v_add_f32 v{t0}, {e5}, v{var}", f"v_rsq_f32 v{vRs1}, v{t0}", f"v_mul_f32 v{t1}, v{var}, v{vRs1}", f"v_mul_f32 v{t1}, v{t1}, v{vRs1}",
      f"v_add_f32 v{t1}, {e5}, v{t1}", f"v_rsq_f32 v{t1}, v{t1}", f"v_mul_f32 v{vRl1}, {f2u(LOG2E)}, v{vRs1}", f"v_mul_f32 v{t1}, v{t1}, v{vRs1}",
      f"v_rcp_f32 v{vIrs}, v{t1}", f"v_mul_f32 v{vA1}, {f2u(C1)}, v{t1}", f"v_mul_f32 v{t2}, v{t1}, v{t1}", f"v_mul_f32 v{t2}, v{t2}, v{t1}",
      f"v_mul_f32 v{vA3}, {f2u(C3)}, v{t2}")
    a(f"v_sub_f32 v{m}, 0, v{m}", f"v_cvt_pk_bf16_f32 v{t0}, v{m}, v{m}", f"v_and_b32 v{t0}, 0xffff0000, v{t0}", f"v_sub_f32 v{t2}, v{m}, v{t0}",
      f"v_cvt_pk_bf16_f32 v{vXE}, v{t0}, v{t2}",
      f"v_cvt_pk_bf16_f32 v{t0}, v{vIrs}, v{vIrs}", f"v_and_b32 v{t0}, 0xffff0000, v{t0}", f"v_sub_f32 v{t2}, v{vIrs}, v{t0}",
      f"v_cvt_pk_bf16_f32 v{vXE + 2}, v{t0}, v{t2}", f"v_and_b32 v{t0}, 0xffff0000, v{vXE + 2}", f"v_sub_f32 v{t2}, v{t2}, v{t0}",
      f"v_cvt_pk_bf16_f32 v{vXE + 3}, v{t2}, 0",
      f"v_not_b32 v{t3}, v{vHiM}", f"v_and_b32 v{vXE}, v{vXE}, v{t3}", f"v_and_b32 v{vXE + 2}, v{vXE + 2}, v{t3}", f"v_and_b32 v{vXE + 3}, v{vXE + 3}, v{t3}",
      f"v_mov_b32 v{vXE + 1}, v{vXE}")
    B = TMP + 4
    for mm in range(1, 4):
        for k in range(4):
            a(f"v_add_f32 v{B + k}, v{B + k}, v{B + 4 * mm + k}")
    a(f"v_permlane32_swap_b32 v{B}, v{B + 2}", f"v_permlane32_swap_b32 v{B + 1}, v{B + 3}",
      f"v_add_f32 v{B}, v{B}, v{B + 2}", f"v_add_f32 v{B + 1}, v{B + 1}, v{B + 3}",
      f"v_permlane16_swap_b32 v{B}, v{B + 1}", f"v_add_f32 v{B}, v{B}, v{B + 1}")
    Rr = TMP + 24
    a(f"v_cvt_pk_bf16_f32 v{Rr}, v{B}, v{B}", f"v_and_b32 v{t0}, 0xffff0000, v{Rr}", f"v_sub_f32 v{t0}, v{B}, v{t0}",
      f"v_cvt_pk_bf16_f32 v{Rr + 1}, v{t0}, v{t0}", f"v_lshl_or_b32 v{Rr + 2}, v{Rr + 3}, 16, v{Rr + 3}",
      f"v_lshlrev_b32 v{t0}, 4, v{TMP + 42}", f"v_add_u32 v{t0}, s{sWL}, v{t0}", f"v_add_u32 v{t0}, {EX}, v{t0}")
    x = ins(f"ds_write_b128 v{t0}, v[{Rr}:{Rr + 3}]")
    o.append(x)
    return o, x


ET = TMP + 64


def gelu_quad(A, dst, tb):
    o = []
    r4 = range(4)
    for i in r4: o += I(f"v_mul_f32 v{tb + i}, v{A + i}, v{A + i}")
    for i in r4: o += I(f"v_fma_f32 v{tb + i}, v{tb + i}, v{vA3}, v{vA1}")
    for i in r4: o += I(f"v_mul_f32 v{tb + i}, v{tb + i}, v{A + i}")
    for i in r4: o += I(f"v_exp_f32 v{tb + i}, v{tb + i}")
    for i in r4: o += I(f"v_fma_f32 v{tb + i}, v{tb + i}, v{vIrs}, v{vIrs}")
    for i in r4: o += I(f"v_rcp_f32 v{tb + i}, v{tb + i}")
    for i in r4: o += I(f"v_mul_f32 v{tb + i}, v{tb + i}, v{A + i}")
    o += I(f"v_cvt_pk_bf16_f32 v{dst}, v{tb}, v{tb + 1}", f"v_cvt_pk_bf16_f32 v{dst + 1}, v{tb + 2}, v{tb + 3}")
    return o


def phi_quad(A, dst, tb):
    o = []
    r4 = range(4)
    for i in r4: o += I(f"v_mul_f32 v{tb + i}, v{A + i}, v{vRl1}")
    for i in r4: o += I(f"v_fma_f32 v{A + i}, v{A + i}, v{vRs1}, 1.0")
    for i in r4: o += I(f"v_exp_f32_e64 v{tb + i}, v{tb + i} clamp")
    for i in r4: o += I(f"v_max_f32 v{tb + i}, v{tb + i}, v{A + i}")
    for i in r4: o += I(f"v_add_f32 v{tb + i}, s{sEps}, v{tb + i}")
    o += I(f"v_cvt_pk_bf16_f32 v{dst}, v{tb}, v{tb + 1}", f"v_cvt_pk_bf16_f32 v{dst + 1}, v{tb + 2}, v{tb + 3}")
    return o


def lin_quad(A, dst, tb):
    o = []
    for i in range(4): o += I(f"v_mul_f32 v{tb + i}, v{A + i}, v{vRs1}")
    o += I(f"v_cvt_pk_bf16_f32 v{dst}, v{tb}, v{tb + 1}", f"v_cvt_pk_bf16_f32 v{dst + 1}, v{tb + 2}, v{tb + 3}")
    return o


def gelu_tile(A, unit_i, toks, last=False):
    o = I(f"s_add_u32 s{sT2}, s{sUnit}, {20 + unit_i}", f"s_lshl_b32 s{sT2}, s{sT2}, 10", f"s_add_u32 s{sH}, s{sT2}, s{sHst}")
    if last:
        o += I(f"s_or_b32 s{sH}, s{sH}, s{sLast}")
    for h in range(2):
        o += gelu_quad(A + 8 * h, A + 8 * h, ET)
        o += gelu_quad(A + 8 * h + 4, A + 8 * h + 2, ET + 4)
        x = ins(f"buffer_store_dwordx4 v[{A + 8 * h}:{A + 8 * h + 3}], v{vHst}, {srd(SWS)}, s{sH} offen offset:{512 * h} sc1")
        o.append(x); toks.append(x)
    return o


class P1:
    def __init__(s, kv):
        s.kv = kv
        if kv:
            s.tiles = ["K0", "K1", "MX", "V0", "V1", "Ha", "Hb"]
            s.np1 = 5
        else:
            s.tiles = ["H0", "H1", "H2", "H3", "H4", "Q0", "Q1", "QM"]
            s.np1 = 4
        T = s.np1
        s.stages = [[(t, k) for t in range(T)] for k in range(10)]
        rest = [(t, k) for t in range(T, len(s.tiles)) for k in range(10)]
        s.stages += [rest[i:i + T] for i in range(0, len(rest), T)]
        s.slot = lambda n: WR + (n % 4) * T * 4096
        s.accset = {t: (t if t < 6 else None) for t in range(len(s.tiles))}

    def dma_w(s, n):
        g = []
        for i, (t, k) in enumerate(s.stages[n]):
            name = s.tiles[t]
            lds = s.slot(n) + 4096 * i
            p1 = t < s.np1
            pre = []
            if name[0] == "H":
                ui = {"a": 0, "b": 1}.get(name[1]) if s.kv else int(name[1])
                col = 64 * ui
                if i == 0 or not p1:
                    pre = I(f"s_add_u32 s{sDw}, s{sU64}, {k * 64 * LD1 + (0 if p1 else col)}")
                    if name == "H4":
                        pre += I(f"s_or_b32 s{sDw}, s{sDw}, s{sLast}")
                v, sr = vW1, SW1
            else:
                col = {"K0": 0, "K1": 64, "MX": 0, "V0": 1280, "V1": 1344, "Q0": 0, "Q1": 64, "QM": 0}[name]
                if i == 0 or not p1:
                    pre = I(f"s_add_u32 s{sDw}, s{sKq}, {k * 64 * LDQ + (0 if p1 else col)}")
                v, sr = (vWm if name in ("MX", "QM") else vWq), SQKV
            imm = col if p1 else 0
            assert lds >= imm
            g.append(pre + I(f"s_add_u32 m0, s{sWL}, {lds - imm}", f"buffer_load_dwordx4 v{v}, {srd(sr)}, s{sDw} offen offset:{imm} lds"))
        return g

    def dma_x(s, n):
        g = []
        if n >= 10:
            return g
        for i in range(4):
            pre = I(f"s_add_u32 s{sDx}, s{sXo}, {128 * n}") if i == 0 else []
            g.append(pre + I(f"s_add_u32 m0, s{sXw}, {(n % 3) * 4096 + 1024 * i}", f"buffer_load_dwordx4 v{vX[i]}, {srd(SX)}, s{sDx} offen lds"))
        return g


def build_phase1(kv):
    p = P1(kv)
    T = p.np1
    o = []
    a = lambda *t: o.extend(I(*t))
    t0, t1 = TMP, TMP + 1
    if kv:
        a(f"s_lshl_b32 s{sT0}, s{sP}, 1", f"s_add_u32 s{sUnit}, s{sUnit}, s{sT0}")
        a(f"s_mul_i32 s{sKq}, s{sU}, 160", f"s_add_u32 s{sKq}, s{sKq}, 1280", f"s_mov_b32 s{sLast}, 0")
        a(f"v_bfe_u32 v{t0}, v{vL}, 1, 1", f"v_mul_u32_u24 v{t0}, 1248, v{t0}", f"v_add_u32 v{vWm}, v{vWq}, v{t0}")
    else:
        a(f"s_mul_i32 s{sT0}, s{sP}, 5", f"s_add_u32 s{sUnit}, s{sUnit}, s{sT0}", f"s_add_u32 s{sUnit}, s{sUnit}, 4")
        a(f"s_mul_i32 s{sKq}, s{sU}, 160")
        a(f"s_and_b32 s{sT0}, s{sU}, 5", f"s_cmp_eq_u32 s{sT0}, 5", f"s_cselect_b32 s{sLast}, {OOB}, 0")
        a(f"v_bfe_u32 v{t0}, v{vL}, 1, 1", f"v_lshlrev_b32 v{t0}, 30, v{t0}", f"v_add_u32 v{vWm}, v{vWq}, v{t0}")
    a(f"s_lshl_b32 s{sU64}, s{sUnit}, 6")
    a(f"s_lshl_b32 s{sT0}, s{sP}, 7", f"s_sub_u32 s{sT0}, 128, s{sT0}", f"v_add_u32 v{vWm}, s{sT0}, v{vWm}")
    a(f"s_lshl_b32 s{sT0}, s{sP}, 5", f"v_add_u32 v{vWq}, s{sT0}, v{vWq}")
    dma_tok = {}

    def issue(n):
        gs = p.dma_x(n) + p.dma_w(n)
        dma_tok[n] = [g[-1] for g in gs]
        return gs

    for g in issue(0): o += g
    o += s0_loads(kv)
    for g in issue(1): o += g
    o += late_setup()
    o += flag_addr_col(vColF, sG, TMP + 62, TMP + 63)
    a(f"v_mov_b32 v{TMP + 76}, 0")
    o += stamp("issued")

    steps = []
    first_of = {}
    for n, st in enumerate(p.stages):
        first_of[n] = len(steps)
        for i, (t, k) in enumerate(st):
            for j in range(4):
                steps.append(dict(n=n, i=i, t=t, k=k, j=j, extra=False))
            if k == 9 and t >= T:
                steps.append(dict(t=t, extra=True))
        if n == 9:
            for t in range(T):
                steps.append(dict(t=t, extra=True))
    aset = {}
    if kv:
        aset = {0: 0, 1: 1, 2: 2, 3: 3, 4: 4, 5: 5, 6: 0}
    else:
        aset = {0: 0, 1: 1, 2: 2, 3: 3, 4: 4, 5: 5, 6: 6, 7: 7}
    spine = [dict(pre=[], post=[]) for _ in range(len(steps) + 1)]
    head = []
    bar_extra = {}
    tile_done = {}

    def at(idx):
        return head if idx < 0 else spine[idx]["pre"]

    reads = {}
    for q, st in enumerate(steps):
        fr = aW + 4 * (q % NRING)
        if st["extra"]:
            reads[q] = I(f"ds_read_b128 a[{fr}:{fr + 3}], v{vEXr} offset:{512 * st['t']}")
            A = acc(aset[st["t"]])
            spine[q]["mfma"] = ins(f"v_mfma_f32_32x32x16_bf16 v[{A}:{A + 15}], a[{fr}:{fr + 3}], v[{vXE}:{vXE + 3}], v[{A}:{A + 15}]")
            tile_done[st["t"]] = q
        else:
            ad = p.slot(st["n"]) + 4096 * st["i"] + 1024 * st["j"]
            v, off = (vTRa, ad) if ad < 65536 else (vTRb, ad - 65536)
            reads[q] = I(f"ds_read_b64_tr_b16 a[{fr}:{fr + 1}], v{v} offset:{off}", f"ds_read_b64_tr_b16 a[{fr + 2}:{fr + 3}], v{v} offset:{off + 256}")
            A = acc(aset[st["t"]])
            xa = aX + 16 * st["k"] + 4 * st["j"]
            c = "0" if (st["k"] == 0 and st["j"] == 0) else f"v[{A}:{A + 15}]"
            spine[q]["mfma"] = ins(f"v_mfma_f32_32x32x16_bf16 v[{A}:{A + 15}], a[{fr}:{fr + 3}], a[{xa}:{xa + 3}], {c}")
    spine[len(steps)]["mfma"] = None

    sides = []
    s0p, s0tok = s0_produce(kv)
    nload = ins(f"buffer_load_dword v{TMP + 76}, v{TMP + 76}, {srd(SDBG)}, 0 offen sc1")
    sides.append(side(s0p[:40] + [nload] + s0p[40:], start=0, end=first_of[2]))
    sides.append(side(nonce_check(TMP + 76) + signal(1, s0tok), start=first_of[2] + 4, end=first_of[3]))
    sides.append(side(s0_consume_issue(), start=first_of[5], end=first_of[5] + 2))
    sides.append(side(s0_consume_loads(), start=first_of[6], end=first_of[7]))
    cm, extok = s0_consume_math()
    sides.append(side(cm, start=first_of[8] - 4, end=first_of[9] - LOOK - 1))
    bar_extra[9] = [extok]

    for n in range(len(p.stages)):
        pos = first_of[n] - LOOK
        blk = []
        b = ins("s_barrier", after=dma_tok[n] + bar_extra.get(n, []))
        blk.append(b)
        if n < 10:
            for j in range(4):
                xa = aX + 16 * n + 4 * j
                blk += I(f"ds_read_b128 a[{xa}:{xa + 3}], v{vXR[j]} offset:{(n % 3) * 4096}")
        if n in OPT.get("stamp_stages", ()):
            blk = [b] + stamp(f"st{n}") + blk[1:]
        at(pos).extend(blk)
        if n + 2 < len(p.stages):
            gs = issue(n + 2)
            span = (first_of[n + 1] - first_of[n])
            for i, g in enumerate(gs):
                idx = max(0, pos + 1 + (i * (span - 2)) // len(gs))
                spine[idx]["post"].extend(g)
                spine[idx]["budget"] = spine[idx].get("budget", OPT["budget"]) - len(g)
    for q in range(len(steps)):
        at(q - LOOK).extend(reads[q])

    if kv:
        o += finish_kv(p, spine, head, sides, tile_done, aset, first_of)
    else:
        o += finish_q(p, spine, head, sides, tile_done, aset, first_of)
    return o


def kv_setup():
    o = []
    a = lambda *t: o.extend(I(*t))
    t0, t1, t2 = TMP + 40, TMP + 41, TMP + 42
    a(f"v_and_b32 v{t0}, 31, v{vL}", f"s_lshl_b32 s{sT0}, s{sW}, 5", f"v_add_u32 v{t0}, s{sT0}, v{t0}", f"v_mul_u32_u24 v{t0}, {KVT_LD}, v{t0}",
      f"v_add_u32 v{t0}, {KVT}, v{t0}", f"v_add_u32 v{TMP + 46}, 320, v{t0}",
      f"v_lshrrev_b32 v{t1}, 5, v{vL}", f"v_lshl_add_u32 v{t0}, v{t1}, 3, v{t0}",
      f"s_lshl_b32 s{sT0}, s{sP}, 5", f"v_add_u32 v{vKf}, s{sT0}, v{t0}",
      f"s_lshl_b32 s{sT0}, s{sP}, 7", f"s_sub_u32 s{sT0}, 128, s{sT0}", f"v_add_u32 v{vKm}, s{sT0}, v{t0}")
    a(f"v_mov_b32 v{TMP + 44}, 0x3f803f80", f"v_mov_b32 v{TMP + 45}, 0x3f803f80")
    ones = ins(f"ds_write_b64 v{TMP + 46}, v[{TMP + 44}:{TMP + 45}]")
    a(f"v_bfe_u32 v{t0}, v{vL}, 2, 2", f"v_lshl_add_u32 v{t0}, v{t1}, 3, v{t0}", f"v_mul_u32_u24 v{t0}, {KVT_LD}, v{t0}", f"v_add_u32 v{t0}, {KVT}, v{t0}",
      f"v_bfe_u32 v{t1}, v{vL}, 4, 1", f"v_and_b32 v{t2}, 3, v{vL}", f"v_lshl_add_u32 v{t1}, v{t1}, 2, v{t2}",
      f"s_mul_i32 s{sT0}, s{sW}, 40", f"v_lshl_add_u32 v{vKB}, v{t1}, 3, v{t0}", f"v_add_u32 v{vKB}, s{sT0}, v{vKB}",
      f"v_add_u32 v{vKA}, 160, v{vKB}", f"v_add_u32 v{t0}, 320, v{t0}", f"v_cmp_eq_u32 vcc, 5, v{t1}", f"v_cndmask_b32 v{vKA}, v{vKA}, v{t0}, vcc")
    a(f"v_and_b32 v{t0}, 31, v{vL}", f"v_cmp_gt_u32 vcc, 20, v{t0}", f"v_lshlrev_b32 v{t0}, 2, v{t0}", f"v_and_b32 v{t1}, 512, v{vHiM}", f"v_add_u32 v{t0}, v{t0}, v{t1}",
      f"v_mov_b32 v{vAt}, {OOB}", f"v_cndmask_b32 v{vAt}, v{vAt}, v{t0}, vcc")
    return o, ones


def finish_kv(p, spine, head, sides, tile_done, aset, first_of):
    o = []
    end1 = tile_done[4] + 1
    blk = stamp("pass1")
    ks, ones = kv_setup()
    sides.append(side(ks, start=first_of[9], end=end1 - 2))
    blk.append(ones)
    wr = [ones]
    plan = [(0, "k", vKf, 0), (1, "k", vKf, 64), (2, "m", vKm, 0), (3, "v", vKf, 160), (4, "v", vKf, 224)]
    for t, kind, vad, cb in plan:
        A = acc(aset[t])
        for g in range(4):
            isk = kind == "k" or (kind == "m" and g < 2)
            blk += (phi_quad if isk else lin_quad)(A + 4 * g, A + 4 * g, ET + 4 * (g & 1))
            off = cb + 16 * g if kind != "m" else (16 * g if g < 2 else 160 + 16 * (g - 2))
            x = ins(f"ds_write_b64 v{vad}, v[{A + 4 * g}:{A + 4 * g + 1}] offset:{off}")
            blk.append(x); wr.append(x)
    blk.append(ins("s_barrier", after=wr))
    KA = acc(1)
    FR = acc(2)
    rd = []
    for j in range(8):
        f = FR + 8 * (j % 4)
        rd.append(I(f"ds_read_b64_tr_b16 v[{f}:{f + 1}], v{vKA} offset:{16 * j * KVT_LD}", f"ds_read_b64_tr_b16 v[{f + 2}:{f + 3}], v{vKA} offset:{(16 * j + 4) * KVT_LD}",
                    f"ds_read_b64_tr_b16 v[{f + 4}:{f + 5}], v{vKB} offset:{16 * j * KVT_LD}", f"ds_read_b64_tr_b16 v[{f + 6}:{f + 7}], v{vKB} offset:{(16 * j + 4) * KVT_LD}"))
    blk += rd[0] + rd[1]
    for j in range(8):
        f = FR + 8 * (j % 4)
        if j + 2 < 8:
            blk += rd[j + 2]
        c = "0" if j == 0 else f"v[{KA}:{KA + 15}]"
        blk += I(f"v_mfma_f32_32x32x16_bf16 v[{KA}:{KA + 15}], v[{f}:{f + 3}], v[{f + 4}:{f + 7}], {c}")
    blk += I(f"s_lshl_b32 s{sT2}, s{sU}, 2", f"s_add_u32 s{sT2}, s{sT2}, s{sW}", f"s_mul_i32 s{sT2}, s{sT2}, 3072", f"s_add_u32 s{sT2}, s{sT2}, {KVACC}")
    at = []
    for rr in range(12):
        x = ins(f"buffer_atomic_add_f32 v{KA + rr}, v{vAt}, {srd(SWS)}, s{sT2} offen offset:{(8 * (rr >> 2) + (rr & 3)) * 128} sc1")
        blk.append(x); at.append(x)
    blk += stamp("kvdone")
    spine[end1]["pre"] = blk + spine[end1]["pre"]
    sides.append(side(signal(2, at), start=first_of[11] + 6, end=first_of[12]))
    htok = []
    sides.append(side(gelu_tile(acc(aset[5]), 0, htok), start=tile_done[5] + 2))
    o += head + merge(spine, sides, OPT["budget"])
    o += stamp("mfma1")
    o += gelu_tile(acc(aset[6]), 1, htok)
    o += signal(3, htok)
    o += stamp("p1end")
    return o


def finish_q(p, spine, head, sides, tile_done, aset, first_of):
    o = []
    a = lambda *t: o.extend(I(*t))
    end1 = tile_done[3] + 1
    spine[end1]["pre"] = stamp("pass1") + spine[end1]["pre"]
    htok = []
    g4 = []
    for t in range(4):
        g4 += gelu_tile(acc(aset[t]), t, htok)
    z = []
    zt = TMP + 40
    z += I(*[f"v_mov_b32 v{zt + k}, 0" for k in range(4)], f"v_lshlrev_b32 v{zt + 4}, 4, v0", f"v_add_u32 v{zt + 4}, {AM}, v{zt + 4}")
    ztok = []
    for k in range(5):
        x = ins(f"ds_write_b128 v{zt + 4}, v[{zt}:{zt + 3}] offset:{4096 * k}")
        z.append(x); ztok.append(x)
    sides.append(side(z, start=end1 + 2, end=first_of[12] - LOOK - 1))
    for st in spine[first_of[12] - LOOK]["pre"]:
        if st.kind == "barrier":
            st.after += ztok
    sides.append(side(g4, start=end1 + 1))
    o += head + merge(spine, sides, OPT["budget"])
    o += stamp("mfma1")
    o += signal(2, htok)
    h4 = []
    o += gelu_tile(acc(aset[4]), 4, h4, last=True)
    o += signal(3, h4)
    t0, t1, t2, t3 = TMP + 40, TMP + 41, TMP + 42, TMP + 43
    a(f"s_sub_u32 s{sT2}, s{sG}, 1")
    o += flag_addr_col(vColF, sT2, t2, t3)
    o.append(poll_issue(vColF))
    for t in (5, 6):
        A = acc(aset[t])
        for h in range(2):
            o += phi_quad(A + 8 * h, A + 8 * h, ET) + phi_quad(A + 8 * h + 4, A + 8 * h + 2, ET + 4)
    A = acc(aset[7])
    o += phi_quad(A, A, ET) + phi_quad(A + 4, A + 2, ET + 4)
    pq = [acc(aset[5]), acc(aset[5]) + 8, acc(aset[6]), acc(aset[6]) + 8, acc(aset[7])]
    for i, (vo, vw) in enumerate(((vOl0, vOw0), (vOl1, vOw1))):
        a(f"v_add_u32 v{t0}, {64 * i}, v{vL}", f"v_mul_u32_u24 v{t1}, 13108, v{t0}", f"v_lshrrev_b32 v{t1}, 16, v{t1}",
          f"v_mul_u32_u24 v{t2}, 5, v{t1}", f"v_sub_u32 v{t2}, v{t0}, v{t2}",
          f"v_lshlrev_b32 v{vo}, 7, v{t1}", f"v_lshl_add_u32 v{vo}, v{t2}, 4, v{vo}")
        a(f"s_mul_i32 s{sT0}, s{sW}, 5", f"s_lshl_b32 s{sT1}, s{sP}, 4", f"s_add_u32 s{sT0}, s{sT0}, s{sT1}", f"v_add_u32 v{t2}, s{sT0}, v{t2}",
          f"v_subrev_u32 v{t3}, 20, v{t2}", f"v_min_u32 v{t2}, v{t2}, v{t3}",
          f"v_lshrrev_b32 v{t3}, 2, v{t2}", f"v_lshlrev_b32 v{vw}, 5, v{t3}", f"v_and_b32 v{t3}, 1, v{t2}", f"v_lshl_add_u32 v{vw}, v{t3}, 4, v{vw}",
          f"v_bfe_u32 v{t3}, v{t2}, 1, 1", f"v_lshl_add_u32 v{vw}, v{t3}, 3, v{vw}", f"v_add_u32 v{vw}, {AM}, v{vw}")
        a(f"s_mul_i32 s{sT0}, s{sW}, 20", f"v_add_u32 v{t2}, s{sT0}, v{t1}")
        if i == 1:
            a(f"s_add_u32 s{sT0}, s{sW}, 80", f"v_mov_b32 v{t3}, s{sT0}", f"v_cmp_eq_u32 vcc, 20, v{t1}", f"v_cndmask_b32 v{t2}, v{t2}, v{t3}, vcc")
        a(f"v_mul_u32_u24 v{t2}, {AM_LD}, v{t2}", f"v_add_u32 v{vw}, v{vw}, v{t2}")
        if i == 1:
            a(f"v_add_u32 v{t2}, {4 * AM_LD}, v{vw}", f"v_cndmask_b32 v{vOw2}, v{vw}, v{t2}, vcc",
              f"v_cmp_lt_u32 vcc, 104, v{t0}", f"v_mov_b32 v{t2}, {SCR}", f"v_cndmask_b32 v{vw}, v{vw}, v{t2}, vcc", f"v_cndmask_b32 v{vOw2}, v{vOw2}, v{t2}, vcc",
              f"v_mov_b32 v{t2}, {OOB}", f"v_cndmask_b32 v{vo}, v{vo}, v{t2}, vcc")
    a(f"v_and_b32 v{t0}, 31, v{vL}", f"v_mul_u32_u24 v{t0}, {AM_LD}, v{t0}", f"v_and_b32 v{t1}, 16, v{vHiM}", f"v_add_u32 v{t0}, v{t0}, v{t1}", f"v_add_u32 v{vAM}, {AM}, v{t0}")
    o += poll_check(vColF, level=2)
    o += stamp("kvseen")
    K0 = TMP
    a(f"s_lshl_b32 s{sT2}, s{sU}, 2", f"s_add_u32 s{sT2}, s{sT2}, s{sW}", f"s_mul_i32 s{sT2}, s{sT2}, 3072", f"s_add_u32 s{sT2}, s{sT2}, {KVACC}",
      f"buffer_load_dwordx4 v[{K0}:{K0 + 3}], v{vOl0}, {srd(SWS)}, s{sT2} offen sc1", f"buffer_load_dwordx4 v[{K0 + 4}:{K0 + 7}], v{vOl1}, {srd(SWS)}, s{sT2} offen sc1")
    wr = []
    for i, vw in enumerate((vOw0, vOw1)):
        k = K0 + 4 * i
        a(f"v_cvt_pk_bf16_f32 v{k}, v{k}, v{k + 1}", f"v_cvt_pk_bf16_f32 v{k + 1}, v{k + 2}, v{k + 3}")
        x = ins(f"ds_write_b64 v{vw}, v[{k}:{k + 1}]"); o.append(x); wr.append(x)
    x = ins(f"ds_write_b64 v{vOw2}, v[{K0 + 4}:{K0 + 5}]"); o.append(x); wr.append(x)
    o.append(ins("s_barrier", after=wr))
    OA = [acc(0), acc(1), acc(2)]
    seq = [(T, k) for T in (2, 0, 1) for k in range(5)]
    fr = lambda n: aW + 4 * (n % NRING)
    rd = lambda n: I(f"ds_read_b128 a[{fr(n)}:{fr(n) + 3}], v{vAM} offset:{seq[n][0] * 32 * AM_LD + 32 * seq[n][1]}")
    for n in range(4): o += rd(n)
    for n, (T, k) in enumerate(seq):
        if n + 4 < len(seq): o += rd(n + 4)
        c = "0" if k == 0 else f"v[{OA[T]}:{OA[T] + 15}]"
        a(f"v_mfma_f32_32x32x16_bf16 v[{OA[T]}:{OA[T] + 15}], a[{fr(n)}:{fr(n) + 3}], v[{pq[k]}:{pq[k] + 3}], {c}")
    rc = TMP + 8
    for h in range(4): a(f"v_add_f32 v{rc + h}, s{sEps}, v{OA[2] + 8 + h}")
    for h in range(4): a(f"v_rcp_f32 v{rc + h}, v{rc + h}")
    a(f"v_bfi_b32 v{rc + 4}, v{vHiM}, v{rc + 1}, v{rc}", f"v_bfi_b32 v{rc + 5}, v{vHiM}, v{rc + 3}, v{rc + 2}")
    otok = []
    for i in (4, 0, 1, 2, 3):
        A = OA[i >> 1] + 8 * (i & 1)
        for gq in range(2):
            e0 = 16 * i + 8 * gq
            rr = {16: rc + 4, 56: rc + 5}.get(e0, rc + e0 // 20)
            for k in range(4): a(f"v_mul_f32 v{A + 4 * gq + k}, v{A + 4 * gq + k}, v{rr}")
            a(f"v_cvt_pk_bf16_f32 v{A + 2 * gq}, v{A + 4 * gq}, v{A + 4 * gq + 1}", f"v_cvt_pk_bf16_f32 v{A + 2 * gq + 1}, v{A + 4 * gq + 2}, v{A + 4 * gq + 3}")
        a(f"s_mul_i32 s{sT2}, s{sU}, 5", f"s_add_u32 s{sT2}, s{sT2}, {i}", f"s_lshl_b32 s{sT2}, s{sT2}, 9", f"s_add_u32 s{sT2}, s{sT2}, s{sHst}")
        x = ins(f"buffer_store_dwordx4 v[{A}:{A + 3}], v{vHst}, {srd(SWS)}, s{sT2} offen sc1")
        o.append(x); otok.append(x)
    o += signal(4, otok)
    o += stamp("p1end")
    return o


def prof_out():
    if not OPT["prof"]:
        return []
    return stamp("end") + stamp("rt1") + I(f"s_lshl_b32 s{sT0}, s2, 2", f"s_add_u32 s{sT0}, s{sT0}, s{sW}", f"s_lshl_b32 s{sT0}, s{sT0}, 8", f"s_add_u32 s{sT0}, s{sT0}, {TS}",
             f"v_lshlrev_b32 v30, 2, v{vL}", f"buffer_store_dword v31, v30, {srd(SWS)}, s{sT0} offen")


def build():
    global slow_paths
    from phase2 import build_phase2
    st = {}
    pro = prologue() + I("s_bitcmp1_b32 s2, 6", "s_cbranch_scc1 L_q")
    kv = build_phase1(True)
    q = build_phase1(False)
    p2 = build_phase2(sys.modules[__name__]) if OPT["stop"] != "p1" else []
    tail = prof_out() + I("s_waitcnt vmcnt(0)")
    fin = lambda x: finalize(x, stats=st)
    a_kv = fin(pro + kv + I("s_waitcnt vmcnt(0) lgkmcnt(0)", "s_nop 7", "s_nop 7", "s_branch L_p2"))
    a_q = fin(pro + I("L_q:") + q + I("s_waitcnt vmcnt(0) lgkmcnt(0)", "s_nop 7", "s_nop 7"))
    iq = [i for i, x in enumerate(a_q) if x.text == "L_q:"][0]
    assert [x.text for x in a_q[:iq]] == [x.text for x in a_kv[:iq]]
    body = a_kv + a_q[iq:] + I("L_p2:") + fin(p2 + tail) + I("L_end:", "s_endpgm")
    for sp in slow_paths:
        body += finalize(I("s_nop 4")[:0] + sp)
    txt = text_of(body)
    ref = open("parallel_sum__linear_attn_block__mixer_channel_mlp__prompt.s.ref").read().split("\n")
    hdr = [l for l in ref if l.startswith(";") and "@launch" not in l and not l.startswith("; Override") and not l.startswith("; grid=")]
    src = "\n".join(hdr) + f"""
; @launch grid=(256,1,1) block=(256,1,1) lds={LDS_SIZE}
.amdgcn_target "amdgcn-amd-amdhsa--gfx950"
.text
.globl {NAME}
.p2align 8
.type {NAME},@function
{NAME}:
{txt}
.section .rodata,"a"
.p2align 6
.amdhsa_kernel {NAME}
  .amdhsa_next_free_vgpr 512
  .amdhsa_next_free_sgpr 102
  .amdhsa_accum_offset 256
  .amdhsa_group_segment_fixed_size 0
  .amdhsa_kernarg_size 88
  .amdhsa_user_sgpr_count 2
  .amdhsa_user_sgpr_kernarg_segment_ptr 1
  .amdhsa_system_sgpr_workgroup_id_x 1
.end_amdhsa_kernel
"""
    return src, st, len(body)


if __name__ == "__main__":
    out = sys.argv[1]
    for kvp in sys.argv[2:]:
        k, v = kvp.split("=")
        OPT[k] = eval(v) if v[0] in "0123456789TFN-" else v
    sys.modules["gen"] = sys.modules[__name__]
    src, st, n = build()
    open(out, "w").write(src)
    open(out + ".ts", "w").write("\n".join(ts_names))
    print("instructions", n, st)
```

```python
import sys
N='parallel_sum__linear_attn_block__mixer_channel_mlp__prompt_kernel'
L="; @launch grid=(256,1,1) block=(256,1,1) lds=163840"
real=f"; @launch kernel={N} grid=(256,1,1) block=(256,1,1) lds=163840"
def kd(name,v=16):
    return f""".p2align 6
.amdhsa_kernel {name}
  .amdhsa_next_free_vgpr {v}
  .amdhsa_next_free_sgpr 102
  .amdhsa_accum_offset {v}
  .amdhsa_group_segment_fixed_size 0
  .amdhsa_kernarg_size 88
  .amdhsa_user_sgpr_count 2
  .amdhsa_user_sgpr_kernarg_segment_ptr 1
  .amdhsa_system_sgpr_workgroup_id_x 1
.end_amdhsa_kernel
"""
def kern(name, body): return "\n".join([f".globl {name}",".p2align 8",f".type {name},@function",f"{name}:"]+body+["s_endpgm"])+"\n"
def launch(name): return f"; @launch kernel={name} grid=(256,1,1) block=(256,1,1) lds=0"
bufs=((4,2621440),(6,2457600),(12,2211840),(16,2211840),(8,819200))
def tlb(stride_log, ws=True):
    t=["s_load_dwordx16 s[4:19], s[0:1], 0","s_load_dwordx4 s[28:31], s[0:1], 64","s_load_dwordx2 s[32:33], s[0:1], 80",f"v_lshlrev_b32 v1, {stride_log}, v0","s_waitcnt lgkmcnt(0)"]
    bl=list(bufs)+[(14,3456),(18,1280),(28,2621440),(30,256)]+([(32,0x1200000)] if ws else [])
    for p,n in bl:
        t+= [f"s_mov_b32 s20, s{p}",f"s_mov_b32 s21, s{p+1}",f"s_mov_b32 s22, {n}","s_mov_b32 s23, 0x20000"]
        span=256<<stride_log
        for k in range((n+span-1)//span):
            t+= [f"s_mov_b32 s24, {k*span}","buffer_load_dword v2, v1, s[20:23], s24 offen"]
    return t+["s_waitcnt vmcnt(0)"]
def uniq():
    t=["s_load_dwordx16 s[4:19], s[0:1], 0","s_lshl_b32 s3, s2, 13","v_and_b32 v1, 63, v0","v_lshlrev_b32 v1, 7, v1","v_add_u32 v1, s3, v1","v_lshrrev_b32 v3, 6, v0","s_nop 1","v_readfirstlane_b32 s25, v3","s_waitcnt lgkmcnt(0)"]
    jobs=[(p,n,k) for p,n in bufs for k in range((n+(2<<20)-1)//(2<<20))]
    for i,(p,n,k) in enumerate(jobs):
        t+= [f"s_cmp_lg_u32 s25, {i%4}",f"s_cbranch_scc1 L_u{i}",f"s_mov_b32 s20, s{p}",f"s_mov_b32 s21, s{p+1}",f"s_mov_b32 s22, {n}","s_mov_b32 s23, 0x20000",f"s_mov_b32 s24, {k*(2<<20)}","buffer_load_dword v2, v1, s[20:23], s24 offen",f"L_u{i}:"]
    return t+["s_waitcnt vmcnt(0)"]
def mk(src,out,lines,ks):
    s=open(src).read()
    x=s.replace(L,"\n".join(lines))
    x=x.replace('.section .rodata,"a"',"".join(kern(n,b) for n,b in ks)+'.section .rodata,"a"')
    open(out,'w').write(x+"".join(kd(n) for n,b in ks))
if __name__=="__main__":
    src=sys.argv[1]
    mk(src,'x_r.s',[real],[])
    mk(src,'x_rr.s',[real,real],[])
    mk(src,'x_t16.s',[launch("t_kernel"),real],[("t_kernel",tlb(16))])
    mk(src,'x_t12.s',[launch("t_kernel"),real],[("t_kernel",tlb(12,ws=False))])
    mk(src,'x_uq.s',[launch("t_kernel"),real],[("t_kernel",uniq())])
    mk(src,'x_t16uq.s',[launch("t_kernel"),launch("u_kernel"),real],[("t_kernel",tlb(16)),("u_kernel",uniq())])
```

```python
import re


def R(kind, lo, n=1):
    return [(kind, lo + i) for i in range(n)]


def rng(kind, lo, n):
    return f"{kind}{lo}" if n == 1 else f"{kind}[{lo}:{lo + n - 1}]"


_REG = re.compile(r"^(-?)(?:abs\()?([vas])(?:(\d+)|\[(\d+):(\d+)\])\)?$")


def regs_of(op):
    op = op.strip()
    if op in ("vcc", "exec", "m0", "scc"):
        return [(op, 0)]
    if op in ("vcc_lo", "vcc_hi"):
        return [("vcc", 0)]
    if op in ("exec_lo", "exec_hi"):
        return [("exec", 0)]
    m = _REG.match(op)
    if not m:
        return []
    k = m.group(2)
    if m.group(3) is not None:
        return [(k, int(m.group(3)))]
    return R(k, int(m.group(4)), int(m.group(5)) - int(m.group(4)) + 1)


TRANS = ("v_exp_f32", "v_rcp_f32", "v_rsq_f32", "v_sqrt_f32", "v_log_f32")


class Ins:
    __slots__ = ("text", "kind", "rd", "wr", "q", "tok", "after", "cost", "passes", "srcc", "wide", "note", "ghost")

    def __init__(self, text, kind, rd=(), wr=(), q=None, after=(), passes=0, srcc=(), wide=False):
        self.text, self.kind = text, kind
        self.rd, self.wr = set(rd), set(wr)
        self.q = q
        self.tok = None
        self.after = list(after)
        self.passes = passes
        self.srcc = set(srcc)
        self.wide = wide
        self.cost = 2 if kind in ("trans", "mfma") else (0 if kind in ("label", "pseudo", "stamp") else 1)
        self.note = ""
        self.ghost = False

    def __repr__(self):
        return self.text


def _split_ops(s):
    out, depth, cur = [], 0, ""
    for ch in s:
        if ch in "[(":
            depth += 1
        if ch in "])":
            depth -= 1
        if ch == "," and depth == 0:
            out.append(cur.strip())
            cur = ""
        else:
            cur += ch
    if cur.strip():
        out.append(cur.strip())
    return out


def ins(text, after=()):
    t = text.strip()
    if t.endswith(":"):
        return Ins(t, "label")
    sp = t.split(None, 1)
    op = sp[0]
    rest = sp[1] if len(sp) > 1 else ""
    ops = _split_ops(rest)
    mods = ""
    if ops:
        last = ops[-1].split(None, 1)
        if len(last) > 1:
            ops[-1], mods = last[0], last[1]
    allr = lambda xs: [r for x in xs for r in regs_of(x)]
    E = [("exec", 0)]
    if op.startswith("v_mfma"):
        passes = 8 if "32x32" in op else 4
        c = regs_of(ops[3])
        return Ins(t, "mfma", allr(ops[1:4]) + E, regs_of(ops[0]), after=after, passes=passes, srcc=c)
    if op.startswith("ds_"):
        if op.startswith("ds_read") or op.startswith("ds_add_rtn"):
            return Ins(t, "ds", allr(ops[1:]) + E, regs_of(ops[0]), q="lgkm", after=after)
        return Ins(t, "ds", allr(ops) + E, [], q="lgkm", after=after)
    if op.startswith("buffer_") or op.startswith("global_"):
        lds = " lds" in (" " + mods)
        if "load" in op and not lds:
            return Ins(t, "vmem", allr(ops[1:]) + E, regs_of(ops[0]), q="vm", after=after)
        if lds:
            return Ins(t, "dma", allr(ops) + E + [("m0", 0)], [], q="vm", after=after)
        wide = "x4" in op or "x3" in op
        return Ins(t, "vmem", allr(ops) + E, [], q="vm", after=after, wide=wide)
    if op.startswith("s_load") or op == "s_memtime" or op == "s_memrealtime":
        return Ins(t, "smem", allr(ops[1:]), regs_of(ops[0]), after=after)
    if op in ("s_waitcnt", "s_nop", "s_barrier", "s_endpgm", "s_setprio", "s_sleep"):
        return Ins(t, op[2:], after=after)
    if op.startswith("s_cbranch") or op == "s_branch":
        rd = []
        if "vcc" in op:
            rd = [("vcc", 0)]
        if "scc" in op:
            rd = [("scc", 0)]
        if "exec" in op:
            rd = E
        return Ins(t, "branch", rd, [], after=after)
    if op.startswith("s_cmp") or op.startswith("s_bitcmp"):
        return Ins(t, "salu", allr(ops), [("scc", 0)], after=after)
    if op.startswith("s_"):
        rd = allr(ops[1:])
        wr = regs_of(ops[0])
        if op in ("s_addk_i32", "s_mulk_i32"):
            rd += regs_of(ops[0])
        if op.startswith("s_cselect") or op in ("s_addc_u32", "s_subb_u32"):
            rd.append(("scc", 0))
        if not (op.startswith("s_mov") or op.startswith("s_mul") or op.startswith("s_cselect") or op.startswith("s_get")):
            wr = wr + [("scc", 0)]
        if "saveexec" in op:
            rd += E
            wr += E
        return Ins(t, "salu", rd, wr, after=after)
    if op.startswith("v_"):
        base = op.replace("_e32", "").replace("_e64", "").replace("_dpp", "").replace("_sdwa", "")
        kind = "trans" if base in TRANS else "valu"
        rd = allr(ops[1:]) + E
        wr = regs_of(ops[0])
        if base.startswith("v_fmac") or base.startswith("v_dot2c") or base.startswith("v_pk_fmac") or base == "v_writelane_b32":
            rd += regs_of(ops[0])
        if base.startswith("v_permlane"):
            rd = allr(ops) + E
            wr = allr(ops)
            kind = "perm"
        if base in ("v_add_co_u32", "v_sub_co_u32", "v_addc_co_u32"):
            wr = allr(ops[:2])
            rd = allr(ops[2:]) + E
        if "_dpp" in op:
            kind = "dpp"
            rd += regs_of(ops[0])
        if base in ("v_readfirstlane_b32", "v_readlane_b32"):
            kind = "rdlane"
        return Ins(t, kind, rd, wr, after=after)
    raise ValueError("unknown instruction: " + t)


VALUISH = ("valu", "trans", "perm", "dpp", "rdlane")


def need_states(p, c):
    n = 0
    isv = lambda s: {r for r in s if r[0] in "va" and len(r[0]) == 1}
    iss = lambda s: {r for r in s if r[0] == "s" or r[0] == "vcc"}
    if p.kind in VALUISH:
        pw = isv(p.wr)
        if pw:
            if c.kind == "mfma" and pw & c.rd:
                n = max(n, 2)
            if c.kind in ("perm", "dpp") and pw & c.rd:
                n = max(n, 2)
            if c.kind == "rdlane" and pw & c.rd:
                n = max(n, 1)
            if p.kind == "trans" and c.kind in VALUISH + ("mfma", "vmem", "ds") and pw & c.rd:
                n = max(n, 1 if c.kind != "mfma" else 2)
        ps = iss(p.wr)
        if ps:
            if c.kind in VALUISH and ps & c.rd:
                n = max(n, 4 if c.kind == "rdlane" else 2)
            if c.kind in ("vmem", "dma") and ps & c.rd:
                n = max(n, 5)
            if c.kind in ("salu", "branch", "smem") and ps & c.rd:
                n = max(n, 1)
    if p.text.startswith("v_dot2") and c.kind in VALUISH + ("mfma", "vmem", "ds") and not c.text.startswith("v_dot2") and p.wr & (c.rd | c.wr):
        n = max(n, 3)
    if p.kind == "mfma":
        big = p.passes == 8
        if c.kind == "mfma":
            ab = c.rd - c.srcc
            if p.wr & ab:
                n = max(n, 12 if big else 8)
            if p.wr & c.srcc and not (p.wr == c.srcc and p.passes == c.passes):
                n = max(n, 10 if big else 6)
            if p.wr & c.wr and not (p.wr == c.srcc and p.passes == c.passes):
                n = max(n, 12 if big else 8)
        elif p.wr & (c.rd | c.wr):
            n = max(n, 12 if big else 8)
        if c.kind in VALUISH + ("ds", "vmem") and p.srcc & c.wr:
            n = max(n, 7 if big else 3)
    if p.kind == "vmem" and p.wide and c.kind in VALUISH + ("mfma", "ds", "vmem") and isv(p.rd) & c.wr:
        n = max(n, 2)
    if p.kind == "salu" and ("m0", 0) in p.wr and c.kind == "dma":
        n = max(n, 1)
    return n


class Prog:
    def __init__(self):
        self.items = []

    def add(self, x, after=()):
        if isinstance(x, str):
            x = ins(x, after)
        self.items.append(x)
        return x

    def extend(self, xs):
        for x in xs:
            self.add(x)

    def wait(self, toks):
        p = Ins("", "pseudo", after=toks)
        self.items.append(p)
        return p

    def drain_point(self, vm=True, lgkm=True):
        return None


def finalize(items, vm_max=63, lg_max=15, stats=None):
    out = []
    queues = {"vm": [], "lgkm": []}
    pend = {}
    smem_pending = set()
    nwait = nnop = 0
    branch_at = {}
    taken = set()

    def states_since(p_index):
        n = 0
        for x in out[p_index + 1:]:
            if x.kind == "nop":
                n += int(x.text.split()[1]) + 1
            elif x.kind in ("label", "pseudo"):
                continue
            else:
                n += 1
        return n

    def emit_wait(cnt):
        nonlocal nwait
        parts = []
        for q in ("vm", "lgkm"):
            if q in cnt:
                n = cnt[q]
                done = queues[q][:len(queues[q]) - n]
                queues[q] = queues[q][len(queues[q]) - n:]
                for d in done:
                    for r in d.wr:
                        if pend.get(r) is d:
                            del pend[r]
                parts.append(f"{'vmcnt' if q == 'vm' else 'lgkmcnt'}({n})")
        out.append(ins("s_waitcnt " + " ".join(parts)))
        nwait += 1

    flat = []
    for x in items:
        flat.extend(x.items if isinstance(x, Bundle) else [x])
    all_ids, seen_ids = {id(x) for x in flat}, set()
    for x in flat:
        if x.kind == "waitcnt" and x.ghost:
            out.append(x)
            continue
        if x.kind == "waitcnt":
            m = re.search(r"vmcnt\((\d+)\)", x.text)
            cnt = {}
            if m:
                cnt["vm"] = min(int(m.group(1)), len(queues["vm"]))
            m = re.search(r"lgkmcnt\((\d+)\)", x.text)
            if m:
                cnt["lgkm"] = min(int(m.group(1)), len(queues["lgkm"]))
                if int(m.group(1)) == 0:
                    smem_pending.clear()
            for q, n in cnt.items():
                done = queues[q][:len(queues[q]) - n]
                queues[q] = queues[q][len(queues[q]) - n:]
                for d in done:
                    for r in d.wr:
                        if pend.get(r) is d:
                            del pend[r]
            out.append(x)
            continue
        need = list(x.after)
        for d in need:
            assert id(d) in seen_ids or id(d) not in all_ids, f"{x.text!r} waits for {d.text!r}, which comes later"
        seen_ids.add(id(x))
        for r in x.rd | x.wr:
            if r in pend:
                need.append(pend[r])
            assert r not in smem_pending, f"scalar load result used without lgkmcnt(0): {x.text}"
        cnt = {}
        for d in need:
            q = d.q
            if d in queues[q]:
                n = len(queues[q]) - 1 - queues[q].index(d)
                cnt[q] = min(cnt.get(q, 1 << 30), n)
        if x.q == "vm" and len(queues["vm"]) >= vm_max:
            cnt["vm"] = min(cnt.get("vm", 1 << 30), vm_max - 1)
        if x.q == "lgkm" and len(queues["lgkm"]) >= lg_max:
            cnt["lgkm"] = min(cnt.get("lgkm", 1 << 30), lg_max - 7)
        if cnt:
            emit_wait(cnt)
        if x.kind == "pseudo":
            continue
        if x.kind not in ("label",):
            pad = 0
            work = [(len(out) - 1, 0)]
            while work:
                i, seen = work.pop()
                while i >= 0 and seen < 12:
                    p = out[i]
                    if p.kind == "label":
                        for j in branch_at.get(p.text[:-1], ()):
                            work.append((j, seen))
                        i -= 1
                        continue
                    if p.kind == "branch" and p.text.startswith("s_branch") and i != len(out) - 1 and out[i + 1].kind == "label" and (i, seen) not in taken:
                        pass
                    req = need_states(p, x)
                    if req > seen:
                        pad = max(pad, req - seen)
                    seen += (int(p.text.split()[1]) + 1) if p.kind == "nop" else 1
                    i -= 1
            if pad:
                out.append(ins(f"s_nop {pad - 1}"))
                nnop += pad
        out.append(x)
        if x.kind == "branch":
            branch_at.setdefault(x.text.split()[1], []).append(len(out) - 1)
        if x.q and not x.ghost:
            queues[x.q].append(x)
            for r in x.wr:
                pend[r] = x
        if x.kind == "smem":
            smem_pending.update(x.wr)
    if stats is not None:
        stats["waits"] = stats.get("waits", 0) + nwait
        stats["nops"] = stats.get("nops", 0) + nnop
    return out


def resolve_stamps(items, names, sreg, vreg):
    out, prev = [], None
    for x in items:
        for y in (x.items if isinstance(x, Bundle) else [x]):
            if y.kind == "stamp":
                if prev is not None:
                    if y.note == "last" or prev in ("rt0", "rt1", "end", "rt_end", "karg", "prew0", "w0", "pres0") or y.text in ("rt0", "rt1"):
                        w = ins("s_waitcnt lgkmcnt(0)")
                        out.append(w)
                    out.append(Ins(f"v_writelane_b32 v{vreg}, s{sreg}, {names.index(prev)}", "valu", [], [("v", vreg)]))
                if y.note != "last":
                    op = "s_memrealtime" if y.text.startswith("rt") else "s_memtime"
                    out.append(Ins(f"{op} s[{sreg}:{sreg + 1}]", "salu"))
                    prev = y.text
            else:
                out.append(y)
    return out


def text_of(items):
    return "\n".join(("" if x.kind == "label" else "  ") + x.text for x in items if x.kind != "pseudo")


def merge(spine, sides, budget):
    out = []
    put = lambda it: out.extend(it.items) if isinstance(it, Bundle) else out.append(it)
    carry = 0.0
    for n, st in enumerate(spine):
        for s in sides:
            if s.get("end") is not None and s["end"] <= n:
                if s["i"] < len(s["items"]):
                    s["late"] = len(s["items"]) - s["i"]
                while s["i"] < len(s["items"]):
                    put(s["items"][s["i"]])
                    s["i"] += 1
        out.extend(st.get("pre", []))
        if st.get("mfma") is not None:
            out.append(st["mfma"])
        out.extend(st.get("post", []))
        b = st.get("budget", budget) + carry
        for s in sides:
            if s["start"] > n or (s.get("follow") is not None and s["follow"]["i"] < len(s["follow"]["items"])):
                continue
            while s["i"] < len(s["items"]) and b >= min(s["items"][s["i"]].cost, 1):
                it = s["items"][s["i"]]
                b -= it.cost
                put(it)
                s["i"] += 1
                s["done"] = n
            if b < 1:
                break
        carry = max(min(b, 0.99), -3.0)
    for s in sides:
        if s["i"] < len(s["items"]):
            s["late"] = len(s["items"]) - s["i"]
        while s["i"] < len(s["items"]):
            put(s["items"][s["i"]])
            s["i"] += 1
    return out


class Bundle:
    def __init__(self, items):
        self.items = list(items)
        self.cost = sum(x.cost for x in self.items)


def bundled(items):
    items = list(items)
    glue = [False] * len(items)
    flat = lambda x: x.items if isinstance(x, Bundle) else [x]
    for i, it in enumerate(items):
        for x in flat(it):
            if ("scc", 0) in x.rd:
                j = i - 1
                while j >= 0 and not any(("scc", 0) in y.wr for y in flat(it)[:flat(it).index(x)]):
                    glue[j + 1] = True
                    if any(("scc", 0) in y.wr for y in flat(items[j])):
                        break
                    j -= 1
            if ("vcc", 0) in x.rd:
                j = i - 1
                while j >= 0 and not any(("vcc", 0) in y.wr for y in flat(it)[:flat(it).index(x)]):
                    glue[j + 1] = True
                    if any(("vcc", 0) in y.wr for y in flat(items[j])):
                        break
                    j -= 1
            if x.kind == "label" and i > 0:
                glue[i] = True
    out = []
    for it, g in zip(items, glue):
        if g:
            prev = out.pop()
            out.append(Bundle(flat(prev) + flat(it)))
        else:
            out.append(it)
    return out


def side(items, start=0, end=None, follow=None, name=""):
    return dict(items=bundled(items), start=start, end=end, i=0, follow=follow, name=name)
```

```python
import sys, os, struct
sys.path.insert(0, os.path.dirname(os.path.abspath(__file__)))
from asmlib import *

NAME = "parallel_sum__linear_attn_block__mixer_channel_mlp__prompt_kernel"
OPT = dict(prof=False, only=None, b1=3.2, b1p=4.5, touch_w=True, hbsig=10, nkv=0, kvat=1, hop=6, tw0=7, tw1=50, bred=0.6, xch=6, g01end=30, oload=36, gpoll=30, kvsig=4, hearly=20, plag=700, pback=2, touch_h=True, b0=16, lag=800, nphi=5, b2=1.6, touch_code=True, tq=4, s0=(0, 2, 5, 6, 7), sleep=4, dma1_early=False, dspan=1.0,
           seq="A0 B0 A1 B1 A2 A3 A4 A5 A6 B2 B3 B4 B5 B6 O0 O1 O2 O3 O4", opos=4, nsq=10, nsk=2, stages=(0, 1, 2, 3, 4, 5, 6, 7, 8, 9), verbose=False, x=(), stop=None, nos0=False)

LDQ, LD1, LDX = 3840, 3456, 1280
FLAGS, STATS, CSUM, KVF, XCH, KVP, HB, TS = 0x0, 0x8000, 0x10000, 0x60000, 0x80000, 0x400000, 0x800000, 0x1200000
WS_SIZE = 0x1400000
OOB = 0x40000000
NB = 74
SLOT = 20480
RING2, NR2 = 2 * SLOT, 10
XS, EX, SCR, LDS_SIZE = 81920, 131072, 135168, 163840
KVT, KVT_LD = XS, 328
AM, AM_LD = XS, 176
Z0, Z1, Z2, Z5, Z6, ZA, ZB = 143360, 0, SLOT, 2 * SLOT, 3 * SLOT, XS, XS + SLOT
P_X, P_QKV, P_WO, P_BX, P_W1, P_B1, P_W2, P_B2 = 4, 6, 8, 10, 12, 14, 16, 18
P_OUT, P_DBG, P_WS = 20, 22, 24
sR2, sJ160, sBq, sBk, sE, sHA, sHB, sL6, sRow, sB6, sD2w, sD2h, sXc = range(4, 17)
sHq, sHk, sH6, sHo, sWq, sWk, sW6, sWo = range(17, 25)
sOne0, sOne1 = 88, 89
sKw, sW2k, sH4 = 90, 91, 95
sTa, sTb, sTc = 96, 97, 98
sK1, sK2 = 99, 77
SX, SQKV, SW1, SWO, SW2, SWS, SOUT, SB1, SB2, SDBG = 28, 32, 36, 40, 44, 48, 52, 56, 60, 64
sW, sR, sU, sG, sP, sUnit, sNonce, sWL = 68, 69, 70, 71, 72, 73, 74, 75
sXo, sKq, sH, sT0, sT1, sT2, sT3, sLast = 76, 77, 78, 79, 80, 81, 82, 83
sEps, sHst, sXw, sCnt = 84, 85, 86, 87
sA_lo, sA_hi, sB_lo, sB_hi, sLdA, sLdB, sOffA, sOffB, sMixA, sMixB = 40, 41, 42, 43, 44, 45, 46, 47, 52, 53
sBA, sBB, sW5 = 92, 93, 94
sDx, sDw, sU64, sTS, sOst = 100, 101, 3, 26, 25
sU4 = 73
srd = lambda b: f"s[{b}:{b + 3}]"
vL = 1
vX = [2, 3, 4, 5]
vXR = [6, 7, 8, 9]
vWk = [10, 11, 12, 13, 14]
vWp = [46, 47]
vTK, vTM, vTP, vW1, vTR = [208, 209], [210, 211], [212, 213], 214, 215
vHst, vFl, vRowF, vColF, vEXr = 15, 16, 17, 18, 19
vKf, vK2, vKA, vKB, vAt, vOnes = 20, 21, 22, 23, 24, 25
vAM, vOl0, vOl1, vOw0, vOw1, vOw2, vOw3 = 20, 21, 22, 23, 24, 25, 17
vFd, vPoll, vLvl, vHiM = 26, 27, 28, 29
vRs1, vRl1, vA1, vA3, vIrs = 32, 34, 36, 38, 44
vIsQ, vPar, vL16, vTd = 33, 35, 37, 39
vXE = 40
vPoll2 = 45
acc = lambda i: 48 + 16 * i
TMP = 176
vW2 = [180, 181, 182, 183, 184]
vH = {'B': [185, 186, 187, 188], 'A': [2, 3, 4, 5]}
vT2 = [189, 190, 191]
vRW = [192, 193, 207]
vRR = [194, 195, 196]
vFo2, vTw = 197, 198
vFo = [199]
vTch = [200, 201, 206]
vTr = [202, 203, 204]
vRow2 = 205
vTW = 179
ET = 244
T0, T1, T2, T3 = 252, 253, 254, 255
aX, aW, NRING, LOOK = 0, 160, 8, 5
accA = lambda t, f: (48 + 4 * (5 * t + f)) if 5 * t + f < 16 else (208 + 4 * (5 * t + f - 16))


def accB(t, f):
    if t == 0:
        return ("v", 224 + 4 * f)
    g = 5 * (t - 1) + f
    return ("a", 140 + 4 * g) if g < 13 else ("v", 6 + 4 * (g - 13))


HR = 4
aH = lambda n, t: 192 + 16 * (n % HR) + 4 * t
wfragH = lambda i, f: ("a", 20 * i + 4 * f)


def wfragO(k, f):
    g = 5 * k + f
    return ("v", accA(g // 5, g % 5)) if g < 20 else ("v", 112 + 4 * (g - 20))


r4 = lambda x: f"{x[0]}[{x[1]}:{x[1] + 3}]"
f2u = lambda f: struct.unpack("<I", struct.pack("<f", f))[0]
LOG2E = 1.4426950408889634
C1 = -2.0 * 0.7978845608028654 * LOG2E
C3 = C1 * 0.044715
L_S0, L_KP, L_KV, L_HB = 1, 2, 3, 4
L_H01, L_H23, L_H4, L_O, L_XCH = 2, 3, 4, 5, 6

slow_paths, ts_names, _uid = [], [], [0]


def uid(p):
    _uid[0] += 1
    return f"L_{p}{_uid[0]}"


def I(*ts):
    return [ins(t) for t in ts]


def stamp(name):
    if not OPT["prof"]:
        return []
    if OPT["only"] is not None:
        if name.startswith("rt") or (OPT["only"] != "all" and name not in OPT["only"]):
            return []
        name = "rt_" + name
    if name not in ts_names:
        ts_names.append(name)
    return [Ins(name, "stamp")]


def make_srd(b, ptr, nbytes):
    return I(f"s_mov_b32 s{b}, s{ptr}", f"s_mov_b32 s{b + 1}, s{ptr + 1}", f"s_mov_b32 s{b + 2}, {nbytes}", f"s_mov_b32 s{b + 3}, 0x20000")


def signal(level, toks):
    o = I(f"s_add_u32 s{sT3}, s{sNonce}, {level}", f"v_mov_b32 v{vFd}, s{sT3}")
    st = ins(f"buffer_store_dword v{vFd}, v{vFl}, {srd(SWS)}, 0 offen sc1", after=toks)
    st.note = ("sig", level)
    return [Bundle(o), st]


def poll_issue(vaddr, dst=vPoll):
    return ins(f"buffer_load_dword v{dst}, v{vaddr}, {srd(SWS)}, 0 offen sc1")


def poll_check(vaddr, level, qlevel=None, dst=vPoll, who="both"):
    slow, back, loop = uid("slow"), uid("back"), uid("loop")

    def test():
        o = I(f"s_add_u32 s{sT3}, s{sNonce}, {level}", f"v_subrev_u32 v{vLvl}, s{sT3}, v{dst}")
        if qlevel is not None and qlevel != level:
            o += I(f"v_mad_i32_i24 v{vLvl}, v{vIsQ}, {level - qlevel}, v{vLvl}")
        return o + I(f"v_cmp_lt_u32 vcc, 63, v{vLvl}")

    sp = I(f"{slow}:", f"s_mov_b32 s{sCnt}, 20000", f"{loop}:", f"s_sleep {OPT['sleep']}") + [poll_issue(vaddr, dst)] + I("s_waitcnt vmcnt(0)") + test()
    sp += I(f"s_cbranch_vccz {back}", f"s_sub_u32 s{sCnt}, s{sCnt}, 1", f"s_cmp_lg_u32 s{sCnt}, 0", f"s_cbranch_scc1 {loop}", f"s_branch {back}")
    slow_paths.append(sp)
    br = ins(f"s_cbranch_vccnz {slow}")
    br.note = ("chk", level if who != "q" else 0, (qlevel if qlevel is not None else level) if who != "kv" else 0, who)
    return [Bundle(test() + [br] + I(f"{back}:"))]


def nonce_check(dst):
    slow, back, loop = uid("nslow"), uid("nback"), uid("nloop")
    sp = I(f"{slow}:", f"s_mov_b32 s{sCnt}, 20000", f"{loop}:", f"s_sleep {OPT['sleep']}", f"v_mov_b32 v{dst}, 0",
           f"buffer_load_dword v{dst}, v{dst}, {srd(SDBG)}, 0 offen sc1", "s_waitcnt vmcnt(0)",
           f"v_readfirstlane_b32 s{sNonce}, v{dst}", f"s_cmp_lg_u32 s{sNonce}, 0", f"s_cbranch_scc1 {back}",
           f"s_sub_u32 s{sCnt}, s{sCnt}, 1", f"s_cmp_lg_u32 s{sCnt}, 0", f"s_cbranch_scc1 {loop}", f"s_branch {back}")
    slow_paths.append(sp)
    return [Bundle(I(f"v_readfirstlane_b32 s{sNonce}, v{dst}", f"s_cmp_eq_u32 s{sNonce}, 0", f"s_cbranch_scc1 {slow}", f"{back}:"))]


def flag_addr_row(dst, sr, t2, t3):
    return I(f"s_lshr_b32 s{sT0}, s{sr}, 3", f"s_and_b32 s{sT1}, s{sr}, 7", f"s_lshl_b32 s{sT1}, s{sT1}, 3", f"s_add_u32 s{sT0}, s{sT0}, s{sT1}",
             f"v_lshrrev_b32 v{t2}, 4, v{vL}", f"v_lshlrev_b32 v{t2}, 1, v{t2}", f"v_bfe_u32 v{t3}, v{vL}, 2, 2", f"v_lshl_add_u32 v{t2}, v{t3}, 6, v{t2}",
             f"v_add_u32 v{t2}, s{sT0}, v{t2}", f"v_and_b32 v{t3}, 3, v{vL}", f"v_lshlrev_b32 v{t3}, 2, v{t3}", f"v_lshl_add_u32 v{dst}, v{t2}, 7, v{t3}")


def flag_addr_col(dst, sg, t2, t3):
    return I(f"s_lshr_b32 s{sT0}, s{sg}, 2", f"s_lshl_b32 s{sT0}, s{sT0}, 1", f"s_and_b32 s{sT1}, s{sg}, 3", f"s_lshl_b32 s{sT1}, s{sT1}, 6", f"s_add_u32 s{sT0}, s{sT0}, s{sT1}",
             f"v_lshrrev_b32 v{t2}, 5, v{vL}", f"v_bfe_u32 v{t3}, v{vL}, 2, 3", f"v_lshl_add_u32 v{t2}, v{t3}, 3, v{t2}",
             f"v_add_u32 v{t2}, s{sT0}, v{t2}", f"v_and_b32 v{t3}, 3, v{vL}", f"v_lshlrev_b32 v{t3}, 2, v{t3}", f"v_lshl_add_u32 v{dst}, v{t2}, 7, v{t3}")


def dma_x(n):
    g = []
    for i in range(4):
        pre = I(f"s_add_u32 s{sDx}, s{sXo}, {128 * n}") if i == 0 else []
        g.append(pre + I(f"s_add_u32 m0, s{sXw}, {(n % 3) * 4096}", f"buffer_load_dwordx4 v{vX[i]}, {srd(SX)}, s{sDx} offen offset:{1024 * i} lds"))
    return g


def prologue():
    o = []
    a = lambda *t: o.extend(I(*t))
    a("s_cmp_ge_u32 s2, 256", "s_cbranch_scc1 L_end")
    a("s_load_dwordx16 s[4:19], s[0:1], 0", "s_load_dwordx4 s[20:23], s[0:1], 64", "s_load_dwordx2 s[24:25], s[0:1], 80")
    a(f"s_memrealtime s[{sNonce}:{sNonce + 1}]")
    if OPT["prof"]:
        a("v_mov_b32 v31, 0")
        o += stamp("rt0") + stamp("start")
    t0, t1, t2 = T0, T1, T2
    a(f"v_lshrrev_b32 v{t0}, 6, v0", f"v_and_b32 v{vL}, 63, v0", f"v_readfirstlane_b32 s{sW}, v{t0}")
    a(f"s_and_b32 s{sT0}, s2, 1", f"s_lshl_b32 s{sT0}, s{sT0}, 3", f"s_bfe_u32 s{sT1}, s2, 0x30003", f"s_add_u32 s{sR}, s{sT0}, s{sT1}")
    a(f"v_lshrrev_b32 v{t0}, 3, v{vL}", f"v_lshrrev_b32 v{t1}, 4, v{vL}", f"v_and_b32 v{t2}, 7, v{vL}", f"v_xor_b32 v{t2}, v{t2}, v{t1}",
      f"v_lshlrev_b32 v{t2}, 4, v{t2}", f"v_mul_u32_u24 v{t0}, {LDX}, v{t0}", f"v_add_u32 v{vX[0]}, v{t0}, v{t2}",
      f"v_xor_b32 v{vX[1]}, 64, v{vX[0]}", f"v_add_u32 v{vX[1]}, {8 * LDX - 1024}, v{vX[1]}",
      f"v_add_u32 v{vX[2]}, {16 * LDX - 2048}, v{vX[0]}", f"v_add_u32 v{vX[3]}, {16 * LDX - 2048}, v{vX[1]}")
    a(f"s_lshl_b32 s{sT0}, s{sR}, 2", f"s_add_u32 s{sT0}, s{sT0}, s{sW}", f"s_mul_i32 s{sXo}, s{sT0}, {32 * LDX}")
    a(f"s_mul_i32 s{sXw}, s{sW}, 12288", f"s_add_u32 s{sXw}, s{sXw}, {XS}")
    a(f"s_bfe_u32 s{sT0}, s2, 0x20001", f"s_lshr_b32 s{sT1}, s2, 6",
      f"s_lshl_b32 s{sG}, s{sT0}, 2", f"s_add_u32 s{sG}, s{sG}, s{sT1}", f"s_lshr_b32 s{sP}, s{sT1}, 1",
      f"s_lshl_b32 s{sU}, s{sT0}, 1", f"s_add_u32 s{sU}, s{sU}, s{sP}",
      f"s_mul_i32 s{sKq}, s{sU}, 160", f"s_mul_i32 s{sU64}, s{sU}, 384")
    a("s_mov_b32 s30, 2621440", "s_mov_b32 s31, 0x20000", "s_mov_b32 s34, 2457600", "s_mov_b32 s35, 0x20000", "s_mov_b32 s38, 2211840", "s_mov_b32 s39, 0x20000")
    assert (SX, SQKV, SW1) == (28, 32, 36)
    return o


def first_loads():
    o = I("s_waitcnt lgkmcnt(0)", f"s_mov_b32 s28, s{P_X}", f"s_mov_b32 s29, s{P_X + 1}",
          f"s_mov_b32 s32, s{P_QKV}", f"s_mov_b32 s33, s{P_QKV + 1}", f"s_mov_b32 s36, s{P_W1}", f"s_mov_b32 s37, s{P_W1 + 1}")
    return o


def nonce_publish():
    o = I(f"s_or_b32 s{sT0}, s2, s{sW}", f"s_cmp_lg_u32 s{sT0}, 0", "s_cbranch_scc1 L_nn",
          f"s_max_u32 s{sT0}, s{sNonce}, 1", f"v_mov_b32 v{T0}, s{sT0}", f"v_mov_b32 v{T1}, 0",
          f"global_store_dword v{T1}, v{T0}, s[{P_DBG}:{P_DBG + 1}] sc1")
    o[-1].ghost = True
    return o + I("L_nn:")


def div10(q, row, ch):
    return I(f"v_mul_u32_u24 v{row}, 6554, v{q}", f"v_lshrrev_b32 v{row}, 16, v{row}", f"v_mul_u32_u24 v{ch}, 10, v{row}", f"v_sub_u32 v{ch}, v{q}, v{ch}", f"v_lshlrev_b32 v{ch}, 4, v{ch}")


def wk_setup(kv):
    o = []
    for i in range(5):
        o += I(f"v_add_u32 v{T0}, {64 * i}, v{vL}") + div10(T0, T1, T2)
        if kv:
            o += I(f"v_lshrrev_b32 v{T0}, 4, v{T1}", f"v_and_b32 v{T1}, 15, v{T1}", f"v_mul_u32_u24 v{T0}, 1280, v{T0}", f"v_add_u32 v{T2}, v{T2}, v{T0}")
        o += I(f"v_mul_u32_u24 v{T1}, {LDQ}, v{T1}", f"v_add_u32 v{vWk[i]}, v{T1}, v{T2}")
        if not kv and i in (1, 2, 3):
            o += I(f"v_subrev_u32 v{vWk[i]}, {1024 * i}, v{vWk[i]}")
    return o + I(f"s_mul_i32 s{sT0}, s{sW}, {(16 if kv else 32) * LDQ}", f"s_add_u32 s{sKw}, s{sKq}, s{sT0}", f"s_mul_i32 s{sW5}, s{sW}, 5120")


def wp_setup():
    return I(f"v_lshrrev_b32 v{T0}, 3, v{vL}", f"s_lshl_b32 s{sT0}, s{sW}, 4", f"v_add_u32 v{T0}, s{sT0}, v{T0}", f"v_mul_u32_u24 v{T0}, {LD1}, v{T0}",
             f"v_bfe_u32 v{T1}, v{vL}, 4, 1", f"v_lshlrev_b32 v{T1}, 2, v{T1}", f"v_and_b32 v{T2}, 7, v{vL}", f"v_xor_b32 v{T1}, v{T1}, v{T2}",
             f"v_lshl_add_u32 v{vWp[0]}, v{T1}, 4, v{T0}", f"v_add_u32 v{vWp[1]}, {8 * LD1 - 1024}, v{vWp[0]}", f"s_lshl_b32 s{sW2k}, s{sW}, 11")


def w1_setup():
    return I(f"v_lshrrev_b32 v{T0}, 2, v0", f"v_and_b32 v{T1}, 3, v{vL}", f"v_mul_u32_u24 v{T0}, {LD1}, v{T0}", f"v_lshl_add_u32 v{vW1}, v{T1}, 4, v{T0}")


def x_read_setup():
    o = I(f"v_and_b32 v{T0}, 31, v{vL}", f"v_lshrrev_b32 v{T1}, 5, v{vL}", f"v_bfe_u32 v{T2}, v{vL}, 1, 3", f"v_xor_b32 v{T2}, v{T2}, v{T1}",
          f"v_lshlrev_b32 v{T2}, 4, v{T2}", f"v_lshl_add_u32 v{T2}, v{T0}, 7, v{T2}")
    for j in range(4):
        o += I(f"v_xor_b32 v{vXR[j]}, {32 * j}, v{T2}", f"v_add_u32 v{vXR[j]}, s{sXw}, v{vXR[j]}")
    return o


def tr_parts():
    return I(f"v_lshrrev_b32 v{T1}, 5, v{vL}", f"v_bfe_u32 v{T0}, v{vL}, 2, 2", f"v_lshl_add_u32 v{T0}, v{T1}, 3, v{T0}",
             f"v_bfe_u32 v{T1}, v{vL}, 4, 1", f"v_and_b32 v{T2}, 3, v{vL}", f"v_lshlrev_b32 v{T2}, 3, v{T2}")


def tk_setup(kv):
    o = tr_parts() + I(f"v_mul_u32_u24 v{T0}, 160, v{T0}", f"v_add_u32 v{T0}, v{T0}, v{T2}", f"v_lshl_add_u32 v{vTK[0]}, v{T1}, 5, v{T0}", f"v_add_u32 v{vTM[0]}, 128, v{T0}")
    if kv:
        o += I(f"v_mul_u32_u24 v{T1}, 2560, v{T1}", f"v_add_u32 v{vTM[0]}, v{vTM[0]}, v{T1}")
    return o + I(f"v_add_u32 v{vTK[1]}, 0x8000, v{vTK[0]}", f"v_add_u32 v{vTM[1]}, 0x8000, v{vTM[0]}")


def tp_setup(base):
    return tr_parts() + I(f"v_lshl_add_u32 v{T2}, v{T1}, 5, v{T2}", f"v_lshl_add_u32 v{T2}, v{T0}, 7, v{T2}", f"v_bfe_u32 v{T1}, v{vL}, 3, 1",
                          f"v_lshl_add_u32 v{T2}, v{T1}, 6, v{T2}", f"v_add_u32 v{vTP[0]}, {base}, v{T2}", f"v_xor_b32 v{vTP[1]}, 64, v{vTP[0]}")


def tr_setup(base):
    return tr_parts() + I(f"v_lshl_add_u32 v{T2}, v{T1}, 5, v{T2}", f"v_lshl_add_u32 v{T2}, v{T0}, 6, v{T2}", f"v_add_u32 v{vTR}, {base}, v{T2}")


def late_setup():
    o = []
    a = lambda *t: o.extend(I(*t))
    t0, t1, t2, t3 = T0, T1, T2, T3
    o += make_srd(SDBG, P_DBG, 256)
    a(f"v_mov_b32 v{vPoll2}, 0", f"buffer_load_dword v{vPoll2}, v{vPoll2}, {srd(SDBG)}, 0 offen sc1")
    o += make_srd(SB1, P_B1, 1728 * 2)
    o += make_srd(SWO, P_WO, 640 * LDX) + make_srd(SW2, P_W2, 1728 * LDX) + make_srd(SOUT, P_OUT, 2048 * LDX) + make_srd(SB2, P_B2, 1280)
    a(f"v_and_b32 v{t0}, 31, v{vL}", f"v_lshrrev_b32 v{t1}, 5, v{vL}")
    a(f"v_lshlrev_b32 v{vEXr}, 4, v{t0}", f"v_add_u32 v{vEXr}, {EX}, v{vEXr}", f"v_sub_u32 v{vHiM}, 0, v{t1}")
    a(f"v_bfe_u32 v{t2}, v{vL}, 4, 1", f"v_mul_u32_u24 v{t2}, {NB * 1024}, v{t2}", f"v_and_b32 v{t3}, 15, v{vL}",
      f"v_lshl_add_u32 v{t3}, v{t1}, 4, v{t3}", f"v_lshl_add_u32 v{vHst}, v{t3}, 4, v{t2}")
    a(f"s_lshl_b32 s{sT0}, s{sR}, 2", f"s_add_u32 s{sT0}, s{sT0}, s{sW}", f"s_mul_i32 s{sHst}, s{sT0}, {2 * NB * 1024}", f"s_add_u32 s{sHst}, s{sHst}, {HB}",
      f"s_mul_i32 s{sOst}, s{sU}, 2560", f"s_add_u32 s{sOst}, s{sOst}, s{sHst}",
      f"s_add_u32 s{sHst}, s{sHst}, {20 * 1024}", f"s_lshl_b32 s{sT0}, s{sU4}, 4", f"s_add_u32 s{sH4}, s{sHst}, s{sT0}", f"s_or_b32 s{sH4}, s{sH4}, s{sLast}",
      f"s_lshl_b32 s{sT0}, s{sU64}, 4", f"s_add_u32 s{sHst}, s{sHst}, s{sT0}")
    a(f"s_lshl_b32 s{sT0}, s2, 7", f"s_lshl_b32 s{sT1}, s{sW}, 2", f"s_add_u32 s{sT0}, s{sT0}, s{sT1}",
      f"v_mov_b32 v{vFl}, {OOB}", f"v_writelane_b32 v{vFl}, s{sT0}, 0")
    a(f"s_mov_b32 s{sEps}, {f2u(1e-6)}")
    return o


def touch_code():
    t0 = T0
    return I(f"s_getpc_b64 s[{sT0 + 1}:{sT0 + 2}]", f"s_and_b32 s{sT0 + 1}, s{sT0 + 1}, 0xffffff00", f"s_bfe_u32 s{sT0}, s2, 0x30003", f"s_lshl_b32 s{sT3}, s{sP}, 3",
             f"s_add_u32 s{sT0}, s{sT0}, s{sT3}", f"s_lshl_b32 s{sT0}, s{sT0}, 7", f"s_lshl_b32 s{sT3}, s{sW}, 14", f"s_add_u32 s{sT0}, s{sT0}, s{sT3}",
             f"v_lshlrev_b32 v{t0}, 11, v{vL}", f"v_add_u32 v{t0}, s{sT0}, v{t0}", "s_mov_b64 exec, 0xff",
             f"global_load_dword v{vTd}, v{t0}, s[{sT0 + 1}:{sT0 + 2}]", "s_mov_b64 exec, -1")


CB = 128
ST, CS, CAD, SAD, SST = CB, CB + 10, CB + 30, CB + 45, CB + 44
PA = 216


def s0_wave_params(tiles):
    o = []
    done = uid("s0p")
    for w in range(4):
        nxt = uid("s0p")
        if w < 3:
            o += I(f"s_cmp_lg_u32 s{sW}, {w}", f"s_cbranch_scc1 {nxt}")
        for name, (lo, hi, ld, off, mx, sb) in zip((tiles + ["--"])[2 * w:2 * w + 2], ((sA_lo, sA_hi, sLdA, sOffA, sMixA, sBA), (sB_lo, sB_hi, sLdB, sOffB, sMixB, sBB))):
            ish = name[0] in "H-"
            p = P_W1 if ish else P_QKV
            o += I(f"s_mov_b32 s{lo}, s{p}", f"s_mov_b32 s{hi}, s{p + 1}", f"s_mov_b32 s{ld}, {LD1 if ish else LDQ}",
                   f"s_mov_b32 s{mx}, {dict(MX=1248, QM=-32).get(name, 0)}")
            if not ish:
                o += I(f"s_add_u32 s{off}, s{sKq}, {QCOL[name]}", f"s_mov_b32 s{sb}, {OOB}")
            elif name == "--":
                o += I(f"s_mov_b32 s{off}, 0", f"s_mov_b32 s{sb}, {OOB}")
            elif name == "H4":
                o += I(f"s_or_b32 s{sb}, s{sU4}, s{sLast}", f"s_mov_b32 s{off}, s{sU4}")
            else:
                o += I(f"s_add_u32 s{off}, s{sU64}, {64 * HUNIT[name]}", f"s_mov_b32 s{sb}, s{off}")
        if w < 3:
            o += I(f"s_branch {done}", f"{nxt}:")
    o += I(f"{done}:")
    return o


QCOL = {"K0": 0, "K1": 64, "MX": 128, "V0": 1280, "V1": 1344, "Q0": 0, "Q1": 64, "QM": 128}
HUNIT = {"Ha": 0, "Hb": 1, "H0": 0, "H1": 1, "H2": 2, "H3": 3, "H4": 4}


def s0_addr(tiles):
    o = []
    a = lambda *t: o.extend(I(*t))
    t0, t1, t2, t3 = T0, T1, T2, T3
    a(f"s_lshl_b32 s{sT0}, s{sR}, 7", f"s_lshl_b32 s{sT1}, s{sG}, 3", f"s_add_u32 s{sT0}, s{sT0}, s{sT1}", f"s_lshl_b32 s{sT1}, s{sW}, 1",
      f"s_add_u32 s{sT2}, s{sT0}, s{sT1}", f"s_mul_i32 s{sH}, s{sT2}, {LDX}",
      f"v_lshrrev_b32 v{t0}, 5, v{vL}", f"v_mul_u32_u24 v{t1}, {LDX}, v{t0}", f"v_and_b32 v{t2}, 31, v{vL}", f"v_lshl_add_u32 v{SAD}, v{t2}, 3, v{t1}",
      f"v_add_u32 v{SST}, s{sT2}, v{t0}")
    o += s0_wave_params(tiles)
    ad, ld = CAD, CB + 46
    a(f"v_and_b32 v{t0}, 4, v{vL}", f"v_cmp_ne_u32 vcc, 0, v{t0}",
      f"v_mov_b32 v{ld}, s{sLdA}", f"v_mov_b32 v{t1}, s{sLdB}", f"v_cndmask_b32 v{ld}, v{ld}, v{t1}, vcc", f"v_mov_b32 v{ld + 1}, 0",
      f"v_mov_b32 v{t2}, s{sOffA}", f"v_mov_b32 v{t1}, s{sOffB}", f"v_cndmask_b32 v{t2}, v{t2}, v{t1}, vcc",
      f"v_mov_b32 v{t3}, s{sMixA}", f"v_mov_b32 v{t1}, s{sMixB}", f"v_cndmask_b32 v{t3}, v{t3}, v{t1}, vcc",
      f"v_mov_b32 v{ad}, s{sA_lo}", f"v_mov_b32 v{t1}, s{sB_lo}", f"v_cndmask_b32 v{ad}, v{ad}, v{t1}, vcc",
      f"v_mov_b32 v{ad + 1}, s{sA_hi}", f"v_mov_b32 v{t1}, s{sB_hi}", f"v_cndmask_b32 v{ad + 1}, v{ad + 1}, v{t1}, vcc",
      f"v_bfe_u32 v{t0}, v{vL}, 1, 1", f"v_mad_i32_i24 v{t2}, v{t0}, v{t3}, v{t2}",
      f"v_and_b32 v{t0}, 3, v{vL}", f"v_lshl_add_u32 v{t2}, v{t0}, 4, v{t2}",
      f"v_lshrrev_b32 v{t0}, 3, v{vL}", f"v_mul_u32_u24 v{t0}, 5, v{t0}", f"s_mul_i32 s{sT0}, s{sR}, 40", f"v_add_u32 v{t0}, s{sT0}, v{t0}",
      f"v_mad_u32_u24 v{t2}, v{t0}, v{ld}, v{t2}", f"v_mov_b32 v{t3}, 0",
      f"v_lshl_add_u64 v[{ad}:{ad + 1}], v[{t2}:{t3}], 0, v[{ad}:{ad + 1}]")
    for i in range(4):
        a(f"v_lshl_add_u64 v[{ad + 2 * i + 2}:{ad + 2 * i + 3}], v[{ld}:{ld + 1}], 0, v[{ad + 2 * i}:{ad + 2 * i + 1}]")
    return o


def s0_mem():
    o = [I(f"buffer_load_dwordx2 v[{ST + 2 * m}:{ST + 2 * m + 1}], v{SAD}, {srd(SX)}, s{sH} offen offset:{256 * m}") for m in range(5)]
    o += [I(f"global_load_dwordx4 v[{CS + 4 * i}:{CS + 4 * i + 3}], v[{CAD + 2 * i}:{CAD + 2 * i + 1}], off") for i in range(5)]
    return o


def reduce32(x, t):
    o = []
    for n in (8, 4, 2, 1):
        o += I(f"v_add_f32_dpp v{x}, v{x}, v{x} row_ror:{n} row_mask:0xf bank_mask:0xf")
    return o + I(f"v_mov_b32 v{t}, v{x}", f"v_permlane16_swap_b32 v{x}, v{t}", f"v_add_f32 v{x}, v{x}, v{t}")


def weave(*streams):
    out, streams = [], [list(s) for s in streams]
    while any(streams):
        for s in streams:
            if s:
                out.append(s.pop(0))
    return out


def s0_produce(kv):
    st, cs, stores = [], [], []
    a = lambda *t: st.extend(I(*t))
    s0, s1, t = CB + 40, CB + 41, CB + 42
    a(f"s_mov_b32 s{sCnt}, 0x3f803f80")
    for m in range(10):
        a(f"v_dot2_f32_bf16 v{s0}, v{ST + m}, s{sCnt}, {'0' if m == 0 else 'v%d' % s0}", f"v_dot2_f32_bf16 v{s1}, v{ST + m}, v{ST + m}, {'0' if m == 0 else 'v%d' % s1}")
    a(f"v_lshlrev_b32 v{SST}, 3, v{SST}", f"v_add_u32 v{SST}, {STATS}, v{SST}", f"v_and_b32 v{t}, 31, v{vL}", f"v_min_u32 v{t}, 1, v{t}", f"v_lshl_add_u32 v{SST}, v{t}, 30, v{SST}")
    red = weave(reduce32(s0, t), reduce32(s1, CB + 43))
    red += I(f"v_mul_f32 v{s0}, {f2u(1 / 640)}, v{s0}", f"v_mul_f32 v{s1}, {f2u(1 / 640)}, v{s1}", f"v_fma_f32 v{s1}, -v{s0}, v{s0}, v{s1}", f"v_max_f32 v{s1}, 0, v{s1}")
    stores.append(ins(f"buffer_store_dwordx2 v[{s0}:{s1}], v{SST}, {srd(SWS)}, 0 offen sc1"))
    a = lambda *t: cs.extend(I(*t))
    A, ta, tb = CAD, CB + 46, CB + 47
    for i in range(5):
        for k in range(4):
            for h in range(2):
                d = A + 2 * k + h
                a(f"v_dot2_f32_bf16 v{d}, v{CS + 4 * i + k}, s{sOne1 if h else sOne0}, {'0' if i == 0 else 'v%d' % d}")
    n1 = len(cs)
    a(f"v_and_b32 v{ta}, 7, v{vL}", f"v_lshlrev_b32 v{ta}, 5, v{ta}", f"v_lshrrev_b32 v{tb}, 5, v{vL}", f"v_lshl_add_u32 v{ta}, v{tb}, 4, v{ta}")
    for i in range(4):
        a(f"v_permlane32_swap_b32 v{A + i}, v{A + i + 4}")
    for i in range(4):
        a(f"v_add_f32 v{A + i}, v{A + i}, v{A + i + 4}")
    a(f"v_bfe_u32 v{tb}, v{vL}, 4, 1", f"v_lshl_add_u32 v{ta}, v{tb}, 3, v{ta}")
    for i in range(2):
        a(f"v_permlane16_swap_b32 v{A + i}, v{A + i + 2}")
    for i in range(2):
        a(f"v_add_f32 v{A + i}, v{A + i}, v{A + i + 2}")
    a(f"v_bfe_u32 v{tb}, v{vL}, 3, 1", f"v_lshl_add_u32 v{ta}, v{tb}, 30, v{ta}")
    for i in range(2):
        a(f"v_add_f32_dpp v{A + i}, v{A + i}, v{A + i} row_ror:8 row_mask:0xf bank_mask:0xf")
    a(f"s_lshl_b32 s{sH}, s{sG}, 4", f"s_add_u32 s{sH}, s{sH}, s{sR}", f"s_lshl_b32 s{sH}, s{sH}, 2", f"s_add_u32 s{sH}, s{sH}, s{sW}",
      f"s_lshl_b32 s{sH}, s{sH}, 8", f"s_add_u32 s{sH}, s{sH}, {CSUM}", f"v_add_u32 v{ta}, s{sH}, v{ta}")
    stores.append(ins(f"buffer_store_dwordx2 v[{A}:{A + 1}], v{ta}, {srd(SWS)}, 0 offen sc1"))
    return st + cs[:n1] + weave(red, bundled(cs[n1:])), stores


def s0_consume_loads():
    o = stamp("prepoll") + poll_check(vRowF, L_S0, dst=vPoll) + poll_check(vColF, L_S0, dst=vPoll2) + stamp("polled")
    a = lambda *t: o.extend(I(*t))
    a(f"buffer_load_dwordx2 v[{CB}:{CB + 1}], v{PA}, {srd(SWS)}, 0 offen sc1")
    for m in range(4):
        a(f"buffer_load_dwordx4 v[{CB + 4 + 4 * m}:{CB + 7 + 4 * m}], v{PA + 1 + m}, {srd(SWS)}, 0 offen sc1")
    a(f"buffer_load_ushort v{CB + 27}, v{PA + 5}, {srd(SB1)}, 0 offen")
    return o


def s0_consume_addr():
    o = []
    a = lambda *t: o.extend(I(*t))
    t0, t1 = T0, T1
    o += flag_addr_row(vRowF, sR, t0, t1) + flag_addr_col(vColF, sG, t0, t1)
    a(f"v_and_b32 v{t0}, 31, v{vL}", f"v_lshlrev_b32 v{t0}, 3, v{t0}", f"s_lshl_b32 s{sT0}, s{sR}, 2", f"s_add_u32 s{sT0}, s{sT0}, s{sW}",
      f"s_lshl_b32 s{sT0}, s{sT0}, 8", f"s_add_u32 s{sT0}, s{sT0}, {STATS}", f"v_add_u32 v{PA}, s{sT0}, v{t0}")
    a(f"v_lshrrev_b32 v{t0}, 4, v{vL}", f"v_lshlrev_b32 v{t0}, 10, v{t0}", f"v_and_b32 v{t1}, 15, v{vL}", f"v_lshl_add_u32 v{t0}, v{t1}, 4, v{t0}",
      f"s_lshl_b32 s{sT0}, s{sG}, 14", f"s_lshl_b32 s{sT1}, s{sW}, 8", f"s_add_u32 s{sT0}, s{sT0}, s{sT1}", f"s_add_u32 s{sT0}, s{sT0}, {CSUM}",
      f"v_add_u32 v{PA + 1}, s{sT0}, v{t0}")
    for m in range(1, 4):
        a(f"v_add_u32 v{PA + 1 + m}, {4096 * m}, v{PA + 1}")
    p = PA + 6
    a(f"v_lshlrev_b32 v{p}, 2, v{t1}", f"v_lshrrev_b32 v{t0}, 5, v{vL}", f"v_lshl_add_u32 v{p}, v{t0}, 1, v{p}", f"v_bfe_u32 v{t0}, v{vL}, 4, 1", f"v_add_u32 v{p}, v{p}, v{t0}",
      f"v_cmp_le_u32 vcc, 32, v{p}", f"v_mov_b32 v{t0}, s{sBA}", f"v_mov_b32 v{t1}, s{sBB}", f"v_cndmask_b32 v{t0}, v{t0}, v{t1}, vcc",
      f"v_and_b32 v{t1}, 31, v{p}", f"v_lshl_add_u32 v{PA + 5}, v{t1}, 1, v{t0}",
      f"v_lshlrev_b32 v{p}, 4, v{p}", f"v_add_u32 v{p}, s{sWL}, v{p}", f"v_add_u32 v{p}, {EX}, v{p}")
    return o


def s0_consume_math():
    x, y = [], []
    a = lambda *t: x.extend(I(*t))
    m, var = CB, CB + 1
    t0, t1, t2, t3 = CB + 28, CB + 29, CB + 30, CB + 31
    e5 = f2u(1e-5)
    a(f"v_add_f32 v{t0}, {e5}, v{var}", f"v_rsq_f32 v{vRs1}, v{t0}", f"v_mul_f32 v{t1}, v{var}, v{vRs1}", f"v_mul_f32 v{t1}, v{t1}, v{vRs1}",
      f"v_add_f32 v{t1}, {e5}, v{t1}", f"v_rsq_f32 v{t1}, v{t1}", f"v_mul_f32 v{vRl1}, {f2u(LOG2E)}, v{vRs1}", f"v_mul_f32 v{t1}, v{t1}, v{vRs1}",
      f"v_rcp_f32 v{vIrs}, v{t1}", f"v_mul_f32 v{vA1}, {f2u(C1)}, v{t1}", f"v_mul_f32 v{t2}, v{t1}, v{t1}", f"v_mul_f32 v{t2}, v{t2}, v{t1}",
      f"v_mul_f32 v{vA3}, {f2u(C3)}, v{t2}")
    a(f"v_sub_f32 v{m}, 0, v{m}", f"v_cvt_pk_bf16_f32 v{t0}, v{m}, v{m}", f"v_and_b32 v{t0}, 0xffff0000, v{t0}", f"v_sub_f32 v{t2}, v{m}, v{t0}",
      f"v_cvt_pk_bf16_f32 v{vXE}, v{t0}, v{t2}",
      f"v_cvt_pk_bf16_f32 v{t0}, v{vIrs}, v{vIrs}", f"v_and_b32 v{t0}, 0xffff0000, v{t0}", f"v_sub_f32 v{t2}, v{vIrs}, v{t0}",
      f"v_cvt_pk_bf16_f32 v{vXE + 2}, v{t0}, v{t2}", f"v_and_b32 v{t0}, 0xffff0000, v{vXE + 2}", f"v_sub_f32 v{t2}, v{t2}, v{t0}",
      f"v_cvt_pk_bf16_f32 v{vXE + 3}, v{t2}, 0",
      f"v_not_b32 v{t3}, v{vHiM}", f"v_and_b32 v{vXE}, v{vXE}, v{t3}", f"v_and_b32 v{vXE + 2}, v{vXE + 2}, v{t3}", f"v_and_b32 v{vXE + 3}, v{vXE + 3}, v{t3}",
      f"v_mov_b32 v{vXE + 1}, v{vXE}")
    a = lambda *t: y.extend(I(*t))
    B, u0 = CB + 4, CB + 32
    for mm in range(1, 4):
        for k in range(4):
            a(f"v_add_f32 v{B + k}, v{B + k}, v{B + 4 * mm + k}")
    a(f"v_permlane32_swap_b32 v{B}, v{B + 2}", f"v_permlane32_swap_b32 v{B + 1}, v{B + 3}",
      f"v_add_f32 v{B}, v{B}, v{B + 2}", f"v_add_f32 v{B + 1}, v{B + 1}, v{B + 3}",
      f"v_permlane16_swap_b32 v{B}, v{B + 1}", f"v_add_f32 v{B}, v{B}, v{B + 1}")
    Rr = CB + 24
    a(f"v_cvt_pk_bf16_f32 v{Rr}, v{B}, v{B}", f"v_and_b32 v{u0}, 0xffff0000, v{Rr}", f"v_sub_f32 v{u0}, v{B}, v{u0}",
      f"v_cvt_pk_bf16_f32 v{Rr + 1}, v{u0}, v{u0}", f"v_lshl_or_b32 v{Rr + 2}, v{Rr + 3}, 16, v{Rr + 3}")
    w = ins(f"ds_write_b128 v{PA + 6}, v[{Rr}:{Rr + 3}]")
    return weave(y + [w], x), w


pr = lambda r: f"v[{r}:{r + 1}]"


def cvt2(dst, tb):
    return I(f"v_cvt_pk_bf16_f32 v{dst}, v{tb}, v{tb + 1}", f"v_cvt_pk_bf16_f32 v{dst + 1}, v{tb + 2}, v{tb + 3}")


def gelu_quad(A, dst, tb, pk=False):
    o = []
    each = lambda f, n=4, s=1: [o.extend(I(f(i))) for i in range(0, n, s)]
    if pk:
        each(lambda i: f"v_pk_mul_f32 {pr(tb + i)}, {pr(A + i)}, {pr(A + i)}", 4, 2)
        each(lambda i: f"v_pk_fma_f32 {pr(tb + i)}, {pr(tb + i)}, {pr(vA3)}, {pr(vA1)} op_sel_hi:[1,0,0]", 4, 2)
        each(lambda i: f"v_pk_mul_f32 {pr(tb + i)}, {pr(tb + i)}, {pr(A + i)}", 4, 2)
        each(lambda i: f"v_exp_f32 v{tb + i}, v{tb + i}")
        each(lambda i: f"v_pk_fma_f32 {pr(tb + i)}, {pr(tb + i)}, {pr(vIrs)}, {pr(vIrs)} op_sel_hi:[1,0,0]", 4, 2)
        each(lambda i: f"v_rcp_f32 v{tb + i}, v{tb + i}")
        each(lambda i: f"v_pk_mul_f32 {pr(tb + i)}, {pr(tb + i)}, {pr(A + i)}", 4, 2)
    else:
        each(lambda i: f"v_mul_f32 v{tb + i}, v{A + i}, v{A + i}")
        each(lambda i: f"v_fma_f32 v{tb + i}, v{tb + i}, v{vA3}, v{vA1}")
        each(lambda i: f"v_mul_f32 v{tb + i}, v{tb + i}, v{A + i}")
        each(lambda i: f"v_exp_f32 v{tb + i}, v{tb + i}")
        each(lambda i: f"v_fma_f32 v{tb + i}, v{tb + i}, v{vIrs}, v{vIrs}")
        each(lambda i: f"v_rcp_f32 v{tb + i}, v{tb + i}")
        each(lambda i: f"v_mul_f32 v{tb + i}, v{tb + i}, v{A + i}")
    return o + cvt2(dst, tb)


def phi_quad(A, dst, tb, pk=False):
    o = []
    each = lambda f, n=4, s=1: [o.extend(I(f(i))) for i in range(0, n, s)]
    if pk:
        each(lambda i: f"v_pk_mul_f32 {pr(tb + i)}, {pr(A + i)}, {pr(vRl1)} op_sel_hi:[1,0]", 4, 2)
        each(lambda i: f"v_pk_fma_f32 {pr(A + i)}, {pr(A + i)}, {pr(vRs1)}, 1.0 op_sel_hi:[1,0,0]", 4, 2)
    else:
        each(lambda i: f"v_mul_f32 v{tb + i}, v{A + i}, v{vRl1}")
        each(lambda i: f"v_fma_f32 v{A + i}, v{A + i}, v{vRs1}, 1.0")
    each(lambda i: f"v_exp_f32_e64 v{tb + i}, v{tb + i} clamp")
    each(lambda i: f"v_max_f32 v{tb + i}, v{tb + i}, v{A + i}")
    if pk:
        each(lambda i: f"v_pk_add_f32 {pr(tb + i)}, {pr(tb + i)}, s[{sEps}:{sEps + 1}] op_sel_hi:[1,0]", 4, 2)
    else:
        each(lambda i: f"v_add_f32 v{tb + i}, s{sEps}, v{tb + i}")
    return o + cvt2(dst, tb)


def lin_quad(A, dst, tb, pk=False):
    o = []
    if pk:
        for i in (0, 2): o += I(f"v_pk_mul_f32 {pr(tb + i)}, {pr(A + i)}, {pr(vRs1)} op_sel_hi:[1,0]")
    else:
        for i in range(4): o += I(f"v_mul_f32 v{tb + i}, v{A + i}, v{vRs1}")
    return o + cvt2(dst, tb)


def gelu_quads(jobs, lo, hi, pk):
    o = []
    for n in range(lo, hi):
        A, name, toks = jobs[n // 4]
        gq, h = n % 4, (n % 4) // 2
        if gq == 0 or n == lo:
            pass
        o += gelu_quad(A + 4 * gq, A + 8 * h + 2 * (gq & 1), ET + 4 * (gq & 1), pk)
        if gq & 1:
            x = ins(f"buffer_store_dwordx4 v[{A + 8 * h}:{A + 8 * h + 3}], v{vHst}, {srd(SWS)}, s{sH4 if name == 'H4' else sHst} offen offset:{512 * h + 1024 * (HUNIT[name] % 4)} sc1")
            o.append(x); toks.append(x)
    return o


def kv_setup():
    o = []
    a = lambda *t: o.extend(I(*t))
    t0, t1, t2 = T0, T1, T2
    a(f"v_and_b32 v{t0}, 31, v{vL}", f"s_lshl_b32 s{sT0}, s{sW}, 5", f"v_add_u32 v{t0}, s{sT0}, v{t0}", f"v_mul_u32_u24 v{t0}, {KVT_LD}, v{t0}",
      f"v_add_u32 v{t0}, {KVT}, v{t0}", f"v_add_u32 v{vOnes}, 320, v{t0}",
      f"v_lshrrev_b32 v{t1}, 5, v{vL}", f"v_lshl_add_u32 v{vKf}, v{t1}, 3, v{t0}")
    a(f"v_bfe_u32 v{t0}, v{vL}, 2, 2", f"v_lshl_add_u32 v{t0}, v{t1}, 3, v{t0}", f"v_mul_u32_u24 v{t0}, {KVT_LD}, v{t0}", f"v_add_u32 v{t0}, {KVT}, v{t0}",
      f"v_bfe_u32 v{t1}, v{vL}, 4, 1", f"v_and_b32 v{t2}, 3, v{vL}", f"v_lshl_add_u32 v{t1}, v{t1}, 2, v{t2}",
      f"s_mul_i32 s{sT0}, s{sW}, 40", f"v_lshl_add_u32 v{vKB}, v{t1}, 3, v{t0}", f"v_add_u32 v{vKB}, s{sT0}, v{vKB}",
      f"v_add_u32 v{vKA}, 160, v{vKB}", f"v_add_u32 v{t0}, 320, v{t0}", f"v_cmp_eq_u32 vcc, 5, v{t1}", f"v_cndmask_b32 v{vKA}, v{vKA}, v{t0}, vcc")
    a(f"v_and_b32 v{t0}, 31, v{vL}", f"v_cmp_gt_u32 vcc, 21, v{t0}", f"v_lshlrev_b32 v{t0}, 4, v{t0}", f"v_and_b32 v{t1}, 336, v{vHiM}", f"v_add_u32 v{t0}, v{t0}, v{t1}",
      f"s_lshl_b32 s{sT0}, s{sU}, 4", f"s_add_u32 s{sT1}, s{sT0}, s{sR}", f"s_lshl_b32 s{sT1}, s{sT1}, 13", f"s_mul_i32 s{sT2}, s{sW}, 1680", f"s_add_u32 s{sT1}, s{sT1}, s{sT2}",
      f"s_add_u32 s{sT1}, s{sT1}, {KVP}", f"v_add_u32 v{t0}, s{sT1}, v{t0}", f"v_mov_b32 v{vAt}, {OOB}", f"v_cndmask_b32 v{vAt}, v{vAt}, v{t0}, vcc")
    a(f"s_mul_i32 s{sT1}, s{sR}, 28", f"s_mul_i32 s{sT2}, s{sW}, 7", f"s_add_u32 s{sT1}, s{sT1}, s{sT2}",
      f"s_lshl_b32 s{sK2}, s{sU}, 12", f"s_lshl_b32 s{sT2}, s{sT1}, 3", f"s_add_u32 s{sK2}, s{sK2}, s{sT2}", f"s_add_u32 s{sK2}, s{sK2}, {KVF}",
      f"s_lshl_b32 s{sT0}, s{sT0}, 13", f"s_lshl_b32 s{sT1}, s{sT1}, 4", f"s_add_u32 s{sT0}, s{sT0}, s{sT1}", f"s_add_u32 s{sK1}, s{sT0}, {KVP}",
      f"s_cmp_eq_u32 s{sR}, 15", f"s_cselect_b32 s{sT0}, {OOB}, 0", f"s_or_b32 s{sK1}, s{sK1}, s{sT0}", f"s_or_b32 s{sK2}, s{sK2}, s{sT0}",
      f"v_and_b32 v{t0}, 7, v{vL}", f"v_cmp_gt_u32 vcc, 7, v{t0}", f"v_lshlrev_b32 v{t0}, 4, v{t0}", f"v_lshrrev_b32 v{t1}, 3, v{vL}", f"v_lshl_add_u32 v{t0}, v{t1}, 13, v{t0}",
      f"v_mov_b32 v{vK2}, {OOB}", f"v_cndmask_b32 v{vK2}, v{vK2}, v{t0}, vcc")
    return o


def kv_epilogue(aset, nshadow):
    blk = I(f"v_mov_b32 v{T2}, 0x3f803f80", f"v_mov_b32 v{T3}, 0x3f803f80")
    ones = ins(f"ds_write_b64 v{vOnes}, v[{T2}:{T3}]")
    blk.append(ones)
    wr, parts, n = [ones], [blk, []], 0
    for t, kind, cb in [(0, "k", 0), (1, "k", 64), (2, "m", 128), (3, "v", 160), (4, "v", 224)]:
        A = acc(aset[t])
        for g in range(4):
            isk = kind == "k" or (kind == "m" and g < 2)
            pk = n >= nshadow
            off = cb + 16 * g if kind != "m" else cb + (16 * g if g < 2 else 160 + 16 * (g - 2))
            x = ins(f"ds_write_b64 v{vKf}, v[{A + 4 * g}:{A + 4 * g + 1}] offset:{off}")
            parts[pk] += (phi_quad if isk else lin_quad)(A + 4 * g, A + 4 * g, ET + 4 * (g & 1), pk) + [x]
            wr.append(x)
            n += 1
    return parts[0], parts[1], wr


def kv_product(wr):
    blk = [ins("s_barrier", after=wr)]
    KA, FR = acc(1), acc(2)
    rd = []
    for j in range(8):
        f = FR + 8 * (j % 4)
        rd.append(I(f"ds_read_b64_tr_b16 v[{f}:{f + 1}], v{vKA} offset:{16 * j * KVT_LD}", f"ds_read_b64_tr_b16 v[{f + 2}:{f + 3}], v{vKA} offset:{(16 * j + 4) * KVT_LD}",
                    f"ds_read_b64_tr_b16 v[{f + 4}:{f + 5}], v{vKB} offset:{16 * j * KVT_LD}", f"ds_read_b64_tr_b16 v[{f + 6}:{f + 7}], v{vKB} offset:{(16 * j + 4) * KVT_LD}"))
    blk += rd[0] + rd[1] + rd[2]
    for j in range(8):
        f = FR + 8 * (j % 4)
        c = "0" if j == 0 else f"v[{KA}:{KA + 15}]"
        blk += I(f"v_mfma_f32_32x32x16_bf16 v[{KA}:{KA + 15}], v[{f + 4}:{f + 7}], v[{f}:{f + 3}], {c}")
        if j + 3 < 8:
            blk += rd[j + 3]
    blk += I(f"v_or_b32 v{FR}, v{vAt}, v{vHiM}", f"v_and_b32 v{FR}, 0x7fffffff, v{FR}")
    at = [ins(f"buffer_store_dwordx4 v[{KA + 4 * q}:{KA + 4 * q + 3}], v{vAt if q < 2 else FR}, {srd(SWS)}, 0 offen offset:{672 * q} sc1") for q in range(3)]
    return blk, at


K2 = 112


def kv_hop_load():
    return poll_check(vColF, L_KP, dst=vPoll2, who="kv") + stamp("kpseen") + I(
        f"buffer_load_dwordx4 v[{K2}:{K2 + 3}], v{vK2}, {srd(SWS)}, s{sK1} offen sc1", f"s_add_u32 s{sK1}, s{sK1}, 65536",
        f"buffer_load_dwordx4 v[{K2 + 4}:{K2 + 7}], v{vK2}, {srd(SWS)}, s{sK1} offen sc1")


def kv_hop_sum(toks):
    o = I(*[f"v_add_f32 v{K2 + i}, v{K2 + i}, v{K2 + 4 + i}" for i in range(4)])
    for sw in ("32", "16"):
        o += I(*[f"v_mov_b32 v{K2 + 4 + i}, v{K2 + i}" for i in range(4)])
        o += I(*[f"v_permlane{sw}_swap_b32 v{K2 + i}, v{K2 + 4 + i}" for i in range(4)])
        o += I(*[f"v_add_f32 v{K2 + i}, v{K2 + i}, v{K2 + 4 + i}" for i in range(4)])
    o += I(f"v_lshlrev_b32 v{K2 + 4}, 3, v{vL}", f"v_cmp_gt_u32 vcc, 7, v{vL}", f"v_mov_b32 v{K2 + 5}, {OOB}", f"v_cndmask_b32 v{K2 + 4}, v{K2 + 5}, v{K2 + 4}, vcc")
    o += I(*[f"v_add_f32_dpp v{K2 + i}, v{K2 + i}, v{K2 + i} row_ror:8 row_mask:0xf bank_mask:0xf" for i in range(4)])
    o += cvt2(K2, K2)
    x = ins(f"buffer_store_dwordx2 v[{K2}:{K2 + 1}], v{K2 + 4}, {srd(SWS)}, s{sK2} offen sc1")
    toks.append(x)
    return o + [x]


PQ = 128
OA = [112, 148, 164]


def o_setup():
    o = []
    a = lambda *t: o.extend(I(*t))
    t0, t1, t2, t3 = T0, T1, T2, T3
    a(f"s_sub_u32 s{sT2}, s{sG}, 1")
    o += flag_addr_col(vColF, sT2, t2, t3)
    a(f"s_lshl_b32 s{sT2}, s{sU}, 12", f"s_mul_i32 s{sT0}, s{sW}, 840", f"s_add_u32 s{sT2}, s{sT2}, s{sT0}", f"s_add_u32 s{sT2}, s{sT2}, {KVF}")
    for i, (vo, vw) in enumerate(((vOl0, vOw0), (vOl1, vOw1))):
        a(f"v_add_u32 v{t0}, {64 * i}, v{vL}", f"v_mul_u32_u24 v{t2}, 3121, v{t0}", f"v_lshrrev_b32 v{t2}, 16, v{t2}",
          f"v_mul_u32_u24 v{t1}, 21, v{t2}", f"v_sub_u32 v{t1}, v{t0}, v{t1}",
          f"v_lshlrev_b32 v{vo}, 3, v{t0}", f"v_add_u32 v{vo}, s{sT2}, v{vo}")
        a(f"s_mul_i32 s{sT0}, s{sW}, 5", f"v_add_u32 v{t2}, s{sT0}, v{t2}",
          f"v_lshrrev_b32 v{t3}, 2, v{t2}", f"v_lshlrev_b32 v{vw}, 5, v{t3}", f"v_and_b32 v{t3}, 1, v{t2}", f"v_lshl_add_u32 v{vw}, v{t3}, 4, v{vw}",
          f"v_bfe_u32 v{t3}, v{t2}, 1, 1", f"v_lshl_add_u32 v{vw}, v{t3}, 3, v{vw}", f"v_add_u32 v{vw}, {AM}, v{vw}")
        v2 = (vOw2, vOw3)[i]
        a(f"s_mul_i32 s{sT0}, s{sW}, 20", f"v_add_u32 v{t2}, s{sT0}, v{t1}",
          f"s_add_u32 s{sT0}, s{sW}, 80", f"v_mov_b32 v{t3}, s{sT0}", f"v_cmp_eq_u32 vcc, 20, v{t1}", f"v_cndmask_b32 v{t2}, v{t2}, v{t3}, vcc",
          f"v_mul_u32_u24 v{t2}, {AM_LD}, v{t2}", f"v_add_u32 v{vw}, v{vw}, v{t2}",
          f"v_add_u32 v{t2}, {4 * AM_LD}, v{vw}", f"v_cndmask_b32 v{v2}, v{vw}, v{t2}, vcc")
        if i == 1:
            a(f"v_cmp_lt_u32 vcc, 104, v{t0}", f"v_mov_b32 v{t2}, {SCR}", f"v_cndmask_b32 v{vw}, v{vw}, v{t2}, vcc", f"v_cndmask_b32 v{v2}, v{v2}, v{t2}, vcc",
              f"v_mov_b32 v{t2}, {OOB}", f"v_cndmask_b32 v{vo}, v{vo}, v{t2}, vcc")
    a(f"v_and_b32 v{t0}, 31, v{vL}", f"v_mul_u32_u24 v{t0}, {AM_LD}, v{t0}", f"v_and_b32 v{t1}, 16, v{vHiM}", f"v_add_u32 v{t0}, v{t0}, v{t1}", f"v_add_u32 v{vAM}, {AM}, v{t0}")
    return o


def am_zero():
    o = I(*[f"v_mov_b32 v{ET + k}, 0" for k in range(4)], f"v_lshlrev_b32 v{ET + 4}, 4, v0", f"v_add_u32 v{ET + 4}, {AM}, v{ET + 4}")
    tk = [ins(f"ds_write_b128 v{ET + 4}, v[{ET}:{ET + 3}] offset:{4096 * k}") for k in range(5)]
    return o + tk, tk


def phi_q(aset, pk, lo, hi):
    o = []
    for n in range(lo, hi):
        A = acc(aset[5 + n // 4]) + 4 * (n % 4)
        o += phi_quad(A, PQ + 2 * n, ET + 4 * (n & 1), pk)
    return o


def o_load():
    o = poll_check(vColF, L_HB, dst=vPoll2, who="kv") + stamp("kvseen")
    o += I(f"buffer_load_dwordx2 v[{OA[0]}:{OA[0] + 1}], v{vOl0}, {srd(SWS)}, 0 offen sc1", f"buffer_load_dwordx2 v[{OA[0] + 2}:{OA[0] + 3}], v{vOl1}, {srd(SWS)}, 0 offen sc1")
    return o


def o_write():
    wr = [ins(f"ds_write_b64 v{vw}, v[{OA[0] + 2 * i}:{OA[0] + 2 * i + 1}]") for i, vw in ((0, vOw0), (0, vOw2), (1, vOw1), (1, vOw3))]
    return wr, wr


def o_steps(wr):
    seq = [(T, k) for T in (2, 0, 1) for k in range(5)]
    fr = lambda n: r4([("v", ET), ("v", ET + 4), ("v", T0)][n % 3])
    rd = lambda n: I(f"ds_read_b128 {fr(n)}, v{vAM} offset:{seq[n][0] * 32 * AM_LD + 32 * seq[n][1]}")
    steps = []
    for n, (T, k) in enumerate(seq):
        pre = []
        if n == 0:
            pre = [ins("s_barrier", after=wr)] + rd(0) + rd(1)
        c = "0" if k == 0 else f"v[{OA[T]}:{OA[T] + 15}]"
        m = ins(f"v_mfma_f32_32x32x16_bf16 v[{OA[T]}:{OA[T] + 15}], {fr(n)}, v[{PQ + 4 * k}:{PQ + 4 * k + 3}], {c}")
        steps.append(dict(pre=pre, mfma=m, post=rd(n + 2) if n + 2 < 15 else [], budget=0))
    return steps


def o_finish(toks):
    o = []
    a = lambda *t: o.extend(I(*t))
    rc = ET
    for h in range(4): a(f"v_add_f32 v{rc + h}, s{sEps}, v{OA[2] + 8 + h}")
    for h in range(4): a(f"v_rcp_f32 v{rc + h}, v{rc + h}")
    a(f"v_bfi_b32 v{rc + 4}, v{vHiM}, v{rc + 1}, v{rc}", f"v_bfi_b32 v{rc + 5}, v{vHiM}, v{rc + 3}, v{rc + 2}")
    for i in (4, 0, 1, 2, 3):
        A = OA[i >> 1] + 8 * (i & 1)
        for gq in range(2):
            e0 = 16 * i + 8 * gq
            rr = {16: rc + 4, 56: rc + 5}.get(e0, rc + e0 // 20)
            sel = "op_sel:[0,1] op_sel_hi:[1,1]" if rr & 1 else "op_sel_hi:[1,0]"
            for k in (0, 2): a(f"v_pk_mul_f32 {pr(A + 4 * gq + k)}, {pr(A + 4 * gq + k)}, {pr(rr & ~1)} {sel}")
            o += cvt2(A + 2 * gq, A + 4 * gq)
        x = ins(f"buffer_store_dwordx4 v[{A}:{A + 3}], v{vHst}, {srd(SWS)}, s{sOst} offen offset:{512 * i} sc1")
        o.append(x); toks.append(x)
    return o


def p2_setup(RA):
    o = []
    a = lambda *t: o.extend(I(*t))
    t0, t1, t2 = T0, T1, T2
    a(f"s_and_b32 s{sT0}, s2, 1", f"s_lshl_b32 s{sT0}, s{sT0}, 3", f"s_and_b32 s{sT1}, s2, 4", f"s_add_u32 s{sT0}, s{sT0}, s{sT1}",
      f"s_bfe_u32 s{sT1}, s2, 0x20003", f"s_add_u32 s{sR2}, s{sT0}, s{sT1}",
      f"s_lshr_b32 s{sT1}, s2, 5", f"s_mul_i32 s{sJ160}, s{sT1}, 160",
      f"s_bfe_u32 s{sT2}, s2, 0x10001",
      f"s_lshl_b32 s{sE}, s{sT2}, 2", f"s_add_u32 s{sE}, s{sE}, s{sW}",
      f"s_and_b32 s{sT0}, s{sW}, 1", f"s_lshl_b32 s{sT0}, s{sT0}, 1", f"s_mul_i32 s{sBk}, s{sE}, 6", f"s_sub_u32 s{sBq}, s{sBk}, s{sT0}",
      f"s_sub_u32 s{sBk}, s{sBq}, s{sT0}", f"s_add_u32 s{sBq}, s{sBq}, 4",
      f"s_sub_u32 s{sB6}, s{sE}, s{sT2}", f"s_add_u32 s{sB6}, s{sB6}, 48", f"s_cmp_eq_u32 s{sW}, 3", f"s_cselect_b32 s{sL6}, {OOB}, 0",
      f"s_lshl_b32 s{sT0}, s{sR2}, 1", f"s_add_u32 s{sT1}, s{sT0}, s{sT2}",
      f"s_mul_i32 s{sHB}, s{sT1}, {4 * NB * 1024}", f"s_add_u32 s{sHB}, s{sHB}, {HB}",
      f"s_lshl_b32 s{sRow}, s{sT1}, 2", f"s_add_u32 s{sRow}, s{sRow}, s{sW}", f"s_mul_i32 s{sRow}, s{sRow}, {16 * LDX}", f"s_add_u32 s{sRow}, s{sRow}, s{sJ160}",
      f"s_xor_b32 s{sT1}, s{sT1}, 1", f"s_mul_i32 s{sHA}, s{sT1}, {4 * NB * 1024}", f"s_add_u32 s{sHA}, s{sHA}, {HB}")
    a(f"s_add_u32 s{sT0}, s{sBq}, 20", f"s_lshl_b32 s{sHq}, s{sT0}, 10", f"s_add_u32 s{sT0}, s{sBk}, 20", f"s_lshl_b32 s{sHk}, s{sT0}, 10",
      f"s_add_u32 s{sT0}, s{sB6}, 20", f"s_lshl_b32 s{sH6}, s{sT0}, 10", f"s_or_b32 s{sH6}, s{sH6}, s{sL6}", f"s_lshl_b32 s{sHo}, s{sW}, 10",
      f"s_mul_i32 s{sWq}, s{sBq}, {32 * LDX}", f"s_add_u32 s{sWq}, s{sWq}, s{sJ160}", f"s_mul_i32 s{sWk}, s{sBk}, {32 * LDX}", f"s_add_u32 s{sWk}, s{sWk}, s{sJ160}",
      f"s_mul_i32 s{sW6}, s{sB6}, {32 * LDX}", f"s_add_u32 s{sW6}, s{sW6}, s{sJ160}", f"s_or_b32 s{sW6}, s{sW6}, s{sL6}", f"s_mul_i32 s{sWo}, s{sW}, {32 * LDX}", f"s_add_u32 s{sWo}, s{sWo}, s{sJ160}")
    for i in range(5):
        a(f"v_add_u32 v{t0}, {64 * i}, v{vL}", f"v_mul_u32_u24 v{t1}, 6554, v{t0}", f"v_lshrrev_b32 v{t1}, 16, v{t1}",
          f"v_mul_u32_u24 v{t2}, 10, v{t1}", f"v_sub_u32 v{t2}, v{t0}, v{t2}", f"v_lshlrev_b32 v{t2}, 4, v{t2}",
          f"v_mul_u32_u24 v{vW2[i]}, {LDX}, v{t1}", f"v_add_u32 v{vW2[i]}, v{vW2[i]}, v{t2}")
        if i < 3:
            a(f"v_mul_u32_u24 v{vTr[i]}, 336, v{t1}", f"v_lshl_add_u32 v{vTr[i]}, v{t2}, 1, v{vTr[i]}",
              f"s_mul_i32 s{sT0}, s{sW}, 5632", f"s_add_u32 s{sT0}, s{sT0}, {FIN}", f"v_add_u32 v{vTr[i]}, s{sT0}, v{vTr[i]}")
        if i in (1, 2, 3):
            a(f"v_subrev_u32 v{vW2[i]}, {1024 * i}, v{vW2[i]}")
    a(f"v_lshlrev_b32 v{vL16}, 4, v{vL}")
    for t in range(4):
        a(f"s_add_u32 s{sT0}, s{sW}, {t}", f"s_and_b32 s{sT0}, s{sT0}, 3", f"s_mul_i32 s{sT0}, s{sT0}, {NB * 1024}", f"s_add_u32 s{sT0}, s{sT0}, s{sHB}",
          f"v_add_u32 v{vH['B'][t]}, s{sT0}, v{vL16}")
    a(f"v_lshrrev_b32 v{t0}, 5, v{vL}", f"v_lshlrev_b32 v{t0}, 4, v{t0}", f"v_bfe_u32 v{t1}, v{vL}, 4, 1", f"v_lshl_add_u32 v{t0}, v{t1}, 2, v{t0}",
      f"v_bfe_u32 v{t1}, v{vL}, 2, 2", f"v_add_u32 v{t0}, v{t0}, v{t1}", f"v_mul_u32_u24 v{t0}, 160, v{t0}", f"v_and_b32 v{t1}, 3, v{vL}",
      f"v_lshl_add_u32 v{t0}, v{t1}, 3, v{t0}", f"v_add_u32 v{vT2[0]}, s{sW5}, v{t0}",
      f"v_add_u32 v{vT2[1]}, 0x10000, v{vT2[0]}", f"v_add_u32 v{vT2[2]}, 0x20000, v{vT2[0]}")
    o += flag_addr_row(vRow2, sR2, t0, t1)
    a(f"v_bfe_u32 v{vIsQ}, v{vL}, 2, 1")
    a(f"s_lshl_b32 s{sT0}, s{sR2}, 3", f"s_lshr_b32 s{sT1}, s2, 5", f"s_add_u32 s{sT0}, s{sT0}, s{sT1}", f"s_mul_i32 s{sT0}, s{sT0}, {NB * 1024}", f"s_add_u32 s{sT0}, s{sT0}, {HB}",
      f"v_and_b32 v{t0}, 15, v{vL}", f"v_lshlrev_b32 v{t0}, 7, v{t0}", f"v_add_u32 v{t0}, s{sT0}, v{t0}",
      f"v_cmp_gt_u32 vcc, 16, v{vL}", f"v_mov_b32 v{t1}, {OOB}", f"v_mov_b32 v{t2}, s{sHq}", f"v_cndmask_b32 v{t2}, v{t1}, v{t2}, vcc", f"v_add_u32 v{vTch[0]}, v{t0}, v{t2}",
      f"v_add_u32 v{vTch[1]}, 2048, v{t2}", f"v_mov_b32 v{t2}, s{sHk}", f"v_cndmask_b32 v{vTch[1]}, v{t2}, v{vTch[1]}, vcc",
      f"v_cmp_gt_u32 vcc, 32, v{vL}", f"v_mov_b32 v{t2}, s{sH6}", f"v_cndmask_b32 v{vTch[1]}, v{t2}, v{vTch[1]}, vcc",
      f"v_cmp_gt_u32 vcc, 40, v{vL}", f"v_cndmask_b32 v{vTch[1]}, v{t1}, v{vTch[1]}, vcc", f"v_add_u32 v{vTch[1]}, v{vTch[1]}, v{t0}",
      f"s_mul_i32 s{sT0}, s{sW}, {NB * 1024}", f"s_add_u32 s{sT0}, s{sT0}, s{sHB}", f"s_lshl_b32 s{sT1}, s{sJ160}, 4", f"s_add_u32 s{sT0}, s{sT0}, s{sT1}",
      f"v_lshlrev_b32 v{t0}, 7, v{vL}", f"v_add_u32 v{t0}, s{sT0}, v{t0}", f"v_cmp_gt_u32 vcc, 20, v{vL}", f"v_cndmask_b32 v{vTch[2]}, v{t1}, v{t0}, vcc")
    a(f"v_add_u32 v{vRW[0]}, s{sW5}, v{vL16}", f"v_add_u32 v{vRW[1]}, 0x10000, v{vRW[0]}", f"v_add_u32 v{vRW[2]}, 0x20000, v{vRW[0]}")
    a(f"s_lshr_b32 s{sT0}, s2, 3", f"s_lshl_b32 s{sT0}, s{sT0}, 2", f"s_add_u32 s{sT0}, s{sT0}, s{sW}", f"s_bfe_u32 s{sT1}, s2, 0x10001",
      f"s_mul_i32 s{sTb}, s{sT0}, {50 * 128}", f"s_mul_i32 s{sTa}, s{sT0}, {60 * 128}", f"s_mul_i32 s{sT2}, s{sT1}, {7680 * 128}", f"s_add_u32 s{sTa}, s{sTa}, s{sT2}",
      f"s_lshl_b32 s{sTc}, s{sT0}, 10", f"s_mul_i32 s{sT2}, s{sT1}, {960 * 128}", f"s_add_u32 s{sTc}, s{sTc}, s{sT2}", f"s_add_u32 s{sTc}, s{sTc}, {15360 * 128}",
      f"v_lshlrev_b32 v{vTW}, 7, v{vL}")
    for t in range(1, 4):
        a(f"s_sub_u32 s{sT0}, s{sW}, {t}", f"s_and_b32 s{sT0}, s{sT0}, 3", f"s_mul_i32 s{sT0}, s{sT0}, 5120", f"s_add_u32 s{sT0}, s{sT0}, {RA[t - 1]}",
          f"v_add_u32 v{vRR[t - 1]}, s{sT0}, v{vL16}")
    a(f"s_xor_b32 s{sT0}, s2, 2", f"s_lshl_b32 s{sT1}, s{sT0}, 7", f"s_lshl_b32 s{sT2}, s{sW}, 2", f"s_add_u32 s{sT1}, s{sT1}, s{sT2}", f"v_mov_b32 v{vPar}, s{sT1}")
    a(f"s_lshl_b32 s{sXc}, s2, 2", f"s_add_u32 s{sXc}, s{sXc}, s{sW}", f"s_mul_i32 s{sXc}, s{sXc}, 3072", f"s_add_u32 s{sXc}, s{sXc}, {XCH}")
    a(f"v_and_b32 v{vFo2}, {OOB}, v{vHiM}", f"v_or_b32 v{vFo2}, v{vFo2}, v{vW2[2]}")
    a(f"v_lshrrev_b32 v{t0}, 4, v{vL}", f"v_lshlrev_b32 v{t0}, 3, v{t0}", f"v_add_u32 v{vFo[0]}, s{sJ160}, v{t0}")
    a(f"v_and_b32 v{t0}, 15, v{vL}", f"v_mul_u32_u24 v{t0}, 336, v{t0}", f"v_lshrrev_b32 v{t1}, 4, v{vL}", f"v_lshl_add_u32 v{t0}, v{t1}, 4, v{t0}",
      f"s_mul_i32 s{sT0}, s{sW}, 5632", f"s_add_u32 s{sT0}, s{sT0}, {FIN}", f"v_add_u32 v{vTw}, s{sT0}, v{t0}")
    return o


FIN = 141312


def touch_w2():
    out = []
    for sr, so, n, k in ((SW2, sTa, 15, 4), (SW2, sTc, 8, 1), (SWO, sTb, 13, 4)):
        for i in range(k):
            out.append([Bundle(I(f"s_mov_b64 exec, {(1 << n) - 1}", f"buffer_load_dword v{vTd}, v{vTW}, {srd(sr)}, s{so} offen", "s_mov_b64 exec, -1",
                                 f"s_add_u32 s{so}, s{so}, {128 * n}"))])
    return out


def sprinkle(valu, groups, lo=0.0, hi=1.0):
    valu, out, k = bundled(valu), [], 0
    for i, x in enumerate(valu):
        while k < len(groups) and i >= len(valu) * (lo + (hi - lo) * k / len(groups)):
            out += groups[k]
            k += 1
        out.append(x)
    return out + [y for g in groups[k:] for y in g]


def b2_load():
    return [I(f"buffer_load_dwordx2 v[{accB(0, f)[1] + 2}:{accB(0, f)[1] + 3}], v{vFo[0]}, {srd(SB2)}, 0 offen offset:{32 * f}") for f in range(5)]


def b2_unpack():
    o = []
    for f in range(5):
        d = accB(0, f)[1]
        o += I(f"v_lshlrev_b32 v{d}, 16, v{d + 2}", f"v_and_b32 v{d + 1}, 0xffff0000, v{d + 2}", f"v_lshlrev_b32 v{d + 2}, 16, v{d + 3}", f"v_and_b32 v{d + 3}, 0xffff0000, v{d + 3}")
    return o


def ha_setup():
    o = I(f"s_sub_u32 s{sT0}, s{sHA}, s{sHB}")
    return [Bundle(o + I(*[f"v_add_u32 v{vH['A'][t]}, s{sT0}, v{vH['B'][t]}" for t in range(4)]))]


class Program:
    def __init__(s, kv):
        s.kv = kv
        if kv:
            s.tiles, s.T = ["K0", "K1", "MX", "V0", "V1", "Ha", "Hb"], 5
            s.aset = {t: t for t in range(7)}
        else:
            s.tiles, s.T = ["H0", "H1", "H2", "H3", "H4", "Q0", "Q1", "QM"], 4
            s.aset = {t: t for t in range(8)}
        s.spine, s.head, s.sides = [], [], []

    def at(s, idx):
        return s.head if idx < 0 else s.spine[idx]["pre"]

    def pin(s, idx, g):
        st = s.spine[max(idx, 0)]
        if st.get("pinned"):
            st["post"].extend(g)
        else:
            st["pre2"] = g[:-1]
            st["post"].append(g[-1])
        st["pinned"] = True
        st["budget"] -= len(g)

    def spread(s, gs, lo, hi):
        last = lo
        for i, g in enumerate(gs):
            last = lo + (i * max(hi - lo, 1)) // len(gs)
            s.pin(last, g)
        return last

    def w2_dma(s, kind, i, z, after=()):
        base, k0 = (sWo, 4 * i) if kind == "O" else ((sWq, i) if i < 4 else (sWk, i - 4) if i < 6 else (sW6, 0))
        x, so = [], base
        if k0:
            x, so = I(f"s_add_u32 s{sD2w}, s{base}, {k0 * 32 * LDX}"), sD2w
        gs = []
        for k in range(5):
            d = ins(f"buffer_load_dwordx4 v{vW2[k]}, {srd(SWO if kind == 'O' else SW2)}, s{so} offen offset:{1024 * (k % 4)} lds", after=after if k == 0 else ())
            d.note = z + (4096 if k == 4 else 0)
            gs.append((x if k == 0 else []) + I(f"s_add_u32 m0, s{sW5}, {d.note}") + [d])
        s.w2tok[(kind, i)] = [g[-1] for g in gs]
        s.w2z[(kind, i)] = z
        return gs

    def w2_reads(s, kind, i):
        x = []
        z = s.w2z[(kind, i)]
        for f in range(5):
            k, r = (wfragO if kind == "O" else wfragH)(i, f)
            for h in range(2):
                ad = z + 32 * f + 1280 * h
                x.append(ins(f"ds_read_b64_tr_b16 {k}[{r + 2 * h}:{r + 2 * h + 1}], v{vT2[ad >> 16]} offset:{ad & 0xffff}", after=s.w2tok[(kind, i)]))
        s.w2rd[(kind, i)] = x
        return x

    def h_load(s, n, blk):
        kind, i = blk[0], int(blk[1])
        x = []
        if kind == "O":
            so, imm = sHo, 0
            if i:
                x = I(f"s_add_u32 s{sHo}, s{sHo}, 4096")
        else:
            so, imm = (sHq, 1024 * i) if i < 4 else (sHk, 1024 * (i - 4)) if i < 6 else (sH6, 0)
        v = vH["A" if kind == "A" else "B"]
        return [(x if t == 1 else []) + I(f"buffer_load_dwordx4 a[{aH(n, t)}:{aH(n, t) + 3}], v{v[t]}, {srd(SWS)}, s{so} offen offset:{imm} sc1") for t in (1, 2, 3, 0)]

    def build(s):
        kv, T, tiles = s.kv, s.T, s.tiles
        o = []
        a = lambda *t: o.extend(I(*t))
        if kv:
            a(f"s_lshl_b32 s{sT0}, s{sP}, 8", f"s_sub_u32 s{sU64}, s{sU64}, s{sT0}", f"s_add_u32 s{sKq}, s{sKq}, 1280", f"s_mov_b32 s{sLast}, 0", f"s_mov_b32 s{sU4}, 0")
            o += wk_setup(True)
        else:
            a(f"s_lshl_b32 s{sT0}, s{sP}, 7", f"s_sub_u32 s{sU64}, s{sU64}, s{sT0}", f"s_add_u32 s{sU64}, s{sU64}, 256")
            o += wp_setup()
        dma = lambda pre, m0, v, sr, imm: pre + I(f"s_add_u32 m0, {m0}", f"buffer_load_dwordx4 v{v}, {srd(sr)}, s{sDw} offen offset:{imm} lds")
        so = lambda base, off, last=False: I(f"s_add_u32 s{sDw}, s{base}, {off}") + (I(f"s_or_b32 s{sDw}, s{sDw}, s{sLast}") if last else [])
        two = lambda regs, ad: (regs[0], ad) if ad < 0x8000 else (regs[1], ad - 0x8000)

        def pair_dma(k, bases):
            return [dma(so(sU64, k * 64 * LD1) if (p, i) == (0, 0) else [], f"s{sW2k}, {b - 128 * p}", vWp[i], SW1, 128 * p + 1024 * i) for p, b in enumerate(bases) for i in range(2)]

        pair_step = lambda t, k, j, b, shift: dict(t=t, k=k, j=j, v=vTP[(t - (5 if kv else 0)) & 1], o1=b + 2048 * j - shift, d=512)
        stages = []
        for n in range(10):
            if kv:
                sl = (n % 4) * SLOT
                w = [dma(so(sKw, n * 64 * LDQ) if i == 0 else [], f"s{sW5}, {sl + 1024 * i}", vWk[i], SQKV, 0) for i in range(5)]
                st = []
                for t, (regs, col) in enumerate(((vTK, 0), (vTK, 64), (vTM, 0), (vTK, 2560), (vTK, 2624))):
                    for j in range(4):
                        v, off = two(regs, sl + 5120 * j + col)
                        st.append(dict(t=t, k=n, j=j, v=v, o1=off, d=640))
            else:
                sl = (n % 4) * 16384
                w = pair_dma(n, [sl, sl + 8192])
                st = [pair_step(t, n, j, sl + 8192 * (t >> 1), 0) for t in range(4) for j in range(4)]
            stages.append(dict(w=dma_x(n) + w, steps=st, issue=n - 2))
        stages[9]["steps"] += [dict(t=t, extra=True) for t in range(T)]
        if kv:
            for m in range(10):
                b = RING2 + 8192 * (m % 5)
                stages.append(dict(w=pair_dma(m, [b]), steps=[pair_step(t, m, j, b, 0x8000) for t in (5, 6) for j in range(4)], issue=8 if m < 2 else 9 if m < 5 else m + 7))
            stages[-1]["steps"].insert(4, dict(t=5, extra=True))
            stages[-1]["steps"].append(dict(t=6, extra=True))
        else:
            for gq in range(5):
                w, st = [], []
                for m in (2 * gq, 2 * gq + 1):
                    w.append(dma(so(sU4, m * 64 * LD1, True), f"s{sWL}, {0x8000 + 4096 * m}", vW1, SW1, 0))
                    st += [dict(t=4, k=m, j=j, v=vTR, o1=4096 * m + 1024 * j, d=256) for j in range(4)]
                stages.append(dict(w=w, steps=st, issue=8 if gq < 2 else 9))
            stages[-1]["steps"].append(dict(t=4, extra=True))
            for qs in range(5):
                b = (qs % 4) * SLOT
                w = [dma(so(sKw, qs * 128 * LDQ) if i == 0 else [], f"s{sW5}, {b + (4096 if i == 4 else 0)}", vWk[i], SQKV, 1024 * (i % 4)) for i in range(5)]
                st = []
                for kk in range(2):
                    for t, regs, col in ((5, vTK, 0), (6, vTK, 64), (7, vTM, 0)):
                        for j in range(4):
                            v, off = two(regs, b + 2560 * (4 * kk + j) + col)
                            st.append(dict(t=t, k=2 * qs + kk, j=j, v=v, o1=off, d=640))
                        if qs == 4 and kk == 1:
                            st.append(dict(t=t, extra=True))
                stages.append(dict(w=w, steps=st, issue=(11, 12, 15, 16, 17)[qs]))
        o += first_loads()
        for g in stages[0]["w"]: o += g
        if kv:
            o += nonce_publish()
        a(f"s_lshl_b32 s{sWL}, s{sW}, 10")
        if not kv:
            a(f"s_lshr_b32 s{sT0}, s{sU}, 2", f"s_sub_u32 s{sT0}, s{sU}, s{sT0}", f"s_add_u32 s{sT0}, s{sT0}, 48", f"s_min_u32 s{sT0}, s{sT0}, 53", f"s_lshl_b32 s{sU4}, s{sT0}, 6",
              f"s_and_b32 s{sT0}, s{sU}, 3", f"s_cmp_eq_u32 s{sT0}, 3", f"s_cselect_b32 s{sLast}, {OOB}, 0")
        o += s0_addr(tiles)
        X = OPT["nos0"] or ()
        if "mem" not in X:
            for g in s0_mem(): o += g
        o += x_read_setup() + (tk_setup(True) if kv else tp_setup(0))
        o += make_srd(SWS, P_WS, WS_SIZE) + I(f"s_mov_b32 s{sOne0}, 0x3f80", f"s_mov_b32 s{sOne1}, 0x3f800000")
        if OPT["touch_code"]:
            o += touch_code()
        first_mem = stages[1]["w"]
        if OPT["dma1_early"]:
            for g in first_mem: o += g
            first_mem = []
        o += stamp("issued")
        steps, first = [], {}
        for n, st in enumerate(stages):
            first[n] = len(steps)
            steps += st["steps"]
        n1 = len(steps)
        first[len(stages)] = n1
        end1 = first[10]
        s.spine = spine = [dict(pre=[], post=[], budget=OPT["b1p"] if q < end1 else OPT["b1"]) for q in range(n1)]
        reads, done, xfree = {}, {}, {}
        for q, st in enumerate(steps):
            fr = aW + 4 * (q % NRING)
            A = acc(s.aset[st["t"]])
            if st.get("extra"):
                reads[q] = I(f"ds_read_b128 a[{fr}:{fr + 3}], v{vEXr} offset:{512 * st['t']}")
                spine[q]["mfma"] = ins(f"v_mfma_f32_32x32x16_bf16 v[{A}:{A + 15}], a[{fr}:{fr + 3}], v[{vXE}:{vXE + 3}], v[{A}:{A + 15}]")
                done[tiles[st["t"]]] = q
            else:
                assert 0 <= st["o1"] and st["o1"] + st["d"] < 65536
                reads[q] = I(f"ds_read_b64_tr_b16 a[{fr}:{fr + 1}], v{st['v']} offset:{st['o1']}", f"ds_read_b64_tr_b16 a[{fr + 2}:{fr + 3}], v{st['v']} offset:{st['o1'] + st['d']}")
                xa = aX + 16 * st["k"] + 4 * st["j"]
                c = "0" if (st["k"] == 0 and st["j"] == 0) else f"v[{A}:{A + 15}]"
                spine[q]["mfma"] = ins(f"v_mfma_f32_32x32x16_bf16 v[{A}:{A + 15}], a[{fr}:{fr + 3}], a[{xa}:{xa + 3}], {c}")
                xfree[xa] = q
        seq = OPT["seq"].split()
        s.w2tok, s.w2z, s.w2rd = {}, {}, {}
        p2first = {}
        owr = None
        for n, blk in enumerate(seq):
            if n == OPT["opos"]:
                p2first["gap"] = len(spine)
                spine.append(dict(pre=[], post=[], mfma=None, budget=0))
                if not kv:
                    ow, owr = o_write()
                    p2first["o"] = len(spine)
                    spine += o_steps(owr)
                    s.otk = []
                    p2first["ofin"] = len(spine)
                    spine.append(dict(pre=[ins("s_barrier")] + o_finish(s.otk) + stamp("ofin"), post=[], mfma=None, budget=0))
            p2first[n] = len(spine)
            kind, i = blk[0], int(blk[1])
            for t in (1, 2, 3, 0):
                for f in range(5):
                    d = ("v", accA(t, f)) if kind == "A" else accB(t, f)
                    isfirst = blk == [b for b in seq if (b[0] == "A") == (kind == "A")][0]
                    w = (wfragO if kind == "O" else wfragH)(i, f)
                    m = ins(f"v_mfma_f32_16x16x32_bf16 {r4(d)}, {r4(w)}, a[{aH(n, t)}:{aH(n, t) + 3}], {'0' if isfirst and not (kind != 'A' and t == 0) else r4(d)}")
                    spine.append(dict(pre=[], post=[], mfma=m, budget=OPT["b2"]))
        nend = len(spine)
        p2first[len(seq)] = nend
        spine.append(dict(pre=[], post=[], mfma=None, budget=0))
        last_dma, bar = {}, {}
        for n in range(len(stages)):
            pos = first[n] - LOOK
            bar[n] = b = ins("s_barrier", after=[g[-1] for g in stages[n]["w"]])
            blk = [b] + (stamp(f"st{n}") if n in OPT["stages"] else [])
            if n < 10:
                for j in range(4):
                    xa = aX + 16 * n + 4 * j
                    blk += I(f"ds_read_b128 a[{xa}:{xa + 3}], v{vXR[j]} offset:{(n % 3) * 4096}")
            s.at(pos).extend(blk)
            gs = list(first_mem) if n == 0 else []
            gs += [g for st in stages[2:] if st["issue"] == n for g in st["w"]]
            if gs:
                lo = max(pos + 1, 0)
                hi = first[n + 1] - LOOK
                last_dma[n] = s.spread(gs, lo, lo + int((hi - lo) * (OPT["dspan"] if n else 1.0)))
        for q in range(n1):
            if q < LOOK:
                s.head.extend(reads[q])
            else:
                spine[q - LOOK]["post"][0:0] = reads[q]
            if q % 2 == 0 and q + 1 < n1:
                spine[q]["mfma"].after += reads[q + 1]
        S = OPT["s0"]
        sides = s.sides
        s0m, s0st = s0_produce(kv)
        for q in range(first[1] - LOOK):
            spine[q]["budget"] += OPT["b0"] - OPT["b1p"]
        if "math" not in X:
            sides.append(side(s0m, start=OPT.get("s0start", 2 * T), end=last_dma[S[0]], name="s0math"))
        spine[last_dma[S[0]]]["post"] += (s0st if "store" not in X else []) + stamp("s0b")
        later = (wp_setup() + tp_setup(0x8000)) if kv else (w1_setup() + tr_setup(0x8000) + wk_setup(False) + tk_setup(False))
        ls = side(late_setup() + s0_consume_addr(), start=0, end=last_dma[S[1]], name="late")
        sides.append(ls)
        if "sig" not in X:
            spine[last_dma[S[1]]]["post"] += nonce_check(vPoll2) + signal(L_S0, s0st)
        s.RA = [Z1, ZA, ZB] if kv else [Z1, ZA, Z0]
        p2s = side(later + p2_setup(s.RA) + (kv_setup() if kv else []), start=0, follow=ls, end=last_dma[7], name="p2setup")
        sides.append(p2s)
        if "poll" not in X:
            spine[last_dma[S[2]]]["post"] += [poll_issue(vRowF, vPoll), poll_issue(vColF, vPoll2)]
            spine[last_dma[S[3]]]["post"] += s0_consume_loads()
        assert S[4] >= 7 and S[4] > S[3]
        s.spread(b2_load(), last_dma[7] + 1, last_dma[7] + 6)
        cm, extok = s0_consume_math()
        s.b2 = b2_unpack() + ha_setup()
        exbar = end1 - T - LOOK - 1
        cms = side(cm, start=last_dma[S[4]] + 1, end=exbar - 1, follow=p2s, name="s0use")
        sides.append(cms)
        spine[exbar]["pre"].insert(0, ins("s_barrier", after=[extok]))
        spine[end1]["pre"] = stamp("pass1") + spine[end1]["pre"]
        spine[n1]["pre"] += stamp("mfma1")
        b2s = side(s.b2, start=exbar + 1, end=end1, follow=cms, name="b2")
        sides.append(b2s)
        use = {b: n for n, b in reversed(list(enumerate(seq)))}
        flat = lambda gs: [x for g in gs for x in g]
        pairs = lambda rd: [rd[k:k + 2] for k in range(0, 10, 2)]
        W = lambda i: s.w2_dma("H", i, zs[i], after=[x for j in range(i) if zs[j] == zs[i] for x in s.w2rd[("H", j)]])
        WO = lambda k: s.w2_dma("O", k, s.zo[k], after=[x for j in range(7) if zs[j] == s.zo[k] for x in s.w2rd[("H", j)]])
        RD = lambda i: pairs(s.w2_reads("H", i))
        gap, opos = p2first["gap"], OPT["opos"]
        need = {"h0": (L_S0, L_H01), "h2": (L_HB, L_H4), "o0": (L_HB, L_O)}

        def cp(key, blk):
            x = poll_check(vRow2, *need.pop(key)) + stamp("cp" + blk)
            if OPT["touch_h"]:
                x += I(f"buffer_load_dword v{vTd}, v{vTch[dict(h0=0, h2=1, o0=2)[key]]}, {srd(SWS)}, 0 offen sc1")
            return x

        HL = lambda n: s.h_load(n, seq[n])
        if OPT["touch_w"]:
            tw = touch_w2()
            lo, hi = first[OPT["tw0"]], n1 - OPT["tw1"]
            for i, x in enumerate(tw):
                spine[lo + i * (hi - lo) // len(tw)]["post"] += x
        if kv:
            zs = {0: Z0, 1: Z1, 2: Z2, 3: Z5, 4: Z6, 5: ZA, 6: ZB}
            s.zo = [Z0, Z2, Z5, Z6, Z0]
            epi0, epi, wr = kv_epilogue(s.aset, OPT["nkv"])
            prod, at = kv_product(wr)
            ha, ft = [], []
            jobs = [(acc(s.aset[5]), "Ha", ha), (acc(s.aset[6]), "Hb", ha)]
            kp = end1 + OPT["kvat"]
            sides.append(side(epi0, start=end1 + 1, end=kp, name="kvepi"))
            spine[kp]["pre"] = epi + prod + at + stamp("kvdone") + spine[kp]["pre"]
            s.spread(W(0) + W(1) + W(2), first[14], n1 - 8)
            rd0 = RD(0)
            s.sig = [(kp, L_KP, at, OPT["lag"])]
            spine[n1 - OPT["hop"] - 24]["post"].append(poll_issue(vColF, vPoll2))
            spine[n1 - OPT["hop"]]["post"] += kv_hop_load()
            e1 = sprinkle(gelu_quads(jobs, 0, 4, True), RD(1), 0, 0.9) + kv_hop_sum(ft)
            e1 += sprinkle(gelu_quads(jobs, 4, 8, True), RD(2) + [[poll_issue(vRow2)]], 0, 0.9) + stamp("expo")
            e1 += flat(W(3)) + signal(L_HB, ha + ft) + stamp("sigT") + cp("h0", seq[0]) + flat(HL(0) + HL(1))
            shadow0 = W(4) + W(5) + W(6)
            shadow = HL(2) + HL(3) + shadow0 + RD(3) + WO(0) + RD(4) + RD(5) + RD(6)
            s.spread(WO(1) + WO(2) + WO(3), p2first[opos + 1], p2first[opos + 4])
        else:
            zs = {0: Z0, 1: ZB, 2: Z2, 3: Z5, 4: Z6, 5: Z1, 6: Z0}
            s.zo = [ZB, Z2, Z5, Z6, ZB]
            os_ = side(o_setup(), start=last_dma[S[3]] + 1, end=last_dma[S[4]], follow=p2s, name="osetup")
            sides.insert(sides.index(cms), os_)
            cms["follow"] = os_
            z, ztok = am_zero()
            zsd = side(z, start=end1 + 1, end=first[14] - LOOK - 1, name="amzero")
            sides.append(zsd)
            bar[14].after += ztok
            s.spread(W(0) + W(1), first[15], first[17] + 10)
            s.spread(W(2), first[18], first[18] + 15)
            s.spread(W(3), first[19], first[19] + 12)
            rd0 = RD(0)
            tk = [[], []]
            jobs = [(acc(t), tiles[t], tk[t >= 2]) for t in range(5)]
            ns = OPT["nsq"]
            g01 = side(gelu_quads(jobs, 0, 8, False), start=end1 + 1, follow=zsd, end=n1 - OPT["g01end"], name="gelu01")
            g23 = side(gelu_quads(jobs, 8, ns, False), start=end1 + 1, end=n1, follow=g01, name="gelu23")
            sides += [g01, g23]
            e1 = sprinkle(gelu_quads(jobs, ns, 20, True), RD(1) + [[poll_issue(vRow2)]] + RD(2) + RD(3), 0, 0.9) + stamp("expo")
            e1 += cp("h0", seq[0]) + flat(HL(0) + HL(1))
            nph = OPT["nphi"]
            e1 += phi_q(s.aset, True, 0, nph) + signal(L_H4, tk[1]) + stamp("sigT") + sprinkle(phi_q(s.aset, True, nph, 10), HL(2) + W(4) + HL(3))
            spine[gap - OPT["oload"] - 30]["post"].append(poll_issue(vColF, vPoll2))
            spine[gap - OPT["oload"]]["post"] += o_load()
            spine[gap]["pre"] += ow
            s.sig = [(g01, L_H01, tk[0], OPT["lag"]), (p2first["ofin"], L_O, s.otk, OPT["lag"])]
            shadow = W(5) + W(6) + WO(0) + RD(4) + WO(1) + RD(5) + RD(6)
            s.spread(WO(2) + WO(3), p2first[opos + 1], p2first[opos + 4])
        spine[n1]["pre"] = [ins("s_barrier")] + stamp("T") + e1 + spine[n1]["pre"]
        s.n1 = n1
        s.spread(shadow, n1, gap - 2)
        lo = max(max(xfree[xa] for xa in range(0, 20, 4)) + 1, n1 - 12)
        for k in range(5):
            spine[lo + 2 * k]["post"] += rd0[k]
            spine[lo + 2 * k]["budget"] -= 2
        assert opos == HR
        spine[gap - OPT["gpoll"]]["post"].append(poll_issue(vRow2))
        held = cp("h2", seq[opos]) + flat(HL(opos))
        rest = [g for n in range(opos + 1, opos + HR) for g in HL(n)]
        if kv:
            held += flat(rest)
        else:
            s.spread(rest, p2first["o"], p2first["o"] + 12)
        spine[gap]["post"] += held
        for n in range(opos + HR, len(seq)):
            p = p2first[n - HR] + 4
            if seq[n] == "O0":
                spine[p2first[n - HR - OPT["pback"]] + 3]["post"].append(poll_issue(vRow2))
                spine[p]["pre"] += cp("o0", "O0")
            elif n % 2 == 0:
                spine[p]["pre"] += stamp("ld" + seq[n])
            for k, g in enumerate(HL(n)):
                s.pin(p + 5 * k, g)
        return o, seq, p2first, nend, use, zs

    def finish(s, o, seq, p2first, nend, use, zs):
        kv, spine, sides = s.kv, s.spine, s.sides
        a = lambda *t: o.extend(I(*t))
        aend = p2first[max(n for n, b in enumerate(seq) if b[0] == "A") + 1]
        RA, RB = s.RA, [Z2, Z5, Z6]

        def red_write(get, R):
            x = []
            for t in (1, 2, 3):
                for f in range(5):
                    ad = R[t - 1] + 1024 * f
                    x.append(ins(f"ds_write_b128 v{vRW[ad >> 16]}, {r4(get(t, f))} offset:{ad & 0xffff}"))
            return x

        def red_read():
            x = []
            for t in (1, 2, 3):
                for f in range(5):
                    d = accA(t, f)
                    x += I(f"ds_read_b128 v[{d}:{d + 3}], v{vRR[t - 1]} offset:{1024 * f}")
            return x

        def red_add(own, pk):
            x = []
            for t in (1, 2, 3):
                for f in range(5):
                    for r in range(0, 4, 2 if pk else 1):
                        d, e = own(f) + r, accA(t, f) + r
                        x += I(f"v_pk_add_f32 {pr(d)}, {pr(d)}, {pr(e)}" if pk else f"v_add_f32 v{d}, v{d}, v{e}")
            return x

        wA = red_write(lambda t, f: ("v", accA(t, f)), RA)
        for q in range(aend - 15, aend + 60):
            spine[q]["budget"] += OPT["bred"]
        for k in range(3):
            sides.insert(k, side(wA[5 * k:5 * k + 5], start=aend - 12 + 5 * k, end=aend + 6, name=f"redAw{k}"))
        spine[aend + 8]["pre"].append(ins("s_barrier", after=wA))
        xt = []
        xs = red_read() + red_add(lambda f: accA(0, f), False)
        P = accA(1, 0)
        for f in range(5):
            xs += cvt2(P + 2 * f, accA(0, f))
        for k, n in ((0, 4), (4, 4), (8, 2)):
            x = ins(f"buffer_store_dwordx{n} v[{P + k}:{P + k + n - 1}], v{vL16}, {srd(SWS)}, s{sXc} offen offset:{256 * k} sc1")
            xs.append(x); xt.append(x)
        xsd = side(xs, start=aend + 8, end=aend + 60, name="redA")
        sides.insert(3, xsd)
        s.sig.append((xsd, L_XCH, xt, OPT["lag"]))
        o0 = use["O0"]
        for k in range(5):
            rd = s.w2_reads("O", k)
            for j in range(10):
                st = spine[p2first[o0 + k - 1] + 2 * j]
                st["post"].append(rd[j]); st["budget"] -= 1
            if k == 0:
                s.spread(s.w2_dma("O", 4, s.zo[4], after=rd), p2first[o0] + 1, p2first[o0] + 12)
        assert p2first[o0 - 1] >= aend + 80
        XR, PX = 132, 144
        fo = [(vW2[0], 0), (vW2[1], 1024), (vFo2, 2048)]
        s.spread([I(f"buffer_load_dwordx4 v[{XR + 4 * i}:{XR + 4 * i + 3}], v{fo[i][0]}, {srd(SX)}, s{sRow} offen offset:{fo[i][1]}") for i in range(3)], nend - 80, nend - 70)
        s.xb_at = p2first[o0 + 3]
        spine[nend - OPT["xch"] - 25]["post"].append(poll_issue(vPar))
        px = poll_check(vPar, L_XCH) + stamp("xch") + I(f"s_xor_b32 s{sT0}, s2, 2", f"s_sub_u32 s{sT0}, s{sT0}, s2", f"s_mul_i32 s{sT0}, s{sT0}, 12288", f"s_add_u32 s{sXc}, s{sXc}, s{sT0}")
        for k, n in ((0, 4), (4, 4), (8, 2)):
            px += I(f"buffer_load_dwordx{n} v[{PX + k}:{PX + k + n - 1}], v{vL16}, {srd(SWS)}, s{sXc} offen offset:{256 * k} sc1")
        spine[nend - OPT["xch"]]["post"] += px
        for st in spine:
            st["pre"].extend(st.pop("pre2", []))
        import copy
        dry = copy.deepcopy(sides)
        merge(spine, dry, 0)
        ends = {d["name"]: d.get("done", 0) if not d.get("late") else (d["end"] or nend) for d in dry}
        if OPT["verbose"]:
            print("KV" if kv else "Q", {d["name"]: (d["start"], ends[d["name"]], d.get("late", 0)) for d in dry}, "p2first", p2first)
        n1 = p2first[0]
        for sd, level, tk, lag in s.sig:
            idx, t = (sd if isinstance(sd, int) else ends[sd["name"]]), 0
            while t < lag and idx < nend - 1:
                t += 36 if idx < n1 else 18
                idx += 1
            if idx == n1:
                idx -= 1
            spine[idx]["post"] += signal(level, tk)
        o = drop_m0(o + s.head + merge(spine, sides, 0))
        XX = OPT["x"]
        if "nohst" in XX:
            o = [y for y in o if not (y.text.startswith("buffer_store_dwordx4") and f"v{vHst}," in y.text)]
        if "now2" in XX:
            o = [y for y in o if not (y.kind == "dma" and (srd(SW2) in y.text or srd(SWO) in y.text))]
        if "nochk" in XX:
            o = [y for y in o if not (isinstance(y.note, tuple) and y.note[0] == "chk" and max(y.note[1:3]) > 1)]
        if "nopoll" in XX:
            o = [y for y in o if not (y.text.startswith("buffer_load_dword v") and (f"v{vRow2}," in y.text or f"v{vPar}," in y.text))]
        if "noH" in XX:
            o = [y for y in o if not y.text.startswith("buffer_load_dwordx4 a[")]
        if "nosc1H" in XX:
            for y in o:
                if y.text.startswith("buffer_load_dwordx4 a["):
                    y.text = y.text.replace(" sc1", "")
        if "nononce" in XX:
            o = [y for y in o if srd(SDBG) not in y.text]
        if "nosig" in XX:
            o = [y for y in o if not (isinstance(y.note, tuple) and y.note[0] == "sig" and y.note[1] > 1)]
        if "noat" in XX:
            o = [y for y in o if not y.text.startswith("buffer_atomic")]
        if "notrans" in XX:
            o = [y for y in o if y.kind != "trans"]
        if OPT["stop"]:
            cut = [i for i, x in enumerate(o) if getattr(x, "kind", "") == "stamp" and x.text in (OPT["stop"], "rt_" + OPT["stop"])][0]
            o = o[:cut + 1] + I("s_waitcnt vmcnt(0) lgkmcnt(0)")
            return s.tail(o)
        o += stamp("mfma2")
        wB = red_write(accB, RB)
        o += wB
        for t in range(3):
            a(f"v_add_u32 v{vRR[t]}, {(RB[t] - RA[t]) & 0xffffffff}, v{vRR[t]}")
        o.append(ins("s_barrier", after=wB))
        own = lambda f: accB(0, f)[1]
        o += red_read()
        for f in range(5):
            for r in range(4):
                a(f"v_dot2_f32_bf16 v{own(f) + r}, v{PX + 2 * f + r // 2}, s{sOne1 if r & 1 else sOne0}, v{own(f) + r}")
        o += red_add(own, True)
        for f in range(5):
            a(f"ds_write_b128 v{vTw}, v[{own(f)}:{own(f) + 3}] offset:{64 * f}")
        FO = 48

        def fin_store(i):
            x = I(*[f"v_cvt_pk_bf16_f32 v{FO + 8 * i + k}, v{FO + 8 * i + 2 * k}, v{FO + 8 * i + 2 * k + 1}" for k in range(4)])
            return x + I(f"buffer_store_dwordx4 v[{FO + 8 * i}:{FO + 8 * i + 3}], v{fo[i][0]}, {srd(SOUT)}, s{sRow} offen offset:{fo[i][1]}")

        for i in range(3):
            for h in range(2):
                a(f"ds_read_b128 v[{FO + 8 * i + 4 * h}:{FO + 8 * i + 4 * h + 3}], v{vTr[i]} offset:{16 * h}")
        for i in range(3):
            for k in range(4):
                d = FO + 8 * i + 2 * k
                a(f"v_dot2_f32_bf16 v{d}, v{XR + 4 * i + k}, s{sOne0}, v{d}", f"v_dot2_f32_bf16 v{d + 1}, v{XR + 4 * i + k}, s{sOne1}, v{d + 1}")
            if i:
                o += fin_store(i - 1)
        o += I("s_nop 1") + fin_store(2)
        return s.tail(o)

    def tail(s, o):
        if OPT["prof"]:
            o += stamp("end") + stamp("rt1")
            last = Ins("x", "stamp"); last.note = "last"
            o.append(last)
            o += I(f"s_lshl_b32 s{sT0}, s2, 2", f"s_add_u32 s{sT0}, s{sT0}, s{sW}", f"s_lshl_b32 s{sT0}, s{sT0}, 8", f"s_add_u32 s{sT0}, s{sT0}, {TS}",
                   f"v_lshlrev_b32 v30, 2, v{vL}", f"buffer_store_dword v31, v30, {srd(SWS)}, s{sT0} offen")
        return o + I("s_endpgm")


def check_no_deadlock(progs):
    ev = [[x.note for x in p if isinstance(x.note, tuple)] for p in progs]
    pos, lvl = [0, 0], [0, 0]
    moved = True
    while moved:
        moved = False
        for k in (0, 1):
            while pos[k] < len(ev[k]):
                e = ev[k][pos[k]]
                if e[0] == "sig":
                    assert e[1] > lvl[k], (k, e, lvl)
                    lvl[k] = e[1]
                elif lvl[0] < e[1] or lvl[1] < e[2]:
                    break
                pos[k] += 1
                moved = True
    assert pos == [len(e) for e in ev], f"circular wait: KV stuck at {ev[0][pos[0]:pos[0] + 1]}, Q at {ev[1][pos[1]:pos[1] + 1]}"


def drop_m0(items):
    out, cur = [], None
    for x in items:
        for y in (x.items if isinstance(x, Bundle) else [x]):
            if y.kind == "vmem" and y.wr == {("v", vTd)}:
                y.wr = set()
            if ("m0", 0) in y.wr:
                if y.text == cur:
                    continue
                cur = y.text
            out.append(y)
    return out


def build():
    st = {}
    pro = prologue()
    pro += I("s_bitcmp1_b32 s2, 6", "s_cbranch_scc1 L_q")
    progs = []
    for kv in (True, False):
        p = Program(kv)
        body = p.finish(*p.build())
        full = pro + ([] if kv else I("L_q:")) + body
        if OPT["prof"]:
            full = resolve_stamps(full, ts_names, sTS, 31)
        progs.append(finalize(full, stats=st))
    a_kv, a_q = progs
    if not OPT["stop"] and not OPT["x"]:
        check_no_deadlock(progs)
    iq = [i for i, x in enumerate(a_q) if x.text == "L_q:"][0]
    assert [x.text for x in a_q[:iq]] == [x.text for x in a_kv[:iq]]
    body = a_kv + a_q[iq:] + I("L_end:", "s_endpgm")
    used = {x.text.split()[1] for x in body if x.kind == "branch"}
    for sp in slow_paths:
        if sp[0].text[:-1] in used:
            body += finalize(sp)
    txt = text_of(body)
    ref = open("parallel_sum__linear_attn_block__mixer_channel_mlp__prompt.s.ref").read().split("\n")
    hdr = [l for l in ref if l.startswith(";") and "@launch" not in l and not l.startswith("; Override") and not l.startswith("; grid=")]
    src = "\n".join(hdr) + f"""
; @launch grid=(256,1,1) block=(256,1,1) lds={LDS_SIZE}
.amdgcn_target "amdgcn-amd-amdhsa--gfx950"
.text
.globl {NAME}
.p2align 8
.type {NAME},@function
{NAME}:
{txt}
L_code_end:
.fill 65536 / 4, 4, 0xbf810000
.section .rodata,"a"
.p2align 6
.amdhsa_kernel {NAME}
  .amdhsa_next_free_vgpr 512
  .amdhsa_next_free_sgpr 102
  .amdhsa_accum_offset 256
  .amdhsa_group_segment_fixed_size 0
  .amdhsa_kernarg_size 88
  .amdhsa_user_sgpr_count 2
  .amdhsa_user_sgpr_kernarg_segment_ptr 1
  .amdhsa_system_sgpr_workgroup_id_x 1
.end_amdhsa_kernel
"""
    return src, st, len(a_kv), len(a_q)


if __name__ == "__main__":
    out = sys.argv[1]
    for kvp in sys.argv[2:]:
        k, v = kvp.split("=", 1)
        OPT[k] = eval(v) if v[0] in "0123456789TFN-([" else v
    src, st, n1, n2 = build()
    open(out, "w").write(src)
    if OPT["prof"]:
        open(out + ".ts", "w").write("\n".join(ts_names))
    print("instructions", n1, n2, st)
```

```python
import sys, os, struct
sys.path.insert(0, os.path.dirname(os.path.abspath(__file__)))
from asmlib import *

NAME = "parallel_sum__linear_attn_block__mixer_channel_mlp__prompt_kernel"
OPT = dict(prof=False, only=None, b1=3.0, b1p=4.5, touch_w=False, hbsig=10, hop=4, hopp=30, hopq=(3, 7), lagkp=700, nx=14, gend=70, hpoll=30, lback=4, ybar=54, twa=(2, 9), twb=((10, 18), (10, 18)), bred=0.7, xch=6, g01end=30, oload=36, gpoll=30, kvsig=4, hearly=24, ost=0, outf='', np0=3, tlb=None, seq="A0 A1 A2 A3 A4 B0 A5 A6 B1 B2 B3 B4 B5 B6 O0 O1 O2 O3 O4", plag=700, pback=2, touch_h=True, b0=16, lag=1000, nphi=7, b2=1.6, touch_code=True, tq=4, s0=(0, 2, 5, 6, 7), sleep=4, dma1_early=False, dspan=0.4,
           nsq=10, nsk=2, stages=(0, 1, 2, 3, 4, 5, 6, 7, 8, 9), verbose=False, x=(), stop=None, nos0=False)

LDQ, LD1, LDX = 3840, 3456, 1280
FLAGS, STATS, CSUM, KVF, XCH, KVP, HB, TS = 0x0, 0x8000, 0x10000, 0x60000, 0x80000, 0x400000, 0x800000, 0x1200000
WS_SIZE = 0x1400000
OOB = 0x40000000
NB = 74
SLOT = 20480
RING2, NR2 = 2 * SLOT, 10
XS, EX, SCR, LDS_SIZE = 81920, 131072, 135168, 163840
KVT, KVT_LD = XS, 328
AM, AM_LD = XS, 176
Z0, Z1, Z2, Z5, Z6, ZA, ZB = 143360, 0, SLOT, 2 * SLOT, 3 * SLOT, XS, XS + SLOT
P_X, P_QKV, P_WO, P_BX, P_W1, P_B1, P_W2, P_B2 = 4, 6, 8, 10, 12, 14, 16, 18
P_OUT, P_DBG, P_WS = 20, 22, 24
sR2, sJ160, sBq, sBk, sE, sHA, sHB, sL6, sRow, sB6, sD2w, sD2h, sXc = range(4, 17)
sHq, sHk, sH6, sHo, sWq, sWk, sW6, sWo = range(17, 25)
sOne0, sOne1 = 88, 89
sKw, sW2k, sH4 = 90, 91, 95
sTa, sTb, sTc, sTe = 96, 97, 98, 72
sK1, sK2 = 99, 77
SX, SQKV, SW1, SWO, SW2, SWS, SOUT, SB1, SB2, SDBG = 28, 32, 36, 40, 44, 48, 52, 56, 60, 64
sW, sR, sU, sG, sP, sUnit, sNonce, sWL = 68, 69, 70, 71, 72, 73, 74, 75
sXo, sKq, sH, sT0, sT1, sT2, sT3, sLast = 76, 77, 78, 79, 80, 81, 82, 83
sEps, sHst, sXw, sCnt = 84, 85, 86, 87
sA_lo, sA_hi, sB_lo, sB_hi, sLdA, sLdB, sOffA, sOffB, sMixA, sMixB = 40, 41, 42, 43, 44, 45, 46, 47, 52, 53
sBA, sBB, sW5 = 92, 93, 94
sDx, sDw, sU64, sTS, sOst = 100, 101, 3, 26, 25
sU4 = 73
srd = lambda b: f"s[{b}:{b + 3}]"
vL = 1
vX = [2, 3, 4, 5]
vXR = [6, 7, 8, 9]
vWk = [10, 11, 12, 13, 14]
vWp = [46, 47]
vTK, vTM, vTP, vW1, vTR = [208, 209], [210, 211], [212, 213], 214, 215
vHst, vFl, vRowF, vColF, vEXr = 15, 16, 17, 18, 19
vKf, vK2, vKA, vKB, vAt, vOnes = 20, 21, 22, 23, 24, 25
vAM, vOl0, vOl1, vOw0, vOw1, vOw2, vOw3 = 20, 21, 22, 23, 24, 25, 17
vFd, vPoll, vLvl, vHiM = 26, 27, 28, 29
vRs1, vRl1, vA1, vA3, vIrs = 32, 34, 36, 38, 44
vIsQ, vPar, vL16, vTd = 33, 35, 37, 39
vXE = 40
vPoll2 = 45
acc = lambda i: 48 + 16 * i
TMP = 176
vW2 = [180, 181, 182, 183, 184]
vH = {'B': [185, 186, 187, 188], 'A': [2, 3, 4, 5]}
vT2 = [189, 190, 191]
vRW = [192, 193, 207]
vRR = [194, 195, 196]
vFo2, vTw = 197, 198
vFo = [199]
vTch = [200, 201, 206]
vTr = [202, 203, 204]
vRow2 = 205
vTW = 179
ET = 244
T0, T1, T2, T3 = 252, 253, 254, 255
aX, aW, NRING, LOOK = 0, 160, 8, 5
accA = lambda t, f: (48 + 4 * (5 * t + f)) if 5 * t + f < 16 else (208 + 4 * (5 * t + f - 16))


def accB(t, f):
    if t == 0:
        return ("v", 224 + 4 * f)
    g = 5 * (t - 1) + f
    return ("a", 140 + 4 * g) if g < 13 else ("v", 6 + 4 * (g - 13))


HR = 4
aH = lambda n, t: 192 + 16 * (n % HR) + 4 * t
wfrag = lambda kind, i, f: ("a", 20 * i + 4 * f) if kind == "E" else ("v", 112 + 20 * (i % 2) + 4 * f)
r4 = lambda x: f"{x[0]}[{x[1]}:{x[1] + 3}]"
f2u = lambda f: struct.unpack("<I", struct.pack("<f", f))[0]
LOG2E = 1.4426950408889634
C1 = -2.0 * 0.7978845608028654 * LOG2E
C3 = C1 * 0.044715
L_S0, L_KP, L_KV, L_HB = 1, 2, 3, 4
L_HQ, L_O, L_XCH = 2, 5, 6

slow_paths, ts_names, _uid = [], [], [0]


def uid(p):
    _uid[0] += 1
    return f"L_{p}{_uid[0]}"


def I(*ts):
    return [ins(t) for t in ts]


def stamp(name):
    if not OPT["prof"]:
        return []
    if OPT["only"] is not None:
        if name.startswith("rt") or (OPT["only"] != "all" and name not in OPT["only"]):
            return []
        name = "rt_" + name
    if name not in ts_names:
        ts_names.append(name)
    return [Ins(name, "stamp")]


def make_srd(b, ptr, nbytes):
    return I(f"s_mov_b32 s{b}, s{ptr}", f"s_mov_b32 s{b + 1}, s{ptr + 1}", f"s_mov_b32 s{b + 2}, {nbytes}", f"s_mov_b32 s{b + 3}, 0x20000")


def signal(level, toks):
    o = I(f"s_add_u32 s{sT3}, s{sNonce}, {level}", f"v_mov_b32 v{vFd}, s{sT3}")
    st = ins(f"buffer_store_dword v{vFd}, v{vFl}, {srd(SWS)}, 0 offen sc1", after=toks)
    st.note = ("sig", level)
    return [Bundle(o), st]


def poll_issue(vaddr, dst=vPoll):
    return ins(f"buffer_load_dword v{dst}, v{vaddr}, {srd(SWS)}, 0 offen sc1")


def poll_check(vaddr, level, qlevel=None, dst=vPoll, who="both"):
    slow, back, loop = uid("slow"), uid("back"), uid("loop")

    def test():
        o = I(f"s_add_u32 s{sT3}, s{sNonce}, {level}", f"v_subrev_u32 v{vLvl}, s{sT3}, v{dst}")
        if qlevel is not None and qlevel != level:
            o += I(f"v_mad_i32_i24 v{vLvl}, v{vIsQ}, {level - qlevel}, v{vLvl}")
        return o + I(f"v_cmp_lt_u32 vcc, 63, v{vLvl}")

    sp = I(f"{slow}:", f"s_mov_b32 s{sCnt}, 20000", f"{loop}:", f"s_sleep {OPT['sleep']}") + [poll_issue(vaddr, dst)] + I("s_waitcnt vmcnt(0)") + test()
    sp += I(f"s_cbranch_vccz {back}", f"s_sub_u32 s{sCnt}, s{sCnt}, 1", f"s_cmp_lg_u32 s{sCnt}, 0", f"s_cbranch_scc1 {loop}", f"s_branch {back}")
    slow_paths.append(sp)
    br = ins(f"s_cbranch_vccnz {slow}")
    br.note = ("chk", level if who != "q" else 0, (qlevel if qlevel is not None else level) if who != "kv" else 0, who)
    return [Bundle(test() + [br] + I(f"{back}:"))]


def nonce_check(dst):
    slow, back, loop = uid("nslow"), uid("nback"), uid("nloop")
    sp = I(f"{slow}:", f"s_mov_b32 s{sCnt}, 20000", f"{loop}:", f"s_sleep {OPT['sleep']}", f"v_mov_b32 v{dst}, 0",
           f"buffer_load_dword v{dst}, v{dst}, {srd(SDBG)}, 0 offen sc1", "s_waitcnt vmcnt(0)",
           f"v_readfirstlane_b32 s{sNonce}, v{dst}", f"s_cmp_lg_u32 s{sNonce}, 0", f"s_cbranch_scc1 {back}",
           f"s_sub_u32 s{sCnt}, s{sCnt}, 1", f"s_cmp_lg_u32 s{sCnt}, 0", f"s_cbranch_scc1 {loop}", f"s_branch {back}")
    slow_paths.append(sp)
    return [Bundle(I(f"v_readfirstlane_b32 s{sNonce}, v{dst}", f"s_cmp_eq_u32 s{sNonce}, 0", f"s_cbranch_scc1 {slow}", f"{back}:"))]


def flag_addr_row(dst, sr, t2, t3):
    return I(f"s_lshr_b32 s{sT0}, s{sr}, 3", f"s_and_b32 s{sT1}, s{sr}, 7", f"s_lshl_b32 s{sT1}, s{sT1}, 3", f"s_add_u32 s{sT0}, s{sT0}, s{sT1}",
             f"v_lshrrev_b32 v{t2}, 4, v{vL}", f"v_lshlrev_b32 v{t2}, 1, v{t2}", f"v_bfe_u32 v{t3}, v{vL}, 2, 2", f"v_lshl_add_u32 v{t2}, v{t3}, 6, v{t2}",
             f"v_add_u32 v{t2}, s{sT0}, v{t2}", f"v_and_b32 v{t3}, 3, v{vL}", f"v_lshlrev_b32 v{t3}, 2, v{t3}", f"v_lshl_add_u32 v{dst}, v{t2}, 7, v{t3}")


def flag_addr_col(dst, sg, t2, t3):
    return I(f"s_lshr_b32 s{sT0}, s{sg}, 2", f"s_lshl_b32 s{sT0}, s{sT0}, 1", f"s_and_b32 s{sT1}, s{sg}, 3", f"s_lshl_b32 s{sT1}, s{sT1}, 6", f"s_add_u32 s{sT0}, s{sT0}, s{sT1}",
             f"v_lshrrev_b32 v{t2}, 5, v{vL}", f"v_bfe_u32 v{t3}, v{vL}, 2, 3", f"v_lshl_add_u32 v{t2}, v{t3}, 3, v{t2}",
             f"v_add_u32 v{t2}, s{sT0}, v{t2}", f"v_and_b32 v{t3}, 3, v{vL}", f"v_lshlrev_b32 v{t3}, 2, v{t3}", f"v_lshl_add_u32 v{dst}, v{t2}, 7, v{t3}")


def dma_x(n):
    g = []
    for i in range(4):
        pre = I(f"s_add_u32 s{sDx}, s{sXo}, {128 * n}") if i == 0 else []
        g.append(pre + I(f"s_add_u32 m0, s{sXw}, {(n % 3) * 4096}", f"buffer_load_dwordx4 v{vX[i]}, {srd(SX)}, s{sDx} offen offset:{1024 * i} lds"))
    return g


def prologue():
    o = []
    a = lambda *t: o.extend(I(*t))
    a("s_cmp_ge_u32 s2, 256", "s_cbranch_scc1 L_end")
    a("s_load_dwordx16 s[4:19], s[0:1], 0", "s_load_dwordx4 s[20:23], s[0:1], 64", "s_load_dwordx2 s[24:25], s[0:1], 80")
    a(f"s_memrealtime s[{sNonce}:{sNonce + 1}]")
    if OPT["prof"]:
        a("v_mov_b32 v31, 0")
        o += stamp("rt0") + stamp("start")
    t0, t1, t2 = T0, T1, T2
    a(f"v_lshrrev_b32 v{t0}, 6, v0", f"v_and_b32 v{vL}, 63, v0", f"v_readfirstlane_b32 s{sW}, v{t0}")
    a(f"s_and_b32 s{sT0}, s2, 1", f"s_lshl_b32 s{sT0}, s{sT0}, 3", f"s_bfe_u32 s{sT1}, s2, 0x30003", f"s_add_u32 s{sR}, s{sT0}, s{sT1}")
    a(f"v_lshrrev_b32 v{t0}, 3, v{vL}", f"v_lshrrev_b32 v{t1}, 4, v{vL}", f"v_and_b32 v{t2}, 7, v{vL}", f"v_xor_b32 v{t2}, v{t2}, v{t1}",
      f"v_lshlrev_b32 v{t2}, 4, v{t2}", f"v_mul_u32_u24 v{t0}, {LDX}, v{t0}", f"v_add_u32 v{vX[0]}, v{t0}, v{t2}",
      f"v_xor_b32 v{vX[1]}, 64, v{vX[0]}", f"v_add_u32 v{vX[1]}, {8 * LDX - 1024}, v{vX[1]}",
      f"v_add_u32 v{vX[2]}, {16 * LDX - 2048}, v{vX[0]}", f"v_add_u32 v{vX[3]}, {16 * LDX - 2048}, v{vX[1]}")
    a(f"s_lshl_b32 s{sT0}, s{sR}, 2", f"s_add_u32 s{sT0}, s{sT0}, s{sW}", f"s_mul_i32 s{sXo}, s{sT0}, {32 * LDX}")
    a(f"s_mul_i32 s{sXw}, s{sW}, 12288", f"s_add_u32 s{sXw}, s{sXw}, {XS}")
    a(f"s_bfe_u32 s{sT0}, s2, 0x20001", f"s_lshr_b32 s{sT1}, s2, 6",
      f"s_lshl_b32 s{sG}, s{sT0}, 2", f"s_add_u32 s{sG}, s{sG}, s{sT1}", f"s_lshr_b32 s{sP}, s{sT1}, 1",
      f"s_lshl_b32 s{sU}, s{sT0}, 1", f"s_add_u32 s{sU}, s{sU}, s{sP}",
      f"s_mul_i32 s{sKq}, s{sU}, 160", f"s_mul_i32 s{sU64}, s{sU}, 384")
    a("s_mov_b32 s30, 2621440", "s_mov_b32 s31, 0x20000", "s_mov_b32 s34, 2457600", "s_mov_b32 s35, 0x20000", "s_mov_b32 s38, 2211840", "s_mov_b32 s39, 0x20000")
    assert (SX, SQKV, SW1) == (28, 32, 36)
    return o


def first_loads():
    o = I("s_waitcnt lgkmcnt(0)", f"s_mov_b32 s28, s{P_X}", f"s_mov_b32 s29, s{P_X + 1}",
          f"s_mov_b32 s32, s{P_QKV}", f"s_mov_b32 s33, s{P_QKV + 1}", f"s_mov_b32 s36, s{P_W1}", f"s_mov_b32 s37, s{P_W1 + 1}")
    return o


def nonce_publish():
    o = I(f"s_or_b32 s{sT0}, s2, s{sW}", f"s_cmp_lg_u32 s{sT0}, 0", "s_cbranch_scc1 L_nn",
          f"s_max_u32 s{sT0}, s{sNonce}, 1", f"v_mov_b32 v{T0}, s{sT0}", f"v_mov_b32 v{T1}, 0",
          f"global_store_dword v{T1}, v{T0}, s[{P_DBG}:{P_DBG + 1}] sc1")
    o[-1].ghost = True
    return o + I("L_nn:")


def div10(q, row, ch):
    return I(f"v_mul_u32_u24 v{row}, 6554, v{q}", f"v_lshrrev_b32 v{row}, 16, v{row}", f"v_mul_u32_u24 v{ch}, 10, v{row}", f"v_sub_u32 v{ch}, v{q}, v{ch}", f"v_lshlrev_b32 v{ch}, 4, v{ch}")


def wk_setup(kv):
    o = []
    for i in range(5):
        o += I(f"v_add_u32 v{T0}, {64 * i}, v{vL}") + div10(T0, T1, T2)
        if kv:
            o += I(f"v_lshrrev_b32 v{T0}, 4, v{T1}", f"v_and_b32 v{T1}, 15, v{T1}", f"v_mul_u32_u24 v{T0}, 1280, v{T0}", f"v_add_u32 v{T2}, v{T2}, v{T0}")
        o += I(f"v_mul_u32_u24 v{T1}, {LDQ}, v{T1}", f"v_add_u32 v{vWk[i]}, v{T1}, v{T2}")
        if not kv and i in (1, 2, 3):
            o += I(f"v_subrev_u32 v{vWk[i]}, {1024 * i}, v{vWk[i]}")
    return o + I(f"s_mul_i32 s{sT0}, s{sW}, {(16 if kv else 32) * LDQ}", f"s_add_u32 s{sKw}, s{sKq}, s{sT0}", f"s_mul_i32 s{sW5}, s{sW}, 5120")


def wp_setup():
    return I(f"v_lshrrev_b32 v{T0}, 3, v{vL}", f"s_lshl_b32 s{sT0}, s{sW}, 4", f"v_add_u32 v{T0}, s{sT0}, v{T0}", f"v_mul_u32_u24 v{T0}, {LD1}, v{T0}",
             f"v_bfe_u32 v{T1}, v{vL}, 4, 1", f"v_lshlrev_b32 v{T1}, 2, v{T1}", f"v_and_b32 v{T2}, 7, v{vL}", f"v_xor_b32 v{T1}, v{T1}, v{T2}",
             f"v_lshl_add_u32 v{vWp[0]}, v{T1}, 4, v{T0}", f"v_add_u32 v{vWp[1]}, {8 * LD1 - 1024}, v{vWp[0]}", f"s_lshl_b32 s{sW2k}, s{sW}, 11")


def w1_setup():
    return I(f"v_lshrrev_b32 v{T0}, 2, v0", f"v_and_b32 v{T1}, 3, v{vL}", f"v_mul_u32_u24 v{T0}, {LD1}, v{T0}", f"v_lshl_add_u32 v{vW1}, v{T1}, 4, v{T0}")


def x_read_setup():
    o = I(f"v_and_b32 v{T0}, 31, v{vL}", f"v_lshrrev_b32 v{T1}, 5, v{vL}", f"v_bfe_u32 v{T2}, v{vL}, 1, 3", f"v_xor_b32 v{T2}, v{T2}, v{T1}",
          f"v_lshlrev_b32 v{T2}, 4, v{T2}", f"v_lshl_add_u32 v{T2}, v{T0}, 7, v{T2}")
    for j in range(4):
        o += I(f"v_xor_b32 v{vXR[j]}, {32 * j}, v{T2}", f"v_add_u32 v{vXR[j]}, s{sXw}, v{vXR[j]}")
    return o


def tr_parts():
    return I(f"v_lshrrev_b32 v{T1}, 5, v{vL}", f"v_bfe_u32 v{T0}, v{vL}, 2, 2", f"v_lshl_add_u32 v{T0}, v{T1}, 3, v{T0}",
             f"v_bfe_u32 v{T1}, v{vL}, 4, 1", f"v_and_b32 v{T2}, 3, v{vL}", f"v_lshlrev_b32 v{T2}, 3, v{T2}")


def tk_setup(kv):
    o = tr_parts() + I(f"v_mul_u32_u24 v{T0}, 160, v{T0}", f"v_add_u32 v{T0}, v{T0}, v{T2}", f"v_lshl_add_u32 v{vTK[0]}, v{T1}, 5, v{T0}", f"v_add_u32 v{vTM[0]}, 128, v{T0}")
    if kv:
        o += I(f"v_mul_u32_u24 v{T1}, 2560, v{T1}", f"v_add_u32 v{vTM[0]}, v{vTM[0]}, v{T1}")
    return o + I(f"v_add_u32 v{vTK[1]}, 0x8000, v{vTK[0]}", f"v_add_u32 v{vTM[1]}, 0x8000, v{vTM[0]}")


def tp_setup(base):
    return tr_parts() + I(f"v_lshl_add_u32 v{T2}, v{T1}, 5, v{T2}", f"v_lshl_add_u32 v{T2}, v{T0}, 7, v{T2}", f"v_bfe_u32 v{T1}, v{vL}, 3, 1",
                          f"v_lshl_add_u32 v{T2}, v{T1}, 6, v{T2}", f"v_add_u32 v{vTP[0]}, {base}, v{T2}", f"v_xor_b32 v{vTP[1]}, 64, v{vTP[0]}")


def tr_setup(base):
    return tr_parts() + I(f"v_lshl_add_u32 v{T2}, v{T1}, 5, v{T2}", f"v_lshl_add_u32 v{T2}, v{T0}, 6, v{T2}", f"v_add_u32 v{vTR}, {base}, v{T2}")


def late_setup():
    o = []
    a = lambda *t: o.extend(I(*t))
    t0, t1, t2, t3 = T0, T1, T2, T3
    o += make_srd(SDBG, P_DBG, 256)
    a(f"v_mov_b32 v{vPoll2}, 0", f"buffer_load_dword v{vPoll2}, v{vPoll2}, {srd(SDBG)}, 0 offen sc1")
    o += make_srd(SB1, P_B1, 1728 * 2)
    o += make_srd(SWO, P_WO, 640 * LDX) + make_srd(SW2, P_W2, 1728 * LDX) + make_srd(SOUT, P_OUT, 2048 * LDX) + make_srd(SB2, P_B2, 1280)
    a(f"v_and_b32 v{t0}, 31, v{vL}", f"v_lshrrev_b32 v{t1}, 5, v{vL}")
    a(f"v_lshlrev_b32 v{vEXr}, 4, v{t0}", f"v_add_u32 v{vEXr}, {EX}, v{vEXr}", f"v_sub_u32 v{vHiM}, 0, v{t1}")
    a(f"v_bfe_u32 v{t2}, v{vL}, 4, 1", f"v_mul_u32_u24 v{t2}, {NB * 1024}, v{t2}", f"v_and_b32 v{t3}, 15, v{vL}",
      f"v_lshl_add_u32 v{t3}, v{t1}, 4, v{t3}", f"v_lshl_add_u32 v{vHst}, v{t3}, 4, v{t2}")
    a(f"s_lshl_b32 s{sT0}, s{sR}, 2", f"s_add_u32 s{sT0}, s{sT0}, s{sW}", f"s_mul_i32 s{sHst}, s{sT0}, {2 * NB * 1024}", f"s_add_u32 s{sHst}, s{sHst}, {HB}",
      f"s_mul_i32 s{sOst}, s{sU}, 2560", f"s_add_u32 s{sOst}, s{sOst}, s{sHst}",
      f"s_add_u32 s{sHst}, s{sHst}, {20 * 1024}", f"s_lshl_b32 s{sT0}, s{sU4}, 4", f"s_add_u32 s{sH4}, s{sHst}, s{sT0}", f"s_or_b32 s{sH4}, s{sH4}, s{sLast}",
      f"s_lshl_b32 s{sT0}, s{sU64}, 4", f"s_add_u32 s{sHst}, s{sHst}, s{sT0}")
    a(f"s_lshl_b32 s{sT0}, s2, 7", f"s_lshl_b32 s{sT1}, s{sW}, 2", f"s_add_u32 s{sT0}, s{sT0}, s{sT1}",
      f"v_mov_b32 v{vFl}, {OOB}", f"v_writelane_b32 v{vFl}, s{sT0}, 0")
    a(f"s_mov_b32 s{sEps}, {f2u(1e-6)}")
    return o


def touch_code():
    t0 = T0
    return I(f"s_getpc_b64 s[{sT0 + 1}:{sT0 + 2}]", f"s_and_b32 s{sT0 + 1}, s{sT0 + 1}, 0xffffff00", f"s_bfe_u32 s{sT0}, s2, 0x30003", f"s_lshl_b32 s{sT3}, s{sP}, 3",
             f"s_add_u32 s{sT0}, s{sT0}, s{sT3}", f"s_lshl_b32 s{sT0}, s{sT0}, 7", f"s_lshl_b32 s{sT3}, s{sW}, 14", f"s_add_u32 s{sT0}, s{sT0}, s{sT3}",
             f"v_lshlrev_b32 v{t0}, 11, v{vL}", f"v_add_u32 v{t0}, s{sT0}, v{t0}", "s_mov_b64 exec, 0xff",
             f"global_load_dword v{vTd}, v{t0}, s[{sT0 + 1}:{sT0 + 2}]", "s_mov_b64 exec, -1")


CB = 128
ST, CS, CAD, SAD, SST = CB, CB + 10, CB + 30, CB + 45, CB + 44
PA = 216


def s0_wave_params(tiles):
    o = []
    done = uid("s0p")
    for w in range(4):
        nxt = uid("s0p")
        if w < 3:
            o += I(f"s_cmp_lg_u32 s{sW}, {w}", f"s_cbranch_scc1 {nxt}")
        for name, (lo, hi, ld, off, mx, sb) in zip((tiles + ["--"])[2 * w:2 * w + 2], ((sA_lo, sA_hi, sLdA, sOffA, sMixA, sBA), (sB_lo, sB_hi, sLdB, sOffB, sMixB, sBB))):
            ish = name[0] in "H-"
            p = P_W1 if ish else P_QKV
            o += I(f"s_mov_b32 s{lo}, s{p}", f"s_mov_b32 s{hi}, s{p + 1}", f"s_mov_b32 s{ld}, {LD1 if ish else LDQ}",
                   f"s_mov_b32 s{mx}, {dict(MX=1248, QM=-32).get(name, 0)}")
            if not ish:
                o += I(f"s_add_u32 s{off}, s{sKq}, {QCOL[name]}", f"s_mov_b32 s{sb}, {OOB}")
            elif name == "--":
                o += I(f"s_mov_b32 s{off}, 0", f"s_mov_b32 s{sb}, {OOB}")
            elif name == "H4":
                o += I(f"s_or_b32 s{sb}, s{sU4}, s{sLast}", f"s_mov_b32 s{off}, s{sU4}")
            else:
                o += I(f"s_add_u32 s{off}, s{sU64}, {64 * HUNIT[name]}", f"s_mov_b32 s{sb}, s{off}")
        if w < 3:
            o += I(f"s_branch {done}", f"{nxt}:")
    o += I(f"{done}:")
    return o


QCOL = {"K0": 0, "K1": 64, "MX": 128, "V0": 1280, "V1": 1344, "Q0": 0, "Q1": 64, "QM": 128}
HUNIT = {"Ha": 0, "Hb": 1, "H0": 0, "H1": 1, "H2": 2, "H3": 3, "H4": 4}


def s0_addr(tiles):
    o = []
    a = lambda *t: o.extend(I(*t))
    t0, t1, t2, t3 = T0, T1, T2, T3
    a(f"s_lshl_b32 s{sT0}, s{sR}, 7", f"s_lshl_b32 s{sT1}, s{sG}, 3", f"s_add_u32 s{sT0}, s{sT0}, s{sT1}", f"s_lshl_b32 s{sT1}, s{sW}, 1",
      f"s_add_u32 s{sT2}, s{sT0}, s{sT1}", f"s_mul_i32 s{sH}, s{sT2}, {LDX}",
      f"v_lshrrev_b32 v{t0}, 5, v{vL}", f"v_mul_u32_u24 v{t1}, {LDX}, v{t0}", f"v_and_b32 v{t2}, 31, v{vL}", f"v_lshl_add_u32 v{SAD}, v{t2}, 3, v{t1}",
      f"v_add_u32 v{SST}, s{sT2}, v{t0}")
    o += s0_wave_params(tiles)
    ad, ld = CAD, CB + 46
    a(f"v_and_b32 v{t0}, 4, v{vL}", f"v_cmp_ne_u32 vcc, 0, v{t0}",
      f"v_mov_b32 v{ld}, s{sLdA}", f"v_mov_b32 v{t1}, s{sLdB}", f"v_cndmask_b32 v{ld}, v{ld}, v{t1}, vcc", f"v_mov_b32 v{ld + 1}, 0",
      f"v_mov_b32 v{t2}, s{sOffA}", f"v_mov_b32 v{t1}, s{sOffB}", f"v_cndmask_b32 v{t2}, v{t2}, v{t1}, vcc",
      f"v_mov_b32 v{t3}, s{sMixA}", f"v_mov_b32 v{t1}, s{sMixB}", f"v_cndmask_b32 v{t3}, v{t3}, v{t1}, vcc",
      f"v_mov_b32 v{ad}, s{sA_lo}", f"v_mov_b32 v{t1}, s{sB_lo}", f"v_cndmask_b32 v{ad}, v{ad}, v{t1}, vcc",
      f"v_mov_b32 v{ad + 1}, s{sA_hi}", f"v_mov_b32 v{t1}, s{sB_hi}", f"v_cndmask_b32 v{ad + 1}, v{ad + 1}, v{t1}, vcc",
      f"v_bfe_u32 v{t0}, v{vL}, 1, 1", f"v_mad_i32_i24 v{t2}, v{t0}, v{t3}, v{t2}",
      f"v_and_b32 v{t0}, 3, v{vL}", f"v_lshl_add_u32 v{t2}, v{t0}, 4, v{t2}",
      f"v_lshrrev_b32 v{t0}, 3, v{vL}", f"v_mul_u32_u24 v{t0}, 5, v{t0}", f"s_mul_i32 s{sT0}, s{sR}, 40", f"v_add_u32 v{t0}, s{sT0}, v{t0}",
      f"v_mad_u32_u24 v{t2}, v{t0}, v{ld}, v{t2}", f"v_mov_b32 v{t3}, 0",
      f"v_lshl_add_u64 v[{ad}:{ad + 1}], v[{t2}:{t3}], 0, v[{ad}:{ad + 1}]")
    for i in range(4):
        a(f"v_lshl_add_u64 v[{ad + 2 * i + 2}:{ad + 2 * i + 3}], v[{ld}:{ld + 1}], 0, v[{ad + 2 * i}:{ad + 2 * i + 1}]")
    return o


def s0_mem():
    o = [I(f"buffer_load_dwordx2 v[{ST + 2 * m}:{ST + 2 * m + 1}], v{SAD}, {srd(SX)}, s{sH} offen offset:{256 * m}") for m in range(5)]
    o += [I(f"global_load_dwordx4 v[{CS + 4 * i}:{CS + 4 * i + 3}], v[{CAD + 2 * i}:{CAD + 2 * i + 1}], off") for i in range(5)]
    return o


def reduce32(x, t):
    o = []
    for n in (8, 4, 2, 1):
        o += I(f"v_add_f32_dpp v{x}, v{x}, v{x} row_ror:{n} row_mask:0xf bank_mask:0xf")
    return o + I(f"v_mov_b32 v{t}, v{x}", f"v_permlane16_swap_b32 v{x}, v{t}", f"v_add_f32 v{x}, v{x}, v{t}")


def weave(*streams):
    out, streams = [], [list(s) for s in streams]
    while any(streams):
        for s in streams:
            if s:
                out.append(s.pop(0))
    return out


def s0_produce(kv):
    st, cs, stores = [], [], []
    a = lambda *t: st.extend(I(*t))
    s0, s1, t = CB + 40, CB + 41, CB + 42
    a(f"s_mov_b32 s{sCnt}, 0x3f803f80")
    for m in range(10):
        a(f"v_dot2_f32_bf16 v{s0}, v{ST + m}, s{sCnt}, {'0' if m == 0 else 'v%d' % s0}", f"v_dot2_f32_bf16 v{s1}, v{ST + m}, v{ST + m}, {'0' if m == 0 else 'v%d' % s1}")
    a(f"v_lshlrev_b32 v{SST}, 3, v{SST}", f"v_add_u32 v{SST}, {STATS}, v{SST}", f"v_and_b32 v{t}, 31, v{vL}", f"v_min_u32 v{t}, 1, v{t}", f"v_lshl_add_u32 v{SST}, v{t}, 30, v{SST}")
    red = weave(reduce32(s0, t), reduce32(s1, CB + 43))
    red += I(f"v_mul_f32 v{s0}, {f2u(1 / 640)}, v{s0}", f"v_mul_f32 v{s1}, {f2u(1 / 640)}, v{s1}", f"v_fma_f32 v{s1}, -v{s0}, v{s0}, v{s1}", f"v_max_f32 v{s1}, 0, v{s1}")
    stores.append(ins(f"buffer_store_dwordx2 v[{s0}:{s1}], v{SST}, {srd(SWS)}, 0 offen sc1"))
    a = lambda *t: cs.extend(I(*t))
    A, ta, tb = CAD, CB + 46, CB + 47
    for i in range(5):
        for k in range(4):
            for h in range(2):
                d = A + 2 * k + h
                a(f"v_dot2_f32_bf16 v{d}, v{CS + 4 * i + k}, s{sOne1 if h else sOne0}, {'0' if i == 0 else 'v%d' % d}")
    n1 = len(cs)
    a(f"v_and_b32 v{ta}, 7, v{vL}", f"v_lshlrev_b32 v{ta}, 5, v{ta}", f"v_lshrrev_b32 v{tb}, 5, v{vL}", f"v_lshl_add_u32 v{ta}, v{tb}, 4, v{ta}")
    for i in range(4):
        a(f"v_permlane32_swap_b32 v{A + i}, v{A + i + 4}")
    for i in range(4):
        a(f"v_add_f32 v{A + i}, v{A + i}, v{A + i + 4}")
    a(f"v_bfe_u32 v{tb}, v{vL}, 4, 1", f"v_lshl_add_u32 v{ta}, v{tb}, 3, v{ta}")
    for i in range(2):
        a(f"v_permlane16_swap_b32 v{A + i}, v{A + i + 2}")
    for i in range(2):
        a(f"v_add_f32 v{A + i}, v{A + i}, v{A + i + 2}")
    a(f"v_bfe_u32 v{tb}, v{vL}, 3, 1", f"v_lshl_add_u32 v{ta}, v{tb}, 30, v{ta}")
    for i in range(2):
        a(f"v_add_f32_dpp v{A + i}, v{A + i}, v{A + i} row_ror:8 row_mask:0xf bank_mask:0xf")
    a(f"s_lshl_b32 s{sH}, s{sG}, 4", f"s_add_u32 s{sH}, s{sH}, s{sR}", f"s_lshl_b32 s{sH}, s{sH}, 2", f"s_add_u32 s{sH}, s{sH}, s{sW}",
      f"s_lshl_b32 s{sH}, s{sH}, 8", f"s_add_u32 s{sH}, s{sH}, {CSUM}", f"v_add_u32 v{ta}, s{sH}, v{ta}")
    stores.append(ins(f"buffer_store_dwordx2 v[{A}:{A + 1}], v{ta}, {srd(SWS)}, 0 offen sc1"))
    return st + cs[:n1] + weave(red, bundled(cs[n1:])), stores


def s0_consume_loads():
    o = stamp("prepoll") + poll_check(vRowF, L_S0, dst=vPoll) + poll_check(vColF, L_S0, dst=vPoll2) + stamp("polled")
    a = lambda *t: o.extend(I(*t))
    a(f"buffer_load_dwordx2 v[{CB}:{CB + 1}], v{PA}, {srd(SWS)}, 0 offen sc1")
    for m in range(4):
        a(f"buffer_load_dwordx4 v[{CB + 4 + 4 * m}:{CB + 7 + 4 * m}], v{PA + 1 + m}, {srd(SWS)}, 0 offen sc1")
    a(f"buffer_load_ushort v{CB + 27}, v{PA + 5}, {srd(SB1)}, 0 offen")
    return o


def s0_consume_addr():
    o = []
    a = lambda *t: o.extend(I(*t))
    t0, t1 = T0, T1
    o += flag_addr_row(vRowF, sR, t0, t1) + flag_addr_col(vColF, sG, t0, t1)
    a(f"v_and_b32 v{t0}, 31, v{vL}", f"v_lshlrev_b32 v{t0}, 3, v{t0}", f"s_lshl_b32 s{sT0}, s{sR}, 2", f"s_add_u32 s{sT0}, s{sT0}, s{sW}",
      f"s_lshl_b32 s{sT0}, s{sT0}, 8", f"s_add_u32 s{sT0}, s{sT0}, {STATS}", f"v_add_u32 v{PA}, s{sT0}, v{t0}")
    a(f"v_lshrrev_b32 v{t0}, 4, v{vL}", f"v_lshlrev_b32 v{t0}, 10, v{t0}", f"v_and_b32 v{t1}, 15, v{vL}", f"v_lshl_add_u32 v{t0}, v{t1}, 4, v{t0}",
      f"s_lshl_b32 s{sT0}, s{sG}, 14", f"s_lshl_b32 s{sT1}, s{sW}, 8", f"s_add_u32 s{sT0}, s{sT0}, s{sT1}", f"s_add_u32 s{sT0}, s{sT0}, {CSUM}",
      f"v_add_u32 v{PA + 1}, s{sT0}, v{t0}")
    for m in range(1, 4):
        a(f"v_add_u32 v{PA + 1 + m}, {4096 * m}, v{PA + 1}")
    p = PA + 6
    a(f"v_lshlrev_b32 v{p}, 2, v{t1}", f"v_lshrrev_b32 v{t0}, 5, v{vL}", f"v_lshl_add_u32 v{p}, v{t0}, 1, v{p}", f"v_bfe_u32 v{t0}, v{vL}, 4, 1", f"v_add_u32 v{p}, v{p}, v{t0}",
      f"v_cmp_le_u32 vcc, 32, v{p}", f"v_mov_b32 v{t0}, s{sBA}", f"v_mov_b32 v{t1}, s{sBB}", f"v_cndmask_b32 v{t0}, v{t0}, v{t1}, vcc",
      f"v_and_b32 v{t1}, 31, v{p}", f"v_lshl_add_u32 v{PA + 5}, v{t1}, 1, v{t0}",
      f"v_lshlrev_b32 v{p}, 4, v{p}", f"v_add_u32 v{p}, s{sWL}, v{p}", f"v_add_u32 v{p}, {EX}, v{p}")
    return o


def s0_consume_math():
    x, y = [], []
    a = lambda *t: x.extend(I(*t))
    m, var = CB, CB + 1
    t0, t1, t2, t3 = CB + 28, CB + 29, CB + 30, CB + 31
    e5 = f2u(1e-5)
    a(f"v_add_f32 v{t0}, {e5}, v{var}", f"v_rsq_f32 v{vRs1}, v{t0}", f"v_mul_f32 v{t1}, v{var}, v{vRs1}", f"v_mul_f32 v{t1}, v{t1}, v{vRs1}",
      f"v_add_f32 v{t1}, {e5}, v{t1}", f"v_rsq_f32 v{t1}, v{t1}", f"v_mul_f32 v{vRl1}, {f2u(LOG2E)}, v{vRs1}", f"v_mul_f32 v{t1}, v{t1}, v{vRs1}",
      f"v_rcp_f32 v{vIrs}, v{t1}", f"v_mul_f32 v{vA1}, {f2u(C1)}, v{t1}", f"v_mul_f32 v{t2}, v{t1}, v{t1}", f"v_mul_f32 v{t2}, v{t2}, v{t1}",
      f"v_mul_f32 v{vA3}, {f2u(C3)}, v{t2}")
    a(f"v_sub_f32 v{m}, 0, v{m}", f"v_cvt_pk_bf16_f32 v{t0}, v{m}, v{m}", f"v_and_b32 v{t0}, 0xffff0000, v{t0}", f"v_sub_f32 v{t2}, v{m}, v{t0}",
      f"v_cvt_pk_bf16_f32 v{vXE}, v{t0}, v{t2}",
      f"v_cvt_pk_bf16_f32 v{t0}, v{vIrs}, v{vIrs}", f"v_and_b32 v{t0}, 0xffff0000, v{t0}", f"v_sub_f32 v{t2}, v{vIrs}, v{t0}",
      f"v_cvt_pk_bf16_f32 v{vXE + 2}, v{t0}, v{t2}", f"v_and_b32 v{t0}, 0xffff0000, v{vXE + 2}", f"v_sub_f32 v{t2}, v{t2}, v{t0}",
      f"v_cvt_pk_bf16_f32 v{vXE + 3}, v{t2}, 0",
      f"v_not_b32 v{t3}, v{vHiM}", f"v_and_b32 v{vXE}, v{vXE}, v{t3}", f"v_and_b32 v{vXE + 2}, v{vXE + 2}, v{t3}", f"v_and_b32 v{vXE + 3}, v{vXE + 3}, v{t3}",
      f"v_mov_b32 v{vXE + 1}, v{vXE}")
    a = lambda *t: y.extend(I(*t))
    B, u0 = CB + 4, CB + 32
    for mm in range(1, 4):
        for k in range(4):
            a(f"v_add_f32 v{B + k}, v{B + k}, v{B + 4 * mm + k}")
    a(f"v_permlane32_swap_b32 v{B}, v{B + 2}", f"v_permlane32_swap_b32 v{B + 1}, v{B + 3}",
      f"v_add_f32 v{B}, v{B}, v{B + 2}", f"v_add_f32 v{B + 1}, v{B + 1}, v{B + 3}",
      f"v_permlane16_swap_b32 v{B}, v{B + 1}", f"v_add_f32 v{B}, v{B}, v{B + 1}")
    Rr = CB + 24
    a(f"v_cvt_pk_bf16_f32 v{Rr}, v{B}, v{B}", f"v_and_b32 v{u0}, 0xffff0000, v{Rr}", f"v_sub_f32 v{u0}, v{B}, v{u0}",
      f"v_cvt_pk_bf16_f32 v{Rr + 1}, v{u0}, v{u0}", f"v_lshl_or_b32 v{Rr + 2}, v{Rr + 3}, 16, v{Rr + 3}")
    w = ins(f"ds_write_b128 v{PA + 6}, v[{Rr}:{Rr + 3}]")
    return weave(y + [w], x), w


pr = lambda r: f"v[{r}:{r + 1}]"


def cvt2(dst, tb):
    return I(f"v_cvt_pk_bf16_f32 v{dst}, v{tb}, v{tb + 1}", f"v_cvt_pk_bf16_f32 v{dst + 1}, v{tb + 2}, v{tb + 3}")


def gelu_quad(A, dst, tb, pk=False):
    o = []
    each = lambda f, n=4, s=1: [o.extend(I(f(i))) for i in range(0, n, s)]
    if pk:
        each(lambda i: f"v_pk_mul_f32 {pr(tb + i)}, {pr(A + i)}, {pr(A + i)}", 4, 2)
        each(lambda i: f"v_pk_fma_f32 {pr(tb + i)}, {pr(tb + i)}, {pr(vA3)}, {pr(vA1)} op_sel_hi:[1,0,0]", 4, 2)
        each(lambda i: f"v_pk_mul_f32 {pr(tb + i)}, {pr(tb + i)}, {pr(A + i)}", 4, 2)
        each(lambda i: f"v_exp_f32 v{tb + i}, v{tb + i}")
        each(lambda i: f"v_pk_fma_f32 {pr(tb + i)}, {pr(tb + i)}, {pr(vIrs)}, {pr(vIrs)} op_sel_hi:[1,0,0]", 4, 2)
        each(lambda i: f"v_rcp_f32 v{tb + i}, v{tb + i}")
        each(lambda i: f"v_pk_mul_f32 {pr(tb + i)}, {pr(tb + i)}, {pr(A + i)}", 4, 2)
    else:
        each(lambda i: f"v_mul_f32 v{tb + i}, v{A + i}, v{A + i}")
        each(lambda i: f"v_fma_f32 v{tb + i}, v{tb + i}, v{vA3}, v{vA1}")
        each(lambda i: f"v_mul_f32 v{tb + i}, v{tb + i}, v{A + i}")
        each(lambda i: f"v_exp_f32 v{tb + i}, v{tb + i}")
        each(lambda i: f"v_fma_f32 v{tb + i}, v{tb + i}, v{vIrs}, v{vIrs}")
        each(lambda i: f"v_rcp_f32 v{tb + i}, v{tb + i}")
        each(lambda i: f"v_mul_f32 v{tb + i}, v{tb + i}, v{A + i}")
    return o + cvt2(dst, tb)


def phi_quad(A, dst, tb, pk=False):
    o = []
    each = lambda f, n=4, s=1: [o.extend(I(f(i))) for i in range(0, n, s)]
    if pk:
        each(lambda i: f"v_pk_mul_f32 {pr(tb + i)}, {pr(A + i)}, {pr(vRl1)} op_sel_hi:[1,0]", 4, 2)
        each(lambda i: f"v_pk_fma_f32 {pr(A + i)}, {pr(A + i)}, {pr(vRs1)}, 1.0 op_sel_hi:[1,0,0]", 4, 2)
    else:
        each(lambda i: f"v_mul_f32 v{tb + i}, v{A + i}, v{vRl1}")
        each(lambda i: f"v_fma_f32 v{A + i}, v{A + i}, v{vRs1}, 1.0")
    each(lambda i: f"v_exp_f32_e64 v{tb + i}, v{tb + i} clamp")
    each(lambda i: f"v_max_f32 v{tb + i}, v{tb + i}, v{A + i}")
    if pk:
        each(lambda i: f"v_pk_add_f32 {pr(tb + i)}, {pr(tb + i)}, s[{sEps}:{sEps + 1}] op_sel_hi:[1,0]", 4, 2)
    else:
        each(lambda i: f"v_add_f32 v{tb + i}, s{sEps}, v{tb + i}")
    return o + cvt2(dst, tb)


def lin_quad(A, dst, tb, pk=False):
    o = []
    if pk:
        for i in (0, 2): o += I(f"v_pk_mul_f32 {pr(tb + i)}, {pr(A + i)}, {pr(vRs1)} op_sel_hi:[1,0]")
    else:
        for i in range(4): o += I(f"v_mul_f32 v{tb + i}, v{A + i}, v{vRs1}")
    return o + cvt2(dst, tb)


def gelu_quads(jobs, lo, hi, pk):
    o = []
    for n in range(lo, hi):
        A, name, toks = jobs[n // 4]
        gq, h = n % 4, (n % 4) // 2
        if gq == 0 or n == lo:
            pass
        o += gelu_quad(A + 4 * gq, A + 8 * h + 2 * (gq & 1), ET + 4 * (gq & 1), pk)
        if gq & 1:
            x = ins(f"buffer_store_dwordx4 v[{A + 8 * h}:{A + 8 * h + 3}], v{vHst}, {srd(SWS)}, s{sH4 if name == 'H4' else sHst} offen offset:{512 * h + 1024 * (HUNIT[name] % 4)} sc1")
            o.append(x); toks.append(x)
    return o


def kv_setup():
    o = []
    a = lambda *t: o.extend(I(*t))
    t0, t1, t2 = T0, T1, T2
    a(f"v_and_b32 v{t0}, 31, v{vL}", f"s_lshl_b32 s{sT0}, s{sW}, 5", f"v_add_u32 v{t0}, s{sT0}, v{t0}", f"v_mul_u32_u24 v{t0}, {KVT_LD}, v{t0}",
      f"v_add_u32 v{t0}, {KVT}, v{t0}", f"v_add_u32 v{vOnes}, 320, v{t0}",
      f"v_lshrrev_b32 v{t1}, 5, v{vL}", f"v_lshl_add_u32 v{vKf}, v{t1}, 3, v{t0}")
    a(f"v_bfe_u32 v{t0}, v{vL}, 2, 2", f"v_lshl_add_u32 v{t0}, v{t1}, 3, v{t0}", f"v_mul_u32_u24 v{t0}, {KVT_LD}, v{t0}", f"v_add_u32 v{t0}, {KVT}, v{t0}",
      f"v_bfe_u32 v{t1}, v{vL}, 4, 1", f"v_and_b32 v{t2}, 3, v{vL}", f"v_lshl_add_u32 v{t1}, v{t1}, 2, v{t2}",
      f"s_mul_i32 s{sT0}, s{sW}, 40", f"v_lshl_add_u32 v{vKB}, v{t1}, 3, v{t0}", f"v_add_u32 v{vKB}, s{sT0}, v{vKB}",
      f"v_add_u32 v{vKA}, 160, v{vKB}", f"v_add_u32 v{t0}, 320, v{t0}", f"v_cmp_eq_u32 vcc, 5, v{t1}", f"v_cndmask_b32 v{vKA}, v{vKA}, v{t0}, vcc")
    a(f"v_and_b32 v{t0}, 31, v{vL}", f"v_cmp_gt_u32 vcc, 24, v{t0}", f"v_lshlrev_b32 v{t0}, 3, v{t0}", f"v_and_b32 v{t1}, 192, v{vHiM}", f"v_add_u32 v{t0}, v{t0}, v{t1}",
      f"s_lshl_b32 s{sT0}, s{sU}, 2", f"s_add_u32 s{sT0}, s{sT0}, s{sW}", f"s_lshl_b32 s{sT0}, s{sT0}, 4", f"s_add_u32 s{sT0}, s{sT0}, s{sR}", f"s_mul_i32 s{sT0}, s{sT0}, 1280",
      f"s_add_u32 s{sT0}, s{sT0}, {KVP}", f"v_add_u32 v{t0}, s{sT0}, v{t0}", f"v_mov_b32 v{vAt}, {OOB}", f"v_cndmask_b32 v{vAt}, v{vAt}, v{t0}, vcc")
    return o


def kv_epilogue(aset, nshadow):
    blk = I(f"v_mov_b32 v{T2}, 0x3f803f80", f"v_mov_b32 v{T3}, 0x3f803f80")
    ones = ins(f"ds_write_b64 v{vOnes}, v[{T2}:{T3}]")
    blk.append(ones)
    wr, parts, n = [ones], [blk, []], 0
    for t, kind, cb in [(0, "k", 0), (1, "k", 64), (2, "m", 128), (3, "v", 160), (4, "v", 224)]:
        A = acc(aset[t])
        for g in range(4):
            isk = kind == "k" or (kind == "m" and g < 2)
            pk = n >= nshadow
            off = cb + 16 * g if kind != "m" else cb + (16 * g if g < 2 else 160 + 16 * (g - 2))
            x = ins(f"ds_write_b64 v{vKf}, v[{A + 4 * g}:{A + 4 * g + 1}] offset:{off}")
            parts[pk] += (phi_quad if isk else lin_quad)(A + 4 * g, A + 4 * g, ET + 4 * (g & 1), pk) + [x]
            wr.append(x)
            n += 1
    return parts[0], parts[1], wr


def kv_product(wr):
    blk = [ins("s_barrier", after=wr)]
    KA, FR = acc(1), acc(2)
    rd = []
    for j in range(8):
        f = FR + 8 * (j % 4)
        rd.append(I(f"ds_read_b64_tr_b16 v[{f}:{f + 1}], v{vKA} offset:{16 * j * KVT_LD}", f"ds_read_b64_tr_b16 v[{f + 2}:{f + 3}], v{vKA} offset:{(16 * j + 4) * KVT_LD}",
                    f"ds_read_b64_tr_b16 v[{f + 4}:{f + 5}], v{vKB} offset:{16 * j * KVT_LD}", f"ds_read_b64_tr_b16 v[{f + 6}:{f + 7}], v{vKB} offset:{(16 * j + 4) * KVT_LD}"))
    blk += rd[0] + rd[1] + rd[2]
    for j in range(8):
        f = FR + 8 * (j % 4)
        c = "0" if j == 0 else f"v[{KA}:{KA + 15}]"
        blk += I(f"v_mfma_f32_32x32x16_bf16 v[{KA}:{KA + 15}], v[{f + 4}:{f + 7}], v[{f}:{f + 3}], {c}")
        if j + 3 < 8:
            blk += rd[j + 3]
    at = []
    for q in range(3):
        at.append(ins(f"buffer_store_dwordx2 v[{KA + 4 * q}:{KA + 4 * q + 1}], v{vAt}, {srd(SWS)}, 0 offen offset:{384 * q} sc1"))
        blk += cvt2(KA + 4 * q, KA + 4 * q) + at[-1:]
    return blk, at


PQ = 128
OA = [112, 148, 164]


def o_setup():
    o = []
    a = lambda *t: o.extend(I(*t))
    t0, t1, t2, t3 = T0, T1, T2, T3
    a(f"s_sub_u32 s{sT2}, s{sG}, 1")
    o += flag_addr_col(vColF, sT2, t2, t3)
    a(f"s_lshl_b32 s{sK1}, s{sU}, 2", f"s_add_u32 s{sK1}, s{sK1}, s{sW}", f"s_mul_i32 s{sK1}, s{sK1}, 20480", f"s_add_u32 s{sK1}, s{sK1}, {KVP}",
      f"v_cmp_gt_u32 vcc, 60, v{vL}", f"v_lshlrev_b32 v{t0}, 4, v{vL}", f"v_mov_b32 v{vOl0}, {OOB}", f"v_cndmask_b32 v{vOl0}, v{vOl0}, v{t0}, vcc")
    for i, vw in enumerate((vOw0, vOw1)):
        a(f"v_lshl_add_u32 v{t0}, v{vL}, 1, {i}", f"v_mul_u32_u24 v{t2}, 2731, v{t0}", f"v_lshrrev_b32 v{t2}, 16, v{t2}",
          f"v_mul_u32_u24 v{t1}, 24, v{t2}", f"v_sub_u32 v{t1}, v{t0}, v{t1}",
          f"v_mul_u32_u24 v{t0}, 5, v{t2}", f"v_subrev_u32 v{t0}, 4, v{t0}", f"v_max_i32 v{t0}, v{t0}, v{t1}")
        a(f"s_mul_i32 s{sT0}, s{sW}, 5", f"v_add_u32 v{t2}, s{sT0}, v{t2}",
          f"v_lshrrev_b32 v{t3}, 2, v{t2}", f"v_lshlrev_b32 v{vw}, 5, v{t3}", f"v_and_b32 v{t3}, 1, v{t2}", f"v_lshl_add_u32 v{vw}, v{t3}, 4, v{vw}",
          f"v_bfe_u32 v{t3}, v{t2}, 1, 1", f"v_lshl_add_u32 v{vw}, v{t3}, 3, v{vw}", f"v_add_u32 v{vw}, {AM}, v{vw}")
        v2 = (vOw2, vOw3)[i]
        a(f"s_mul_i32 s{sT0}, s{sW}, 20", f"v_add_u32 v{t2}, s{sT0}, v{t1}",
          f"s_add_u32 s{sT0}, s{sW}, 80", f"v_mov_b32 v{t3}, s{sT0}", f"v_cmp_eq_u32 vcc, 20, v{t1}", f"v_cndmask_b32 v{t2}, v{t2}, v{t3}, vcc",
          f"v_mul_u32_u24 v{t2}, {AM_LD}, v{t2}", f"v_add_u32 v{vw}, v{vw}, v{t2}",
          f"v_add_u32 v{t2}, {4 * AM_LD}, v{vw}", f"v_cndmask_b32 v{v2}, v{vw}, v{t2}, vcc")
        a(f"v_cmp_lt_u32 vcc, 20, v{t0}", f"v_mov_b32 v{t2}, {SCR}", f"v_cndmask_b32 v{vw}, v{vw}, v{t2}, vcc", f"v_cndmask_b32 v{v2}, v{v2}, v{t2}, vcc")
    a(f"v_and_b32 v{t0}, 31, v{vL}", f"v_mul_u32_u24 v{t0}, {AM_LD}, v{t0}", f"v_and_b32 v{t1}, 16, v{vHiM}", f"v_add_u32 v{t0}, v{t0}, v{t1}", f"v_add_u32 v{vAM}, {AM}, v{t0}")
    return o


def am_zero():
    o = I(*[f"v_mov_b32 v{ET + k}, 0" for k in range(4)], f"v_lshlrev_b32 v{ET + 4}, 4, v0", f"v_add_u32 v{ET + 4}, {AM}, v{ET + 4}")
    tk = [ins(f"ds_write_b128 v{ET + 4}, v[{ET}:{ET + 3}] offset:{4096 * k}") for k in range(5)]
    return o + tk, tk


def phi_q(aset, pk, lo, hi):
    o = []
    for n in range(lo, hi):
        A = acc(aset[5 + n // 4]) + 4 * (n % 4)
        o += phi_quad(A, PQ + 2 * n, ET + 4 * (n & 1), pk)
    return o


KL, KS = 48, 112


def o_load():
    g = []
    for r in range(16):
        g.append((I(f"s_add_u32 s{sK1}, s{sK1}, 5120") if r and r % 4 == 0 else []) +
                 I(f"buffer_load_dwordx4 v[{KL + 4 * r}:{KL + 4 * r + 3}], v{vOl0}, {srd(SWS)}, s{sK1} offen offset:{1280 * (r % 4)} sc1"))
    return poll_check(vColF, L_KP, dst=vPoll2, who="kv") + stamp("kvseen"), g


def o_write():
    o = []
    for r in range(16):
        for k in range(8):
            o += I(f"v_dot2_f32_bf16 v{KS + k}, v{KL + 4 * r + k // 2}, s{sOne1 if k & 1 else sOne0}, {'0' if r == 0 else 'v%d' % (KS + k)}")
    o += cvt2(KS, KS) + cvt2(KS + 2, KS + 4)
    wr = [ins(f"ds_write_b64 v{vw}, v[{KS + 2 * i}:{KS + 2 * i + 1}]") for i, vw in ((0, vOw0), (0, vOw2), (1, vOw1), (1, vOw3))]
    return o + wr, wr


def o_steps():
    seq = [(T, k) for T in (2, 0, 1) for k in range(5)]
    fr = lambda n: r4([("v", ET), ("v", ET + 4), ("v", T0)][n % 3])
    rd = lambda n: I(f"ds_read_b128 {fr(n)}, v{vAM} offset:{seq[n][0] * 32 * AM_LD + 32 * seq[n][1]}")
    steps = []
    for n, (T, k) in enumerate(seq):
        pre = []
        if n == 0:
            pre = rd(0) + rd(1)
        c = "0" if k == 0 else f"v[{OA[T]}:{OA[T] + 15}]"
        m = ins(f"v_mfma_f32_32x32x16_bf16 v[{OA[T]}:{OA[T] + 15}], {fr(n)}, v[{PQ + 4 * k}:{PQ + 4 * k + 3}], {c}")
        steps.append(dict(pre=pre, mfma=m, post=rd(n + 2) if n + 2 < 15 else [], budget=0))
    return steps


def o_finish(toks):
    o = []
    a = lambda *t: o.extend(I(*t))
    rc = ET
    for h in range(4): a(f"v_add_f32 v{rc + h}, s{sEps}, v{OA[2] + 8 + h}")
    for h in range(4): a(f"v_rcp_f32 v{rc + h}, v{rc + h}")
    a(f"v_bfi_b32 v{rc + 4}, v{vHiM}, v{rc + 1}, v{rc}", f"v_bfi_b32 v{rc + 5}, v{vHiM}, v{rc + 3}, v{rc + 2}")
    for i in (4, 0, 1, 2, 3):
        A = OA[i >> 1] + 8 * (i & 1)
        for gq in range(2):
            e0 = 16 * i + 8 * gq
            rr = {16: rc + 4, 56: rc + 5}.get(e0, rc + e0 // 20)
            sel = "op_sel:[0,1] op_sel_hi:[1,1]" if rr & 1 else "op_sel_hi:[1,0]"
            for k in (0, 2): a(f"v_pk_mul_f32 {pr(A + 4 * gq + k)}, {pr(A + 4 * gq + k)}, {pr(rr & ~1)} {sel}")
            o += cvt2(A + 2 * gq, A + 4 * gq)
        x = ins(f"buffer_store_dwordx4 v[{A}:{A + 3}], v{vHst}, {srd(SWS)}, s{sOst} offen offset:{512 * i} sc1")
        o.append(x); toks.append(x)
    return o


def p2_setup(RA):
    o = []
    a = lambda *t: o.extend(I(*t))
    t0, t1, t2 = T0, T1, T2
    a(f"s_and_b32 s{sT0}, s2, 1", f"s_lshl_b32 s{sT0}, s{sT0}, 3", f"s_and_b32 s{sT1}, s2, 4", f"s_add_u32 s{sT0}, s{sT0}, s{sT1}",
      f"s_bfe_u32 s{sT1}, s2, 0x20003", f"s_add_u32 s{sR2}, s{sT0}, s{sT1}",
      f"s_lshr_b32 s{sT1}, s2, 5", f"s_mul_i32 s{sJ160}, s{sT1}, 160",
      f"s_bfe_u32 s{sT2}, s2, 0x10001",
      f"s_lshl_b32 s{sE}, s{sT2}, 2", f"s_add_u32 s{sE}, s{sE}, s{sW}",
      f"s_and_b32 s{sT0}, s{sW}, 1", f"s_lshl_b32 s{sT0}, s{sT0}, 1", f"s_mul_i32 s{sBq}, s{sE}, 6", f"s_sub_u32 s{sBq}, s{sBq}, s{sT0}",
      f"s_sub_u32 s{sBk}, s{sBq}, s{sT0}", f"s_add_u32 s{sBq}, s{sBq}, 4",
      f"s_sub_u32 s{sB6}, s{sE}, s{sT2}", f"s_add_u32 s{sB6}, s{sB6}, 48", f"s_cmp_eq_u32 s{sW}, 3", f"s_cselect_b32 s{sL6}, {OOB}, 0",
      f"s_lshl_b32 s{sT0}, s{sR2}, 1", f"s_add_u32 s{sT1}, s{sT0}, s{sT2}",
      f"s_mul_i32 s{sHB}, s{sT1}, {4 * NB * 1024}", f"s_add_u32 s{sHB}, s{sHB}, {HB}",
      f"s_lshl_b32 s{sRow}, s{sT1}, 2", f"s_add_u32 s{sRow}, s{sRow}, s{sW}", f"s_mul_i32 s{sRow}, s{sRow}, {16 * LDX}", f"s_add_u32 s{sRow}, s{sRow}, s{sJ160}",
      f"s_xor_b32 s{sT1}, s{sT1}, 1", f"s_mul_i32 s{sHA}, s{sT1}, {4 * NB * 1024}", f"s_add_u32 s{sHA}, s{sHA}, {HB}")
    a(f"s_add_u32 s{sT0}, s{sBq}, 20", f"s_lshl_b32 s{sHq}, s{sT0}, 10", f"s_add_u32 s{sT0}, s{sBk}, 20", f"s_lshl_b32 s{sHk}, s{sT0}, 10",
      f"s_add_u32 s{sT0}, s{sB6}, 20", f"s_lshl_b32 s{sH6}, s{sT0}, 10", f"s_or_b32 s{sH6}, s{sH6}, s{sL6}", f"s_lshl_b32 s{sHo}, s{sW}, 10",
      f"s_mul_i32 s{sWq}, s{sBq}, {32 * LDX}", f"s_add_u32 s{sWq}, s{sWq}, s{sJ160}", f"s_mul_i32 s{sWk}, s{sBk}, {32 * LDX}", f"s_add_u32 s{sWk}, s{sWk}, s{sJ160}",
      f"s_mul_i32 s{sW6}, s{sB6}, {32 * LDX}", f"s_add_u32 s{sW6}, s{sW6}, s{sJ160}", f"s_or_b32 s{sW6}, s{sW6}, s{sL6}", f"s_mul_i32 s{sWo}, s{sW}, {32 * LDX}", f"s_add_u32 s{sWo}, s{sWo}, s{sJ160}")
    for i in range(5):
        a(f"v_add_u32 v{t0}, {64 * i}, v{vL}", f"v_mul_u32_u24 v{t1}, 6554, v{t0}", f"v_lshrrev_b32 v{t1}, 16, v{t1}",
          f"v_mul_u32_u24 v{t2}, 10, v{t1}", f"v_sub_u32 v{t2}, v{t0}, v{t2}", f"v_lshlrev_b32 v{t2}, 4, v{t2}",
          f"v_mul_u32_u24 v{vW2[i]}, {LDX}, v{t1}", f"v_add_u32 v{vW2[i]}, v{vW2[i]}, v{t2}")
        if i < 3:
            a(f"v_mul_u32_u24 v{vTr[i]}, 336, v{t1}", f"v_lshl_add_u32 v{vTr[i]}, v{t2}, 1, v{vTr[i]}",
              f"s_mul_i32 s{sT0}, s{sW}, 5632", f"s_add_u32 s{sT0}, s{sT0}, {FIN}", f"v_add_u32 v{vTr[i]}, s{sT0}, v{vTr[i]}")
        if i in (1, 2, 3):
            a(f"v_subrev_u32 v{vW2[i]}, {1024 * i}, v{vW2[i]}")
    a(f"v_lshlrev_b32 v{vL16}, 4, v{vL}")
    for t in range(4):
        a(f"s_add_u32 s{sT0}, s{sW}, {t}", f"s_and_b32 s{sT0}, s{sT0}, 3", f"s_mul_i32 s{sT0}, s{sT0}, {NB * 1024}", f"s_add_u32 s{sT0}, s{sT0}, s{sHB}",
          f"v_add_u32 v{vH['B'][t]}, s{sT0}, v{vL16}")
    a(f"v_lshrrev_b32 v{t0}, 5, v{vL}", f"v_lshlrev_b32 v{t0}, 4, v{t0}", f"v_bfe_u32 v{t1}, v{vL}, 4, 1", f"v_lshl_add_u32 v{t0}, v{t1}, 2, v{t0}",
      f"v_bfe_u32 v{t1}, v{vL}, 2, 2", f"v_add_u32 v{t0}, v{t0}, v{t1}", f"v_mul_u32_u24 v{t0}, 160, v{t0}", f"v_and_b32 v{t1}, 3, v{vL}",
      f"v_lshl_add_u32 v{t0}, v{t1}, 3, v{t0}", f"v_add_u32 v{vT2[0]}, s{sW5}, v{t0}",
      f"v_add_u32 v{vT2[1]}, 0x10000, v{vT2[0]}", f"v_add_u32 v{vT2[2]}, 0x20000, v{vT2[0]}")
    o += flag_addr_row(vRow2, sR2, t0, t1)
    a(f"v_bfe_u32 v{vIsQ}, v{vL}, 2, 1")
    a(f"s_lshl_b32 s{sT0}, s{sR2}, 3", f"s_lshr_b32 s{sT1}, s2, 5", f"s_add_u32 s{sT0}, s{sT0}, s{sT1}", f"s_mul_i32 s{sT0}, s{sT0}, {NB * 1024}", f"s_add_u32 s{sT0}, s{sT0}, {HB}",
      f"v_and_b32 v{t0}, 31, v{vL}", f"v_lshlrev_b32 v{t0}, 7, v{t0}", f"v_add_u32 v{t2}, s{sT0}, v{t0}",
      f"v_cmp_gt_u32 vcc, 32, v{vL}", f"v_mov_b32 v{t1}, s{sH6}", f"v_mov_b32 v{vTch[0]}, s{sHq}", f"v_cndmask_b32 v{vTch[0]}, v{t1}, v{vTch[0]}, vcc",
      f"v_cmp_gt_u32 vcc, 40, v{vL}", f"v_mov_b32 v{t1}, {OOB}", f"v_cndmask_b32 v{vTch[0]}, v{t1}, v{vTch[0]}, vcc", f"v_add_u32 v{vTch[0]}, v{vTch[0]}, v{t2}",
      f"v_add_u32 v{t2}, s{sHk}, v{t2}", f"v_cmp_gt_u32 vcc, 16, v{vL}", f"v_cndmask_b32 v{vTch[1]}, v{t1}, v{t2}, vcc",
      f"s_mul_i32 s{sT0}, s{sW}, {NB * 1024}", f"s_add_u32 s{sT0}, s{sT0}, s{sHB}", f"s_lshl_b32 s{sT1}, s{sJ160}, 4", f"s_add_u32 s{sT0}, s{sT0}, s{sT1}",
      f"v_lshlrev_b32 v{t0}, 7, v{vL}", f"v_add_u32 v{t0}, s{sT0}, v{t0}", f"v_cmp_gt_u32 vcc, 20, v{vL}", f"v_cndmask_b32 v{vTch[2]}, v{t1}, v{t0}, vcc")
    a(f"v_add_u32 v{vRW[0]}, s{sW5}, v{vL16}", f"v_add_u32 v{vRW[1]}, 0x10000, v{vRW[0]}", f"v_add_u32 v{vRW[2]}, 0x20000, v{vRW[0]}")
    for t in range(1, 4):
        a(f"s_sub_u32 s{sT0}, s{sW}, {t}", f"s_and_b32 s{sT0}, s{sT0}, 3", f"s_mul_i32 s{sT0}, s{sT0}, 5120", f"s_add_u32 s{sT0}, s{sT0}, {RA[t - 1]}",
          f"v_add_u32 v{vRR[t - 1]}, s{sT0}, v{vL16}")
    a(f"s_xor_b32 s{sT0}, s2, 2", f"s_lshl_b32 s{sT1}, s{sT0}, 7", f"s_lshl_b32 s{sT2}, s{sW}, 2", f"s_add_u32 s{sT1}, s{sT1}, s{sT2}", f"v_mov_b32 v{vPar}, s{sT1}")
    a(f"s_lshl_b32 s{sXc}, s2, 2", f"s_add_u32 s{sXc}, s{sXc}, s{sW}", f"s_mul_i32 s{sXc}, s{sXc}, 3072", f"s_add_u32 s{sXc}, s{sXc}, {XCH}")
    a(f"v_and_b32 v{vFo2}, {OOB}, v{vHiM}", f"v_or_b32 v{vFo2}, v{vFo2}, v{vW2[2]}")
    a(f"v_lshrrev_b32 v{t0}, 4, v{vL}", f"v_lshlrev_b32 v{t0}, 3, v{t0}", f"v_add_u32 v{vFo[0]}, s{sJ160}, v{t0}")
    a(f"v_and_b32 v{t0}, 15, v{vL}", f"v_mul_u32_u24 v{t0}, 336, v{t0}", f"v_lshrrev_b32 v{t1}, 4, v{vL}", f"v_lshl_add_u32 v{t0}, v{t1}, 4, v{t0}",
      f"s_mul_i32 s{sT0}, s{sW}, 5632", f"s_add_u32 s{sT0}, s{sT0}, {FIN}", f"v_add_u32 v{vTw}, s{sT0}, v{t0}")
    return o


FIN = 141312


def tw_setup():
    o = []
    a = lambda *t: o.extend(I(*t))
    a(f"s_lshr_b32 s{sT0}, s2, 3", f"s_lshl_b32 s{sT0}, s{sT0}, 2", f"s_add_u32 s{sT0}, s{sT0}, s{sW}", f"s_bfe_u32 s{sT1}, s2, 0x10001",
      f"s_mul_i32 s{sTb}, s{sT0}, {50 * 128}", f"s_mul_i32 s{sTa}, s{sT0}, {60 * 128}", f"s_mul_i32 s{sT2}, s{sT1}, {7680 * 128}", f"s_add_u32 s{sTa}, s{sTa}, s{sT2}",
      f"s_lshl_b32 s{sTc}, s{sT0}, 10", f"s_mul_i32 s{sT2}, s{sT1}, {960 * 128}", f"s_add_u32 s{sTc}, s{sTc}, s{sT2}", f"s_add_u32 s{sTc}, s{sTc}, {15360 * 128}",
      f"s_xor_b32 s{sT1}, s{sT1}, 1", f"s_mul_i32 s{sT2}, s{sT1}, {7680 * 128}", f"s_mul_i32 s{sTe}, s{sT0}, {10 * 128}", f"s_add_u32 s{sTe}, s{sTe}, s{sT2}",
      f"v_lshlrev_b32 v{vTW}, 7, v{vL}")
    return o


def touch_w2():
    out = []
    for sr, so, n, k in ((SW2, sTa, 15, 4), (SW2, sTc, 8, 1), (SW2, sTe, 10, 2), (SWO, sTb, 13, 4)):
        for i in range(k):
            out.append([Bundle(I(f"s_mov_b64 exec, {(1 << n) - 1}", f"buffer_load_dword v{vTd}, v{vTW}, {srd(sr)}, s{so} offen", "s_mov_b64 exec, -1",
                                 f"s_add_u32 s{so}, s{so}, {128 * n if so != sTe else 3840 * 128}"))])
    return out


def tlb_warm(shift):
    o = I(f"v_lshlrev_b32 v178, {shift}, v{vL}")
    for sr in (SWS, SOUT, SW2, SWO):
        o += I(f"buffer_load_dword v{vTd}, v178, {srd(sr)}, 0 offen")
    return [Bundle(o)]


def sprinkle(valu, groups, lo=0.0, hi=1.0):
    valu, out, k = bundled(valu), [], 0
    for i, x in enumerate(valu):
        while k < len(groups) and i >= len(valu) * (lo + (hi - lo) * k / len(groups)):
            out += groups[k]
            k += 1
        out.append(x)
    return out + [y for g in groups[k:] for y in g]


def b2_load():
    return [I(f"buffer_load_dwordx2 v[{accB(0, f)[1] + 2}:{accB(0, f)[1] + 3}], v{vFo[0]}, {srd(SB2)}, 0 offen offset:{32 * f}") for f in range(5)]


def b2_unpack():
    o = []
    for f in range(5):
        d = accB(0, f)[1]
        o += I(f"v_lshlrev_b32 v{d}, 16, v{d + 2}", f"v_and_b32 v{d + 1}, 0xffff0000, v{d + 2}", f"v_lshlrev_b32 v{d + 2}, 16, v{d + 3}", f"v_and_b32 v{d + 3}, 0xffff0000, v{d + 3}")
    return o


def ha_setup():
    o = I(f"s_sub_u32 s{sT0}, s{sHA}, s{sHB}")
    return [Bundle(o + I(*[f"v_add_u32 v{vH['A'][t]}, s{sT0}, v{vH['B'][t]}" for t in range(4)]))]


class Program:
    def __init__(s, kv):
        s.kv = kv
        if kv:
            s.tiles, s.T = ["K0", "K1", "MX", "V0", "V1", "Ha", "Hb"], 5
            s.aset = {t: t for t in range(7)}
        else:
            s.tiles, s.T = ["H0", "H1", "H2", "H3", "H4", "Q0", "Q1", "QM"], 4
            s.aset = {t: t for t in range(8)}
        s.spine, s.head, s.sides = [], [], []

    def at(s, idx):
        return s.head if idx < 0 else s.spine[idx]["pre"]

    def pin(s, idx, g):
        st = s.spine[max(idx, 0)]
        if st.get("pinned"):
            st["post"].extend(g)
        else:
            st["pre2"] = g[:-1]
            st["post"].append(g[-1])
        st["pinned"] = True
        st["budget"] -= len(g)

    def spread(s, gs, lo, hi):
        last = lo
        for i, g in enumerate(gs):
            last = lo + (i * max(hi - lo, 1)) // len(gs)
            s.pin(last, g)
        return last

    def w2_dma(s, kind, i, z):
        if kind == "E":
            base, k0, sr = (sWq, i, SW2) if i < 4 else (sW6, 0, SW2) if i == 4 else (sWk, i - 5, SW2)
        else:
            base, k0, sr = sWo, 4 * i, SWO
        x, so = [], base
        if k0:
            x, so = I(f"s_add_u32 s{sD2w}, s{base}, {k0 * 32 * LDX}"), sD2w
        after = s.zrd.get(z, [])
        gs = []
        for k in range(5):
            d = ins(f"buffer_load_dwordx4 v{vW2[k]}, {srd(sr)}, s{so} offen offset:{1024 * (k % 4)} lds", after=after if k == 0 else ())
            gs.append((x if k == 0 else []) + I(f"s_add_u32 m0, s{sW5}, {z + (4096 if k == 4 else 0)}") + [d])
        s.w2tok[(kind, i)] = [g[-1] for g in gs]
        s.w2z[(kind, i)] = z
        if OPT.get("lat") == f"{kind}{i}":
            x = stamp("lat0") + I("s_waitcnt vmcnt(0)", "s_nop 15", "s_nop 15") + stamp("lat1") + [y for g in gs for y in g] + I("s_waitcnt vmcnt(0)") + stamp("lat2") + I("s_nop 15", "s_nop 15", "s_nop 15", "s_nop 15")
            return [[Bundle(x)]]
        return gs

    def w2_reads(s, kind, i):
        x = []
        z = s.w2z[(kind, i)]
        for f in range(5):
            k, r = wfrag(kind, i, f)
            for h in range(2):
                ad = z + 32 * f + 1280 * h
                x.append(ins(f"ds_read_b64_tr_b16 {k}[{r + 2 * h}:{r + 2 * h + 1}], v{vT2[ad >> 16]} offset:{ad & 0xffff}", after=s.w2tok[(kind, i)]))
        s.zrd[z] = x
        return x

    def h_load(s, n, blk):
        kind, i = blk[0], int(blk[1])
        x = []
        if kind == "O":
            so, imm = sHo, 0
            if i:
                x = I(f"s_add_u32 s{sHo}, s{sHo}, 4096")
        else:
            so, imm = (sHq, 1024 * i) if i < 4 else (sH6, 0) if i == 4 else (sHk, 1024 * (i - 5))
        v = vH["A" if kind == "A" else "B"]
        return [(x if t == 1 else []) + I(f"buffer_load_dwordx4 a[{aH(n, t)}:{aH(n, t) + 3}], v{v[t]}, {srd(SWS)}, s{so} offen offset:{imm} sc1") for t in (1, 2, 3, 0)]

    def build(s):
        kv, T, tiles = s.kv, s.T, s.tiles
        o = []
        a = lambda *t: o.extend(I(*t))
        if kv:
            a(f"s_lshl_b32 s{sT0}, s{sP}, 8", f"s_sub_u32 s{sU64}, s{sU64}, s{sT0}", f"s_add_u32 s{sKq}, s{sKq}, 1280", f"s_mov_b32 s{sLast}, 0", f"s_mov_b32 s{sU4}, 0")
            o += wk_setup(True)
        else:
            a(f"s_lshl_b32 s{sT0}, s{sP}, 7", f"s_sub_u32 s{sU64}, s{sU64}, s{sT0}", f"s_add_u32 s{sU64}, s{sU64}, 256")
            o += wp_setup()
        dma = lambda pre, m0, v, sr, imm: pre + I(f"s_add_u32 m0, {m0}", f"buffer_load_dwordx4 v{v}, {srd(sr)}, s{sDw} offen offset:{imm} lds")
        so = lambda base, off, last=False: I(f"s_add_u32 s{sDw}, s{base}, {off}") + (I(f"s_or_b32 s{sDw}, s{sDw}, s{sLast}") if last else [])
        two = lambda regs, ad: (regs[0], ad) if ad < 0x8000 else (regs[1], ad - 0x8000)

        def pair_dma(k, bases):
            return [dma(so(sU64, k * 64 * LD1) if (p, i) == (0, 0) else [], f"s{sW2k}, {b - 128 * p}", vWp[i], SW1, 128 * p + 1024 * i) for p, b in enumerate(bases) for i in range(2)]

        pair_step = lambda t, k, j, b, shift: dict(t=t, k=k, j=j, v=vTP[(t - (5 if kv else 0)) & 1], o1=b + 2048 * j - shift, d=512)
        stages = []
        for n in range(10):
            if kv:
                sl = (n % 4) * SLOT
                w = [dma(so(sKw, n * 64 * LDQ) if i == 0 else [], f"s{sW5}, {sl + 1024 * i}", vWk[i], SQKV, 0) for i in range(5)]
                st = []
                for t, (regs, col) in enumerate(((vTK, 0), (vTK, 64), (vTM, 0), (vTK, 2560), (vTK, 2624))):
                    for j in range(4):
                        v, off = two(regs, sl + 5120 * j + col)
                        st.append(dict(t=t, k=n, j=j, v=v, o1=off, d=640))
            else:
                sl = (n % 4) * 16384
                w = pair_dma(n, [sl, sl + 8192])
                st = [pair_step(t, n, j, sl + 8192 * (t >> 1), 0) for t in range(4) for j in range(4)]
            stages.append(dict(w=dma_x(n) + w, steps=st, issue=n - 2))
        stages[9]["steps"] += [dict(t=t, extra=True) for t in range(T)]
        if kv:
            for m in range(10):
                b = RING2 + 8192 * m if m < 5 else 8192 * (m - 5)
                st = [pair_step(t, m, j, b, 0x8000 if m < 5 else 0) for t in (5, 6) for j in range(4)]
                for x in st:
                    x["v"] += 0 if m < 5 else 2
                stages.append(dict(w=pair_dma(m, [b]), steps=st, issue=8 if m < 2 else 9 if m < 5 else None))
            stages[-1]["steps"].insert(4, dict(t=5, extra=True))
            stages[-1]["steps"].append(dict(t=6, extra=True))
        else:
            for gq in range(5):
                w, st = [], []
                for m in (2 * gq, 2 * gq + 1):
                    w.append(dma(so(sU4, m * 64 * LD1, True), f"s{sWL}, {0x8000 + 4096 * m}", vW1, SW1, 0))
                    st += [dict(t=4, k=m, j=j, v=vTR, o1=4096 * m + 1024 * j, d=256) for j in range(4)]
                stages.append(dict(w=w, steps=st, issue=8 if gq < 2 else 9))
            stages[-1]["steps"].append(dict(t=4, extra=True))
            for qs in range(5):
                b = (qs % 4) * SLOT
                w = [dma(so(sKw, qs * 128 * LDQ) if i == 0 else [], f"s{sW5}, {b + (4096 if i == 4 else 0)}", vWk[i], SQKV, 1024 * (i % 4)) for i in range(5)]
                st = []
                for kk in range(2):
                    for t, regs, col in ((5, vTK, 0), (6, vTK, 64), (7, vTM, 0)):
                        for j in range(4):
                            v, off = two(regs, b + 2560 * (4 * kk + j) + col)
                            st.append(dict(t=t, k=2 * qs + kk, j=j, v=v, o1=off, d=640))
                        if qs == 4 and kk == 1:
                            st.append(dict(t=t, extra=True))
                stages.append(dict(w=w, steps=st, issue=(11, 12, 15, 16, 17)[qs]))
        o += first_loads()
        for g in stages[0]["w"]: o += g
        if kv:
            o += nonce_publish()
        a(f"s_lshl_b32 s{sWL}, s{sW}, 10")
        if not kv:
            a(f"s_lshr_b32 s{sT0}, s{sU}, 2", f"s_sub_u32 s{sT0}, s{sU}, s{sT0}", f"s_add_u32 s{sT0}, s{sT0}, 48", f"s_min_u32 s{sT0}, s{sT0}, 53", f"s_lshl_b32 s{sU4}, s{sT0}, 6",
              f"s_and_b32 s{sT0}, s{sU}, 3", f"s_cmp_eq_u32 s{sT0}, 3", f"s_cselect_b32 s{sLast}, {OOB}, 0")
        o += s0_addr(tiles)
        X = OPT["nos0"] or ()
        if "mem" not in X:
            for g in s0_mem(): o += g
        o += x_read_setup() + (tk_setup(True) if kv else tp_setup(0))
        o += make_srd(SWS, P_WS, WS_SIZE) + I(f"s_mov_b32 s{sOne0}, 0x3f80", f"s_mov_b32 s{sOne1}, 0x3f800000")
        if OPT["touch_code"]:
            o += touch_code()
        first_mem = stages[1]["w"]
        if OPT["dma1_early"]:
            for g in first_mem: o += g
            first_mem = []
        o += stamp("issued")
        steps, first = [], {}
        for n, st in enumerate(stages):
            first[n] = len(steps)
            steps += st["steps"]
        n1 = len(steps)
        first[len(stages)] = n1
        end1 = first[10]
        s.spine = spine = [dict(pre=[], post=[], budget=OPT["b1p"] if q < end1 else OPT["b1"]) for q in range(n1)]
        reads, done, xfree = {}, {}, {}
        for q, st in enumerate(steps):
            fr = aW + 4 * (q % NRING)
            A = acc(s.aset[st["t"]])
            if st.get("extra"):
                reads[q] = I(f"ds_read_b128 a[{fr}:{fr + 3}], v{vEXr} offset:{512 * st['t']}")
                spine[q]["mfma"] = ins(f"v_mfma_f32_32x32x16_bf16 v[{A}:{A + 15}], a[{fr}:{fr + 3}], v[{vXE}:{vXE + 3}], v[{A}:{A + 15}]")
                done[tiles[st["t"]]] = q
            else:
                assert 0 <= st["o1"] and st["o1"] + st["d"] < 65536
                reads[q] = I(f"ds_read_b64_tr_b16 a[{fr}:{fr + 1}], v{st['v']} offset:{st['o1']}", f"ds_read_b64_tr_b16 a[{fr + 2}:{fr + 3}], v{st['v']} offset:{st['o1'] + st['d']}")
                xa = aX + 16 * st["k"] + 4 * st["j"]
                c = "0" if (st["k"] == 0 and st["j"] == 0) else f"v[{A}:{A + 15}]"
                spine[q]["mfma"] = ins(f"v_mfma_f32_32x32x16_bf16 v[{A}:{A + 15}], a[{fr}:{fr + 3}], a[{xa}:{xa + 3}], {c}")
                xfree[xa] = q
        seq = OPT["seq"].split()
        ngap = max(n for n, b in enumerate(seq) if b[0] == "A") + 1
        s.w2tok, s.w2z, s.zrd = {}, {}, {}
        p2first = {}
        s.gapbar = ins("s_barrier")
        if not kv:
            ow, owr = o_write()
            spine.append(dict(pre=[], post=[ins("s_barrier", after=owr)], mfma=None, budget=0))
            spine += o_steps()
            s.otk = []
            p2first["ofin"] = len(spine)
            spine.append(dict(pre=o_finish(s.otk) + stamp("ofin"), post=[ins("s_barrier")], mfma=None, budget=0))
        for n, blk in enumerate(seq):
            if n == ngap:
                p2first["gap"] = len(spine)
                spine.append(dict(pre=[], post=[s.gapbar], mfma=None, budget=0))
            p2first[n] = len(spine)
            kind, i = blk[0], int(blk[1])
            for t in (1, 2, 3, 0):
                for f in range(5):
                    d = ("v", accA(t, f)) if kind == "A" else accB(t, f)
                    zero = blk == "A0" or (blk == "B0" and t != 0)
                    assert seq.index("A0") == 0 and seq.index("B0") == min(k for k, b in enumerate(seq) if b[0] != "A")
                    m = ins(f"v_mfma_f32_16x16x32_bf16 {r4(d)}, {r4(wfrag('O' if kind == 'O' else 'E', i, f))}, a[{aH(n, t)}:{aH(n, t) + 3}], {'0' if zero else r4(d)}")
                    spine.append(dict(pre=[], post=[], mfma=m, budget=OPT["b2"]))
        nend = len(spine)
        p2first[len(seq)] = nend
        spine.append(dict(pre=[], post=[], mfma=None, budget=0))
        last_dma, bar = {}, {}
        for n in range(len(stages)):
            pos = first[n] - LOOK
            bar[n] = b = ins("s_barrier", after=[g[-1] for g in stages[n]["w"]])
            blk = [b] + (stamp(f"st{n}") if n in OPT["stages"] else [])
            if n < 10:
                for j in range(4):
                    xa = aX + 16 * n + 4 * j
                    blk += I(f"ds_read_b128 a[{xa}:{xa + 3}], v{vXR[j]} offset:{(n % 3) * 4096}")
            s.at(pos).extend(blk)
            gs = list(first_mem) if n == 0 else []
            gs += [g for st in stages[2:] if st["issue"] == n for g in st["w"]]
            if gs:
                lo = max(pos + 1, 0)
                hi = first[n + 1] - LOOK
                last_dma[n] = s.spread(gs, lo, lo + int((hi - lo) * (1.0 if n < 10 else OPT["dspan"])))
        for q in range(n1):
            if q < LOOK:
                s.head.extend(reads[q])
            else:
                spine[q - LOOK]["post"][0:0] = reads[q]
            if q % 2 == 0 and q + 1 < n1:
                spine[q]["mfma"].after += reads[q + 1]
        S = OPT["s0"]
        sides = s.sides
        s0m, s0st = s0_produce(kv)
        for q in range(first[1] - LOOK):
            spine[q]["budget"] += OPT["b0"] - OPT["b1p"]
        if "math" not in X:
            sides.append(side(s0m, start=OPT.get("s0start", 2 * T), end=last_dma[S[0]], name="s0math"))
        spine[last_dma[S[0]]]["post"] += (s0st if "store" not in X else []) + stamp("s0b")
        later = (wp_setup() + tp_setup(0x8000) + I(f"v_subrev_u32 v{vTP[0] + 2}, 0x8000, v{vTP[0]}", f"v_subrev_u32 v{vTP[1] + 2}, 0x8000, v{vTP[1]}")) if kv else (w1_setup() + tr_setup(0x8000) + wk_setup(False) + tk_setup(False))
        ls = side(late_setup() + tw_setup() + s0_consume_addr(), start=0, end=last_dma[S[1]], name="late")
        sides.append(ls)
        if "sig" not in X:
            spine[last_dma[S[1]]]["post"] += nonce_check(vPoll2) + signal(L_S0, s0st)
        s.RA, s.RB = ([Z1, Z2, Z0], [ZB, Z5, Z6]) if kv else ([Z2, Z5, ZA], [ZB, Z6, Z1])
        p2s = side(later + p2_setup(s.RA) + (kv_setup() if kv else []), start=0, follow=ls, end=last_dma[7], name="p2setup")
        sides.append(p2s)
        if "poll" not in X:
            spine[last_dma[S[2]]]["post"] += [poll_issue(vRowF, vPoll), poll_issue(vColF, vPoll2)]
            spine[last_dma[S[3]]]["post"] += s0_consume_loads()
        assert S[4] >= 7 and S[4] > S[3]
        s.spread(b2_load(), last_dma[7] + 1, last_dma[7] + 6)
        cm, extok = s0_consume_math()
        s.b2 = b2_unpack() + ha_setup()
        exbar = end1 - T - LOOK - 1
        cms = side(cm, start=last_dma[S[4]] + 1, end=exbar - 1, follow=p2s, name="s0use")
        sides.append(cms)
        spine[exbar]["pre"].insert(0, ins("s_barrier", after=[extok]))
        spine[end1]["pre"] = stamp("pass1") + spine[end1]["pre"]
        spine[n1]["pre"] += stamp("mfma1")
        b2s = side(s.b2, start=exbar + 1, end=end1, follow=cms, name="b2")
        sides.append(b2s)
        flat = lambda gs: [x for g in gs for x in g]
        W = s.w2_dma
        gap = p2first["gap"]

        def RD(kind, i, lo, step=1):
            if kind == "E":
                assert lo > max(xfree[xa] for xa in range(20 * i, 20 * i + 20, 4)), (i, lo)
            for k, x in enumerate(s.w2_reads(kind, i)):
                spine[lo + k * step]["post"].append(x)
                spine[lo + k * step]["budget"] -= 1

        def cp(n, kl, ql):
            x = poll_check(vRow2, kl, ql) + stamp("cp" + seq[n])
            if OPT["touch_h"]:
                x += I(f"buffer_load_dword v{vTd}, v{vTch[dict(A0=0, A5=1, O0=2)[seq[n]]]}, {srd(SWS)}, 0 offen sc1")
            return x

        HL = lambda n: s.h_load(n, seq[n])
        if OPT["touch_w"]:
            tw = touch_w2()
            for part, (lo, hi) in ((tw[:7], OPT["twa"]), (tw[7:], OPT["twb"][kv])):
                for i, x in enumerate(part):
                    spine[first[lo] + i * (first[hi] - first[lo]) // len(part)]["post"] += x
        if OPT["tlb"]:
            spine[first[OPT["tlb"][0]]]["post"] += tlb_warm(OPT["tlb"][1])
        k1 = len(stamp("pass1"))
        f = first
        if kv:
            epi0, epi, wr = kv_epilogue(s.aset, 0)
            prod, at = kv_product(wr)
            ha, ft = [], []
            rest = [g for m in range(15, 20) for g in stages[m]["w"]]
            spine[end1]["pre"][k1:k1] = [ins("s_barrier")] + sprinkle(epi0 + epi, rest + W("E", 0, Z0), 0, 0.9) + prod + stamp("kvdone")
            s.spread(W("E", 1, ZA) + W("E", 2, ZB), f[11], f[13] + 4)
            RD("E", 0, f[12] + 4)
            s.spread(W("E", 3, Z5) + W("E", 4, Z0), f[14], f[16])
            s.spread(W("E", 5, Z6), f[16], f[17] + 4)
            RD("E", 1, f[17]); RD("E", 2, n1 - 11)
            s.spread(W("E", 6, ZA), f[18] + 4, n1 - 2)
            spine[n1 - 20]["post"].append(poll_issue(vRow2))
            jobs = [(acc(s.aset[5]), "Ha", ha), (acc(s.aset[6]), "Hb", ha)]
            e1 = sprinkle(gelu_quads(jobs, 0, 8, True), [[x] for x in s.w2_reads("E", 3)]) + stamp("expo")
            e1 += flat(W("O", 1, ZB)) + signal(L_HB, ha) + stamp("sigT") + cp(0, L_S0, L_HQ) + flat(HL(0) + HL(1) + HL(2) + HL(3))
            s.sig = [(end1, L_KP, at, OPT["lagkp"])]
            RD("E", 4, p2first[0], 2); RD("E", 5, p2first[2], 2); RD("E", 6, p2first[4], 2)
            s.spread(W("O", 2, Z5), p2first[1], p2first[3])
            s.spread(W("O", 3, Z6), p2first[3] + 1, p2first[5])
            s.spread(W("O", 0, ZA), p2first[5] + 1, p2first[7])
            zo4 = ZA
        else:
            os_ = side(o_setup(), start=last_dma[S[3]] + 1, end=last_dma[S[4]], follow=p2s, name="osetup")
            sides.insert(sides.index(cms), os_)
            cms["follow"] = os_
            tk = []
            jobs = [(acc(t), tiles[t], tk) for t in range(5)]
            nx = OPT["nx"]
            spine[end1]["pre"][k1:k1] = sprinkle(gelu_quads(jobs, 0, nx, True), W("E", 0, Z0) + W("E", 1, ZB), 0, 0.9) + stamp("x1")
            g3 = side(gelu_quads(jobs, nx, 16, False), start=end1, name="gelu3")
            g4 = side(gelu_quads(jobs, 16, 20, False), start=done["H4"] + 2, follow=g3, end=n1 - OPT["gend"], name="gelu4")
            sides += [g3, g4]
            s.spread(W("E", 2, ZA), f[13], f[15] - 5)
            RD("E", 0, f[16]); s.spread(W("E", 3, Z0), f[16] + 11, f[16] + 19)
            RD("E", 1, f[16] + 13); s.spread(W("E", 4, ZB), f[17] + 6, f[17] + 16)
            RD("E", 2, f[17] + 4)
            z, ztok = am_zero()
            bar[18].after += s.zrd[ZA]
            sides.append(side(z, start=f[18] - LOOK + 1, end=f[19] - LOOK - 1, follow=g4, name="amzero"))
            bar[19].after += ztok
            s.spread(W("E", 5, Z2), f[18], f[18] + 10)
            RD("E", 3, f[18] + 4)
            RD("E", 4, f[19] + 2)
            ko = n1 - OPT["hearly"]
            spine[ko - OPT["hpoll"]]["post"].append(poll_issue(vColF, vPoll2))
            kc, kl = o_load()
            spine[ko]["post"] += kc
            s.spread(kl, ko + 1, n1 - 1)
            spine[n1 - 1]["post"].append(poll_issue(vRow2))
            np0 = OPT["np0"]
            e1 = phi_q(s.aset, True, 0, np0) + ow + cp(0, L_S0, L_HQ)
            e1 += sprinkle(phi_q(s.aset, True, np0, 10), HL(0) + HL(1) + W("E", 6, Z5)) + stamp("gap")
            s.spread(HL(2) + HL(3), n1 + 1, n1 + 15)
            RD("E", 5, p2first[0], 2); RD("E", 6, p2first[2], 2)
            for i, z in ((0, Z0), (1, ZB), (2, Z6), (3, Z1)):
                s.spread(W("O", i, z), p2first[OPT["ost"] + 3 * i], p2first[OPT["ost"] + 3 * i + 3])
            zo4 = Z0
            s.sig = [(g4, L_HQ, tk, OPT["lag"]), (p2first["ofin"], L_O, s.otk, OPT["lag"])]
        spine[n1]["pre"] = [ins("s_barrier")] + stamp("tee") + e1 + spine[n1]["pre"]
        s.n1 = n1
        for n in range(HR, len(seq)):
            p = p2first[n - HR] + 4
            if seq[n] in ("A5", "O0"):
                spine[p2first[n - HR - OPT["pback"]] + 3]["post"].append(poll_issue(vRow2))
                spine[p]["pre"] += cp(n, L_HB, L_HQ if seq[n] == "A5" else L_O)
            elif n % 2 == 0 or OPT.get("allst"):
                spine[p]["pre"] += stamp("ld" + seq[n])
            for k, g in enumerate(HL(n)):
                s.pin(p + 5 * k, g)
        o0 = seq.index("O0")
        for i in range(5):
            RD("O", i, p2first[o0 + i - 1], 2)
            if i == 0:
                s.spread(W("O", 4, zo4), p2first[o0] + 1, p2first[o0 + 1])
        return o, seq, p2first, nend

    def finish(s, o, seq, p2first, nend):
        kv, spine, sides = s.kv, s.spine, s.sides
        a = lambda *t: o.extend(I(*t))
        aend = p2first["gap"]
        b0, rend = aend + 1, aend + 1 + OPT["ybar"]
        RA, RB = s.RA, s.RB

        def red_write(get, R):
            x = []
            for t in (1, 2, 3):
                for f in range(5):
                    ad = R[t - 1] + 1024 * f
                    x.append(ins(f"ds_write_b128 v{vRW[ad >> 16]}, {r4(get(t, f))} offset:{ad & 0xffff}"))
            return x

        def red_read():
            x = []
            for t in (1, 2, 3):
                for f in range(5):
                    d = accA(t, f)
                    x += I(f"ds_read_b128 v[{d}:{d + 3}], v{vRR[t - 1]} offset:{1024 * f}")
            return x

        def red_add(own, pk):
            x = []
            for t in (1, 2, 3):
                for f in range(5):
                    for r in range(0, 4, 2 if pk else 1):
                        d, e = own(f) + r, accA(t, f) + r
                        x += I(f"v_pk_add_f32 {pr(d)}, {pr(d)}, {pr(e)}" if pk else f"v_add_f32 v{d}, v{d}, v{e}")
            return x

        wA = red_write(lambda t, f: ("v", accA(t, f)), RA)
        for q in list(range(aend - 15, aend)) + list(range(b0, rend)):
            spine[q]["budget"] += OPT["bred"]
        for k in range(3):
            sides.insert(k, side(wA[5 * k:5 * k + 5], start=aend - 12 + 5 * k, end=aend, name=f"redAw{k}"))
        s.gapbar.after += wA
        xt = []
        xs = red_read() + red_add(lambda f: accA(0, f), False)
        P = accA(1, 0)
        for f in range(5):
            xs += cvt2(P + 2 * f, accA(0, f))
        for k, n in ((0, 4), (4, 4), (8, 4)):
            x = ins(f"buffer_store_dwordx{n} v[{P + k}:{P + k + n - 1}], v{vL16}, {srd(SWS)}, s{sXc} offen offset:{256 * k} sc1")
            xs.append(x); xt.append(x)
        xsd = side(xs, start=b0, end=rend, name="redA")
        sides.insert(3, xsd)
        s.sig.append((xsd, L_XCH, xt, OPT["lag"]))
        XR, PX = 152, 164
        fo = [(vW2[0], 0), (vW2[1], 1024), (vFo2, 2048)]
        s.spread([I(f"buffer_load_dwordx4 v[{XR + 4 * i}:{XR + 4 * i + 3}], v{fo[i][0]}, {srd(SX)}, s{sRow} offen offset:{fo[i][1]}") for i in range(3)], nend - 80, nend - 70)
        spine[nend - OPT["xch"] - 25]["post"].append(poll_issue(vPar))
        px = poll_check(vPar, L_XCH) + stamp("xch") + I(f"s_xor_b32 s{sT0}, s2, 2", f"s_sub_u32 s{sT0}, s{sT0}, s2", f"s_mul_i32 s{sT0}, s{sT0}, 12288", f"s_add_u32 s{sXc}, s{sXc}, s{sT0}")
        for k, n in ((0, 4), (4, 4), (8, 4)):
            px += I(f"buffer_load_dwordx{n} v[{PX + k}:{PX + k + n - 1}], v{vL16}, {srd(SWS)}, s{sXc} offen offset:{256 * k} sc1")
        spine[nend - OPT["xch"]]["post"] += px
        for st in spine:
            st["pre"].extend(st.pop("pre2", []))
        import copy
        dry = copy.deepcopy(sides)
        merge(spine, dry, 0)
        ends = {d["name"]: d.get("done", 0) if not d.get("late") else (d["end"] or nend) for d in dry}
        if OPT["verbose"]:
            print("KV" if kv else "Q", {d["name"]: (d["start"], ends[d["name"]], d.get("late", 0)) for d in dry}, "p2first", p2first)
        n1 = s.n1
        for sd, level, tk, lag in s.sig:
            idx, t = (sd if isinstance(sd, int) else ends[sd["name"]]), 0
            while t < lag and idx < nend - 1:
                t += 36 if idx < n1 else 18
                idx += 1
            if idx == n1:
                idx -= 1
            spine[idx]["post"] += signal(level, tk)
        o = drop_m0(o + s.head + merge(spine, sides, 0))
        XX = OPT["x"]
        if "nohst" in XX:
            o = [y for y in o if not (y.text.startswith("buffer_store_dwordx4") and f"v{vHst}," in y.text)]
        if "now2" in XX:
            o = [y for y in o if not (y.kind == "dma" and (srd(SW2) in y.text or srd(SWO) in y.text))]
        if "nochk" in XX:
            o = [y for y in o if not (isinstance(y.note, tuple) and y.note[0] == "chk" and max(y.note[1:3]) > 1)]
        if "nopoll" in XX:
            o = [y for y in o if not (y.text.startswith("buffer_load_dword v") and (f"v{vRow2}," in y.text or f"v{vPar}," in y.text))]
        if "noH" in XX:
            o = [y for y in o if not y.text.startswith("buffer_load_dwordx4 a[")]
        if "nosc1H" in XX:
            for y in o:
                if y.text.startswith("buffer_load_dwordx4 a["):
                    y.text = y.text.replace(" sc1", "")
        if "nononce" in XX:
            o = [y for y in o if srd(SDBG) not in y.text]
        if "nosig" in XX:
            o = [y for y in o if not (isinstance(y.note, tuple) and y.note[0] == "sig" and y.note[1] > 1)]
        if "noat" in XX:
            o = [y for y in o if not y.text.startswith("buffer_atomic")]
        if "notrans" in XX:
            o = [y for y in o if y.kind != "trans"]
        if OPT["stop"]:
            cut = [i for i, x in enumerate(o) if getattr(x, "kind", "") == "stamp" and x.text in (OPT["stop"], "rt_" + OPT["stop"])][0]
            o = o[:cut + 1] + I("s_waitcnt vmcnt(0) lgkmcnt(0)")
            return s.tail(o)
        o += stamp("mfma2")
        wB = red_write(accB, RB)
        o += wB
        for t in range(3):
            a(f"v_add_u32 v{vRR[t]}, {(RB[t] - RA[t]) & 0xffffffff}, v{vRR[t]}")
        o.append(ins("s_barrier", after=wB))
        own = lambda f: accB(0, f)[1]
        o += red_read()
        for f in range(5):
            for r in range(4):
                a(f"v_dot2_f32_bf16 v{own(f) + r}, v{PX + 2 * f + r // 2}, s{sOne1 if r & 1 else sOne0}, v{own(f) + r}")
        o += red_add(own, True)
        for f in range(5):
            a(f"ds_write_b128 v{vTw}, v[{own(f)}:{own(f) + 3}] offset:{64 * f}")
        FO = 48

        def fin_store(i):
            x = I(*[f"v_cvt_pk_bf16_f32 v{FO + 8 * i + k}, v{FO + 8 * i + 2 * k}, v{FO + 8 * i + 2 * k + 1}" for k in range(4)])
            return x + I(f"buffer_store_dwordx4 v[{FO + 8 * i}:{FO + 8 * i + 3}], v{fo[i][0]}, {srd(SOUT)}, s{sRow} offen offset:{fo[i][1]} {OPT['outf']}")

        for i in range(3):
            for h in range(2):
                a(f"ds_read_b128 v[{FO + 8 * i + 4 * h}:{FO + 8 * i + 4 * h + 3}], v{vTr[i]} offset:{16 * h}")
        for i in range(3):
            for k in range(4):
                d = FO + 8 * i + 2 * k
                a(f"v_dot2_f32_bf16 v{d}, v{XR + 4 * i + k}, s{sOne0}, v{d}", f"v_dot2_f32_bf16 v{d + 1}, v{XR + 4 * i + k}, s{sOne1}, v{d + 1}")
            if i:
                o += fin_store(i - 1)
        o += I("s_nop 1") + fin_store(2)
        return s.tail(o)

    def tail(s, o):
        if OPT["prof"]:
            o += stamp("end") + stamp("rt1")
            last = Ins("x", "stamp"); last.note = "last"
            o.append(last)
            o += I(f"s_lshl_b32 s{sT0}, s2, 2", f"s_add_u32 s{sT0}, s{sT0}, s{sW}", f"s_lshl_b32 s{sT0}, s{sT0}, 8", f"s_add_u32 s{sT0}, s{sT0}, {TS}",
                   f"v_lshlrev_b32 v30, 2, v{vL}", f"buffer_store_dword v31, v30, {srd(SWS)}, s{sT0} offen")
        return o + I("s_endpgm")


def check_no_deadlock(progs):
    ev = [[x.note for x in p if isinstance(x.note, tuple)] for p in progs]
    pos, lvl = [0, 0], [0, 0]
    moved = True
    while moved:
        moved = False
        for k in (0, 1):
            while pos[k] < len(ev[k]):
                e = ev[k][pos[k]]
                if e[0] == "sig":
                    assert e[1] > lvl[k], (k, e, lvl)
                    lvl[k] = e[1]
                elif lvl[0] < e[1] or lvl[1] < e[2]:
                    break
                pos[k] += 1
                moved = True
    assert pos == [len(e) for e in ev], f"circular wait: KV stuck at {ev[0][pos[0]:pos[0] + 1]}, Q at {ev[1][pos[1]:pos[1] + 1]}"


def drop_m0(items):
    out, cur = [], None
    for x in items:
        for y in (x.items if isinstance(x, Bundle) else [x]):
            if y.kind == "vmem" and y.wr == {("v", vTd)}:
                y.wr = set()
            if ("m0", 0) in y.wr:
                if y.text == cur:
                    continue
                cur = y.text
            out.append(y)
    return out


def build():
    st = {}
    pro = prologue()
    pro += I("s_bitcmp1_b32 s2, 6", "s_cbranch_scc1 L_q")
    progs = []
    for kv in (True, False):
        p = Program(kv)
        body = p.finish(*p.build())
        full = pro + ([] if kv else I("L_q:")) + body
        if OPT["prof"]:
            full = resolve_stamps(full, ts_names, sTS, 31)
        progs.append(finalize(full, stats=st))
    a_kv, a_q = progs
    if not OPT["stop"] and not OPT["x"]:
        check_no_deadlock(progs)
    iq = [i for i, x in enumerate(a_q) if x.text == "L_q:"][0]
    assert [x.text for x in a_q[:iq]] == [x.text for x in a_kv[:iq]]
    body = a_kv + a_q[iq:] + I("L_end:", "s_endpgm")
    used = {x.text.split()[1] for x in body if x.kind == "branch"}
    for sp in slow_paths:
        if sp[0].text[:-1] in used:
            body += finalize(sp)
    txt = text_of(body)
    ref = open("parallel_sum__linear_attn_block__mixer_channel_mlp__prompt.s.ref").read().split("\n")
    hdr = [l for l in ref if l.startswith(";") and "@launch" not in l and not l.startswith("; Override") and not l.startswith("; grid=")]
    src = "\n".join(hdr) + f"""
; @launch grid=(256,1,1) block=(256,1,1) lds={LDS_SIZE}
.amdgcn_target "amdgcn-amd-amdhsa--gfx950"
.text
.globl {NAME}
.p2align 8
.type {NAME},@function
{NAME}:
{txt}
L_code_end:
.fill 65536 / 4, 4, 0xbf810000
.section .rodata,"a"
.p2align 6
.amdhsa_kernel {NAME}
  .amdhsa_next_free_vgpr 512
  .amdhsa_next_free_sgpr 102
  .amdhsa_accum_offset 256
  .amdhsa_group_segment_fixed_size 0
  .amdhsa_kernarg_size 88
  .amdhsa_user_sgpr_count 2
  .amdhsa_user_sgpr_kernarg_segment_ptr 1
  .amdhsa_system_sgpr_workgroup_id_x 1
.end_amdhsa_kernel
"""
    return src, st, len(a_kv), len(a_q)


if __name__ == "__main__":
    out = sys.argv[1]
    for kvp in sys.argv[2:]:
        k, v = kvp.split("=", 1)
        OPT[k] = eval(v) if v[0] in "0123456789TFN-([" else v
    src, st, n1, n2 = build()
    open(out, "w").write(src)
    if OPT["prof"]:
        open(out + ".ts", "w").write("\n".join(ts_names))
    print("instructions", n1, n2, st)
```

```python
import sys, os, struct
sys.path.insert(0, os.path.dirname(os.path.abspath(__file__)))
from asmlib import *

NAME = "parallel_sum__linear_attn_block__mixer_channel_mlp__prompt_kernel"
OPT = dict(prof=False, only=None, b1=3.0, b1p=4.5, touch_w=True, hbsig=10, hop=4, hopp=30, hopq=(3, 7), lagkp=700, nx=14, gend=70, hpoll=30, lback=4, ybar=54, twa=(2, 9), twb=((10, 18), (10, 18)), bred=0.7, xch=6, g01end=30, oload=36, gpoll=30, kvsig=4, hearly=24, ost=0, outf='', np0=3, tlb=None, seq="A0 A1 A2 A3 A4 B0 A5 A6 B1 B2 B3 B4 B5 B6 O0 O1 O2 O3 O4", plag=700, pback=2, touch_h=True, b0=16, lag=1000, nphi=7, b2=1.6, touch_code=True, tq=4, s0=(0, 2, 5, 6, 7), s0ld=2, s0start=2, xearly=2, s0first=False, sleep=4, dma1_early=False, dspan=0.4,
           nsq=10, nsk=2, stages=(0, 1, 2, 3, 4, 5, 6, 7, 8, 9), verbose=False, x=(), stop=None, nos0=False)

LDQ, LD1, LDX = 3840, 3456, 1280
FLAGS, STATS, CSUM, KVF, XCH, KVP, HB, TS = 0x0, 0x8000, 0x10000, 0x60000, 0x80000, 0x400000, 0x800000, 0x1200000
WS_SIZE = 0x1400000
OOB = 0x40000000
NB = 74
SLOT = 20480
RING2, NR2 = 2 * SLOT, 10
XS, EX, SCR, LDS_SIZE = 81920, 131072, 135168, 163840
KVT, KVT_LD = XS, 328
AM, AM_LD = XS, 176
Z0, Z1, Z2, Z5, Z6, ZA, ZB = 143360, 0, SLOT, 2 * SLOT, 3 * SLOT, XS, XS + SLOT
P_X, P_QKV, P_WO, P_BX, P_W1, P_B1, P_W2, P_B2 = 4, 6, 8, 10, 12, 14, 16, 18
P_OUT, P_DBG, P_WS = 20, 22, 24
sR2, sJ160, sBq, sBk, sE, sHA, sHB, sL6, sRow, sB6, sD2w, sD2h, sXc = range(4, 17)
sHq, sHk, sH6, sHo, sWq, sWk, sW6, sWo = range(17, 25)
sOne0, sOne1 = 88, 89
sKw, sW2k, sH4 = 90, 91, 95
sTa, sTb, sTc, sTe = 96, 97, 98, 72
sK1, sK2 = 99, 77
SX, SQKV, SW1, SWO, SW2, SWS, SOUT, SB1, SB2, SDBG = 28, 32, 36, 40, 44, 48, 52, 56, 60, 64
sW, sR, sU, sG, sP, sUnit, sNonce, sWL = 68, 69, 70, 71, 72, 73, 74, 75
sXo, sKq, sH, sT0, sT1, sT2, sT3, sLast = 76, 77, 78, 79, 80, 81, 82, 83
sEps, sHst, sXw, sCnt = 84, 85, 86, 87
sA_lo, sA_hi, sB_lo, sB_hi, sLdA, sLdB, sOffA, sOffB, sMixA, sMixB = 40, 41, 42, 43, 44, 45, 46, 47, 52, 53
sBA, sBB, sW5 = 92, 93, 94
sDx, sDw, sU64, sTS, sOst = 100, 101, 3, 26, 25
sU4 = 73
srd = lambda b: f"s[{b}:{b + 3}]"
vL = 1
vX = [2, 3, 4, 5]
vXR = [6, 7, 8, 9]
vWk = [10, 11, 12, 13, 14]
vWp = [46, 47]
vTK, vTM, vTP, vW1, vTR = [208, 209], [210, 211], [212, 213], 214, 215
vHst, vFl, vRowF, vColF, vEXr = 15, 16, 17, 18, 19
vKf, vK2, vKA, vKB, vAt, vOnes = 20, 21, 22, 23, 24, 25
vAM, vOl0, vOl1, vOw0, vOw1, vOw2, vOw3 = 20, 21, 22, 23, 24, 25, 17
vFd, vPoll, vLvl, vHiM = 26, 27, 28, 29
vRs1, vRl1, vA1, vA3, vIrs = 32, 34, 36, 38, 44
vIsQ, vPar, vL16, vTd = 33, 35, 37, 39
vXE = 40
vPoll2 = 45
acc = lambda i: 48 + 16 * i
TMP = 176
vW2 = [180, 181, 182, 183, 184]
vH = {'B': [185, 186, 187, 188], 'A': [2, 3, 4, 5]}
vT2 = [189, 190, 191]
vRW = [192, 193, 207]
vRR = [194, 195, 196]
vFo2, vTw = 197, 198
vFo = [199]
vTch = [200, 201, 206]
vTr = [202, 203, 204]
vRow2 = 205
vTW = 179
ET = 244
T0, T1, T2, T3 = 252, 253, 254, 255
aX, aW, NRING, LOOK = 0, 160, 8, 5
accA = lambda t, f: (48 + 4 * (5 * t + f)) if 5 * t + f < 16 else (208 + 4 * (5 * t + f - 16))


def accB(t, f):
    if t == 0:
        return ("v", 224 + 4 * f)
    g = 5 * (t - 1) + f
    return ("a", 140 + 4 * g) if g < 13 else ("v", 6 + 4 * (g - 13))


HR = 4
aH = lambda n, t: 192 + 16 * (n % HR) + 4 * t
wfrag = lambda kind, i, f: ("a", 20 * i + 4 * f) if kind == "E" else ("v", 112 + 20 * (i % 2) + 4 * f)
r4 = lambda x: f"{x[0]}[{x[1]}:{x[1] + 3}]"
f2u = lambda f: struct.unpack("<I", struct.pack("<f", f))[0]
LOG2E = 1.4426950408889634
C1 = -2.0 * 0.7978845608028654 * LOG2E
C3 = C1 * 0.044715
L_S0, L_KP, L_KV, L_HB = 1, 2, 3, 4
L_HQ, L_O, L_XCH = 2, 5, 6

slow_paths, ts_names, _uid = [], [], [0]


def uid(p):
    _uid[0] += 1
    return f"L_{p}{_uid[0]}"


def I(*ts):
    return [ins(t) for t in ts]


def stamp(name):
    if not OPT["prof"]:
        return []
    if OPT["only"] is not None:
        if name.startswith("rt") or (OPT["only"] != "all" and name not in OPT["only"]):
            return []
        name = "rt_" + name
    if name not in ts_names:
        ts_names.append(name)
    return [Ins(name, "stamp")]


def make_srd(b, ptr, nbytes):
    return I(f"s_mov_b32 s{b}, s{ptr}", f"s_mov_b32 s{b + 1}, s{ptr + 1}", f"s_mov_b32 s{b + 2}, {nbytes}", f"s_mov_b32 s{b + 3}, 0x20000")


def signal(level, toks):
    o = I(f"s_add_u32 s{sT3}, s{sNonce}, {level}", f"v_mov_b32 v{vFd}, s{sT3}")
    st = ins(f"buffer_store_dword v{vFd}, v{vFl}, {srd(SWS)}, 0 offen sc1", after=toks)
    st.note = ("sig", level)
    return [Bundle(o), st]


def poll_issue(vaddr, dst=vPoll):
    return ins(f"buffer_load_dword v{dst}, v{vaddr}, {srd(SWS)}, 0 offen sc1")


def poll_check(vaddr, level, qlevel=None, dst=vPoll, who="both"):
    slow, back, loop = uid("slow"), uid("back"), uid("loop")

    def test():
        o = I(f"s_add_u32 s{sT3}, s{sNonce}, {level}", f"v_subrev_u32 v{vLvl}, s{sT3}, v{dst}")
        if qlevel is not None and qlevel != level:
            o += I(f"v_mad_i32_i24 v{vLvl}, v{vIsQ}, {level - qlevel}, v{vLvl}")
        return o + I(f"v_cmp_lt_u32 vcc, 63, v{vLvl}")

    sp = I(f"{slow}:", f"s_mov_b32 s{sCnt}, 20000", f"{loop}:", f"s_sleep {OPT['sleep']}") + [poll_issue(vaddr, dst)] + I("s_waitcnt vmcnt(0)") + test()
    sp += I(f"s_cbranch_vccz {back}", f"s_sub_u32 s{sCnt}, s{sCnt}, 1", f"s_cmp_lg_u32 s{sCnt}, 0", f"s_cbranch_scc1 {loop}", f"s_branch {back}")
    slow_paths.append(sp)
    br = ins(f"s_cbranch_vccnz {slow}")
    br.note = ("chk", level if who != "q" else 0, (qlevel if qlevel is not None else level) if who != "kv" else 0, who)
    return [Bundle(test() + [br] + I(f"{back}:"))]


def nonce_check(dst):
    slow, back, loop = uid("nslow"), uid("nback"), uid("nloop")
    sp = I(f"{slow}:", f"s_mov_b32 s{sCnt}, 20000", f"{loop}:", f"s_sleep {OPT['sleep']}", f"v_mov_b32 v{dst}, 0",
           f"buffer_load_dword v{dst}, v{dst}, {srd(SDBG)}, 0 offen sc1", "s_waitcnt vmcnt(0)",
           f"v_readfirstlane_b32 s{sNonce}, v{dst}", f"s_cmp_lg_u32 s{sNonce}, 0", f"s_cbranch_scc1 {back}",
           f"s_sub_u32 s{sCnt}, s{sCnt}, 1", f"s_cmp_lg_u32 s{sCnt}, 0", f"s_cbranch_scc1 {loop}", f"s_branch {back}")
    slow_paths.append(sp)
    return [Bundle(I(f"v_readfirstlane_b32 s{sNonce}, v{dst}", f"s_cmp_eq_u32 s{sNonce}, 0", f"s_cbranch_scc1 {slow}", f"{back}:"))]


def flag_addr_row(dst, sr, t2, t3):
    return I(f"s_lshr_b32 s{sT0}, s{sr}, 3", f"s_and_b32 s{sT1}, s{sr}, 7", f"s_lshl_b32 s{sT1}, s{sT1}, 3", f"s_add_u32 s{sT0}, s{sT0}, s{sT1}",
             f"v_lshrrev_b32 v{t2}, 4, v{vL}", f"v_lshlrev_b32 v{t2}, 1, v{t2}", f"v_bfe_u32 v{t3}, v{vL}, 2, 2", f"v_lshl_add_u32 v{t2}, v{t3}, 6, v{t2}",
             f"v_add_u32 v{t2}, s{sT0}, v{t2}", f"v_and_b32 v{t3}, 3, v{vL}", f"v_lshlrev_b32 v{t3}, 2, v{t3}", f"v_lshl_add_u32 v{dst}, v{t2}, 7, v{t3}")


def flag_addr_col(dst, sg, t2, t3):
    return I(f"s_lshr_b32 s{sT0}, s{sg}, 2", f"s_lshl_b32 s{sT0}, s{sT0}, 1", f"s_and_b32 s{sT1}, s{sg}, 3", f"s_lshl_b32 s{sT1}, s{sT1}, 6", f"s_add_u32 s{sT0}, s{sT0}, s{sT1}",
             f"v_lshrrev_b32 v{t2}, 5, v{vL}", f"v_bfe_u32 v{t3}, v{vL}, 2, 3", f"v_lshl_add_u32 v{t2}, v{t3}, 3, v{t2}",
             f"v_add_u32 v{t2}, s{sT0}, v{t2}", f"v_and_b32 v{t3}, 3, v{vL}", f"v_lshlrev_b32 v{t3}, 2, v{t3}", f"v_lshl_add_u32 v{dst}, v{t2}, 7, v{t3}")


def dma_x(n):
    g = []
    for i in range(4):
        pre = I(f"s_add_u32 s{sDx}, s{sXo}, {128 * n}") if i == 0 else []
        g.append(pre + I(f"s_add_u32 m0, s{sXw}, {(n % 3) * 4096}", f"buffer_load_dwordx4 v{vX[i]}, {srd(SX)}, s{sDx} offen offset:{1024 * i} lds"))
    return g


def prologue():
    o = []
    a = lambda *t: o.extend(I(*t))
    a("s_cmp_ge_u32 s2, 256", "s_cbranch_scc1 L_end")
    a("s_load_dwordx16 s[4:19], s[0:1], 0", "s_load_dwordx4 s[20:23], s[0:1], 64", "s_load_dwordx2 s[24:25], s[0:1], 80")
    a(f"s_memrealtime s[{sNonce}:{sNonce + 1}]")
    if OPT["prof"]:
        a("v_mov_b32 v31, 0")
        o += stamp("rt0") + stamp("start")
    t0, t1, t2 = T0, T1, T2
    a(f"v_lshrrev_b32 v{t0}, 6, v0", f"v_and_b32 v{vL}, 63, v0", f"v_readfirstlane_b32 s{sW}, v{t0}")
    a(f"s_and_b32 s{sT0}, s2, 1", f"s_lshl_b32 s{sT0}, s{sT0}, 3", f"s_bfe_u32 s{sT1}, s2, 0x30003", f"s_add_u32 s{sR}, s{sT0}, s{sT1}")
    a(f"v_lshrrev_b32 v{t0}, 3, v{vL}", f"v_lshrrev_b32 v{t1}, 4, v{vL}", f"v_and_b32 v{t2}, 7, v{vL}", f"v_xor_b32 v{t2}, v{t2}, v{t1}",
      f"v_lshlrev_b32 v{t2}, 4, v{t2}", f"v_mul_u32_u24 v{t0}, {LDX}, v{t0}", f"v_add_u32 v{vX[0]}, v{t0}, v{t2}",
      f"v_xor_b32 v{vX[1]}, 64, v{vX[0]}", f"v_add_u32 v{vX[1]}, {8 * LDX - 1024}, v{vX[1]}",
      f"v_add_u32 v{vX[2]}, {16 * LDX - 2048}, v{vX[0]}", f"v_add_u32 v{vX[3]}, {16 * LDX - 2048}, v{vX[1]}")
    a(f"s_lshl_b32 s{sT0}, s{sR}, 2", f"s_add_u32 s{sT0}, s{sT0}, s{sW}", f"s_mul_i32 s{sXo}, s{sT0}, {32 * LDX}")
    a(f"s_mul_i32 s{sXw}, s{sW}, 12288", f"s_add_u32 s{sXw}, s{sXw}, {XS}")
    a("s_mov_b32 s30, 2621440", "s_mov_b32 s31, 0x20000")
    a(f"s_bfe_u32 s{sT0}, s2, 0x20001", f"s_lshr_b32 s{sT1}, s2, 6",
      f"s_lshl_b32 s{sG}, s{sT0}, 2", f"s_add_u32 s{sG}, s{sG}, s{sT1}", f"s_lshr_b32 s{sP}, s{sT1}, 1",
      f"s_lshl_b32 s{sU}, s{sT0}, 1", f"s_add_u32 s{sU}, s{sU}, s{sP}",
      f"s_mul_i32 s{sKq}, s{sU}, 160", f"s_mul_i32 s{sU64}, s{sU}, 384")
    assert (SX, SQKV, SW1) == (28, 32, 36)
    a("s_waitcnt lgkmcnt(0)", f"s_mov_b32 s28, s{P_X}", f"s_mov_b32 s29, s{P_X + 1}")
    xs = [dma_x(n) for n in range(OPT["xearly"])]
    for x in xs:
        for g in x:
            o += g
    return o, xs


def nonce_publish():
    o = I(f"s_or_b32 s{sT0}, s2, s{sW}", f"s_cmp_lg_u32 s{sT0}, 0", "s_cbranch_scc1 L_nn",
          f"s_max_u32 s{sT0}, s{sNonce}, 1", f"v_mov_b32 v{T0}, s{sT0}", f"v_mov_b32 v{T1}, 0",
          f"global_store_dword v{T1}, v{T0}, s[{P_DBG}:{P_DBG + 1}] sc1")
    o[-1].ghost = True
    return o + I("L_nn:")


def div10(q, row, ch):
    return I(f"v_mul_u32_u24 v{row}, 6554, v{q}", f"v_lshrrev_b32 v{row}, 16, v{row}", f"v_mul_u32_u24 v{ch}, 10, v{row}", f"v_sub_u32 v{ch}, v{q}, v{ch}", f"v_lshlrev_b32 v{ch}, 4, v{ch}")


def wk_setup(kv):
    o = []
    for i in range(5):
        o += I(f"v_add_u32 v{T0}, {64 * i}, v{vL}") + div10(T0, T1, T2)
        if kv:
            o += I(f"v_lshrrev_b32 v{T0}, 4, v{T1}", f"v_and_b32 v{T1}, 15, v{T1}", f"v_mul_u32_u24 v{T0}, 1280, v{T0}", f"v_add_u32 v{T2}, v{T2}, v{T0}")
        o += I(f"v_mul_u32_u24 v{T1}, {LDQ}, v{T1}", f"v_add_u32 v{vWk[i]}, v{T1}, v{T2}")
        if not kv and i in (1, 2, 3):
            o += I(f"v_subrev_u32 v{vWk[i]}, {1024 * i}, v{vWk[i]}")
    return o + I(f"s_mul_i32 s{sT0}, s{sW}, {(16 if kv else 32) * LDQ}", f"s_add_u32 s{sKw}, s{sKq}, s{sT0}", f"s_mul_i32 s{sW5}, s{sW}, 5120")


def wp_setup():
    return I(f"v_lshrrev_b32 v{T0}, 3, v{vL}", f"s_lshl_b32 s{sT0}, s{sW}, 4", f"v_add_u32 v{T0}, s{sT0}, v{T0}", f"v_mul_u32_u24 v{T0}, {LD1}, v{T0}",
             f"v_bfe_u32 v{T1}, v{vL}, 4, 1", f"v_lshlrev_b32 v{T1}, 2, v{T1}", f"v_and_b32 v{T2}, 7, v{vL}", f"v_xor_b32 v{T1}, v{T1}, v{T2}",
             f"v_lshl_add_u32 v{vWp[0]}, v{T1}, 4, v{T0}", f"v_add_u32 v{vWp[1]}, {8 * LD1 - 1024}, v{vWp[0]}", f"s_lshl_b32 s{sW2k}, s{sW}, 11")


def w1_setup():
    return I(f"v_lshrrev_b32 v{T0}, 2, v0", f"v_and_b32 v{T1}, 3, v{vL}", f"v_mul_u32_u24 v{T0}, {LD1}, v{T0}", f"v_lshl_add_u32 v{vW1}, v{T1}, 4, v{T0}")


def x_read_setup():
    o = I(f"v_and_b32 v{T0}, 31, v{vL}", f"v_lshrrev_b32 v{T1}, 5, v{vL}", f"v_bfe_u32 v{T2}, v{vL}, 1, 3", f"v_xor_b32 v{T2}, v{T2}, v{T1}",
          f"v_lshlrev_b32 v{T2}, 4, v{T2}", f"v_lshl_add_u32 v{T2}, v{T0}, 7, v{T2}")
    for j in range(4):
        o += I(f"v_xor_b32 v{vXR[j]}, {32 * j}, v{T2}", f"v_add_u32 v{vXR[j]}, s{sXw}, v{vXR[j]}")
    return o


def tr_parts():
    return I(f"v_lshrrev_b32 v{T1}, 5, v{vL}", f"v_bfe_u32 v{T0}, v{vL}, 2, 2", f"v_lshl_add_u32 v{T0}, v{T1}, 3, v{T0}",
             f"v_bfe_u32 v{T1}, v{vL}, 4, 1", f"v_and_b32 v{T2}, 3, v{vL}", f"v_lshlrev_b32 v{T2}, 3, v{T2}")


def tk_setup(kv):
    o = tr_parts() + I(f"v_mul_u32_u24 v{T0}, 160, v{T0}", f"v_add_u32 v{T0}, v{T0}, v{T2}", f"v_lshl_add_u32 v{vTK[0]}, v{T1}, 5, v{T0}", f"v_add_u32 v{vTM[0]}, 128, v{T0}")
    if kv:
        o += I(f"v_mul_u32_u24 v{T1}, 2560, v{T1}", f"v_add_u32 v{vTM[0]}, v{vTM[0]}, v{T1}")
    return o + I(f"v_add_u32 v{vTK[1]}, 0x8000, v{vTK[0]}", f"v_add_u32 v{vTM[1]}, 0x8000, v{vTM[0]}")


def tp_setup(base):
    return tr_parts() + I(f"v_lshl_add_u32 v{T2}, v{T1}, 5, v{T2}", f"v_lshl_add_u32 v{T2}, v{T0}, 7, v{T2}", f"v_bfe_u32 v{T1}, v{vL}, 3, 1",
                          f"v_lshl_add_u32 v{T2}, v{T1}, 6, v{T2}", f"v_add_u32 v{vTP[0]}, {base}, v{T2}", f"v_xor_b32 v{vTP[1]}, 64, v{vTP[0]}")


def tr_setup(base):
    return tr_parts() + I(f"v_lshl_add_u32 v{T2}, v{T1}, 5, v{T2}", f"v_lshl_add_u32 v{T2}, v{T0}, 6, v{T2}", f"v_add_u32 v{vTR}, {base}, v{T2}")


def late_setup():
    o = []
    a = lambda *t: o.extend(I(*t))
    t0, t1, t2, t3 = T0, T1, T2, T3
    o += make_srd(SDBG, P_DBG, 256)
    a(f"v_mov_b32 v{vPoll2}, 0", f"buffer_load_dword v{vPoll2}, v{vPoll2}, {srd(SDBG)}, 0 offen sc1")
    o += make_srd(SB1, P_B1, 1728 * 2)
    o += make_srd(SWO, P_WO, 640 * LDX) + make_srd(SW2, P_W2, 1728 * LDX) + make_srd(SOUT, P_OUT, 2048 * LDX) + make_srd(SB2, P_B2, 1280)
    a(f"v_and_b32 v{t0}, 31, v{vL}", f"v_lshrrev_b32 v{t1}, 5, v{vL}")
    a(f"v_lshlrev_b32 v{vEXr}, 4, v{t0}", f"v_add_u32 v{vEXr}, {EX}, v{vEXr}", f"v_sub_u32 v{vHiM}, 0, v{t1}")
    a(f"v_bfe_u32 v{t2}, v{vL}, 4, 1", f"v_mul_u32_u24 v{t2}, {NB * 1024}, v{t2}", f"v_and_b32 v{t3}, 15, v{vL}",
      f"v_lshl_add_u32 v{t3}, v{t1}, 4, v{t3}", f"v_lshl_add_u32 v{vHst}, v{t3}, 4, v{t2}")
    a(f"s_lshl_b32 s{sT0}, s{sR}, 2", f"s_add_u32 s{sT0}, s{sT0}, s{sW}", f"s_mul_i32 s{sHst}, s{sT0}, {2 * NB * 1024}", f"s_add_u32 s{sHst}, s{sHst}, {HB}",
      f"s_mul_i32 s{sOst}, s{sU}, 2560", f"s_add_u32 s{sOst}, s{sOst}, s{sHst}",
      f"s_add_u32 s{sHst}, s{sHst}, {20 * 1024}", f"s_lshl_b32 s{sT0}, s{sU4}, 4", f"s_add_u32 s{sH4}, s{sHst}, s{sT0}", f"s_or_b32 s{sH4}, s{sH4}, s{sLast}",
      f"s_lshl_b32 s{sT0}, s{sU64}, 4", f"s_add_u32 s{sHst}, s{sHst}, s{sT0}")
    a(f"s_lshl_b32 s{sT0}, s2, 7", f"s_lshl_b32 s{sT1}, s{sW}, 2", f"s_add_u32 s{sT0}, s{sT0}, s{sT1}",
      f"v_mov_b32 v{vFl}, {OOB}", f"v_writelane_b32 v{vFl}, s{sT0}, 0")
    a(f"s_mov_b32 s{sEps}, {f2u(1e-6)}")
    return o


def touch_code():
    t0 = T0
    return I(f"s_getpc_b64 s[{sT0 + 1}:{sT0 + 2}]", f"s_and_b32 s{sT0 + 1}, s{sT0 + 1}, 0xffffff00", f"s_bfe_u32 s{sT0}, s2, 0x30003", f"s_lshl_b32 s{sT3}, s{sP}, 3",
             f"s_add_u32 s{sT0}, s{sT0}, s{sT3}", f"s_lshl_b32 s{sT0}, s{sT0}, 7", f"s_lshl_b32 s{sT3}, s{sW}, 14", f"s_add_u32 s{sT0}, s{sT0}, s{sT3}",
             f"v_lshlrev_b32 v{t0}, 11, v{vL}", f"v_add_u32 v{t0}, s{sT0}, v{t0}", "s_mov_b64 exec, 0xff",
             f"global_load_dword v{vTd}, v{t0}, s[{sT0 + 1}:{sT0 + 2}]", "s_mov_b64 exec, -1")


CB = 128
ST, CS, CAD, SAD, SST = CB, CB + 10, CB + 30, CB + 45, CB + 44
PA = 216


def s0_wave_params(tiles):
    o = []
    done = uid("s0p")
    for w in range(4):
        nxt = uid("s0p")
        if w < 3:
            o += I(f"s_cmp_lg_u32 s{sW}, {w}", f"s_cbranch_scc1 {nxt}")
        for name, (lo, hi, ld, off, mx, sb) in zip((tiles + ["--"])[2 * w:2 * w + 2], ((sA_lo, sA_hi, sLdA, sOffA, sMixA, sBA), (sB_lo, sB_hi, sLdB, sOffB, sMixB, sBB))):
            ish = name[0] in "H-"
            p = P_W1 if ish else P_QKV
            o += I(f"s_mov_b32 s{lo}, s{p}", f"s_mov_b32 s{hi}, s{p + 1}", f"s_mov_b32 s{ld}, {LD1 if ish else LDQ}",
                   f"s_mov_b32 s{mx}, {dict(MX=1248, QM=-32).get(name, 0)}")
            if not ish:
                o += I(f"s_add_u32 s{off}, s{sKq}, {QCOL[name]}", f"s_mov_b32 s{sb}, {OOB}")
            elif name == "--":
                o += I(f"s_mov_b32 s{off}, 0", f"s_mov_b32 s{sb}, {OOB}")
            elif name == "H4":
                o += I(f"s_or_b32 s{sb}, s{sU4}, s{sLast}", f"s_mov_b32 s{off}, s{sU4}")
            else:
                o += I(f"s_add_u32 s{off}, s{sU64}, {64 * HUNIT[name]}", f"s_mov_b32 s{sb}, s{off}")
        if w < 3:
            o += I(f"s_branch {done}", f"{nxt}:")
    o += I(f"{done}:")
    return o


QCOL = {"K0": 0, "K1": 64, "MX": 128, "V0": 1280, "V1": 1344, "Q0": 0, "Q1": 64, "QM": 128}
HUNIT = {"Ha": 0, "Hb": 1, "H0": 0, "H1": 1, "H2": 2, "H3": 3, "H4": 4}


def s0_addr(tiles):
    o = []
    a = lambda *t: o.extend(I(*t))
    t0, t1, t2, t3 = T0, T1, T2, T3
    a(f"s_lshl_b32 s{sT0}, s{sR}, 7", f"s_lshl_b32 s{sT1}, s{sG}, 3", f"s_add_u32 s{sT0}, s{sT0}, s{sT1}", f"s_lshl_b32 s{sT1}, s{sW}, 1",
      f"s_add_u32 s{sT2}, s{sT0}, s{sT1}", f"s_mul_i32 s{sH}, s{sT2}, {LDX}",
      f"v_lshrrev_b32 v{t0}, 5, v{vL}", f"v_mul_u32_u24 v{t1}, {LDX}, v{t0}", f"v_and_b32 v{t2}, 31, v{vL}", f"v_lshl_add_u32 v{SAD}, v{t2}, 3, v{t1}",
      f"v_add_u32 v{SST}, s{sT2}, v{t0}")
    o += s0_wave_params(tiles)
    ad, ld = CAD, CB + 46
    a(f"v_and_b32 v{t0}, 4, v{vL}", f"v_cmp_ne_u32 vcc, 0, v{t0}",
      f"v_mov_b32 v{ld}, s{sLdA}", f"v_mov_b32 v{t1}, s{sLdB}", f"v_cndmask_b32 v{ld}, v{ld}, v{t1}, vcc", f"v_mov_b32 v{ld + 1}, 0",
      f"v_mov_b32 v{t2}, s{sOffA}", f"v_mov_b32 v{t1}, s{sOffB}", f"v_cndmask_b32 v{t2}, v{t2}, v{t1}, vcc",
      f"v_mov_b32 v{t3}, s{sMixA}", f"v_mov_b32 v{t1}, s{sMixB}", f"v_cndmask_b32 v{t3}, v{t3}, v{t1}, vcc",
      f"v_mov_b32 v{ad}, s{sA_lo}", f"v_mov_b32 v{t1}, s{sB_lo}", f"v_cndmask_b32 v{ad}, v{ad}, v{t1}, vcc",
      f"v_mov_b32 v{ad + 1}, s{sA_hi}", f"v_mov_b32 v{t1}, s{sB_hi}", f"v_cndmask_b32 v{ad + 1}, v{ad + 1}, v{t1}, vcc",
      f"v_bfe_u32 v{t0}, v{vL}, 1, 1", f"v_mad_i32_i24 v{t2}, v{t0}, v{t3}, v{t2}",
      f"v_and_b32 v{t0}, 3, v{vL}", f"v_lshl_add_u32 v{t2}, v{t0}, 4, v{t2}",
      f"v_lshrrev_b32 v{t0}, 3, v{vL}", f"v_mul_u32_u24 v{t0}, 5, v{t0}", f"s_mul_i32 s{sT0}, s{sR}, 40", f"v_add_u32 v{t0}, s{sT0}, v{t0}",
      f"v_mad_u32_u24 v{t2}, v{t0}, v{ld}, v{t2}", f"v_mov_b32 v{t3}, 0",
      f"v_lshl_add_u64 v[{ad}:{ad + 1}], v[{t2}:{t3}], 0, v[{ad}:{ad + 1}]")
    for i in range(4):
        a(f"v_lshl_add_u64 v[{ad + 2 * i + 2}:{ad + 2 * i + 3}], v[{ld}:{ld + 1}], 0, v[{ad + 2 * i}:{ad + 2 * i + 1}]")
    return o


def s0_mem():
    o = [I(f"buffer_load_dwordx2 v[{ST + 2 * m}:{ST + 2 * m + 1}], v{SAD}, {srd(SX)}, s{sH} offen offset:{256 * m}") for m in range(5)]
    o += [I(f"global_load_dwordx4 v[{CS + 4 * i}:{CS + 4 * i + 3}], v[{CAD + 2 * i}:{CAD + 2 * i + 1}], off") for i in range(5)]
    return o


def reduce32(x, t):
    o = []
    for n in (8, 4, 2, 1):
        o += I(f"v_add_f32_dpp v{x}, v{x}, v{x} row_ror:{n} row_mask:0xf bank_mask:0xf")
    return o + I(f"v_mov_b32 v{t}, v{x}", f"v_permlane16_swap_b32 v{x}, v{t}", f"v_add_f32 v{x}, v{x}, v{t}")


def weave(*streams):
    out, streams = [], [list(s) for s in streams]
    while any(streams):
        for s in streams:
            if s:
                out.append(s.pop(0))
    return out


def s0_produce(kv):
    st, cs, stores = [], [], []
    a = lambda *t: st.extend(I(*t))
    s0, s1, t = CB + 40, CB + 41, CB + 42
    a(f"s_mov_b32 s{sCnt}, 0x3f803f80")
    for m in range(10):
        a(f"v_dot2_f32_bf16 v{s0}, v{ST + m}, s{sCnt}, {'0' if m == 0 else 'v%d' % s0}", f"v_dot2_f32_bf16 v{s1}, v{ST + m}, v{ST + m}, {'0' if m == 0 else 'v%d' % s1}")
    a(f"v_lshlrev_b32 v{SST}, 3, v{SST}", f"v_add_u32 v{SST}, {STATS}, v{SST}", f"v_and_b32 v{t}, 31, v{vL}", f"v_min_u32 v{t}, 1, v{t}", f"v_lshl_add_u32 v{SST}, v{t}, 30, v{SST}")
    red = weave(reduce32(s0, t), reduce32(s1, CB + 43))
    red += I(f"v_mul_f32 v{s0}, {f2u(1 / 640)}, v{s0}", f"v_mul_f32 v{s1}, {f2u(1 / 640)}, v{s1}", f"v_fma_f32 v{s1}, -v{s0}, v{s0}, v{s1}", f"v_max_f32 v{s1}, 0, v{s1}")
    stores.append(ins(f"buffer_store_dwordx2 v[{s0}:{s1}], v{SST}, {srd(SWS)}, 0 offen sc1"))
    a = lambda *t: cs.extend(I(*t))
    A, ta, tb = CAD, CB + 46, CB + 47
    for i in range(5):
        for k in range(4):
            for h in range(2):
                d = A + 2 * k + h
                a(f"v_dot2_f32_bf16 v{d}, v{CS + 4 * i + k}, s{sOne1 if h else sOne0}, {'0' if i == 0 else 'v%d' % d}")
    n1 = len(cs)
    a(f"v_and_b32 v{ta}, 7, v{vL}", f"v_lshlrev_b32 v{ta}, 5, v{ta}", f"v_lshrrev_b32 v{tb}, 5, v{vL}", f"v_lshl_add_u32 v{ta}, v{tb}, 4, v{ta}")
    for i in range(4):
        a(f"v_permlane32_swap_b32 v{A + i}, v{A + i + 4}")
    for i in range(4):
        a(f"v_add_f32 v{A + i}, v{A + i}, v{A + i + 4}")
    a(f"v_bfe_u32 v{tb}, v{vL}, 4, 1", f"v_lshl_add_u32 v{ta}, v{tb}, 3, v{ta}")
    for i in range(2):
        a(f"v_permlane16_swap_b32 v{A + i}, v{A + i + 2}")
    for i in range(2):
        a(f"v_add_f32 v{A + i}, v{A + i}, v{A + i + 2}")
    a(f"v_bfe_u32 v{tb}, v{vL}, 3, 1", f"v_lshl_add_u32 v{ta}, v{tb}, 30, v{ta}")
    for i in range(2):
        a(f"v_add_f32_dpp v{A + i}, v{A + i}, v{A + i} row_ror:8 row_mask:0xf bank_mask:0xf")
    a(f"s_lshl_b32 s{sH}, s{sG}, 4", f"s_add_u32 s{sH}, s{sH}, s{sR}", f"s_lshl_b32 s{sH}, s{sH}, 2", f"s_add_u32 s{sH}, s{sH}, s{sW}",
      f"s_lshl_b32 s{sH}, s{sH}, 8", f"s_add_u32 s{sH}, s{sH}, {CSUM}", f"v_add_u32 v{ta}, s{sH}, v{ta}")
    stores.append(ins(f"buffer_store_dwordx2 v[{A}:{A + 1}], v{ta}, {srd(SWS)}, 0 offen sc1"))
    return st + cs[:n1] + weave(red, bundled(cs[n1:])), stores


def s0_consume_loads():
    o = stamp("prepoll") + poll_check(vRowF, L_S0, dst=vPoll) + poll_check(vColF, L_S0, dst=vPoll2) + stamp("polled")
    a = lambda *t: o.extend(I(*t))
    a(f"buffer_load_dwordx2 v[{CB}:{CB + 1}], v{PA}, {srd(SWS)}, 0 offen sc1")
    for m in range(4):
        a(f"buffer_load_dwordx4 v[{CB + 4 + 4 * m}:{CB + 7 + 4 * m}], v{PA + 1 + m}, {srd(SWS)}, 0 offen sc1")
    a(f"buffer_load_ushort v{CB + 27}, v{PA + 5}, {srd(SB1)}, 0 offen")
    return o


def s0_consume_addr():
    o = []
    a = lambda *t: o.extend(I(*t))
    t0, t1 = T0, T1
    o += flag_addr_row(vRowF, sR, t0, t1) + flag_addr_col(vColF, sG, t0, t1)
    a(f"v_and_b32 v{t0}, 31, v{vL}", f"v_lshlrev_b32 v{t0}, 3, v{t0}", f"s_lshl_b32 s{sT0}, s{sR}, 2", f"s_add_u32 s{sT0}, s{sT0}, s{sW}",
      f"s_lshl_b32 s{sT0}, s{sT0}, 8", f"s_add_u32 s{sT0}, s{sT0}, {STATS}", f"v_add_u32 v{PA}, s{sT0}, v{t0}")
    a(f"v_lshrrev_b32 v{t0}, 4, v{vL}", f"v_lshlrev_b32 v{t0}, 10, v{t0}", f"v_and_b32 v{t1}, 15, v{vL}", f"v_lshl_add_u32 v{t0}, v{t1}, 4, v{t0}",
      f"s_lshl_b32 s{sT0}, s{sG}, 14", f"s_lshl_b32 s{sT1}, s{sW}, 8", f"s_add_u32 s{sT0}, s{sT0}, s{sT1}", f"s_add_u32 s{sT0}, s{sT0}, {CSUM}",
      f"v_add_u32 v{PA + 1}, s{sT0}, v{t0}")
    for m in range(1, 4):
        a(f"v_add_u32 v{PA + 1 + m}, {4096 * m}, v{PA + 1}")
    p = PA + 6
    a(f"v_lshlrev_b32 v{p}, 2, v{t1}", f"v_lshrrev_b32 v{t0}, 5, v{vL}", f"v_lshl_add_u32 v{p}, v{t0}, 1, v{p}", f"v_bfe_u32 v{t0}, v{vL}, 4, 1", f"v_add_u32 v{p}, v{p}, v{t0}",
      f"v_cmp_le_u32 vcc, 32, v{p}", f"v_mov_b32 v{t0}, s{sBA}", f"v_mov_b32 v{t1}, s{sBB}", f"v_cndmask_b32 v{t0}, v{t0}, v{t1}, vcc",
      f"v_and_b32 v{t1}, 31, v{p}", f"v_lshl_add_u32 v{PA + 5}, v{t1}, 1, v{t0}",
      f"v_lshlrev_b32 v{p}, 4, v{p}", f"v_add_u32 v{p}, s{sWL}, v{p}", f"v_add_u32 v{p}, {EX}, v{p}")
    return o


def s0_consume_math():
    x, y = [], []
    a = lambda *t: x.extend(I(*t))
    m, var = CB, CB + 1
    t0, t1, t2, t3 = CB + 28, CB + 29, CB + 30, CB + 31
    e5 = f2u(1e-5)
    a(f"v_add_f32 v{t0}, {e5}, v{var}", f"v_rsq_f32 v{vRs1}, v{t0}", f"v_mul_f32 v{t1}, v{var}, v{vRs1}", f"v_mul_f32 v{t1}, v{t1}, v{vRs1}",
      f"v_add_f32 v{t1}, {e5}, v{t1}", f"v_rsq_f32 v{t1}, v{t1}", f"v_mul_f32 v{vRl1}, {f2u(LOG2E)}, v{vRs1}", f"v_mul_f32 v{t1}, v{t1}, v{vRs1}",
      f"v_rcp_f32 v{vIrs}, v{t1}", f"v_mul_f32 v{vA1}, {f2u(C1)}, v{t1}", f"v_mul_f32 v{t2}, v{t1}, v{t1}", f"v_mul_f32 v{t2}, v{t2}, v{t1}",
      f"v_mul_f32 v{vA3}, {f2u(C3)}, v{t2}")
    a(f"v_sub_f32 v{m}, 0, v{m}", f"v_cvt_pk_bf16_f32 v{t0}, v{m}, v{m}", f"v_and_b32 v{t0}, 0xffff0000, v{t0}", f"v_sub_f32 v{t2}, v{m}, v{t0}",
      f"v_cvt_pk_bf16_f32 v{vXE}, v{t0}, v{t2}",
      f"v_cvt_pk_bf16_f32 v{t0}, v{vIrs}, v{vIrs}", f"v_and_b32 v{t0}, 0xffff0000, v{t0}", f"v_sub_f32 v{t2}, v{vIrs}, v{t0}",
      f"v_cvt_pk_bf16_f32 v{vXE + 2}, v{t0}, v{t2}", f"v_and_b32 v{t0}, 0xffff0000, v{vXE + 2}", f"v_sub_f32 v{t2}, v{t2}, v{t0}",
      f"v_cvt_pk_bf16_f32 v{vXE + 3}, v{t2}, 0",
      f"v_not_b32 v{t3}, v{vHiM}", f"v_and_b32 v{vXE}, v{vXE}, v{t3}", f"v_and_b32 v{vXE + 2}, v{vXE + 2}, v{t3}", f"v_and_b32 v{vXE + 3}, v{vXE + 3}, v{t3}",
      f"v_mov_b32 v{vXE + 1}, v{vXE}")
    a = lambda *t: y.extend(I(*t))
    B, u0 = CB + 4, CB + 32
    for mm in range(1, 4):
        for k in range(4):
            a(f"v_add_f32 v{B + k}, v{B + k}, v{B + 4 * mm + k}")
    a(f"v_permlane32_swap_b32 v{B}, v{B + 2}", f"v_permlane32_swap_b32 v{B + 1}, v{B + 3}",
      f"v_add_f32 v{B}, v{B}, v{B + 2}", f"v_add_f32 v{B + 1}, v{B + 1}, v{B + 3}",
      f"v_permlane16_swap_b32 v{B}, v{B + 1}", f"v_add_f32 v{B}, v{B}, v{B + 1}")
    Rr = CB + 24
    a(f"v_cvt_pk_bf16_f32 v{Rr}, v{B}, v{B}", f"v_and_b32 v{u0}, 0xffff0000, v{Rr}", f"v_sub_f32 v{u0}, v{B}, v{u0}",
      f"v_cvt_pk_bf16_f32 v{Rr + 1}, v{u0}, v{u0}", f"v_lshl_or_b32 v{Rr + 2}, v{Rr + 3}, 16, v{Rr + 3}")
    w = ins(f"ds_write_b128 v{PA + 6}, v[{Rr}:{Rr + 3}]")
    return weave(y + [w], x), w


pr = lambda r: f"v[{r}:{r + 1}]"


def cvt2(dst, tb):
    return I(f"v_cvt_pk_bf16_f32 v{dst}, v{tb}, v{tb + 1}", f"v_cvt_pk_bf16_f32 v{dst + 1}, v{tb + 2}, v{tb + 3}")


def gelu_quad(A, dst, tb, pk=False):
    o = []
    each = lambda f, n=4, s=1: [o.extend(I(f(i))) for i in range(0, n, s)]
    if pk:
        each(lambda i: f"v_pk_mul_f32 {pr(tb + i)}, {pr(A + i)}, {pr(A + i)}", 4, 2)
        each(lambda i: f"v_pk_fma_f32 {pr(tb + i)}, {pr(tb + i)}, {pr(vA3)}, {pr(vA1)} op_sel_hi:[1,0,0]", 4, 2)
        each(lambda i: f"v_pk_mul_f32 {pr(tb + i)}, {pr(tb + i)}, {pr(A + i)}", 4, 2)
        each(lambda i: f"v_exp_f32 v{tb + i}, v{tb + i}")
        each(lambda i: f"v_pk_fma_f32 {pr(tb + i)}, {pr(tb + i)}, {pr(vIrs)}, {pr(vIrs)} op_sel_hi:[1,0,0]", 4, 2)
        each(lambda i: f"v_rcp_f32 v{tb + i}, v{tb + i}")
        each(lambda i: f"v_pk_mul_f32 {pr(tb + i)}, {pr(tb + i)}, {pr(A + i)}", 4, 2)
    else:
        each(lambda i: f"v_mul_f32 v{tb + i}, v{A + i}, v{A + i}")
        each(lambda i: f"v_fma_f32 v{tb + i}, v{tb + i}, v{vA3}, v{vA1}")
        each(lambda i: f"v_mul_f32 v{tb + i}, v{tb + i}, v{A + i}")
        each(lambda i: f"v_exp_f32 v{tb + i}, v{tb + i}")
        each(lambda i: f"v_fma_f32 v{tb + i}, v{tb + i}, v{vIrs}, v{vIrs}")
        each(lambda i: f"v_rcp_f32 v{tb + i}, v{tb + i}")
        each(lambda i: f"v_mul_f32 v{tb + i}, v{tb + i}, v{A + i}")
    return o + cvt2(dst, tb)


def phi_quad(A, dst, tb, pk=False):
    o = []
    each = lambda f, n=4, s=1: [o.extend(I(f(i))) for i in range(0, n, s)]
    if pk:
        each(lambda i: f"v_pk_mul_f32 {pr(tb + i)}, {pr(A + i)}, {pr(vRl1)} op_sel_hi:[1,0]", 4, 2)
        each(lambda i: f"v_pk_fma_f32 {pr(A + i)}, {pr(A + i)}, {pr(vRs1)}, 1.0 op_sel_hi:[1,0,0]", 4, 2)
    else:
        each(lambda i: f"v_mul_f32 v{tb + i}, v{A + i}, v{vRl1}")
        each(lambda i: f"v_fma_f32 v{A + i}, v{A + i}, v{vRs1}, 1.0")
    each(lambda i: f"v_exp_f32_e64 v{tb + i}, v{tb + i} clamp")
    each(lambda i: f"v_max_f32 v{tb + i}, v{tb + i}, v{A + i}")
    if pk:
        each(lambda i: f"v_pk_add_f32 {pr(tb + i)}, {pr(tb + i)}, s[{sEps}:{sEps + 1}] op_sel_hi:[1,0]", 4, 2)
    else:
        each(lambda i: f"v_add_f32 v{tb + i}, s{sEps}, v{tb + i}")
    return o + cvt2(dst, tb)


def lin_quad(A, dst, tb, pk=False):
    o = []
    if pk:
        for i in (0, 2): o += I(f"v_pk_mul_f32 {pr(tb + i)}, {pr(A + i)}, {pr(vRs1)} op_sel_hi:[1,0]")
    else:
        for i in range(4): o += I(f"v_mul_f32 v{tb + i}, v{A + i}, v{vRs1}")
    return o + cvt2(dst, tb)


def gelu_quads(jobs, lo, hi, pk):
    o = []
    for n in range(lo, hi):
        A, name, toks = jobs[n // 4]
        gq, h = n % 4, (n % 4) // 2
        if gq == 0 or n == lo:
            pass
        o += gelu_quad(A + 4 * gq, A + 8 * h + 2 * (gq & 1), ET + 4 * (gq & 1), pk)
        if gq & 1:
            x = ins(f"buffer_store_dwordx4 v[{A + 8 * h}:{A + 8 * h + 3}], v{vHst}, {srd(SWS)}, s{sH4 if name == 'H4' else sHst} offen offset:{512 * h + 1024 * (HUNIT[name] % 4)} sc1")
            o.append(x); toks.append(x)
    return o


def kv_setup():
    o = []
    a = lambda *t: o.extend(I(*t))
    t0, t1, t2 = T0, T1, T2
    a(f"v_and_b32 v{t0}, 31, v{vL}", f"s_lshl_b32 s{sT0}, s{sW}, 5", f"v_add_u32 v{t0}, s{sT0}, v{t0}", f"v_mul_u32_u24 v{t0}, {KVT_LD}, v{t0}",
      f"v_add_u32 v{t0}, {KVT}, v{t0}", f"v_add_u32 v{vOnes}, 320, v{t0}",
      f"v_lshrrev_b32 v{t1}, 5, v{vL}", f"v_lshl_add_u32 v{vKf}, v{t1}, 3, v{t0}")
    a(f"v_bfe_u32 v{t0}, v{vL}, 2, 2", f"v_lshl_add_u32 v{t0}, v{t1}, 3, v{t0}", f"v_mul_u32_u24 v{t0}, {KVT_LD}, v{t0}", f"v_add_u32 v{t0}, {KVT}, v{t0}",
      f"v_bfe_u32 v{t1}, v{vL}, 4, 1", f"v_and_b32 v{t2}, 3, v{vL}", f"v_lshl_add_u32 v{t1}, v{t1}, 2, v{t2}",
      f"s_mul_i32 s{sT0}, s{sW}, 40", f"v_lshl_add_u32 v{vKB}, v{t1}, 3, v{t0}", f"v_add_u32 v{vKB}, s{sT0}, v{vKB}",
      f"v_add_u32 v{vKA}, 160, v{vKB}", f"v_add_u32 v{t0}, 320, v{t0}", f"v_cmp_eq_u32 vcc, 5, v{t1}", f"v_cndmask_b32 v{vKA}, v{vKA}, v{t0}, vcc")
    a(f"v_and_b32 v{t0}, 31, v{vL}", f"v_cmp_gt_u32 vcc, 24, v{t0}", f"v_lshlrev_b32 v{t0}, 3, v{t0}", f"v_and_b32 v{t1}, 192, v{vHiM}", f"v_add_u32 v{t0}, v{t0}, v{t1}",
      f"s_lshl_b32 s{sT0}, s{sU}, 2", f"s_add_u32 s{sT0}, s{sT0}, s{sW}", f"s_lshl_b32 s{sT0}, s{sT0}, 4", f"s_add_u32 s{sT0}, s{sT0}, s{sR}", f"s_mul_i32 s{sT0}, s{sT0}, 1280",
      f"s_add_u32 s{sT0}, s{sT0}, {KVP}", f"v_add_u32 v{t0}, s{sT0}, v{t0}", f"v_mov_b32 v{vAt}, {OOB}", f"v_cndmask_b32 v{vAt}, v{vAt}, v{t0}, vcc")
    return o


def kv_epilogue(aset, nshadow):
    blk = I(f"v_mov_b32 v{T2}, 0x3f803f80", f"v_mov_b32 v{T3}, 0x3f803f80")
    ones = ins(f"ds_write_b64 v{vOnes}, v[{T2}:{T3}]")
    blk.append(ones)
    wr, parts, n = [ones], [blk, []], 0
    for t, kind, cb in [(0, "k", 0), (1, "k", 64), (2, "m", 128), (3, "v", 160), (4, "v", 224)]:
        A = acc(aset[t])
        for g in range(4):
            isk = kind == "k" or (kind == "m" and g < 2)
            pk = n >= nshadow
            off = cb + 16 * g if kind != "m" else cb + (16 * g if g < 2 else 160 + 16 * (g - 2))
            x = ins(f"ds_write_b64 v{vKf}, v[{A + 4 * g}:{A + 4 * g + 1}] offset:{off}")
            parts[pk] += (phi_quad if isk else lin_quad)(A + 4 * g, A + 4 * g, ET + 4 * (g & 1), pk) + [x]
            wr.append(x)
            n += 1
    return parts[0], parts[1], wr


def kv_product(wr):
    blk = [ins("s_barrier", after=wr)]
    KA, FR = acc(1), acc(2)
    rd = []
    for j in range(8):
        f = FR + 8 * (j % 4)
        rd.append(I(f"ds_read_b64_tr_b16 v[{f}:{f + 1}], v{vKA} offset:{16 * j * KVT_LD}", f"ds_read_b64_tr_b16 v[{f + 2}:{f + 3}], v{vKA} offset:{(16 * j + 4) * KVT_LD}",
                    f"ds_read_b64_tr_b16 v[{f + 4}:{f + 5}], v{vKB} offset:{16 * j * KVT_LD}", f"ds_read_b64_tr_b16 v[{f + 6}:{f + 7}], v{vKB} offset:{(16 * j + 4) * KVT_LD}"))
    blk += rd[0] + rd[1] + rd[2]
    for j in range(8):
        f = FR + 8 * (j % 4)
        c = "0" if j == 0 else f"v[{KA}:{KA + 15}]"
        blk += I(f"v_mfma_f32_32x32x16_bf16 v[{KA}:{KA + 15}], v[{f + 4}:{f + 7}], v[{f}:{f + 3}], {c}")
        if j + 3 < 8:
            blk += rd[j + 3]
    at = []
    for q in range(3):
        at.append(ins(f"buffer_store_dwordx2 v[{KA + 4 * q}:{KA + 4 * q + 1}], v{vAt}, {srd(SWS)}, 0 offen offset:{384 * q} sc1"))
        blk += cvt2(KA + 4 * q, KA + 4 * q) + at[-1:]
    return blk, at


PQ = 128
OA = [112, 148, 164]


def o_setup():
    o = []
    a = lambda *t: o.extend(I(*t))
    t0, t1, t2, t3 = T0, T1, T2, T3
    a(f"s_sub_u32 s{sT2}, s{sG}, 1")
    o += flag_addr_col(vColF, sT2, t2, t3)
    a(f"s_lshl_b32 s{sK1}, s{sU}, 2", f"s_add_u32 s{sK1}, s{sK1}, s{sW}", f"s_mul_i32 s{sK1}, s{sK1}, 20480", f"s_add_u32 s{sK1}, s{sK1}, {KVP}",
      f"v_cmp_gt_u32 vcc, 60, v{vL}", f"v_lshlrev_b32 v{t0}, 4, v{vL}", f"v_mov_b32 v{vOl0}, {OOB}", f"v_cndmask_b32 v{vOl0}, v{vOl0}, v{t0}, vcc")
    for i, vw in enumerate((vOw0, vOw1)):
        a(f"v_lshl_add_u32 v{t0}, v{vL}, 1, {i}", f"v_mul_u32_u24 v{t2}, 2731, v{t0}", f"v_lshrrev_b32 v{t2}, 16, v{t2}",
          f"v_mul_u32_u24 v{t1}, 24, v{t2}", f"v_sub_u32 v{t1}, v{t0}, v{t1}",
          f"v_mul_u32_u24 v{t0}, 5, v{t2}", f"v_subrev_u32 v{t0}, 4, v{t0}", f"v_max_i32 v{t0}, v{t0}, v{t1}")
        a(f"s_mul_i32 s{sT0}, s{sW}, 5", f"v_add_u32 v{t2}, s{sT0}, v{t2}",
          f"v_lshrrev_b32 v{t3}, 2, v{t2}", f"v_lshlrev_b32 v{vw}, 5, v{t3}", f"v_and_b32 v{t3}, 1, v{t2}", f"v_lshl_add_u32 v{vw}, v{t3}, 4, v{vw}",
          f"v_bfe_u32 v{t3}, v{t2}, 1, 1", f"v_lshl_add_u32 v{vw}, v{t3}, 3, v{vw}", f"v_add_u32 v{vw}, {AM}, v{vw}")
        v2 = (vOw2, vOw3)[i]
        a(f"s_mul_i32 s{sT0}, s{sW}, 20", f"v_add_u32 v{t2}, s{sT0}, v{t1}",
          f"s_add_u32 s{sT0}, s{sW}, 80", f"v_mov_b32 v{t3}, s{sT0}", f"v_cmp_eq_u32 vcc, 20, v{t1}", f"v_cndmask_b32 v{t2}, v{t2}, v{t3}, vcc",
          f"v_mul_u32_u24 v{t2}, {AM_LD}, v{t2}", f"v_add_u32 v{vw}, v{vw}, v{t2}",
          f"v_add_u32 v{t2}, {4 * AM_LD}, v{vw}", f"v_cndmask_b32 v{v2}, v{vw}, v{t2}, vcc")
        a(f"v_cmp_lt_u32 vcc, 20, v{t0}", f"v_mov_b32 v{t2}, {SCR}", f"v_cndmask_b32 v{vw}, v{vw}, v{t2}, vcc", f"v_cndmask_b32 v{v2}, v{v2}, v{t2}, vcc")
    a(f"v_and_b32 v{t0}, 31, v{vL}", f"v_mul_u32_u24 v{t0}, {AM_LD}, v{t0}", f"v_and_b32 v{t1}, 16, v{vHiM}", f"v_add_u32 v{t0}, v{t0}, v{t1}", f"v_add_u32 v{vAM}, {AM}, v{t0}")
    return o


def am_zero():
    o = I(*[f"v_mov_b32 v{ET + k}, 0" for k in range(4)], f"v_lshlrev_b32 v{ET + 4}, 4, v0", f"v_add_u32 v{ET + 4}, {AM}, v{ET + 4}")
    tk = [ins(f"ds_write_b128 v{ET + 4}, v[{ET}:{ET + 3}] offset:{4096 * k}") for k in range(5)]
    return o + tk, tk


def phi_q(aset, pk, lo, hi):
    o = []
    for n in range(lo, hi):
        A = acc(aset[5 + n // 4]) + 4 * (n % 4)
        o += phi_quad(A, PQ + 2 * n, ET + 4 * (n & 1), pk)
    return o


KL, KS = 48, 112


def o_load():
    g = []
    for r in range(16):
        g.append((I(f"s_add_u32 s{sK1}, s{sK1}, 5120") if r and r % 4 == 0 else []) +
                 I(f"buffer_load_dwordx4 v[{KL + 4 * r}:{KL + 4 * r + 3}], v{vOl0}, {srd(SWS)}, s{sK1} offen offset:{1280 * (r % 4)} sc1"))
    return poll_check(vColF, L_KP, dst=vPoll2, who="kv") + stamp("kvseen"), g


def o_write():
    o = []
    for r in range(16):
        for k in range(8):
            o += I(f"v_dot2_f32_bf16 v{KS + k}, v{KL + 4 * r + k // 2}, s{sOne1 if k & 1 else sOne0}, {'0' if r == 0 else 'v%d' % (KS + k)}")
    o += cvt2(KS, KS) + cvt2(KS + 2, KS + 4)
    wr = [ins(f"ds_write_b64 v{vw}, v[{KS + 2 * i}:{KS + 2 * i + 1}]") for i, vw in ((0, vOw0), (0, vOw2), (1, vOw1), (1, vOw3))]
    return o + wr, wr


def o_steps():
    seq = [(T, k) for T in (2, 0, 1) for k in range(5)]
    fr = lambda n: r4([("v", ET), ("v", ET + 4), ("v", T0)][n % 3])
    rd = lambda n: I(f"ds_read_b128 {fr(n)}, v{vAM} offset:{seq[n][0] * 32 * AM_LD + 32 * seq[n][1]}")
    steps = []
    for n, (T, k) in enumerate(seq):
        pre = []
        if n == 0:
            pre = rd(0) + rd(1)
        c = "0" if k == 0 else f"v[{OA[T]}:{OA[T] + 15}]"
        m = ins(f"v_mfma_f32_32x32x16_bf16 v[{OA[T]}:{OA[T] + 15}], {fr(n)}, v[{PQ + 4 * k}:{PQ + 4 * k + 3}], {c}")
        steps.append(dict(pre=pre, mfma=m, post=rd(n + 2) if n + 2 < 15 else [], budget=0))
    return steps


def o_finish(toks):
    o = []
    a = lambda *t: o.extend(I(*t))
    rc = ET
    for h in range(4): a(f"v_add_f32 v{rc + h}, s{sEps}, v{OA[2] + 8 + h}")
    for h in range(4): a(f"v_rcp_f32 v{rc + h}, v{rc + h}")
    a(f"v_bfi_b32 v{rc + 4}, v{vHiM}, v{rc + 1}, v{rc}", f"v_bfi_b32 v{rc + 5}, v{vHiM}, v{rc + 3}, v{rc + 2}")
    for i in (4, 0, 1, 2, 3):
        A = OA[i >> 1] + 8 * (i & 1)
        for gq in range(2):
            e0 = 16 * i + 8 * gq
            rr = {16: rc + 4, 56: rc + 5}.get(e0, rc + e0 // 20)
            sel = "op_sel:[0,1] op_sel_hi:[1,1]" if rr & 1 else "op_sel_hi:[1,0]"
            for k in (0, 2): a(f"v_pk_mul_f32 {pr(A + 4 * gq + k)}, {pr(A + 4 * gq + k)}, {pr(rr & ~1)} {sel}")
            o += cvt2(A + 2 * gq, A + 4 * gq)
        x = ins(f"buffer_store_dwordx4 v[{A}:{A + 3}], v{vHst}, {srd(SWS)}, s{sOst} offen offset:{512 * i} sc1")
        o.append(x); toks.append(x)
    return o


def p2_setup(RA):
    o = []
    a = lambda *t: o.extend(I(*t))
    t0, t1, t2 = T0, T1, T2
    a(f"s_and_b32 s{sT0}, s2, 1", f"s_lshl_b32 s{sT0}, s{sT0}, 3", f"s_and_b32 s{sT1}, s2, 4", f"s_add_u32 s{sT0}, s{sT0}, s{sT1}",
      f"s_bfe_u32 s{sT1}, s2, 0x20003", f"s_add_u32 s{sR2}, s{sT0}, s{sT1}",
      f"s_lshr_b32 s{sT1}, s2, 5", f"s_mul_i32 s{sJ160}, s{sT1}, 160",
      f"s_bfe_u32 s{sT2}, s2, 0x10001",
      f"s_lshl_b32 s{sE}, s{sT2}, 2", f"s_add_u32 s{sE}, s{sE}, s{sW}",
      f"s_and_b32 s{sT0}, s{sW}, 1", f"s_lshl_b32 s{sT0}, s{sT0}, 1", f"s_mul_i32 s{sBq}, s{sE}, 6", f"s_sub_u32 s{sBq}, s{sBq}, s{sT0}",
      f"s_sub_u32 s{sBk}, s{sBq}, s{sT0}", f"s_add_u32 s{sBq}, s{sBq}, 4",
      f"s_sub_u32 s{sB6}, s{sE}, s{sT2}", f"s_add_u32 s{sB6}, s{sB6}, 48", f"s_cmp_eq_u32 s{sW}, 3", f"s_cselect_b32 s{sL6}, {OOB}, 0",
      f"s_lshl_b32 s{sT0}, s{sR2}, 1", f"s_add_u32 s{sT1}, s{sT0}, s{sT2}",
      f"s_mul_i32 s{sHB}, s{sT1}, {4 * NB * 1024}", f"s_add_u32 s{sHB}, s{sHB}, {HB}",
      f"s_lshl_b32 s{sRow}, s{sT1}, 2", f"s_add_u32 s{sRow}, s{sRow}, s{sW}", f"s_mul_i32 s{sRow}, s{sRow}, {16 * LDX}", f"s_add_u32 s{sRow}, s{sRow}, s{sJ160}",
      f"s_xor_b32 s{sT1}, s{sT1}, 1", f"s_mul_i32 s{sHA}, s{sT1}, {4 * NB * 1024}", f"s_add_u32 s{sHA}, s{sHA}, {HB}")
    a(f"s_add_u32 s{sT0}, s{sBq}, 20", f"s_lshl_b32 s{sHq}, s{sT0}, 10", f"s_add_u32 s{sT0}, s{sBk}, 20", f"s_lshl_b32 s{sHk}, s{sT0}, 10",
      f"s_add_u32 s{sT0}, s{sB6}, 20", f"s_lshl_b32 s{sH6}, s{sT0}, 10", f"s_or_b32 s{sH6}, s{sH6}, s{sL6}", f"s_lshl_b32 s{sHo}, s{sW}, 10",
      f"s_mul_i32 s{sWq}, s{sBq}, {32 * LDX}", f"s_add_u32 s{sWq}, s{sWq}, s{sJ160}", f"s_mul_i32 s{sWk}, s{sBk}, {32 * LDX}", f"s_add_u32 s{sWk}, s{sWk}, s{sJ160}",
      f"s_mul_i32 s{sW6}, s{sB6}, {32 * LDX}", f"s_add_u32 s{sW6}, s{sW6}, s{sJ160}", f"s_or_b32 s{sW6}, s{sW6}, s{sL6}", f"s_mul_i32 s{sWo}, s{sW}, {32 * LDX}", f"s_add_u32 s{sWo}, s{sWo}, s{sJ160}")
    for i in range(5):
        a(f"v_add_u32 v{t0}, {64 * i}, v{vL}", f"v_mul_u32_u24 v{t1}, 6554, v{t0}", f"v_lshrrev_b32 v{t1}, 16, v{t1}",
          f"v_mul_u32_u24 v{t2}, 10, v{t1}", f"v_sub_u32 v{t2}, v{t0}, v{t2}", f"v_lshlrev_b32 v{t2}, 4, v{t2}",
          f"v_mul_u32_u24 v{vW2[i]}, {LDX}, v{t1}", f"v_add_u32 v{vW2[i]}, v{vW2[i]}, v{t2}")
        if i < 3:
            a(f"v_mul_u32_u24 v{vTr[i]}, 336, v{t1}", f"v_lshl_add_u32 v{vTr[i]}, v{t2}, 1, v{vTr[i]}",
              f"s_mul_i32 s{sT0}, s{sW}, 5632", f"s_add_u32 s{sT0}, s{sT0}, {FIN}", f"v_add_u32 v{vTr[i]}, s{sT0}, v{vTr[i]}")
        if i in (1, 2, 3):
            a(f"v_subrev_u32 v{vW2[i]}, {1024 * i}, v{vW2[i]}")
    a(f"v_lshlrev_b32 v{vL16}, 4, v{vL}")
    for t in range(4):
        a(f"s_add_u32 s{sT0}, s{sW}, {t}", f"s_and_b32 s{sT0}, s{sT0}, 3", f"s_mul_i32 s{sT0}, s{sT0}, {NB * 1024}", f"s_add_u32 s{sT0}, s{sT0}, s{sHB}",
          f"v_add_u32 v{vH['B'][t]}, s{sT0}, v{vL16}")
    a(f"v_lshrrev_b32 v{t0}, 5, v{vL}", f"v_lshlrev_b32 v{t0}, 4, v{t0}", f"v_bfe_u32 v{t1}, v{vL}, 4, 1", f"v_lshl_add_u32 v{t0}, v{t1}, 2, v{t0}",
      f"v_bfe_u32 v{t1}, v{vL}, 2, 2", f"v_add_u32 v{t0}, v{t0}, v{t1}", f"v_mul_u32_u24 v{t0}, 160, v{t0}", f"v_and_b32 v{t1}, 3, v{vL}",
      f"v_lshl_add_u32 v{t0}, v{t1}, 3, v{t0}", f"v_add_u32 v{vT2[0]}, s{sW5}, v{t0}",
      f"v_add_u32 v{vT2[1]}, 0x10000, v{vT2[0]}", f"v_add_u32 v{vT2[2]}, 0x20000, v{vT2[0]}")
    o += flag_addr_row(vRow2, sR2, t0, t1)
    a(f"v_bfe_u32 v{vIsQ}, v{vL}, 2, 1")
    a(f"s_lshl_b32 s{sT0}, s{sR2}, 3", f"s_lshr_b32 s{sT1}, s2, 5", f"s_add_u32 s{sT0}, s{sT0}, s{sT1}", f"s_mul_i32 s{sT0}, s{sT0}, {NB * 1024}", f"s_add_u32 s{sT0}, s{sT0}, {HB}",
      f"v_and_b32 v{t0}, 31, v{vL}", f"v_lshlrev_b32 v{t0}, 7, v{t0}", f"v_add_u32 v{t2}, s{sT0}, v{t0}",
      f"v_cmp_gt_u32 vcc, 32, v{vL}", f"v_mov_b32 v{t1}, s{sH6}", f"v_mov_b32 v{vTch[0]}, s{sHq}", f"v_cndmask_b32 v{vTch[0]}, v{t1}, v{vTch[0]}, vcc",
      f"v_cmp_gt_u32 vcc, 40, v{vL}", f"v_mov_b32 v{t1}, {OOB}", f"v_cndmask_b32 v{vTch[0]}, v{t1}, v{vTch[0]}, vcc", f"v_add_u32 v{vTch[0]}, v{vTch[0]}, v{t2}",
      f"v_add_u32 v{t2}, s{sHk}, v{t2}", f"v_cmp_gt_u32 vcc, 16, v{vL}", f"v_cndmask_b32 v{vTch[1]}, v{t1}, v{t2}, vcc",
      f"s_mul_i32 s{sT0}, s{sW}, {NB * 1024}", f"s_add_u32 s{sT0}, s{sT0}, s{sHB}", f"s_lshl_b32 s{sT1}, s{sJ160}, 4", f"s_add_u32 s{sT0}, s{sT0}, s{sT1}",
      f"v_lshlrev_b32 v{t0}, 7, v{vL}", f"v_add_u32 v{t0}, s{sT0}, v{t0}", f"v_cmp_gt_u32 vcc, 20, v{vL}", f"v_cndmask_b32 v{vTch[2]}, v{t1}, v{t0}, vcc")
    a(f"v_add_u32 v{vRW[0]}, s{sW5}, v{vL16}", f"v_add_u32 v{vRW[1]}, 0x10000, v{vRW[0]}", f"v_add_u32 v{vRW[2]}, 0x20000, v{vRW[0]}")
    for t in range(1, 4):
        a(f"s_sub_u32 s{sT0}, s{sW}, {t}", f"s_and_b32 s{sT0}, s{sT0}, 3", f"s_mul_i32 s{sT0}, s{sT0}, 5120", f"s_add_u32 s{sT0}, s{sT0}, {RA[t - 1]}",
          f"v_add_u32 v{vRR[t - 1]}, s{sT0}, v{vL16}")
    a(f"s_xor_b32 s{sT0}, s2, 2", f"s_lshl_b32 s{sT1}, s{sT0}, 7", f"s_lshl_b32 s{sT2}, s{sW}, 2", f"s_add_u32 s{sT1}, s{sT1}, s{sT2}", f"v_mov_b32 v{vPar}, s{sT1}")
    a(f"s_lshl_b32 s{sXc}, s2, 2", f"s_add_u32 s{sXc}, s{sXc}, s{sW}", f"s_mul_i32 s{sXc}, s{sXc}, 3072", f"s_add_u32 s{sXc}, s{sXc}, {XCH}")
    a(f"v_and_b32 v{vFo2}, {OOB}, v{vHiM}", f"v_or_b32 v{vFo2}, v{vFo2}, v{vW2[2]}")
    a(f"v_lshrrev_b32 v{t0}, 4, v{vL}", f"v_lshlrev_b32 v{t0}, 3, v{t0}", f"v_add_u32 v{vFo[0]}, s{sJ160}, v{t0}")
    a(f"v_and_b32 v{t0}, 15, v{vL}", f"v_mul_u32_u24 v{t0}, 336, v{t0}", f"v_lshrrev_b32 v{t1}, 4, v{vL}", f"v_lshl_add_u32 v{t0}, v{t1}, 4, v{t0}",
      f"s_mul_i32 s{sT0}, s{sW}, 5632", f"s_add_u32 s{sT0}, s{sT0}, {FIN}", f"v_add_u32 v{vTw}, s{sT0}, v{t0}")
    return o


FIN = 141312


def tw_setup():
    return I(f"s_lshl_b32 s{sT0}, s2, 2", f"s_add_u32 s{sT0}, s{sT0}, s{sW}", f"s_mul_i32 s{sTa}, s{sT0}, {17 * 128}", f"s_mul_i32 s{sTb}, s{sT0}, {7 * 128}",
             f"v_lshlrev_b32 v{vTW}, 7, v{vL}")


def mall_touch():
    if not OPT["touch_w"]:
        return []
    return [[Bundle(I(f"s_mov_b64 exec, {(1 << n) - 1}", f"buffer_load_dword v{vTd}, v{vTW}, {srd(sr)}, s{so} offen", "s_mov_b64 exec, -1"))]
            for sr, so, n in ((SW2, sTa, 17), (SWO, sTb, 7))]


def tlb_warm(shift):
    o = I(f"v_lshlrev_b32 v178, {shift}, v{vL}")
    for sr in (SWS, SOUT, SW2, SWO):
        o += I(f"buffer_load_dword v{vTd}, v178, {srd(sr)}, 0 offen")
    return [Bundle(o)]


def sprinkle(valu, groups, lo=0.0, hi=1.0):
    valu, out, k = bundled(valu), [], 0
    for i, x in enumerate(valu):
        while k < len(groups) and i >= len(valu) * (lo + (hi - lo) * k / len(groups)):
            out += groups[k]
            k += 1
        out.append(x)
    return out + [y for g in groups[k:] for y in g]


def b2_load():
    return [I(f"buffer_load_dwordx2 v[{accB(0, f)[1] + 2}:{accB(0, f)[1] + 3}], v{vFo[0]}, {srd(SB2)}, 0 offen offset:{32 * f}") for f in range(5)]


def b2_unpack():
    o = []
    for f in range(5):
        d = accB(0, f)[1]
        o += I(f"v_lshlrev_b32 v{d}, 16, v{d + 2}", f"v_and_b32 v{d + 1}, 0xffff0000, v{d + 2}", f"v_lshlrev_b32 v{d + 2}, 16, v{d + 3}", f"v_and_b32 v{d + 3}, 0xffff0000, v{d + 3}")
    return o


def ha_setup():
    o = I(f"s_sub_u32 s{sT0}, s{sHA}, s{sHB}")
    return [Bundle(o + I(*[f"v_add_u32 v{vH['A'][t]}, s{sT0}, v{vH['B'][t]}" for t in range(4)]))]


class Program:
    def __init__(s, kv):
        s.kv = kv
        if kv:
            s.tiles, s.T = ["K0", "K1", "MX", "V0", "V1", "Ha", "Hb"], 5
            s.aset = {t: t for t in range(7)}
        else:
            s.tiles, s.T = ["H0", "H1", "H2", "H3", "H4", "Q0", "Q1", "QM"], 4
            s.aset = {t: t for t in range(8)}
        s.spine, s.head, s.sides = [], [], []

    def at(s, idx):
        return s.head if idx < 0 else s.spine[idx]["pre"]

    def pin(s, idx, g):
        st = s.spine[max(idx, 0)]
        if st.get("pinned"):
            st["post"].extend(g)
        else:
            st["pre2"] = g[:-1]
            st["post"].append(g[-1])
        st["pinned"] = True
        st["budget"] -= len(g)

    def spread(s, gs, lo, hi):
        last = lo
        for i, g in enumerate(gs):
            last = lo + (i * max(hi - lo, 1)) // len(gs)
            s.pin(last, g)
        return last

    def w2_dma(s, kind, i, z):
        if kind == "E":
            base, k0, sr = (sWq, i, SW2) if i < 4 else (sW6, 0, SW2) if i == 4 else (sWk, i - 5, SW2)
        else:
            base, k0, sr = sWo, 4 * i, SWO
        x, so = [], base
        if k0:
            x, so = I(f"s_add_u32 s{sD2w}, s{base}, {k0 * 32 * LDX}"), sD2w
        after = s.zrd.get(z, [])
        gs = []
        for k in range(5):
            d = ins(f"buffer_load_dwordx4 v{vW2[k]}, {srd(sr)}, s{so} offen offset:{1024 * (k % 4)} lds", after=after if k == 0 else ())
            gs.append((x if k == 0 else []) + I(f"s_add_u32 m0, s{sW5}, {z + (4096 if k == 4 else 0)}") + [d])
        s.w2tok[(kind, i)] = [g[-1] for g in gs]
        s.w2z[(kind, i)] = z
        if OPT.get("lat") == f"{kind}{i}":
            x = stamp("lat0") + I("s_waitcnt vmcnt(0)", "s_nop 15", "s_nop 15") + stamp("lat1") + [y for g in gs for y in g] + I("s_waitcnt vmcnt(0)") + stamp("lat2") + I("s_nop 15", "s_nop 15", "s_nop 15", "s_nop 15")
            return [[Bundle(x)]]
        return gs

    def w2_reads(s, kind, i):
        x = []
        z = s.w2z[(kind, i)]
        for f in range(5):
            k, r = wfrag(kind, i, f)
            for h in range(2):
                ad = z + 32 * f + 1280 * h
                x.append(ins(f"ds_read_b64_tr_b16 {k}[{r + 2 * h}:{r + 2 * h + 1}], v{vT2[ad >> 16]} offset:{ad & 0xffff}", after=s.w2tok[(kind, i)]))
        s.zrd[z] = x
        return x

    def h_load(s, n, blk):
        kind, i = blk[0], int(blk[1])
        x = []
        if kind == "O":
            so, imm = sHo, 0
            if i:
                x = I(f"s_add_u32 s{sHo}, s{sHo}, 4096")
        else:
            so, imm = (sHq, 1024 * i) if i < 4 else (sH6, 0) if i == 4 else (sHk, 1024 * (i - 5))
        v = vH["A" if kind == "A" else "B"]
        return [(x if t == 1 else []) + I(f"buffer_load_dwordx4 a[{aH(n, t)}:{aH(n, t) + 3}], v{v[t]}, {srd(SWS)}, s{so} offen offset:{imm} sc1") for t in (1, 2, 3, 0)]

    def build(s, xs):
        kv, T, tiles = s.kv, s.T, s.tiles
        o = []
        a = lambda *t: o.extend(I(*t))
        if kv:
            a(f"s_lshl_b32 s{sT0}, s{sP}, 8", f"s_sub_u32 s{sU64}, s{sU64}, s{sT0}", f"s_add_u32 s{sKq}, s{sKq}, 1280", f"s_mov_b32 s{sLast}, 0", f"s_mov_b32 s{sU4}, 0")
            o += wk_setup(True)
        else:
            a(f"s_lshl_b32 s{sT0}, s{sP}, 7", f"s_sub_u32 s{sU64}, s{sU64}, s{sT0}", f"s_add_u32 s{sU64}, s{sU64}, 256")
            o += wp_setup()
        dma = lambda pre, m0, v, sr, imm: pre + I(f"s_add_u32 m0, {m0}", f"buffer_load_dwordx4 v{v}, {srd(sr)}, s{sDw} offen offset:{imm} lds")
        so = lambda base, off, last=False: I(f"s_add_u32 s{sDw}, s{base}, {off}") + (I(f"s_or_b32 s{sDw}, s{sDw}, s{sLast}") if last else [])
        two = lambda regs, ad: (regs[0], ad) if ad < 0x8000 else (regs[1], ad - 0x8000)

        def pair_dma(k, bases):
            return [dma(so(sU64, k * 64 * LD1) if (p, i) == (0, 0) else [], f"s{sW2k}, {b - 128 * p}", vWp[i], SW1, 128 * p + 1024 * i) for p, b in enumerate(bases) for i in range(2)]

        pair_step = lambda t, k, j, b, shift: dict(t=t, k=k, j=j, v=vTP[(t - (5 if kv else 0)) & 1], o1=b + 2048 * j - shift, d=512)
        stages = []
        for n in range(10):
            if kv:
                sl = (n % 4) * SLOT
                w = [dma(so(sKw, n * 64 * LDQ) if i == 0 else [], f"s{sW5}, {sl + 1024 * i}", vWk[i], SQKV, 0) for i in range(5)]
                st = []
                for t, (regs, col) in enumerate(((vTK, 0), (vTK, 64), (vTM, 0), (vTK, 2560), (vTK, 2624))):
                    for j in range(4):
                        v, off = two(regs, sl + 5120 * j + col)
                        st.append(dict(t=t, k=n, j=j, v=v, o1=off, d=640))
            else:
                sl = (n % 4) * 16384
                w = pair_dma(n, [sl, sl + 8192])
                st = [pair_step(t, n, j, sl + 8192 * (t >> 1), 0) for t in range(4) for j in range(4)]
            stages.append(dict(w=(dma_x(n) if n >= len(xs) else []) + w, steps=st, issue=n - 2, xtok=[g[-1] for g in xs[n]] if n < len(xs) else []))
        stages[9]["steps"] += [dict(t=t, extra=True) for t in range(T)]
        if kv:
            for m in range(10):
                b = RING2 + 8192 * m if m < 5 else 8192 * (m - 5)
                st = [pair_step(t, m, j, b, 0x8000 if m < 5 else 0) for t in (5, 6) for j in range(4)]
                for x in st:
                    x["v"] += 0 if m < 5 else 2
                stages.append(dict(w=pair_dma(m, [b]), steps=st, issue=8 if m < 2 else 9 if m < 5 else None))
            stages[-1]["steps"].insert(4, dict(t=5, extra=True))
            stages[-1]["steps"].append(dict(t=6, extra=True))
        else:
            for gq in range(5):
                w, st = [], []
                for m in (2 * gq, 2 * gq + 1):
                    w.append(dma(so(sU4, m * 64 * LD1, True), f"s{sWL}, {0x8000 + 4096 * m}", vW1, SW1, 0))
                    st += [dict(t=4, k=m, j=j, v=vTR, o1=4096 * m + 1024 * j, d=256) for j in range(4)]
                stages.append(dict(w=w, steps=st, issue=8 if gq < 2 else 9))
            stages[-1]["steps"].append(dict(t=4, extra=True))
            for qs in range(5):
                b = (qs % 4) * SLOT
                w = [dma(so(sKw, qs * 128 * LDQ) if i == 0 else [], f"s{sW5}, {b + (4096 if i == 4 else 0)}", vWk[i], SQKV, 1024 * (i % 4)) for i in range(5)]
                st = []
                for kk in range(2):
                    for t, regs, col in ((5, vTK, 0), (6, vTK, 64), (7, vTM, 0)):
                        for j in range(4):
                            v, off = two(regs, b + 2560 * (4 * kk + j) + col)
                            st.append(dict(t=t, k=2 * qs + kk, j=j, v=v, o1=off, d=640))
                        if qs == 4 and kk == 1:
                            st.append(dict(t=t, extra=True))
                stages.append(dict(w=w, steps=st, issue=(11, 12, 15, 16, 17)[qs]))
        o += make_srd(SQKV, P_QKV, 640 * LDQ) if kv else make_srd(SW1, P_W1, 640 * LD1)
        w0 = [x for g in stages[0]["w"] for x in g]
        if not OPT["s0first"]:
            o += w0
        if kv:
            o += nonce_publish()
        a(f"s_lshl_b32 s{sWL}, s{sW}, 10")
        if not kv:
            a(f"s_lshr_b32 s{sT0}, s{sU}, 2", f"s_sub_u32 s{sT0}, s{sU}, s{sT0}", f"s_add_u32 s{sT0}, s{sT0}, 48", f"s_min_u32 s{sT0}, s{sT0}, 53", f"s_lshl_b32 s{sU4}, s{sT0}, 6",
              f"s_and_b32 s{sT0}, s{sU}, 3", f"s_cmp_eq_u32 s{sT0}, 3", f"s_cselect_b32 s{sLast}, {OOB}, 0")
        o += s0_addr(tiles)
        X = OPT["nos0"] or ()
        for g in s0_mem(): o += g
        if OPT["s0first"]:
            o += w0
        if OPT["touch_code"]:
            o += touch_code()
        o += x_read_setup() + (tk_setup(True) if kv else tp_setup(0))
        o += make_srd(SW1, P_W1, 640 * LD1) if kv else make_srd(SQKV, P_QKV, 640 * LDQ)
        o += make_srd(SWS, P_WS, WS_SIZE) + I(f"s_mov_b32 s{sOne0}, 0x3f80", f"s_mov_b32 s{sOne1}, 0x3f800000")
        first_mem = stages[1]["w"]
        o += stamp("issued")
        steps, first = [], {}
        for n, st in enumerate(stages):
            first[n] = len(steps)
            steps += st["steps"]
        n1 = len(steps)
        first[len(stages)] = n1
        end1 = first[10]
        s.spine = spine = [dict(pre=[], post=[], budget=OPT["b1p"] if q < end1 else OPT["b1"]) for q in range(n1)]
        reads, done, xfree = {}, {}, {}
        for q, st in enumerate(steps):
            fr = aW + 4 * (q % NRING)
            A = acc(s.aset[st["t"]])
            if st.get("extra"):
                reads[q] = I(f"ds_read_b128 a[{fr}:{fr + 3}], v{vEXr} offset:{512 * st['t']}")
                spine[q]["mfma"] = ins(f"v_mfma_f32_32x32x16_bf16 v[{A}:{A + 15}], a[{fr}:{fr + 3}], v[{vXE}:{vXE + 3}], v[{A}:{A + 15}]")
                done[tiles[st["t"]]] = q
            else:
                assert 0 <= st["o1"] and st["o1"] + st["d"] < 65536
                reads[q] = I(f"ds_read_b64_tr_b16 a[{fr}:{fr + 1}], v{st['v']} offset:{st['o1']}", f"ds_read_b64_tr_b16 a[{fr + 2}:{fr + 3}], v{st['v']} offset:{st['o1'] + st['d']}")
                xa = aX + 16 * st["k"] + 4 * st["j"]
                c = "0" if (st["k"] == 0 and st["j"] == 0) else f"v[{A}:{A + 15}]"
                spine[q]["mfma"] = ins(f"v_mfma_f32_32x32x16_bf16 v[{A}:{A + 15}], a[{fr}:{fr + 3}], a[{xa}:{xa + 3}], {c}")
                xfree[xa] = q
        seq = OPT["seq"].split()
        ngap = max(n for n, b in enumerate(seq) if b[0] == "A") + 1
        s.w2tok, s.w2z, s.zrd = {}, {}, {}
        p2first = {}
        s.gapbar = ins("s_barrier")
        if not kv:
            ow, owr = o_write()
            spine.append(dict(pre=[], post=[ins("s_barrier", after=owr)], mfma=None, budget=0))
            spine += o_steps()
            s.otk = []
            p2first["ofin"] = len(spine)
            spine.append(dict(pre=o_finish(s.otk) + stamp("ofin"), post=[ins("s_barrier")], mfma=None, budget=0))
        for n, blk in enumerate(seq):
            if n == ngap:
                p2first["gap"] = len(spine)
                spine.append(dict(pre=[], post=[s.gapbar], mfma=None, budget=0))
            p2first[n] = len(spine)
            kind, i = blk[0], int(blk[1])
            for t in (1, 2, 3, 0):
                for f in range(5):
                    d = ("v", accA(t, f)) if kind == "A" else accB(t, f)
                    zero = blk == "A0" or (blk == "B0" and t != 0)
                    assert seq.index("A0") == 0 and seq.index("B0") == min(k for k, b in enumerate(seq) if b[0] != "A")
                    m = ins(f"v_mfma_f32_16x16x32_bf16 {r4(d)}, {r4(wfrag('O' if kind == 'O' else 'E', i, f))}, a[{aH(n, t)}:{aH(n, t) + 3}], {'0' if zero else r4(d)}")
                    spine.append(dict(pre=[], post=[], mfma=m, budget=OPT["b2"]))
        nend = len(spine)
        p2first[len(seq)] = nend
        spine.append(dict(pre=[], post=[], mfma=None, budget=0))
        last_dma, bar = {}, {}
        for n in range(len(stages)):
            pos = first[n] - LOOK
            bar[n] = b = ins("s_barrier", after=[g[-1] for g in stages[n]["w"]] + stages[n].get("xtok", []))
            blk = [b] + (stamp(f"st{n}") if n in OPT["stages"] else [])
            if n < 10:
                for j in range(4):
                    xa = aX + 16 * n + 4 * j
                    blk += I(f"ds_read_b128 a[{xa}:{xa + 3}], v{vXR[j]} offset:{(n % 3) * 4096}")
            s.at(pos).extend(blk)
            gs = list(first_mem) if n == 0 else []
            gs += [g for st in stages[2:] if st["issue"] == n for g in st["w"]]
            if n == OPT["s0ld"]:
                gs += mall_touch()
            if gs:
                lo = max(pos + 1, 0)
                hi = first[n + 1] - LOOK
                last_dma[n] = s.spread(gs, lo, lo + int((hi - lo) * (1.0 if n < 10 else OPT["dspan"])))
        for q in range(n1):
            if q < LOOK:
                s.head.extend(reads[q])
            else:
                spine[q - LOOK]["post"][0:0] = reads[q]
            if q % 2 == 0 and q + 1 < n1:
                spine[q]["mfma"].after += reads[q + 1]
        S = OPT["s0"]
        sides = s.sides
        s0m, s0st = s0_produce(kv)
        for q in range(first[1] - LOOK):
            spine[q]["budget"] += OPT["b0"] - OPT["b1p"]
        if "math" not in X:
            sides.append(side(s0m, start=OPT["s0start"] * T, end=last_dma[S[0]], name="s0math"))
        spine[last_dma[S[0]]]["post"] += (s0st if "store" not in X else []) + stamp("s0b")
        later = (wp_setup() + tp_setup(0x8000) + I(f"v_subrev_u32 v{vTP[0] + 2}, 0x8000, v{vTP[0]}", f"v_subrev_u32 v{vTP[1] + 2}, 0x8000, v{vTP[1]}")) if kv else (w1_setup() + tr_setup(0x8000) + wk_setup(False) + tk_setup(False))
        ls = side(late_setup() + tw_setup() + s0_consume_addr(), start=0, end=last_dma[S[1]], name="late")
        sides.append(ls)
        if "sig" not in X:
            spine[last_dma[S[1]]]["post"] += nonce_check(vPoll2) + signal(L_S0, s0st)
        s.RA, s.RB = ([Z1, Z2, Z0], [ZB, Z5, Z6]) if kv else ([Z2, Z5, ZA], [ZB, Z6, Z1])
        p2s = side(later + p2_setup(s.RA) + (kv_setup() if kv else []), start=0, follow=ls, end=last_dma[7], name="p2setup")
        sides.append(p2s)
        if "poll" not in X:
            spine[last_dma[S[2]]]["post"] += [poll_issue(vRowF, vPoll), poll_issue(vColF, vPoll2)]
            spine[last_dma[S[3]]]["post"] += s0_consume_loads()
        assert S[4] > S[3]
        s.spread(b2_load(), last_dma[7] + 1, last_dma[7] + 6)
        cm, extok = s0_consume_math()
        s.b2 = b2_unpack() + ha_setup()
        exbar = end1 - T - LOOK - 1
        cms = side(cm, start=last_dma[S[4]] + 1, end=exbar - 1, follow=p2s, name="s0use")
        sides.append(cms)
        spine[exbar]["pre"].insert(0, ins("s_barrier", after=[extok]))
        spine[end1]["pre"] = stamp("pass1") + spine[end1]["pre"]
        spine[n1]["pre"] += stamp("mfma1")
        b2s = side(s.b2, start=exbar + 1, end=end1, follow=cms, name="b2")
        sides.append(b2s)
        flat = lambda gs: [x for g in gs for x in g]
        W = s.w2_dma
        gap = p2first["gap"]

        def RD(kind, i, lo, step=1):
            if kind == "E":
                assert lo > max(xfree[xa] for xa in range(20 * i, 20 * i + 20, 4)), (i, lo)
            for k, x in enumerate(s.w2_reads(kind, i)):
                spine[lo + k * step]["post"].append(x)
                spine[lo + k * step]["budget"] -= 1

        def cp(n, kl, ql):
            x = poll_check(vRow2, kl, ql) + stamp("cp" + seq[n])
            if OPT["touch_h"]:
                x += I(f"buffer_load_dword v{vTd}, v{vTch[dict(A0=0, A5=1, O0=2)[seq[n]]]}, {srd(SWS)}, 0 offen sc1")
            return x

        HL = lambda n: s.h_load(n, seq[n])
        if OPT["tlb"]:
            spine[first[OPT["tlb"][0]]]["post"] += tlb_warm(OPT["tlb"][1])
        k1 = len(stamp("pass1"))
        f = first
        if kv:
            epi0, epi, wr = kv_epilogue(s.aset, 0)
            prod, at = kv_product(wr)
            ha, ft = [], []
            rest = [g for m in range(15, 20) for g in stages[m]["w"]]
            spine[end1]["pre"][k1:k1] = [ins("s_barrier")] + sprinkle(epi0 + epi, rest + W("E", 0, Z0), 0, 0.9) + prod + stamp("kvdone")
            s.spread(W("E", 1, ZA) + W("E", 2, ZB), f[11], f[13] + 4)
            RD("E", 0, f[12] + 4)
            s.spread(W("E", 3, Z5) + W("E", 4, Z0), f[14], f[16])
            s.spread(W("E", 5, Z6), f[16], f[17] + 4)
            RD("E", 1, f[17]); RD("E", 2, n1 - 11)
            s.spread(W("E", 6, ZA), f[18] + 4, n1 - 2)
            spine[n1 - 20]["post"].append(poll_issue(vRow2))
            jobs = [(acc(s.aset[5]), "Ha", ha), (acc(s.aset[6]), "Hb", ha)]
            e1 = sprinkle(gelu_quads(jobs, 0, 8, True), [[x] for x in s.w2_reads("E", 3)]) + stamp("expo")
            e1 += flat(W("O", 1, ZB)) + signal(L_HB, ha) + stamp("sigT") + cp(0, L_S0, L_HQ) + flat(HL(0) + HL(1) + HL(2) + HL(3))
            s.sig = [(end1, L_KP, at, OPT["lagkp"])]
            RD("E", 4, p2first[0], 2); RD("E", 5, p2first[2], 2); RD("E", 6, p2first[4], 2)
            s.spread(W("O", 2, Z5), p2first[1], p2first[3])
            s.spread(W("O", 3, Z6), p2first[3] + 1, p2first[5])
            s.spread(W("O", 0, ZA), p2first[5] + 1, p2first[7])
            zo4 = ZA
        else:
            os_ = side(o_setup(), start=last_dma[S[3]] + 1, end=last_dma[S[4]], follow=p2s, name="osetup")
            sides.insert(sides.index(cms), os_)
            cms["follow"] = os_
            tk = []
            jobs = [(acc(t), tiles[t], tk) for t in range(5)]
            nx = OPT["nx"]
            spine[end1]["pre"][k1:k1] = sprinkle(gelu_quads(jobs, 0, nx, True), W("E", 0, Z0) + W("E", 1, ZB), 0, 0.9) + stamp("x1")
            g3 = side(gelu_quads(jobs, nx, 16, False), start=end1, name="gelu3")
            g4 = side(gelu_quads(jobs, 16, 20, False), start=done["H4"] + 2, follow=g3, end=n1 - OPT["gend"], name="gelu4")
            sides += [g3, g4]
            s.spread(W("E", 2, ZA), f[13], f[15] - 5)
            RD("E", 0, f[16]); s.spread(W("E", 3, Z0), f[16] + 11, f[16] + 19)
            RD("E", 1, f[16] + 13); s.spread(W("E", 4, ZB), f[17] + 6, f[17] + 16)
            RD("E", 2, f[17] + 4)
            z, ztok = am_zero()
            bar[18].after += s.zrd[ZA]
            sides.append(side(z, start=f[18] - LOOK + 1, end=f[19] - LOOK - 1, follow=g4, name="amzero"))
            bar[19].after += ztok
            s.spread(W("E", 5, Z2), f[18], f[18] + 10)
            RD("E", 3, f[18] + 4)
            RD("E", 4, f[19] + 2)
            ko = n1 - OPT["hearly"]
            spine[ko - OPT["hpoll"]]["post"].append(poll_issue(vColF, vPoll2))
            kc, kl = o_load()
            spine[ko]["post"] += kc
            s.spread(kl, ko + 1, n1 - 1)
            spine[n1 - 1]["post"].append(poll_issue(vRow2))
            np0 = OPT["np0"]
            e1 = phi_q(s.aset, True, 0, np0) + ow + cp(0, L_S0, L_HQ)
            e1 += sprinkle(phi_q(s.aset, True, np0, 10), HL(0) + HL(1) + W("E", 6, Z5)) + stamp("gap")
            s.spread(HL(2) + HL(3), n1 + 1, n1 + 15)
            RD("E", 5, p2first[0], 2); RD("E", 6, p2first[2], 2)
            for i, z in ((0, Z0), (1, ZB), (2, Z6), (3, Z1)):
                s.spread(W("O", i, z), p2first[OPT["ost"] + 3 * i], p2first[OPT["ost"] + 3 * i + 3])
            zo4 = Z0
            s.sig = [(g4, L_HQ, tk, OPT["lag"]), (p2first["ofin"], L_O, s.otk, OPT["lag"])]
        spine[n1]["pre"] = [ins("s_barrier")] + stamp("tee") + e1 + spine[n1]["pre"]
        s.n1 = n1
        for n in range(HR, len(seq)):
            p = p2first[n - HR] + 4
            if seq[n] in ("A5", "O0"):
                spine[p2first[n - HR - OPT["pback"]] + 3]["post"].append(poll_issue(vRow2))
                spine[p]["pre"] += cp(n, L_HB, L_HQ if seq[n] == "A5" else L_O)
            elif n % 2 == 0 or OPT.get("allst"):
                spine[p]["pre"] += stamp("ld" + seq[n])
            for k, g in enumerate(HL(n)):
                s.pin(p + 5 * k, g)
        o0 = seq.index("O0")
        for i in range(5):
            RD("O", i, p2first[o0 + i - 1], 2)
            if i == 0:
                s.spread(W("O", 4, zo4), p2first[o0] + 1, p2first[o0 + 1])
        return o, seq, p2first, nend

    def finish(s, o, seq, p2first, nend):
        kv, spine, sides = s.kv, s.spine, s.sides
        a = lambda *t: o.extend(I(*t))
        aend = p2first["gap"]
        b0, rend = aend + 1, aend + 1 + OPT["ybar"]
        RA, RB = s.RA, s.RB

        def red_write(get, R):
            x = []
            for t in (1, 2, 3):
                for f in range(5):
                    ad = R[t - 1] + 1024 * f
                    x.append(ins(f"ds_write_b128 v{vRW[ad >> 16]}, {r4(get(t, f))} offset:{ad & 0xffff}"))
            return x

        def red_read():
            x = []
            for t in (1, 2, 3):
                for f in range(5):
                    d = accA(t, f)
                    x += I(f"ds_read_b128 v[{d}:{d + 3}], v{vRR[t - 1]} offset:{1024 * f}")
            return x

        def red_add(own, pk):
            x = []
            for t in (1, 2, 3):
                for f in range(5):
                    for r in range(0, 4, 2 if pk else 1):
                        d, e = own(f) + r, accA(t, f) + r
                        x += I(f"v_pk_add_f32 {pr(d)}, {pr(d)}, {pr(e)}" if pk else f"v_add_f32 v{d}, v{d}, v{e}")
            return x

        wA = red_write(lambda t, f: ("v", accA(t, f)), RA)
        for q in list(range(aend - 15, aend)) + list(range(b0, rend)):
            spine[q]["budget"] += OPT["bred"]
        for k in range(3):
            sides.insert(k, side(wA[5 * k:5 * k + 5], start=aend - 12 + 5 * k, end=aend, name=f"redAw{k}"))
        s.gapbar.after += wA
        xt = []
        xs = red_read() + red_add(lambda f: accA(0, f), False)
        P = accA(1, 0)
        for f in range(5):
            xs += cvt2(P + 2 * f, accA(0, f))
        for k, n in ((0, 4), (4, 4), (8, 4)):
            x = ins(f"buffer_store_dwordx{n} v[{P + k}:{P + k + n - 1}], v{vL16}, {srd(SWS)}, s{sXc} offen offset:{256 * k} sc1")
            xs.append(x); xt.append(x)
        xsd = side(xs, start=b0, end=rend, name="redA")
        sides.insert(3, xsd)
        s.sig.append((xsd, L_XCH, xt, OPT["lag"]))
        XR, PX = 152, 164
        fo = [(vW2[0], 0), (vW2[1], 1024), (vFo2, 2048)]
        s.spread([I(f"buffer_load_dwordx4 v[{XR + 4 * i}:{XR + 4 * i + 3}], v{fo[i][0]}, {srd(SX)}, s{sRow} offen offset:{fo[i][1]}") for i in range(3)], nend - 80, nend - 70)
        spine[nend - OPT["xch"] - 25]["post"].append(poll_issue(vPar))
        px = poll_check(vPar, L_XCH) + stamp("xch") + I(f"s_xor_b32 s{sT0}, s2, 2", f"s_sub_u32 s{sT0}, s{sT0}, s2", f"s_mul_i32 s{sT0}, s{sT0}, 12288", f"s_add_u32 s{sXc}, s{sXc}, s{sT0}")
        for k, n in ((0, 4), (4, 4), (8, 4)):
            px += I(f"buffer_load_dwordx{n} v[{PX + k}:{PX + k + n - 1}], v{vL16}, {srd(SWS)}, s{sXc} offen offset:{256 * k} sc1")
        spine[nend - OPT["xch"]]["post"] += px
        for st in spine:
            st["pre"].extend(st.pop("pre2", []))
        import copy
        dry = copy.deepcopy(sides)
        merge(spine, dry, 0)
        ends = {d["name"]: d.get("done", 0) if not d.get("late") else (d["end"] or nend) for d in dry}
        if OPT["verbose"]:
            print("KV" if kv else "Q", {d["name"]: (d["start"], ends[d["name"]], d.get("late", 0)) for d in dry}, "p2first", p2first)
        n1 = s.n1
        for sd, level, tk, lag in s.sig:
            idx, t = (sd if isinstance(sd, int) else ends[sd["name"]]), 0
            while t < lag and idx < nend - 1:
                t += 36 if idx < n1 else 18
                idx += 1
            if idx == n1:
                idx -= 1
            spine[idx]["post"] += signal(level, tk)
        o = drop_m0(o + s.head + merge(spine, sides, 0))
        XX = OPT["x"]
        if "nohst" in XX:
            o = [y for y in o if not (y.text.startswith("buffer_store_dwordx4") and f"v{vHst}," in y.text)]
        if "now2" in XX:
            o = [y for y in o if not (y.kind == "dma" and (srd(SW2) in y.text or srd(SWO) in y.text))]
        if "nochk" in XX:
            o = [y for y in o if not (isinstance(y.note, tuple) and y.note[0] == "chk" and max(y.note[1:3]) > 1)]
        if "nopoll" in XX:
            o = [y for y in o if not (y.text.startswith("buffer_load_dword v") and (f"v{vRow2}," in y.text or f"v{vPar}," in y.text))]
        if "noH" in XX:
            o = [y for y in o if not y.text.startswith("buffer_load_dwordx4 a[")]
        if "nosc1H" in XX:
            for y in o:
                if y.text.startswith("buffer_load_dwordx4 a["):
                    y.text = y.text.replace(" sc1", "")
        if "nononce" in XX:
            o = [y for y in o if srd(SDBG) not in y.text]
        if "nosig" in XX:
            o = [y for y in o if not (isinstance(y.note, tuple) and y.note[0] == "sig" and y.note[1] > 1)]
        if "noat" in XX:
            o = [y for y in o if not y.text.startswith("buffer_atomic")]
        if "notrans" in XX:
            o = [y for y in o if y.kind != "trans"]
        if OPT["stop"]:
            cut = [i for i, x in enumerate(o) if getattr(x, "kind", "") == "stamp" and x.text in (OPT["stop"], "rt_" + OPT["stop"])][0]
            o = o[:cut + 1] + I("s_waitcnt vmcnt(0) lgkmcnt(0)")
            return s.tail(o)
        o += stamp("mfma2")
        wB = red_write(accB, RB)
        o += wB
        for t in range(3):
            a(f"v_add_u32 v{vRR[t]}, {(RB[t] - RA[t]) & 0xffffffff}, v{vRR[t]}")
        o.append(ins("s_barrier", after=wB))
        own = lambda f: accB(0, f)[1]
        o += red_read()
        for f in range(5):
            for r in range(4):
                a(f"v_dot2_f32_bf16 v{own(f) + r}, v{PX + 2 * f + r // 2}, s{sOne1 if r & 1 else sOne0}, v{own(f) + r}")
        o += red_add(own, True)
        for f in range(5):
            a(f"ds_write_b128 v{vTw}, v[{own(f)}:{own(f) + 3}] offset:{64 * f}")
        FO = 48

        def fin_store(i):
            x = I(*[f"v_cvt_pk_bf16_f32 v{FO + 8 * i + k}, v{FO + 8 * i + 2 * k}, v{FO + 8 * i + 2 * k + 1}" for k in range(4)])
            return x + I(f"buffer_store_dwordx4 v[{FO + 8 * i}:{FO + 8 * i + 3}], v{fo[i][0]}, {srd(SOUT)}, s{sRow} offen offset:{fo[i][1]} {OPT['outf']}")

        for i in range(3):
            for h in range(2):
                a(f"ds_read_b128 v[{FO + 8 * i + 4 * h}:{FO + 8 * i + 4 * h + 3}], v{vTr[i]} offset:{16 * h}")
        for i in range(3):
            for k in range(4):
                d = FO + 8 * i + 2 * k
                a(f"v_dot2_f32_bf16 v{d}, v{XR + 4 * i + k}, s{sOne0}, v{d}", f"v_dot2_f32_bf16 v{d + 1}, v{XR + 4 * i + k}, s{sOne1}, v{d + 1}")
            if i:
                o += fin_store(i - 1)
        o += I("s_nop 1") + fin_store(2)
        return s.tail(o)

    def tail(s, o):
        if OPT["prof"]:
            o += stamp("end") + stamp("rt1")
            last = Ins("x", "stamp"); last.note = "last"
            o.append(last)
            o += I(f"s_lshl_b32 s{sT0}, s2, 2", f"s_add_u32 s{sT0}, s{sT0}, s{sW}", f"s_lshl_b32 s{sT0}, s{sT0}, 8", f"s_add_u32 s{sT0}, s{sT0}, {TS}",
                   f"v_lshlrev_b32 v30, 2, v{vL}", f"buffer_store_dword v31, v30, {srd(SWS)}, s{sT0} offen")
        return o + I("s_endpgm")


def check_no_deadlock(progs):
    ev = [[x.note for x in p if isinstance(x.note, tuple)] for p in progs]
    pos, lvl = [0, 0], [0, 0]
    moved = True
    while moved:
        moved = False
        for k in (0, 1):
            while pos[k] < len(ev[k]):
                e = ev[k][pos[k]]
                if e[0] == "sig":
                    assert e[1] > lvl[k], (k, e, lvl)
                    lvl[k] = e[1]
                elif lvl[0] < e[1] or lvl[1] < e[2]:
                    break
                pos[k] += 1
                moved = True
    assert pos == [len(e) for e in ev], f"circular wait: KV stuck at {ev[0][pos[0]:pos[0] + 1]}, Q at {ev[1][pos[1]:pos[1] + 1]}"


def drop_m0(items):
    out, cur = [], None
    for x in items:
        for y in (x.items if isinstance(x, Bundle) else [x]):
            if y.kind == "vmem" and y.wr == {("v", vTd)}:
                y.wr = set()
            if ("m0", 0) in y.wr:
                if y.text == cur:
                    continue
                cur = y.text
            out.append(y)
    return out


def build():
    st = {}
    pro, xs = prologue()
    pro += I("s_bitcmp1_b32 s2, 6", "s_cbranch_scc1 L_q")
    progs = []
    for kv in (True, False):
        p = Program(kv)
        body = p.finish(*p.build(xs))
        full = pro + ([] if kv else I("L_q:")) + body
        if OPT["prof"]:
            full = resolve_stamps(full, ts_names, sTS, 31)
        progs.append(finalize(full, stats=st))
    a_kv, a_q = progs
    if not OPT["stop"] and not OPT["x"]:
        check_no_deadlock(progs)
    iq = [i for i, x in enumerate(a_q) if x.text == "L_q:"][0]
    assert [x.text for x in a_q[:iq]] == [x.text for x in a_kv[:iq]]
    body = a_kv + a_q[iq:] + I("L_end:", "s_endpgm")
    used = {x.text.split()[1] for x in body if x.kind == "branch"}
    for sp in slow_paths:
        if sp[0].text[:-1] in used:
            body += finalize(sp)
    txt = text_of(body)
    ref = open("parallel_sum__linear_attn_block__mixer_channel_mlp__prompt.s.ref").read().split("\n")
    hdr = [l for l in ref if l.startswith(";") and "@launch" not in l and not l.startswith("; Override") and not l.startswith("; grid=")]
    src = "\n".join(hdr) + f"""
; @launch grid=(256,1,1) block=(256,1,1) lds={LDS_SIZE}
.amdgcn_target "amdgcn-amd-amdhsa--gfx950"
.text
.globl {NAME}
.p2align 8
.type {NAME},@function
{NAME}:
{txt}
L_code_end:
.fill 65536 / 4, 4, 0xbf810000
.section .rodata,"a"
.p2align 6
.amdhsa_kernel {NAME}
  .amdhsa_next_free_vgpr 512
  .amdhsa_next_free_sgpr 102
  .amdhsa_accum_offset 256
  .amdhsa_group_segment_fixed_size 0
  .amdhsa_kernarg_size 88
  .amdhsa_user_sgpr_count 2
  .amdhsa_user_sgpr_kernarg_segment_ptr 1
  .amdhsa_system_sgpr_workgroup_id_x 1
.end_amdhsa_kernel
"""
    return src, st, len(a_kv), len(a_q)


if __name__ == "__main__":
    out = sys.argv[1]
    for kvp in sys.argv[2:]:
        k, v = kvp.split("=", 1)
        OPT[k] = eval(v) if v[0] in "0123456789TFN-([" else v
    src, st, n1, n2 = build()
    open(out, "w").write(src)
    if OPT["prof"]:
        open(out + ".ts", "w").write("\n".join(ts_names))
    print("instructions", n1, n2, st)
```

```python
import sys, os, struct
sys.path.insert(0, os.path.dirname(os.path.abspath(__file__)))
from asmlib import *

NAME = "parallel_sum__linear_attn_block__mixer_channel_mlp__prompt_kernel"
OPT = dict(prof=False, only=None, b1=3.0, b1p=4.5, touch_w=True, hbsig=10, hop=4, hopp=30, hopq=(3, 7), lagkp=700, nx=14, gend=70, hpoll=30, lback=4, ybar=54, twa=(2, 9), twb=((10, 18), (10, 18)), bred=0.7, xch=6, g01end=30, oload=36, gpoll=30, kvsig=4, hearly=24, ost=0, wsoff=0, ft=False, map2=1, s0late=False, npre=(100, 100), l2='', l2at=((1, 4), (4, 8)), l2late=6, otb=1, kvo=True, outf='', np0=3, tlb=None, seq="A0 A1 A2 A3 A4 B0 B1 A5 A6 B2 B3 B4 B5 B6 O0 O1 O2 O3 O4", plag=700, pback=2, touch_h=False, b0=40, lag=1000, nphi=7, b2=1.6, touch_code=True, tq=4, s0=(0, 1, 6, 7, 8), s0k=(0, 1, 5, 6, 7), gdel=8, sigpos=2, s0ld=2, s0start=2, xearly=1, s0first=False, sleep=4, dma1_early=False, dspan=0.4,
           nsq=10, nsk=2, stages=(0, 1, 2, 3, 4, 5, 6, 7, 8, 9), verbose=False, x=(), stop=None, nos0=False)

LDQ, LD1, LDX = 3840, 3456, 1280
FLAGS, STATS, CSUM, KVF, XCH, KVP, HB, TS = 0x0, 0x8000, 0x10000, 0x60000, 0x80000, 0x400000, 0x800000, 0x1200000
WS_SIZE = 0x1400000
OOB = 0x40000000
NB = 74
SLOT = 20480
RING2, NR2 = 2 * SLOT, 10
XS, EX, SCR, LDS_SIZE = 81920, 131072, 135168, 163840
KVT, KVT_LD = XS, 328
AM, AM_LD = XS, 176
Z0, Z1, Z2, Z5, Z6, ZA, ZB = 143360, 0, SLOT, 2 * SLOT, 3 * SLOT, XS, XS + SLOT
P_X, P_QKV, P_WO, P_BX, P_W1, P_B1, P_W2, P_B2 = 4, 6, 8, 10, 12, 14, 16, 18
P_OUT, P_DBG, P_WS = 20, 22, 24
sR2, sJ160, sBq, sBk, sE, sHA, sHB, sL6, sRow, sB6, sD2w, sD2h, sXc = range(4, 17)
sHq, sHk, sH6, sHo, sWq, sWk, sW6, sWo = range(17, 25)
sOne0, sOne1 = 88, 89
sKw, sW2k, sH4 = 90, 91, 95
sTa, sTb, sTc, sTe = 96, 97, 98, 72
sK1, sK2 = 99, 77
SX, SQKV, SW1, SWO, SW2, SWS, SOUT, SB1, SB2, SDBG = 28, 32, 36, 40, 44, 48, 52, 56, 60, 64
sW, sR, sU, sG, sP, sUnit, sNonce, sWL = 68, 69, 70, 71, 72, 73, 74, 75
sXo, sKq, sH, sT0, sT1, sT2, sT3, sLast = 76, 77, 78, 79, 80, 81, 82, 83
sEps, sHst, sXw, sCnt = 84, 85, 86, 87
sA_lo, sA_hi, sB_lo, sB_hi, sLdA, sLdB, sOffA, sOffB, sMixA, sMixB = 40, 41, 42, 43, 44, 45, 46, 47, 52, 53
sBA, sBB, sW5 = 92, 93, 94
sDx, sDw, sU64, sTS, sOst = 100, 101, 3, 26, 25
sU4 = 73
srd = lambda b: f"s[{b}:{b + 3}]"
vL = 1
vX = [2, 3, 4, 5]
vXR = [6, 7, 8, 9]
vWk = [10, 11, 12, 13, 14]
vWp = [46, 47]
vTK, vTM, vTP, vW1, vTR = [208, 209], [210, 211], [212, 213], 214, 215
vHst, vFl, vRowF, vColF, vEXr = 15, 16, 17, 18, 19
vKf, vK2, vKA, vKB, vAt, vOnes = 20, 21, 22, 23, 24, 25
vAM, vOl0, vOl1, vOw0, vOw1, vOw2, vOw3 = 20, 21, 22, 23, 24, 25, 177
vColK = 176
vFd, vPoll, vLvl, vHiM = 26, 27, 28, 29
vRs1, vRl1, vA1, vA3, vIrs = 32, 34, 36, 38, 44
vIsQ, vPar, vL16, vTd = 33, 35, 37, 39
vXE = 40
vPoll2 = 45
acc = lambda i: 48 + 16 * i
TMP = 176
vW2 = [180, 181, 182, 183, 184]
vH = {'B': [185, 186, 187, 188], 'A': [2, 3, 4, 5]}
vT2 = [189, 190, 191]
vRW = [192, 193, 207]
vRR = [194, 195, 196]
vFo2, vTw = 197, 198
vFo = [199]
vTch = [200, 201, 206]
vTr = [202, 203, 204]
vRow2 = 205
vTW = 179
ET = 244
T0, T1, T2, T3 = 252, 253, 254, 255
aX, aW, NRING, LOOK = 0, 160, 8, 5
accA = lambda t, f: (48 + 4 * (5 * t + f)) if 5 * t + f < 16 else (208 + 4 * (5 * t + f - 16))


def accB(t, f):
    if t == 0:
        return ("v", 224 + 4 * f)
    g = 5 * (t - 1) + f
    return ("a", 140 + 4 * g) if g < 13 else ("v", 6 + 4 * (g - 13))


HR = 4
aH = lambda n, t: 192 + 16 * (n % HR) + 4 * t
wfrag = lambda kind, i, f: ("a", 20 * i + 4 * f) if kind == "E" else ("v", 112 + 20 * (i % 2) + 4 * f)
r4 = lambda x: f"{x[0]}[{x[1]}:{x[1] + 3}]"
f2u = lambda f: struct.unpack("<I", struct.pack("<f", f))[0]
LOG2E = 1.4426950408889634
C1 = -2.0 * 0.7978845608028654 * LOG2E
C3 = C1 * 0.044715
L_S0, L_KP, L_KV, L_HB = 1, 2, 3, 4
L_HQ, L_O, L_XCH = 2, 5, 6

slow_paths, ts_names, _uid = [], [], [0]


def uid(p):
    _uid[0] += 1
    return f"L_{p}{_uid[0]}"


def I(*ts):
    return [ins(t) for t in ts]


def stamp(name):
    if not OPT["prof"]:
        return []
    if OPT["only"] == "clk":
        if name not in ("rt0", "rt1", "start", "end"):
            return []
    elif OPT["only"] is not None:
        if name.startswith("rt") or (OPT["only"] != "all" and name not in OPT["only"]):
            return []
        name = "rt_" + name
    if name not in ts_names:
        ts_names.append(name)
    return [Ins(name, "stamp")]


def make_srd(b, ptr, nbytes):
    return I(f"s_mov_b32 s{b}, s{ptr}", f"s_mov_b32 s{b + 1}, s{ptr + 1}", f"s_mov_b32 s{b + 2}, {nbytes}", f"s_mov_b32 s{b + 3}, 0x20000")


def signal(level, toks):
    o = I(f"s_add_u32 s{sT3}, s{sNonce}, {level}", f"v_mov_b32 v{vFd}, s{sT3}")
    st = ins(f"buffer_store_dword v{vFd}, v{vFl}, {srd(SWS)}, 0 offen sc1", after=toks)
    st.note = ("sig", level)
    return [Bundle(o), st]


def poll_issue(vaddr, dst=vPoll):
    return ins(f"buffer_load_dword v{dst}, v{vaddr}, {srd(SWS)}, 0 offen sc1")


def poll_check(vaddr, level, qlevel=None, dst=vPoll, who="both"):
    slow, back, loop = uid("slow"), uid("back"), uid("loop")

    def test():
        o = I(f"s_add_u32 s{sT3}, s{sNonce}, {level}", f"v_subrev_u32 v{vLvl}, s{sT3}, v{dst}")
        if qlevel is not None and qlevel != level:
            o += I(f"v_mad_i32_i24 v{vLvl}, v{vIsQ}, {level - qlevel}, v{vLvl}")
        return o + I(f"v_cmp_lt_u32 vcc, 63, v{vLvl}")

    sp = I(f"{slow}:", f"s_mov_b32 s{sCnt}, 20000", f"{loop}:", f"s_sleep {OPT['sleep']}") + [poll_issue(vaddr, dst)] + I("s_waitcnt vmcnt(0)") + test()
    sp += I(f"s_cbranch_vccz {back}", f"s_sub_u32 s{sCnt}, s{sCnt}, 1", f"s_cmp_lg_u32 s{sCnt}, 0", f"s_cbranch_scc1 {loop}", f"s_branch {back}")
    slow_paths.append(sp)
    br = ins(f"s_cbranch_vccnz {slow}")
    br.note = ("chk", level if who != "q" else 0, (qlevel if qlevel is not None else level) if who != "kv" else 0, who)
    return [Bundle(test() + [br] + I(f"{back}:"))]


def nonce_check(dst):
    slow, back, loop = uid("nslow"), uid("nback"), uid("nloop")
    sp = I(f"{slow}:", f"s_mov_b32 s{sCnt}, 20000", f"{loop}:", f"s_sleep {OPT['sleep']}", f"v_mov_b32 v{dst}, 0",
           f"buffer_load_dword v{dst}, v{dst}, {srd(SDBG)}, 0 offen sc1", "s_waitcnt vmcnt(0)",
           f"v_readfirstlane_b32 s{sNonce}, v{dst}", f"s_cmp_lg_u32 s{sNonce}, 0", f"s_cbranch_scc1 {back}",
           f"s_sub_u32 s{sCnt}, s{sCnt}, 1", f"s_cmp_lg_u32 s{sCnt}, 0", f"s_cbranch_scc1 {loop}", f"s_branch {back}")
    slow_paths.append(sp)
    return [Bundle(I(f"v_readfirstlane_b32 s{sNonce}, v{dst}", f"s_cmp_eq_u32 s{sNonce}, 0", f"s_cbranch_scc1 {slow}", f"{back}:"))]


def flag_addr_row(dst, sr, t2, t3):
    return I(f"s_lshr_b32 s{sT0}, s{sr}, 3", f"s_and_b32 s{sT1}, s{sr}, 7", f"s_lshl_b32 s{sT1}, s{sT1}, 3", f"s_add_u32 s{sT0}, s{sT0}, s{sT1}",
             f"v_lshrrev_b32 v{t2}, 4, v{vL}", f"v_lshlrev_b32 v{t2}, 1, v{t2}", f"v_bfe_u32 v{t3}, v{vL}, 2, 2", f"v_lshl_add_u32 v{t2}, v{t3}, 6, v{t2}",
             f"v_add_u32 v{t2}, s{sT0}, v{t2}", f"v_and_b32 v{t3}, 3, v{vL}", f"v_lshlrev_b32 v{t3}, 2, v{t3}", f"v_lshl_add_u32 v{dst}, v{t2}, 7, v{t3}")


def flag_addr_col(dst, sg, t2, t3):
    return I(f"s_lshr_b32 s{sT0}, s{sg}, 2", f"s_lshl_b32 s{sT0}, s{sT0}, 1", f"s_and_b32 s{sT1}, s{sg}, 3", f"s_lshl_b32 s{sT1}, s{sT1}, 6", f"s_add_u32 s{sT0}, s{sT0}, s{sT1}",
             f"v_lshrrev_b32 v{t2}, 5, v{vL}", f"v_bfe_u32 v{t3}, v{vL}, 2, 3", f"v_lshl_add_u32 v{t2}, v{t3}, 3, v{t2}",
             f"v_add_u32 v{t2}, s{sT0}, v{t2}", f"v_and_b32 v{t3}, 3, v{vL}", f"v_lshlrev_b32 v{t3}, 2, v{t3}", f"v_lshl_add_u32 v{dst}, v{t2}, 7, v{t3}")


def dma_x(n):
    g = []
    for i in range(4):
        pre = I(f"s_add_u32 s{sDx}, s{sXo}, {128 * n}") if i == 0 else []
        g.append(pre + I(f"s_add_u32 m0, s{sXw}, {(n % 3) * 4096}", f"buffer_load_dwordx4 v{vX[i]}, {srd(SX)}, s{sDx} offen offset:{1024 * i} lds"))
    return g


def prologue():
    o = []
    a = lambda *t: o.extend(I(*t))
    a("s_cmp_ge_u32 s2, 256", "s_cbranch_scc1 L_end")
    a("s_load_dwordx16 s[4:19], s[0:1], 0", "s_load_dwordx4 s[20:23], s[0:1], 64", "s_load_dwordx2 s[24:25], s[0:1], 80")
    a(f"s_memrealtime s[{sNonce}:{sNonce + 1}]")
    if OPT["touch_code"]:
        o += touch_code()
        o[-2].wr = set()
    if OPT["prof"]:
        a("v_mov_b32 v31, 0")
        if OPT.get("kst"):
            a("s_memtime s[42:43]", "s_memrealtime s[44:45]")
            ts_names.extend(["rt0", "start"])
        else:
            o += stamp("rt0") + stamp("start")
    t0, t1, t2 = T0, T1, T2
    a(f"v_lshrrev_b32 v{t0}, 6, v0", f"v_and_b32 v{vL}, 63, v0", f"v_readfirstlane_b32 s{sW}, v{t0}")
    a(f"s_and_b32 s{sT0}, s2, 1", f"s_lshl_b32 s{sT0}, s{sT0}, 3", f"s_bfe_u32 s{sT1}, s2, 0x30003", f"s_add_u32 s{sR}, s{sT0}, s{sT1}")
    a(f"v_lshrrev_b32 v{t0}, 3, v{vL}", f"v_lshrrev_b32 v{t1}, 4, v{vL}", f"v_and_b32 v{t2}, 7, v{vL}", f"v_xor_b32 v{t2}, v{t2}, v{t1}",
      f"v_lshlrev_b32 v{t2}, 4, v{t2}", f"v_mul_u32_u24 v{t0}, {LDX}, v{t0}", f"v_add_u32 v{vX[0]}, v{t0}, v{t2}",
      f"v_xor_b32 v{vX[1]}, 64, v{vX[0]}", f"v_add_u32 v{vX[1]}, {8 * LDX - 1024}, v{vX[1]}",
      f"v_add_u32 v{vX[2]}, {16 * LDX - 2048}, v{vX[0]}", f"v_add_u32 v{vX[3]}, {16 * LDX - 2048}, v{vX[1]}")
    a(f"s_lshl_b32 s{sT0}, s{sR}, 2", f"s_add_u32 s{sT0}, s{sT0}, s{sW}", f"s_mul_i32 s{sXo}, s{sT0}, {32 * LDX}")
    a(f"s_mul_i32 s{sXw}, s{sW}, 12288", f"s_add_u32 s{sXw}, s{sXw}, {XS}")
    a("s_mov_b32 s30, 2621440", "s_mov_b32 s31, 0x20000")
    a(f"s_bfe_u32 s{sT0}, s2, 0x20001", f"s_lshr_b32 s{sT1}, s2, 6",
      f"s_lshl_b32 s{sG}, s{sT0}, 2", f"s_add_u32 s{sG}, s{sG}, s{sT1}", f"s_lshr_b32 s{sP}, s{sT1}, 1",
      f"s_lshl_b32 s{sU}, s{sT0}, 1", f"s_add_u32 s{sU}, s{sU}, s{sP}",
      f"s_mul_i32 s{sKq}, s{sU}, 160", f"s_mul_i32 s{sU64}, s{sU}, 384")
    assert (SX, SQKV, SW1) == (28, 32, 36)
    if OPT.get("kst"):
        a("s_memtime s[40:41]")
    a("s_waitcnt lgkmcnt(0)", f"s_mov_b32 s28, s{P_X}", f"s_mov_b32 s29, s{P_X + 1}")
    if OPT.get("kst"):
        ts_names.append("prek")
        a(f"v_writelane_b32 v31, s40, {len(ts_names) - 1}", "v_writelane_b32 v31, s44, 0", "v_writelane_b32 v31, s42, 1")
    o += stamp("karg")
    xs = [dma_x(n) for n in range(OPT["xearly"])]
    for x in xs[:1]:
        for g in x:
            o += g
    o += make_srd(SQKV, P_QKV, 640 * LDQ) + make_srd(SW1, P_W1, 640 * LD1)
    if OPT["ft"]:
        o += first_touch()
    for x in xs[1:]:
        for g in x:
            o += g
    return o, xs


def nonce_publish():
    o = I(f"s_or_b32 s{sT0}, s2, s{sW}", f"s_cmp_lg_u32 s{sT0}, 0", "s_cbranch_scc1 L_nn",
          f"s_max_u32 s{sT0}, s{sNonce}, 1", f"v_mov_b32 v{T0}, s{sT0}", f"v_mov_b32 v{T1}, 0",
          f"global_store_dword v{T1}, v{T0}, s[{P_DBG}:{P_DBG + 1}] sc1")
    o[-1].ghost = True
    return o + I("L_nn:")


def div10(q, row, ch):
    return I(f"v_mul_u32_u24 v{row}, 6554, v{q}", f"v_lshrrev_b32 v{row}, 16, v{row}", f"v_mul_u32_u24 v{ch}, 10, v{row}", f"v_sub_u32 v{ch}, v{q}, v{ch}", f"v_lshlrev_b32 v{ch}, 4, v{ch}")


def wk_setup(kv):
    o = []
    for i in range(5):
        o += I(f"v_add_u32 v{T0}, {64 * i}, v{vL}") + div10(T0, T1, T2)
        if kv:
            o += I(f"v_lshrrev_b32 v{T0}, 4, v{T1}", f"v_and_b32 v{T1}, 15, v{T1}", f"v_mul_u32_u24 v{T0}, 1280, v{T0}", f"v_add_u32 v{T2}, v{T2}, v{T0}")
        o += I(f"v_mul_u32_u24 v{T1}, {LDQ}, v{T1}", f"v_add_u32 v{vWk[i]}, v{T1}, v{T2}")
        if not kv and i in (1, 2, 3):
            o += I(f"v_subrev_u32 v{vWk[i]}, {1024 * i}, v{vWk[i]}")
    return o + I(f"s_mul_i32 s{sT0}, s{sW}, {(16 if kv else 32) * LDQ}", f"s_add_u32 s{sKw}, s{sKq}, s{sT0}", f"s_mul_i32 s{sW5}, s{sW}, 5120")


def wp_setup():
    return I(f"v_lshrrev_b32 v{T0}, 3, v{vL}", f"s_lshl_b32 s{sT0}, s{sW}, 4", f"v_add_u32 v{T0}, s{sT0}, v{T0}", f"v_mul_u32_u24 v{T0}, {LD1}, v{T0}",
             f"v_bfe_u32 v{T1}, v{vL}, 4, 1", f"v_lshlrev_b32 v{T1}, 2, v{T1}", f"v_and_b32 v{T2}, 7, v{vL}", f"v_xor_b32 v{T1}, v{T1}, v{T2}",
             f"v_lshl_add_u32 v{vWp[0]}, v{T1}, 4, v{T0}", f"v_add_u32 v{vWp[1]}, {8 * LD1 - 1024}, v{vWp[0]}", f"s_lshl_b32 s{sW2k}, s{sW}, 11")


def w1_setup():
    return I(f"v_lshrrev_b32 v{T0}, 2, v0", f"v_and_b32 v{T1}, 3, v{vL}", f"v_mul_u32_u24 v{T0}, {LD1}, v{T0}", f"v_lshl_add_u32 v{vW1}, v{T1}, 4, v{T0}")


def x_read_setup():
    o = I(f"v_and_b32 v{T0}, 31, v{vL}", f"v_lshrrev_b32 v{T1}, 5, v{vL}", f"v_bfe_u32 v{T2}, v{vL}, 1, 3", f"v_xor_b32 v{T2}, v{T2}, v{T1}",
          f"v_lshlrev_b32 v{T2}, 4, v{T2}", f"v_lshl_add_u32 v{T2}, v{T0}, 7, v{T2}")
    for j in range(4):
        o += I(f"v_xor_b32 v{vXR[j]}, {32 * j}, v{T2}", f"v_add_u32 v{vXR[j]}, s{sXw}, v{vXR[j]}")
    return o


def tr_parts():
    return I(f"v_lshrrev_b32 v{T1}, 5, v{vL}", f"v_bfe_u32 v{T0}, v{vL}, 2, 2", f"v_lshl_add_u32 v{T0}, v{T1}, 3, v{T0}",
             f"v_bfe_u32 v{T1}, v{vL}, 4, 1", f"v_and_b32 v{T2}, 3, v{vL}", f"v_lshlrev_b32 v{T2}, 3, v{T2}")


def tk_setup(kv):
    o = tr_parts() + I(f"v_mul_u32_u24 v{T0}, 160, v{T0}", f"v_add_u32 v{T0}, v{T0}, v{T2}", f"v_lshl_add_u32 v{vTK[0]}, v{T1}, 5, v{T0}", f"v_add_u32 v{vTM[0]}, 128, v{T0}")
    if kv:
        o += I(f"v_mul_u32_u24 v{T1}, 2560, v{T1}", f"v_add_u32 v{vTM[0]}, v{vTM[0]}, v{T1}")
    return o + I(f"v_add_u32 v{vTK[1]}, 0x8000, v{vTK[0]}", f"v_add_u32 v{vTM[1]}, 0x8000, v{vTM[0]}")


def tp_setup(base):
    return tr_parts() + I(f"v_lshl_add_u32 v{T2}, v{T1}, 5, v{T2}", f"v_lshl_add_u32 v{T2}, v{T0}, 7, v{T2}", f"v_bfe_u32 v{T1}, v{vL}, 3, 1",
                          f"v_lshl_add_u32 v{T2}, v{T1}, 6, v{T2}", f"v_add_u32 v{vTP[0]}, {base}, v{T2}", f"v_xor_b32 v{vTP[1]}, 64, v{vTP[0]}")


def tr_setup(base):
    return tr_parts() + I(f"v_lshl_add_u32 v{T2}, v{T1}, 5, v{T2}", f"v_lshl_add_u32 v{T2}, v{T0}, 6, v{T2}", f"v_add_u32 v{vTR}, {base}, v{T2}")


def late_setup():
    o = []
    a = lambda *t: o.extend(I(*t))
    t0, t1, t2, t3 = T0, T1, T2, T3
    o += make_srd(SDBG, P_DBG, 256)
    a(f"v_mov_b32 v{vPoll2}, 0")
    o += make_srd(SB1, P_B1, 1728 * 2)
    o += make_srd(SWO, P_WO, 640 * LDX) + make_srd(SW2, P_W2, 1728 * LDX) + make_srd(SOUT, P_OUT, 2048 * LDX) + make_srd(SB2, P_B2, 1280)
    a(f"v_and_b32 v{t0}, 31, v{vL}", f"v_lshrrev_b32 v{t1}, 5, v{vL}")
    a(f"v_lshlrev_b32 v{vEXr}, 4, v{t0}", f"v_add_u32 v{vEXr}, {EX}, v{vEXr}", f"v_sub_u32 v{vHiM}, 0, v{t1}")
    a(f"v_bfe_u32 v{t2}, v{vL}, 4, 1", f"v_mul_u32_u24 v{t2}, {NB * 1024}, v{t2}", f"v_and_b32 v{t3}, 15, v{vL}",
      f"v_lshl_add_u32 v{t3}, v{t1}, 4, v{t3}", f"v_lshl_add_u32 v{vHst}, v{t3}, 4, v{t2}")
    a(f"s_lshl_b32 s{sT0}, s{sR}, 2", f"s_add_u32 s{sT0}, s{sT0}, s{sW}", f"s_mul_i32 s{sHst}, s{sT0}, {2 * NB * 1024}", f"s_add_u32 s{sHst}, s{sHst}, {HB}",
      f"s_mul_i32 s{sOst}, s{sU}, 2560", f"s_add_u32 s{sOst}, s{sOst}, s{sHst}",
      f"s_add_u32 s{sHst}, s{sHst}, {20 * 1024}", f"s_lshl_b32 s{sT0}, s{sU4}, 4", f"s_add_u32 s{sH4}, s{sHst}, s{sT0}", f"s_or_b32 s{sH4}, s{sH4}, s{sLast}",
      f"s_lshl_b32 s{sT0}, s{sU64}, 4", f"s_add_u32 s{sHst}, s{sHst}, s{sT0}")
    a(f"s_lshl_b32 s{sT0}, s2, 7", f"s_lshl_b32 s{sT1}, s{sW}, 2", f"s_add_u32 s{sT0}, s{sT0}, s{sT1}",
      f"v_mov_b32 v{vFl}, {OOB}", f"v_writelane_b32 v{vFl}, s{sT0}, 0")
    a(f"s_mov_b32 s{sEps}, {f2u(1e-6)}")
    return o


def touch_code():
    return I(f"s_getpc_b64 s[{sT0 + 1}:{sT0 + 2}]", f"s_and_b32 s{sT0}, s2, 0xf8", f"s_lshl_b32 s{sT0}, s{sT0}, 8", f"v_and_b32 v{T1}, 0xc3, v0", f"v_lshrrev_b32 v{T2}, 4, v{T1}",
             f"v_and_or_b32 v{T1}, v{T1}, 3, v{T2}", f"v_lshl_add_u32 v{T1}, v{T1}, 7, s{sT0}", "s_mov_b64 exec, 15",
             f"global_load_dword v{vTd}, v{T1}, s[{sT0 + 1}:{sT0 + 2}]", "s_mov_b64 exec, -1")


def first_touch():
    o = I(f"s_lshl_b32 s{sT0}, s2, 2", f"s_add_u32 s{sT0}, s{sT0}, s{sW}", f"s_lshl_b32 s{sT1}, s{sT0}, 7", f"s_mul_i32 s{sT0}, s{sT0}, {2 * LDX}",
          f"v_lshlrev_b32 v{T0}, 17, v{vL}", f"v_lshrrev_b32 v{T1}, 1, v{vL}", f"v_and_b32 v{T2}, 1, v{vL}", f"v_mul_u32_u24 v{T2}, {LDX}, v{T2}", f"v_lshl_add_u32 v{T1}, v{T1}, 7, v{T2}",
          "s_mov_b64 exec, 0xfffff",
          f"buffer_load_dword v{vTd}, v{T0}, {srd(SQKV)}, s{sT1} offen", f"buffer_load_dword v{vTd}, v{T0}, {srd(SW1)}, s{sT1} offen",
          f"buffer_load_dword v{vTd}, v{T1}, {srd(SX)}, s{sT0} offen", "s_mov_b64 exec, -1")
    for x in o:
        if x.kind == "vmem":
            x.wr = set()
    return o


CB = 128
ST, CS, CAD, SAD, SST = CB, CB + 10, CB + 30, CB + 45, CB + 44
PA = 216


def s0_wave_params(tiles):
    o = []
    done = uid("s0p")
    for w in range(4):
        nxt = uid("s0p")
        if w < 3:
            o += I(f"s_cmp_lg_u32 s{sW}, {w}", f"s_cbranch_scc1 {nxt}")
        for name, (lo, hi, ld, off, mx, sb) in zip((tiles + ["--"])[2 * w:2 * w + 2], ((sA_lo, sA_hi, sLdA, sOffA, sMixA, sBA), (sB_lo, sB_hi, sLdB, sOffB, sMixB, sBB))):
            ish = name[0] in "H-"
            p = P_W1 if ish else P_QKV
            o += I(f"s_mov_b32 s{lo}, s{p}", f"s_mov_b32 s{hi}, s{p + 1}", f"s_mov_b32 s{ld}, {LD1 if ish else LDQ}",
                   f"s_mov_b32 s{mx}, {dict(MX=1248, QM=-32).get(name, 0)}")
            if not ish:
                o += I(f"s_add_u32 s{off}, s{sKq}, {QCOL[name]}", f"s_mov_b32 s{sb}, {OOB}")
            elif name == "--":
                o += I(f"s_mov_b32 s{off}, 0", f"s_mov_b32 s{sb}, {OOB}")
            elif name == "H4":
                o += I(f"s_or_b32 s{sb}, s{sU4}, s{sLast}", f"s_mov_b32 s{off}, s{sU4}")
            else:
                o += I(f"s_add_u32 s{off}, s{sU64}, {64 * HUNIT[name]}", f"s_mov_b32 s{sb}, s{off}")
        if w < 3:
            o += I(f"s_branch {done}", f"{nxt}:")
    o += I(f"{done}:")
    return o


QCOL = {"K0": 0, "K1": 64, "MX": 128, "V0": 1280, "V1": 1344, "Q0": 0, "Q1": 64, "QM": 128}
HUNIT = {"Ha": 0, "Hb": 1, "H0": 0, "H1": 1, "H2": 2, "H3": 3, "H4": 4}


def s0_addr(tiles):
    o = []
    a = lambda *t: o.extend(I(*t))
    t0, t1, t2, t3 = T0, T1, T2, T3
    a(f"s_lshl_b32 s{sT0}, s{sR}, 7", f"s_lshl_b32 s{sT1}, s{sG}, 3", f"s_add_u32 s{sT0}, s{sT0}, s{sT1}", f"s_lshl_b32 s{sT1}, s{sW}, 1",
      f"s_add_u32 s{sT2}, s{sT0}, s{sT1}", f"s_mul_i32 s{sH}, s{sT2}, {LDX}",
      f"v_lshrrev_b32 v{t0}, 5, v{vL}", f"v_mul_u32_u24 v{t1}, {LDX}, v{t0}", f"v_and_b32 v{t2}, 31, v{vL}", f"v_lshl_add_u32 v{SAD}, v{t2}, 3, v{t1}",
      f"v_add_u32 v{SST}, s{sT2}, v{t0}")
    o += s0_wave_params(tiles)
    ad, ld = CAD, CB + 46
    a(f"v_and_b32 v{t0}, 4, v{vL}", f"v_cmp_ne_u32 vcc, 0, v{t0}",
      f"v_mov_b32 v{ld}, s{sLdA}", f"v_mov_b32 v{t1}, s{sLdB}", f"v_cndmask_b32 v{ld}, v{ld}, v{t1}, vcc", f"v_mov_b32 v{ld + 1}, 0",
      f"v_mov_b32 v{t2}, s{sOffA}", f"v_mov_b32 v{t1}, s{sOffB}", f"v_cndmask_b32 v{t2}, v{t2}, v{t1}, vcc",
      f"v_mov_b32 v{t3}, s{sMixA}", f"v_mov_b32 v{t1}, s{sMixB}", f"v_cndmask_b32 v{t3}, v{t3}, v{t1}, vcc",
      f"v_mov_b32 v{ad}, s{sA_lo}", f"v_mov_b32 v{t1}, s{sB_lo}", f"v_cndmask_b32 v{ad}, v{ad}, v{t1}, vcc",
      f"v_mov_b32 v{ad + 1}, s{sA_hi}", f"v_mov_b32 v{t1}, s{sB_hi}", f"v_cndmask_b32 v{ad + 1}, v{ad + 1}, v{t1}, vcc",
      f"v_bfe_u32 v{t0}, v{vL}, 1, 1", f"v_mad_i32_i24 v{t2}, v{t0}, v{t3}, v{t2}",
      f"v_and_b32 v{t0}, 3, v{vL}", f"v_lshl_add_u32 v{t2}, v{t0}, 4, v{t2}",
      f"v_lshrrev_b32 v{t0}, 3, v{vL}", f"v_mul_u32_u24 v{t0}, 5, v{t0}", f"s_mul_i32 s{sT0}, s{sR}, 40", f"v_add_u32 v{t0}, s{sT0}, v{t0}",
      f"v_mad_u32_u24 v{t2}, v{t0}, v{ld}, v{t2}", f"v_mov_b32 v{t3}, 0",
      f"v_lshl_add_u64 v[{ad}:{ad + 1}], v[{t2}:{t3}], 0, v[{ad}:{ad + 1}]")
    for i in range(4):
        a(f"v_lshl_add_u64 v[{ad + 2 * i + 2}:{ad + 2 * i + 3}], v[{ld}:{ld + 1}], 0, v[{ad + 2 * i}:{ad + 2 * i + 1}]")
    return o


def s0_mem():
    o = [I(f"buffer_load_dwordx2 v[{ST + 2 * m}:{ST + 2 * m + 1}], v{SAD}, {srd(SX)}, s{sH} offen offset:{256 * m}") for m in range(5)]
    o += [I(f"global_load_dwordx4 v[{CS + 4 * i}:{CS + 4 * i + 3}], v[{CAD + 2 * i}:{CAD + 2 * i + 1}], off") for i in range(5)]
    return o


def reduce32(x, t):
    o = []
    for n in (8, 4, 2, 1):
        o += I(f"v_add_f32_dpp v{x}, v{x}, v{x} row_ror:{n} row_mask:0xf bank_mask:0xf")
    return o + I(f"v_mov_b32 v{t}, v{x}", f"v_permlane16_swap_b32 v{x}, v{t}", f"v_add_f32 v{x}, v{x}, v{t}")


def weave(*streams):
    out, streams = [], [list(s) for s in streams]
    while any(streams):
        for s in streams:
            if s:
                out.append(s.pop(0))
    return out


def s0_produce(kv):
    st, cs, stores = [], [], []
    a = lambda *t: st.extend(I(*t))
    s0, s1, t = CB + 40, CB + 41, CB + 42
    a(f"s_mov_b32 s{sCnt}, 0x3f803f80")
    for m in range(10):
        a(f"v_dot2_f32_bf16 v{s0}, v{ST + m}, s{sCnt}, {'0' if m == 0 else 'v%d' % s0}", f"v_dot2_f32_bf16 v{s1}, v{ST + m}, v{ST + m}, {'0' if m == 0 else 'v%d' % s1}")
    a(f"v_lshlrev_b32 v{SST}, 3, v{SST}", f"v_add_u32 v{SST}, {STATS}, v{SST}", f"v_and_b32 v{t}, 31, v{vL}", f"v_min_u32 v{t}, 1, v{t}", f"v_lshl_add_u32 v{SST}, v{t}, 30, v{SST}")
    red = weave(reduce32(s0, t), reduce32(s1, CB + 43))
    red += I(f"v_mul_f32 v{s0}, {f2u(1 / 640)}, v{s0}", f"v_mul_f32 v{s1}, {f2u(1 / 640)}, v{s1}", f"v_fma_f32 v{s1}, -v{s0}, v{s0}, v{s1}", f"v_max_f32 v{s1}, 0, v{s1}")
    stores.append(ins(f"buffer_store_dwordx2 v[{s0}:{s1}], v{SST}, {srd(SWS)}, 0 offen sc1"))
    a = lambda *t: cs.extend(I(*t))
    A, ta, tb = CAD, CB + 46, CB + 47
    for i in range(5):
        for k in range(4):
            for h in range(2):
                d = A + 2 * k + h
                a(f"v_dot2_f32_bf16 v{d}, v{CS + 4 * i + k}, s{sOne1 if h else sOne0}, {'0' if i == 0 else 'v%d' % d}")
    n1 = len(cs)
    a(f"v_and_b32 v{ta}, 7, v{vL}", f"v_lshlrev_b32 v{ta}, 5, v{ta}", f"v_lshrrev_b32 v{tb}, 5, v{vL}", f"v_lshl_add_u32 v{ta}, v{tb}, 4, v{ta}")
    for i in range(4):
        a(f"v_permlane32_swap_b32 v{A + i}, v{A + i + 4}")
    for i in range(4):
        a(f"v_add_f32 v{A + i}, v{A + i}, v{A + i + 4}")
    a(f"v_bfe_u32 v{tb}, v{vL}, 4, 1", f"v_lshl_add_u32 v{ta}, v{tb}, 3, v{ta}")
    for i in range(2):
        a(f"v_permlane16_swap_b32 v{A + i}, v{A + i + 2}")
    for i in range(2):
        a(f"v_add_f32 v{A + i}, v{A + i}, v{A + i + 2}")
    a(f"v_bfe_u32 v{tb}, v{vL}, 3, 1", f"v_lshl_add_u32 v{ta}, v{tb}, 30, v{ta}")
    for i in range(2):
        a(f"v_add_f32_dpp v{A + i}, v{A + i}, v{A + i} row_ror:8 row_mask:0xf bank_mask:0xf")
    a(f"s_lshl_b32 s{sH}, s{sG}, 4", f"s_add_u32 s{sH}, s{sH}, s{sR}", f"s_lshl_b32 s{sH}, s{sH}, 2", f"s_add_u32 s{sH}, s{sH}, s{sW}",
      f"s_lshl_b32 s{sH}, s{sH}, 8", f"s_add_u32 s{sH}, s{sH}, {CSUM}", f"v_add_u32 v{ta}, s{sH}, v{ta}")
    stores.append(ins(f"buffer_store_dwordx2 v[{A}:{A + 1}], v{ta}, {srd(SWS)}, 0 offen sc1"))
    return st + cs[:n1] + weave(red, bundled(cs[n1:])), stores


def s0_consume_loads():
    o = stamp("prepoll") + poll_check(vRowF, L_S0, dst=vPoll) + poll_check(vColF, L_S0, dst=vPoll2) + stamp("polled")
    a = lambda *t: o.extend(I(*t))
    a(f"buffer_load_dwordx2 v[{CB}:{CB + 1}], v{PA}, {srd(SWS)}, 0 offen sc1")
    for m in range(4):
        a(f"buffer_load_dwordx4 v[{CB + 4 + 4 * m}:{CB + 7 + 4 * m}], v{PA + 1 + m}, {srd(SWS)}, 0 offen sc1")
    a(f"buffer_load_ushort v{CB + 27}, v{PA + 5}, {srd(SB1)}, 0 offen")
    return o


def s0_consume_addr():
    o = []
    a = lambda *t: o.extend(I(*t))
    t0, t1 = T0, T1
    o += flag_addr_row(vRowF, sR, t0, t1) + flag_addr_col(vColF, sG, t0, t1)
    a(f"v_and_b32 v{t0}, 31, v{vL}", f"v_lshlrev_b32 v{t0}, 3, v{t0}", f"s_lshl_b32 s{sT0}, s{sR}, 2", f"s_add_u32 s{sT0}, s{sT0}, s{sW}",
      f"s_lshl_b32 s{sT0}, s{sT0}, 8", f"s_add_u32 s{sT0}, s{sT0}, {STATS}", f"v_add_u32 v{PA}, s{sT0}, v{t0}")
    a(f"v_lshrrev_b32 v{t0}, 4, v{vL}", f"v_lshlrev_b32 v{t0}, 10, v{t0}", f"v_and_b32 v{t1}, 15, v{vL}", f"v_lshl_add_u32 v{t0}, v{t1}, 4, v{t0}",
      f"s_lshl_b32 s{sT0}, s{sG}, 14", f"s_lshl_b32 s{sT1}, s{sW}, 8", f"s_add_u32 s{sT0}, s{sT0}, s{sT1}", f"s_add_u32 s{sT0}, s{sT0}, {CSUM}",
      f"v_add_u32 v{PA + 1}, s{sT0}, v{t0}")
    for m in range(1, 4):
        a(f"v_add_u32 v{PA + 1 + m}, {4096 * m}, v{PA + 1}")
    p = PA + 6
    a(f"v_lshlrev_b32 v{p}, 2, v{t1}", f"v_lshrrev_b32 v{t0}, 5, v{vL}", f"v_lshl_add_u32 v{p}, v{t0}, 1, v{p}", f"v_bfe_u32 v{t0}, v{vL}, 4, 1", f"v_add_u32 v{p}, v{p}, v{t0}",
      f"v_cmp_le_u32 vcc, 32, v{p}", f"v_mov_b32 v{t0}, s{sBA}", f"v_mov_b32 v{t1}, s{sBB}", f"v_cndmask_b32 v{t0}, v{t0}, v{t1}, vcc",
      f"v_and_b32 v{t1}, 31, v{p}", f"v_lshl_add_u32 v{PA + 5}, v{t1}, 1, v{t0}",
      f"v_lshlrev_b32 v{p}, 4, v{p}", f"v_add_u32 v{p}, s{sWL}, v{p}", f"v_add_u32 v{p}, {EX}, v{p}")
    return o


def s0_consume_math():
    x, y = [], []
    a = lambda *t: x.extend(I(*t))
    m, var = CB, CB + 1
    t0, t1, t2, t3 = CB + 28, CB + 29, CB + 30, CB + 31
    e5 = f2u(1e-5)
    a(f"v_add_f32 v{t0}, {e5}, v{var}", f"v_rsq_f32 v{vRs1}, v{t0}", f"v_mul_f32 v{t1}, v{var}, v{vRs1}", f"v_mul_f32 v{t1}, v{t1}, v{vRs1}",
      f"v_add_f32 v{t1}, {e5}, v{t1}", f"v_rsq_f32 v{t1}, v{t1}", f"v_mul_f32 v{vRl1}, {f2u(LOG2E)}, v{vRs1}", f"v_mul_f32 v{t1}, v{t1}, v{vRs1}",
      f"v_rcp_f32 v{vIrs}, v{t1}", f"v_mul_f32 v{vA1}, {f2u(C1)}, v{t1}", f"v_mul_f32 v{t2}, v{t1}, v{t1}", f"v_mul_f32 v{t2}, v{t2}, v{t1}",
      f"v_mul_f32 v{vA3}, {f2u(C3)}, v{t2}")
    a(f"v_sub_f32 v{m}, 0, v{m}", f"v_cvt_pk_bf16_f32 v{t0}, v{m}, v{m}", f"v_and_b32 v{t0}, 0xffff0000, v{t0}", f"v_sub_f32 v{t2}, v{m}, v{t0}",
      f"v_cvt_pk_bf16_f32 v{vXE}, v{t0}, v{t2}",
      f"v_cvt_pk_bf16_f32 v{t0}, v{vIrs}, v{vIrs}", f"v_and_b32 v{t0}, 0xffff0000, v{t0}", f"v_sub_f32 v{t2}, v{vIrs}, v{t0}",
      f"v_cvt_pk_bf16_f32 v{vXE + 2}, v{t0}, v{t2}", f"v_and_b32 v{t0}, 0xffff0000, v{vXE + 2}", f"v_sub_f32 v{t2}, v{t2}, v{t0}",
      f"v_cvt_pk_bf16_f32 v{vXE + 3}, v{t2}, 0",
      f"v_not_b32 v{t3}, v{vHiM}", f"v_and_b32 v{vXE}, v{vXE}, v{t3}", f"v_and_b32 v{vXE + 2}, v{vXE + 2}, v{t3}", f"v_and_b32 v{vXE + 3}, v{vXE + 3}, v{t3}",
      f"v_mov_b32 v{vXE + 1}, v{vXE}")
    a = lambda *t: y.extend(I(*t))
    B, u0 = CB + 4, CB + 32
    for mm in range(1, 4):
        for k in range(4):
            a(f"v_add_f32 v{B + k}, v{B + k}, v{B + 4 * mm + k}")
    a(f"v_permlane32_swap_b32 v{B}, v{B + 2}", f"v_permlane32_swap_b32 v{B + 1}, v{B + 3}",
      f"v_add_f32 v{B}, v{B}, v{B + 2}", f"v_add_f32 v{B + 1}, v{B + 1}, v{B + 3}",
      f"v_permlane16_swap_b32 v{B}, v{B + 1}", f"v_add_f32 v{B}, v{B}, v{B + 1}")
    Rr = CB + 24
    a(f"v_cvt_pk_bf16_f32 v{Rr}, v{B}, v{B}", f"v_and_b32 v{u0}, 0xffff0000, v{Rr}", f"v_sub_f32 v{u0}, v{B}, v{u0}",
      f"v_cvt_pk_bf16_f32 v{Rr + 1}, v{u0}, v{u0}", f"v_lshl_or_b32 v{Rr + 2}, v{Rr + 3}, 16, v{Rr + 3}")
    w = ins(f"ds_write_b128 v{PA + 6}, v[{Rr}:{Rr + 3}]")
    return weave(y + [w], x), w


pr = lambda r: f"v[{r}:{r + 1}]"


def cvt2(dst, tb):
    return I(f"v_cvt_pk_bf16_f32 v{dst}, v{tb}, v{tb + 1}", f"v_cvt_pk_bf16_f32 v{dst + 1}, v{tb + 2}, v{tb + 3}")


def gelu_quad(A, dst, tb, pk=False):
    o = []
    each = lambda f, n=4, s=1: [o.extend(I(f(i))) for i in range(0, n, s)]
    if pk:
        each(lambda i: f"v_pk_mul_f32 {pr(tb + i)}, {pr(A + i)}, {pr(A + i)}", 4, 2)
        each(lambda i: f"v_pk_fma_f32 {pr(tb + i)}, {pr(tb + i)}, {pr(vA3)}, {pr(vA1)} op_sel_hi:[1,0,0]", 4, 2)
        each(lambda i: f"v_pk_mul_f32 {pr(tb + i)}, {pr(tb + i)}, {pr(A + i)}", 4, 2)
        each(lambda i: f"v_exp_f32 v{tb + i}, v{tb + i}")
        each(lambda i: f"v_pk_fma_f32 {pr(tb + i)}, {pr(tb + i)}, {pr(vIrs)}, {pr(vIrs)} op_sel_hi:[1,0,0]", 4, 2)
        each(lambda i: f"v_rcp_f32 v{tb + i}, v{tb + i}")
        each(lambda i: f"v_pk_mul_f32 {pr(tb + i)}, {pr(tb + i)}, {pr(A + i)}", 4, 2)
    else:
        each(lambda i: f"v_mul_f32 v{tb + i}, v{A + i}, v{A + i}")
        each(lambda i: f"v_fma_f32 v{tb + i}, v{tb + i}, v{vA3}, v{vA1}")
        each(lambda i: f"v_mul_f32 v{tb + i}, v{tb + i}, v{A + i}")
        each(lambda i: f"v_exp_f32 v{tb + i}, v{tb + i}")
        each(lambda i: f"v_fma_f32 v{tb + i}, v{tb + i}, v{vIrs}, v{vIrs}")
        each(lambda i: f"v_rcp_f32 v{tb + i}, v{tb + i}")
        each(lambda i: f"v_mul_f32 v{tb + i}, v{tb + i}, v{A + i}")
    return o + cvt2(dst, tb)


def phi_quad(A, dst, tb, pk=False):
    o = []
    each = lambda f, n=4, s=1: [o.extend(I(f(i))) for i in range(0, n, s)]
    if pk:
        each(lambda i: f"v_pk_mul_f32 {pr(tb + i)}, {pr(A + i)}, {pr(vRl1)} op_sel_hi:[1,0]", 4, 2)
        each(lambda i: f"v_pk_fma_f32 {pr(A + i)}, {pr(A + i)}, {pr(vRs1)}, 1.0 op_sel_hi:[1,0,0]", 4, 2)
    else:
        each(lambda i: f"v_mul_f32 v{tb + i}, v{A + i}, v{vRl1}")
        each(lambda i: f"v_fma_f32 v{A + i}, v{A + i}, v{vRs1}, 1.0")
    each(lambda i: f"v_exp_f32_e64 v{tb + i}, v{tb + i} clamp")
    each(lambda i: f"v_max_f32 v{tb + i}, v{tb + i}, v{A + i}")
    if pk:
        each(lambda i: f"v_pk_add_f32 {pr(tb + i)}, {pr(tb + i)}, s[{sEps}:{sEps + 1}] op_sel_hi:[1,0]", 4, 2)
    else:
        each(lambda i: f"v_add_f32 v{tb + i}, s{sEps}, v{tb + i}")
    return o + cvt2(dst, tb)


def lin_quad(A, dst, tb, pk=False):
    o = []
    if pk:
        for i in (0, 2): o += I(f"v_pk_mul_f32 {pr(tb + i)}, {pr(A + i)}, {pr(vRs1)} op_sel_hi:[1,0]")
    else:
        for i in range(4): o += I(f"v_mul_f32 v{tb + i}, v{A + i}, v{vRs1}")
    return o + cvt2(dst, tb)


def gelu_quads(jobs, lo, hi, pk):
    o = []
    for n in range(lo, hi):
        A, name, toks = jobs[n // 4]
        gq, h = n % 4, (n % 4) // 2
        if gq == 0 or n == lo:
            pass
        o += gelu_quad(A + 4 * gq, A + 8 * h + 2 * (gq & 1), ET + 4 * (gq & 1), pk)
        if gq & 1:
            x = ins(f"buffer_store_dwordx4 v[{A + 8 * h}:{A + 8 * h + 3}], v{vHst}, {srd(SWS)}, s{sH4 if name == 'H4' else sHst} offen offset:{512 * h + 1024 * (HUNIT[name] % 4)} sc1")
            o.append(x); toks.append(x)
    return o


def kv_setup():
    o = []
    a = lambda *t: o.extend(I(*t))
    t0, t1, t2 = T0, T1, T2
    a(f"v_and_b32 v{t0}, 31, v{vL}", f"s_lshl_b32 s{sT0}, s{sW}, 5", f"v_add_u32 v{t0}, s{sT0}, v{t0}", f"v_mul_u32_u24 v{t0}, {KVT_LD}, v{t0}",
      f"v_add_u32 v{t0}, {KVT}, v{t0}", f"v_add_u32 v{vOnes}, 320, v{t0}",
      f"v_lshrrev_b32 v{t1}, 5, v{vL}", f"v_lshl_add_u32 v{vKf}, v{t1}, 3, v{t0}")
    a(f"v_bfe_u32 v{t0}, v{vL}, 2, 2", f"v_lshl_add_u32 v{t0}, v{t1}, 3, v{t0}", f"v_mul_u32_u24 v{t0}, {KVT_LD}, v{t0}", f"v_add_u32 v{t0}, {KVT}, v{t0}",
      f"v_bfe_u32 v{t1}, v{vL}, 4, 1", f"v_and_b32 v{t2}, 3, v{vL}", f"v_lshl_add_u32 v{t1}, v{t1}, 2, v{t2}",
      f"s_mul_i32 s{sT0}, s{sW}, 40", f"v_lshl_add_u32 v{vKB}, v{t1}, 3, v{t0}", f"v_add_u32 v{vKB}, s{sT0}, v{vKB}",
      f"v_add_u32 v{vKA}, 160, v{vKB}", f"v_add_u32 v{t0}, 320, v{t0}", f"v_cmp_eq_u32 vcc, 5, v{t1}", f"v_cndmask_b32 v{vKA}, v{vKA}, v{t0}, vcc")
    a(f"v_and_b32 v{t0}, 31, v{vL}", f"v_cmp_gt_u32 vcc, 24, v{t0}", f"v_lshlrev_b32 v{t0}, 3, v{t0}", f"v_and_b32 v{t1}, 192, v{vHiM}", f"v_add_u32 v{t0}, v{t0}, v{t1}",
      f"s_lshl_b32 s{sT0}, s{sU}, 2", f"s_add_u32 s{sT0}, s{sT0}, s{sW}", f"s_lshl_b32 s{sT0}, s{sT0}, 4", f"s_add_u32 s{sT0}, s{sT0}, s{sR}", f"s_mul_i32 s{sT0}, s{sT0}, 1280",
      f"s_add_u32 s{sT0}, s{sT0}, {KVP}", f"v_add_u32 v{t0}, s{sT0}, v{t0}", f"v_mov_b32 v{vAt}, {OOB}", f"v_cndmask_b32 v{vAt}, v{vAt}, v{t0}, vcc")
    return o


def kv_epilogue(aset, nshadow):
    blk = I(f"v_mov_b32 v{T2}, 0x3f803f80", f"v_mov_b32 v{T3}, 0x3f803f80")
    ones = ins(f"ds_write_b64 v{vOnes}, v[{T2}:{T3}]")
    blk.append(ones)
    wr, parts, n = [ones], [blk, []], 0
    for t, kind, cb in [(0, "k", 0), (1, "k", 64), (2, "m", 128), (3, "v", 160), (4, "v", 224)]:
        A = acc(aset[t])
        for g in range(4):
            isk = kind == "k" or (kind == "m" and g < 2)
            pk = n >= nshadow
            off = cb + 16 * g if kind != "m" else cb + (16 * g if g < 2 else 160 + 16 * (g - 2))
            x = ins(f"ds_write_b64 v{vKf}, v[{A + 4 * g}:{A + 4 * g + 1}] offset:{off}")
            parts[pk] += (phi_quad if isk else lin_quad)(A + 4 * g, A + 4 * g, ET + 4 * (g & 1), pk) + [x]
            wr.append(x)
            n += 1
    return parts[0], parts[1], wr


def kv_product(wr):
    blk = [ins("s_barrier", after=wr)]
    KA, FR = acc(1), acc(2)
    rd = []
    for j in range(8):
        f = FR + 8 * (j % 4)
        rd.append(I(f"ds_read_b64_tr_b16 v[{f}:{f + 1}], v{vKA} offset:{16 * j * KVT_LD}", f"ds_read_b64_tr_b16 v[{f + 2}:{f + 3}], v{vKA} offset:{(16 * j + 4) * KVT_LD}",
                    f"ds_read_b64_tr_b16 v[{f + 4}:{f + 5}], v{vKB} offset:{16 * j * KVT_LD}", f"ds_read_b64_tr_b16 v[{f + 6}:{f + 7}], v{vKB} offset:{(16 * j + 4) * KVT_LD}"))
    blk += rd[0] + rd[1] + rd[2]
    for j in range(8):
        f = FR + 8 * (j % 4)
        c = "0" if j == 0 else f"v[{KA}:{KA + 15}]"
        blk += I(f"v_mfma_f32_32x32x16_bf16 v[{KA}:{KA + 15}], v[{f + 4}:{f + 7}], v[{f}:{f + 3}], {c}")
        if j + 3 < 8:
            blk += rd[j + 3]
    at = []
    for q in range(3):
        at.append(ins(f"buffer_store_dwordx2 v[{KA + 4 * q}:{KA + 4 * q + 1}], v{vAt}, {srd(SWS)}, 0 offen offset:{384 * q} sc1"))
        blk += cvt2(KA + 4 * q, KA + 4 * q) + at[-1:]
    return blk, at


PQ = 128
OA = [112, 148, 164]


def o_setup():
    o = []
    a = lambda *t: o.extend(I(*t))
    t0, t1, t2, t3 = T0, T1, T2, T3
    a(f"s_sub_u32 s{sT2}, s{sG}, 1")
    o += flag_addr_col(vColK, sT2, t2, t3)
    a(f"s_lshl_b32 s{sK1}, s{sU}, 2", f"s_add_u32 s{sK1}, s{sK1}, s{sW}", f"s_mul_i32 s{sK1}, s{sK1}, 20480", f"s_add_u32 s{sK1}, s{sK1}, {KVP}",
      f"v_cmp_gt_u32 vcc, 60, v{vL}", f"v_lshlrev_b32 v{t0}, 4, v{vL}", f"v_mov_b32 v{vOl0}, {OOB}", f"v_cndmask_b32 v{vOl0}, v{vOl0}, v{t0}, vcc")
    for i, vw in enumerate((vOw0, vOw1)):
        a(f"v_lshl_add_u32 v{t0}, v{vL}, 1, {i}", f"v_mul_u32_u24 v{t2}, 2731, v{t0}", f"v_lshrrev_b32 v{t2}, 16, v{t2}",
          f"v_mul_u32_u24 v{t1}, 24, v{t2}", f"v_sub_u32 v{t1}, v{t0}, v{t1}",
          f"v_mul_u32_u24 v{t0}, 5, v{t2}", f"v_subrev_u32 v{t0}, 4, v{t0}", f"v_max_i32 v{t0}, v{t0}, v{t1}")
        a(f"s_mul_i32 s{sT0}, s{sW}, 5", f"v_add_u32 v{t2}, s{sT0}, v{t2}",
          f"v_lshrrev_b32 v{t3}, 2, v{t2}", f"v_lshlrev_b32 v{vw}, 5, v{t3}", f"v_and_b32 v{t3}, 1, v{t2}", f"v_lshl_add_u32 v{vw}, v{t3}, 4, v{vw}",
          f"v_bfe_u32 v{t3}, v{t2}, 1, 1", f"v_lshl_add_u32 v{vw}, v{t3}, 3, v{vw}", f"v_add_u32 v{vw}, {AM}, v{vw}")
        v2 = (vOw2, vOw3)[i]
        a(f"s_mul_i32 s{sT0}, s{sW}, 20", f"v_add_u32 v{t2}, s{sT0}, v{t1}",
          f"s_add_u32 s{sT0}, s{sW}, 80", f"v_mov_b32 v{t3}, s{sT0}", f"v_cmp_eq_u32 vcc, 20, v{t1}", f"v_cndmask_b32 v{t2}, v{t2}, v{t3}, vcc",
          f"v_mul_u32_u24 v{t2}, {AM_LD}, v{t2}", f"v_add_u32 v{vw}, v{vw}, v{t2}",
          f"v_add_u32 v{t2}, {4 * AM_LD}, v{vw}", f"v_cndmask_b32 v{v2}, v{vw}, v{t2}, vcc")
        a(f"v_cmp_lt_u32 vcc, 20, v{t0}", f"v_mov_b32 v{t2}, {SCR}", f"v_cndmask_b32 v{vw}, v{vw}, v{t2}, vcc", f"v_cndmask_b32 v{v2}, v{v2}, v{t2}, vcc")
    a(f"v_and_b32 v{t0}, 31, v{vL}", f"v_mul_u32_u24 v{t0}, {AM_LD}, v{t0}", f"v_and_b32 v{t1}, 16, v{vHiM}", f"v_add_u32 v{t0}, v{t0}, v{t1}", f"v_add_u32 v{vAM}, {AM}, v{t0}")
    return o


def am_zero():
    o = I(*[f"v_mov_b32 v{ET + k}, 0" for k in range(4)], f"v_lshlrev_b32 v{ET + 4}, 4, v0", f"v_add_u32 v{ET + 4}, {AM}, v{ET + 4}")
    tk = [ins(f"ds_write_b128 v{ET + 4}, v[{ET}:{ET + 3}] offset:{4096 * k}") for k in range(5)]
    return o + tk, tk


def phi_q(aset, pk, lo, hi):
    o = []
    for n in range(lo, hi):
        A = acc(aset[5 + n // 4]) + 4 * (n % 4)
        o += phi_quad(A, PQ + 2 * n, ET + 4 * (n & 1), pk)
    return o


KL, KS = 48, 112


def o_load():
    g = []
    for r in range(16):
        g.append((I(f"s_add_u32 s{sK1}, s{sK1}, 5120") if r and r % 4 == 0 else []) +
                 I(f"buffer_load_dwordx4 v[{KL + 4 * r}:{KL + 4 * r + 3}], v{vOl0}, {srd(SWS)}, s{sK1} offen offset:{1280 * (r % 4)} sc1"))
    return poll_check(vColK, L_KP, dst=vPoll2, who="kv") + stamp("kvseen"), g


def o_write():
    o = []
    for r in range(16):
        for k in range(8):
            o += I(f"v_dot2_f32_bf16 v{KS + k}, v{KL + 4 * r + k // 2}, s{sOne1 if k & 1 else sOne0}, {'0' if r == 0 else 'v%d' % (KS + k)}")
    o += cvt2(KS, KS) + cvt2(KS + 2, KS + 4)
    wr = [ins(f"ds_write_b64 v{vw}, v[{KS + 2 * i}:{KS + 2 * i + 1}]") for i, vw in ((0, vOw0), (0, vOw2), (1, vOw1), (1, vOw3))]
    return o + wr, wr


def o_steps():
    seq = [(T, k) for T in (2, 0, 1) for k in range(5)]
    fr = lambda n: r4([("v", ET), ("v", ET + 4), ("v", T0)][n % 3])
    rd = lambda n: I(f"ds_read_b128 {fr(n)}, v{vAM} offset:{seq[n][0] * 32 * AM_LD + 32 * seq[n][1]}")
    steps = []
    for n, (T, k) in enumerate(seq):
        pre = []
        if n == 0:
            pre = rd(0) + rd(1)
        c = "0" if k == 0 else f"v[{OA[T]}:{OA[T] + 15}]"
        m = ins(f"v_mfma_f32_32x32x16_bf16 v[{OA[T]}:{OA[T] + 15}], {fr(n)}, v[{PQ + 4 * k}:{PQ + 4 * k + 3}], {c}")
        steps.append(dict(pre=pre, mfma=m, post=rd(n + 2) if n + 2 < 15 else [], budget=0))
    return steps


def o_finish(toks):
    o = []
    a = lambda *t: o.extend(I(*t))
    rc = ET
    for h in range(4): a(f"v_add_f32 v{rc + h}, s{sEps}, v{OA[2] + 8 + h}")
    for h in range(4): a(f"v_rcp_f32 v{rc + h}, v{rc + h}")
    a(f"v_bfi_b32 v{rc + 4}, v{vHiM}, v{rc + 1}, v{rc}", f"v_bfi_b32 v{rc + 5}, v{vHiM}, v{rc + 3}, v{rc + 2}")
    for i in (4, 0, 1, 2, 3):
        A = OA[i >> 1] + 8 * (i & 1)
        for gq in range(2):
            e0 = 16 * i + 8 * gq
            rr = {16: rc + 4, 56: rc + 5}.get(e0, rc + e0 // 20)
            sel = "op_sel:[0,1] op_sel_hi:[1,1]" if rr & 1 else "op_sel_hi:[1,0]"
            for k in (0, 2): a(f"v_pk_mul_f32 {pr(A + 4 * gq + k)}, {pr(A + 4 * gq + k)}, {pr(rr & ~1)} {sel}")
            o += cvt2(A + 2 * gq, A + 4 * gq)
        x = ins(f"buffer_store_dwordx4 v[{A}:{A + 3}], v{vHst}, {srd(SWS)}, s{sOst} offen offset:{512 * i} sc1")
        o.append(x); toks.append(x)
    return o


def p2_setup(RA):
    o = []
    a = lambda *t: o.extend(I(*t))
    t0, t1, t2 = T0, T1, T2
    a(f"s_and_b32 s{sT0}, s2, 1", f"s_lshl_b32 s{sT0}, s{sT0}, 3", f"s_and_b32 s{sT1}, s2, 4", f"s_add_u32 s{sT0}, s{sT0}, s{sT1}",
      *([f"s_bfe_u32 s{sT1}, s2, 0x20003", f"s_add_u32 s{sR2}, s{sT0}, s{sT1}", f"s_lshr_b32 s{sT1}, s2, 5"] if OPT["map2"] == 0 else
        [f"s_lshr_b32 s{sT1}, s2, 6", f"s_bfe_u32 s{sT2}, s2, {0x10003 if OPT['map2'] == 1 else 0x10008}", f"s_xor_b32 s{sT1}, s{sT1}, s{sT2}", f"s_add_u32 s{sR2}, s{sT0}, s{sT1}",
         f"s_bfe_u32 s{sT1}, s2, 0x30003"]),
      f"s_mul_i32 s{sJ160}, s{sT1}, 160", f"s_mov_b32 s{sD2h}, s{sT1}",
      f"s_bfe_u32 s{sT2}, s2, 0x10001",
      f"s_lshl_b32 s{sE}, s{sT2}, 2", f"s_add_u32 s{sE}, s{sE}, s{sW}",
      f"s_and_b32 s{sT0}, s{sW}, 1", f"s_lshl_b32 s{sT0}, s{sT0}, 1", f"s_mul_i32 s{sBq}, s{sE}, 6", f"s_sub_u32 s{sBq}, s{sBq}, s{sT0}",
      f"s_sub_u32 s{sBk}, s{sBq}, s{sT0}", f"s_add_u32 s{sBq}, s{sBq}, 4",
      f"s_sub_u32 s{sB6}, s{sE}, s{sT2}", f"s_add_u32 s{sB6}, s{sB6}, 48", f"s_cmp_eq_u32 s{sW}, 3", f"s_cselect_b32 s{sL6}, {OOB}, 0",
      f"s_lshl_b32 s{sT0}, s{sR2}, 1", f"s_add_u32 s{sT1}, s{sT0}, s{sT2}",
      f"s_mul_i32 s{sHB}, s{sT1}, {4 * NB * 1024}", f"s_add_u32 s{sHB}, s{sHB}, {HB}",
      f"s_lshl_b32 s{sRow}, s{sT1}, 2", f"s_add_u32 s{sRow}, s{sRow}, s{sW}", f"s_mul_i32 s{sRow}, s{sRow}, {16 * LDX}", f"s_add_u32 s{sRow}, s{sRow}, s{sJ160}",
      f"s_xor_b32 s{sT1}, s{sT1}, 1", f"s_mul_i32 s{sHA}, s{sT1}, {4 * NB * 1024}", f"s_add_u32 s{sHA}, s{sHA}, {HB}")
    a(f"s_add_u32 s{sT0}, s{sBq}, 20", f"s_lshl_b32 s{sHq}, s{sT0}, 10", f"s_add_u32 s{sT0}, s{sBk}, 20", f"s_lshl_b32 s{sHk}, s{sT0}, 10",
      f"s_add_u32 s{sT0}, s{sB6}, 20", f"s_lshl_b32 s{sH6}, s{sT0}, 10", f"s_or_b32 s{sH6}, s{sH6}, s{sL6}", f"s_lshl_b32 s{sHo}, s{sW}, 10",
      f"s_mul_i32 s{sWq}, s{sBq}, {32 * LDX}", f"s_add_u32 s{sWq}, s{sWq}, s{sJ160}", f"s_mul_i32 s{sWk}, s{sBk}, {32 * LDX}", f"s_add_u32 s{sWk}, s{sWk}, s{sJ160}",
      f"s_mul_i32 s{sW6}, s{sB6}, {32 * LDX}", f"s_add_u32 s{sW6}, s{sW6}, s{sJ160}", f"s_or_b32 s{sW6}, s{sW6}, s{sL6}", f"s_mul_i32 s{sWo}, s{sW}, {32 * LDX}", f"s_add_u32 s{sWo}, s{sWo}, s{sJ160}")
    for i in range(5):
        a(f"v_add_u32 v{t0}, {64 * i}, v{vL}", f"v_mul_u32_u24 v{t1}, 6554, v{t0}", f"v_lshrrev_b32 v{t1}, 16, v{t1}",
          f"v_mul_u32_u24 v{t2}, 10, v{t1}", f"v_sub_u32 v{t2}, v{t0}, v{t2}", f"v_lshlrev_b32 v{t2}, 4, v{t2}",
          f"v_mul_u32_u24 v{vW2[i]}, {LDX}, v{t1}", f"v_add_u32 v{vW2[i]}, v{vW2[i]}, v{t2}")
        if i < 3:
            a(f"v_mul_u32_u24 v{vTr[i]}, 336, v{t1}", f"v_lshl_add_u32 v{vTr[i]}, v{t2}, 1, v{vTr[i]}",
              f"s_mul_i32 s{sT0}, s{sW}, 5632", f"s_add_u32 s{sT0}, s{sT0}, {FIN}", f"v_add_u32 v{vTr[i]}, s{sT0}, v{vTr[i]}")
        if i in (1, 2, 3):
            a(f"v_subrev_u32 v{vW2[i]}, {1024 * i}, v{vW2[i]}")
    a(f"v_lshlrev_b32 v{vL16}, 4, v{vL}")
    for t in range(4):
        a(f"s_add_u32 s{sT0}, s{sW}, {t}", f"s_and_b32 s{sT0}, s{sT0}, 3", f"s_mul_i32 s{sT0}, s{sT0}, {NB * 1024}", f"s_add_u32 s{sT0}, s{sT0}, s{sHB}",
          f"v_add_u32 v{vH['B'][t]}, s{sT0}, v{vL16}")
    a(f"v_lshrrev_b32 v{t0}, 5, v{vL}", f"v_lshlrev_b32 v{t0}, 4, v{t0}", f"v_bfe_u32 v{t1}, v{vL}, 4, 1", f"v_lshl_add_u32 v{t0}, v{t1}, 2, v{t0}",
      f"v_bfe_u32 v{t1}, v{vL}, 2, 2", f"v_add_u32 v{t0}, v{t0}, v{t1}", f"v_mul_u32_u24 v{t0}, 160, v{t0}", f"v_and_b32 v{t1}, 3, v{vL}",
      f"v_lshl_add_u32 v{t0}, v{t1}, 3, v{t0}", f"v_add_u32 v{vT2[0]}, s{sW5}, v{t0}",
      f"v_add_u32 v{vT2[1]}, 0x10000, v{vT2[0]}", f"v_add_u32 v{vT2[2]}, 0x20000, v{vT2[0]}")
    o += flag_addr_row(vRow2, sR2, t0, t1)
    a(f"v_bfe_u32 v{vIsQ}, v{vL}, 2, 1")
    a(f"s_lshl_b32 s{sT0}, s{sR2}, 3", f"s_add_u32 s{sT0}, s{sT0}, s{sD2h}", f"s_mul_i32 s{sT0}, s{sT0}, {NB * 1024}", f"s_add_u32 s{sT0}, s{sT0}, {HB}",
      f"v_and_b32 v{t0}, 31, v{vL}", f"v_lshlrev_b32 v{t0}, 7, v{t0}", f"v_add_u32 v{t2}, s{sT0}, v{t0}",
      f"v_cmp_gt_u32 vcc, 32, v{vL}", f"v_mov_b32 v{t1}, s{sH6}", f"v_mov_b32 v{vTch[0]}, s{sHq}", f"v_cndmask_b32 v{vTch[0]}, v{t1}, v{vTch[0]}, vcc",
      f"v_cmp_gt_u32 vcc, 40, v{vL}", f"v_mov_b32 v{t1}, {OOB}", f"v_cndmask_b32 v{vTch[0]}, v{t1}, v{vTch[0]}, vcc", f"v_add_u32 v{vTch[0]}, v{vTch[0]}, v{t2}",
      f"v_add_u32 v{t2}, s{sHk}, v{t2}", f"v_cmp_gt_u32 vcc, 16, v{vL}", f"v_cndmask_b32 v{vTch[1]}, v{t1}, v{t2}, vcc",
      f"s_mul_i32 s{sT0}, s{sW}, {NB * 1024}", f"s_add_u32 s{sT0}, s{sT0}, s{sHB}", f"s_lshl_b32 s{sT1}, s{sJ160}, 4", f"s_add_u32 s{sT0}, s{sT0}, s{sT1}",
      f"v_lshlrev_b32 v{t0}, 7, v{vL}", f"v_add_u32 v{t0}, s{sT0}, v{t0}", f"v_cmp_gt_u32 vcc, 20, v{vL}", f"v_cndmask_b32 v{vTch[2]}, v{t1}, v{t0}, vcc")
    a(f"v_add_u32 v{vRW[0]}, s{sW5}, v{vL16}", f"v_add_u32 v{vRW[1]}, 0x10000, v{vRW[0]}", f"v_add_u32 v{vRW[2]}, 0x20000, v{vRW[0]}")
    for t in range(1, 4):
        a(f"s_sub_u32 s{sT0}, s{sW}, {t}", f"s_and_b32 s{sT0}, s{sT0}, 3", f"s_mul_i32 s{sT0}, s{sT0}, 5120", f"s_add_u32 s{sT0}, s{sT0}, {RA[t - 1]}",
          f"v_add_u32 v{vRR[t - 1]}, s{sT0}, v{vL16}")
    a(f"s_xor_b32 s{sT0}, s2, 2", f"s_lshl_b32 s{sT1}, s{sT0}, 7", f"s_lshl_b32 s{sT2}, s{sW}, 2", f"s_add_u32 s{sT1}, s{sT1}, s{sT2}", f"v_mov_b32 v{vPar}, s{sT1}")
    a(f"s_lshl_b32 s{sXc}, s2, 2", f"s_add_u32 s{sXc}, s{sXc}, s{sW}", f"s_mul_i32 s{sXc}, s{sXc}, 3072", f"s_add_u32 s{sXc}, s{sXc}, {XCH}")
    a(f"v_and_b32 v{vFo2}, {OOB}, v{vHiM}", f"v_or_b32 v{vFo2}, v{vFo2}, v{vW2[2]}")
    a(f"v_lshrrev_b32 v{t0}, 4, v{vL}", f"v_lshlrev_b32 v{t0}, 3, v{t0}", f"v_add_u32 v{vFo[0]}, s{sJ160}, v{t0}")
    a(f"v_and_b32 v{t0}, 15, v{vL}", f"v_mul_u32_u24 v{t0}, 336, v{t0}", f"v_lshrrev_b32 v{t1}, 4, v{vL}", f"v_lshl_add_u32 v{t0}, v{t1}, 4, v{t0}",
      f"s_mul_i32 s{sT0}, s{sW}, 5632", f"s_add_u32 s{sT0}, s{sT0}, {FIN}", f"v_add_u32 v{vTw}, s{sT0}, v{t0}")
    return o


FIN = 141312


def tw_setup():
    return I(f"s_lshl_b32 s{sT0}, s2, 2", f"s_add_u32 s{sT0}, s{sT0}, s{sW}", f"s_mul_i32 s{sTa}, s{sT0}, {17 * 128}", f"s_mul_i32 s{sTb}, s{sT0}, {7 * 128}",
             f"v_lshlrev_b32 v{vTW}, 7, v{vL}")


vT1 = [176, 177, 178]


def l2_setup(kv):
    o = []
    a = lambda *t: o.extend(I(*t))
    t0 = T0
    a(f"s_lshr_b32 s{sT0}, s2, 6", f"s_lshl_b32 s{sT0}, s{sT0}, 5", f"s_lshl_b32 s{sT1}, s{sR}, 7", f"s_add_u32 s{sT0}, s{sT0}, s{sT1}",
      f"v_add_u32 v{t0}, s{sT0}, v{vL}", f"v_mul_u32_u24 v{vT1[0]}, {LDX}, v{t0}", f"s_lshl_b32 s{sT0}, s{sW}, 7", f"v_add_u32 v{vT1[0]}, s{sT0}, v{vT1[0]}")
    sh = 2 if kv else 1
    a(f"s_and_b32 s{sT0}, s{sR}, 7", f"s_lshl_b32 s{sT0}, s{sT0}, 3", f"s_lshl_b32 s{sT1}, s{sW}, 6", f"s_add_u32 s{sT0}, s{sT0}, s{sT1}",
      f"v_lshrrev_b32 v{t0}, {sh}, v{vL}", f"v_add_u32 v{t0}, s{sT0}, v{t0}", f"v_mul_u32_u24 v{vT1[1]}, {LDQ if kv else LD1}, v{t0}",
      f"v_and_b32 v{t0}, 1, v{vL}", f"v_lshl_add_u32 v{vT1[1]}, v{t0}, 7, v{vT1[1]}")
    if kv:
        a(f"v_bfe_u32 v{t0}, v{vL}, 1, 1", f"v_mul_u32_u24 v{t0}, 1280, v{t0}", f"v_add_u32 v{vT1[1]}, v{vT1[1]}, v{t0}")
    a(f"v_add_u32 v{vT1[1]}, s{sKq if kv else sU64}, v{vT1[1]}")
    a(f"s_and_b32 s{sT0}, s{sR}, 7", f"s_mul_i32 s{sT0}, s{sT0}, 80", f"s_mul_i32 s{sT1}, s{sW}, 20", f"s_add_u32 s{sT0}, s{sT0}, s{sT1}")
    if kv:
        a(f"v_add_u32 v{t0}, s{sT0}, v{vL}", f"v_mul_u32_u24 v{vT1[2]}, {LD1}, v{t0}", f"v_add_u32 v{vT1[2]}, s{sU64}, v{vT1[2]}")
    else:
        a(f"v_lshrrev_b32 v{t0}, 1, v{vL}", f"v_add_u32 v{t0}, s{sT0}, v{t0}", f"v_mul_u32_u24 v{vT1[2]}, {LDQ}, v{t0}",
          f"v_and_b32 v{t0}, 1, v{vL}", f"v_lshl_add_u32 v{vT1[2]}, v{t0}, 7, v{vT1[2]}", f"v_add_u32 v{vT1[2]}, s{sKq}, v{vT1[2]}")
    return o


def masked(n, *body):
    lo, hi = ((1 << n) - 1) & 0xffffffff, ((1 << n) - 1) >> 32
    pre = [f"s_mov_b32 exec_hi, {hi}"] + ([f"s_mov_b32 exec_lo, {lo}"] if n < 32 else [])
    return [Bundle(I(*pre, *body, "s_mov_b64 exec, -1"))]


def l2_touch(kv, base):
    k = OPT["l2"]
    g = []
    if "x" in k:
        g.append(masked(32, f"buffer_load_dword v{vTd}, v{vT1[0]}, {srd(SX)}, 0 offen offset:{128 * base}"))
    if "w" in k:
        g.append(masked(32 if kv else 16, f"s_mov_b32 s{sCnt}, {64 * base * (LDQ if kv else LD1)}", f"buffer_load_dword v{vTd}, v{vT1[1]}, {srd(SQKV if kv else SW1)}, s{sCnt} offen"))
    return g


def l2_late(kv):
    return [masked(20 if kv else 40, f"buffer_load_dword v{vTd}, v{vT1[2]}, {srd(SW1 if kv else SQKV)}, 0 offen")] if "l" in OPT["l2"] else []


def mall_touch():
    if not OPT["touch_w"]:
        return []
    return [[Bundle(I(f"s_mov_b64 exec, {(1 << n) - 1}", f"buffer_load_dword v{vTd}, v{vTW}, {srd(sr)}, s{so} offen", "s_mov_b64 exec, -1"))]
            for sr, so, n in ((SW2, sTa, 17), (SWO, sTb, 7))]


def tlb_warm(shift):
    o = I(f"v_lshlrev_b32 v178, {shift}, v{vL}")
    for sr in (SWS, SOUT, SW2, SWO):
        o += I(f"buffer_load_dword v{vTd}, v178, {srd(sr)}, 0 offen")
    return [Bundle(o)]


def sprinkle(valu, groups, lo=0.0, hi=1.0):
    valu, out, k = bundled(valu), [], 0
    for i, x in enumerate(valu):
        while k < len(groups) and i >= len(valu) * (lo + (hi - lo) * k / len(groups)):
            out += groups[k]
            k += 1
        out.append(x)
    return out + [y for g in groups[k:] for y in g]


def b2_load():
    return [I(f"buffer_load_dwordx2 v[{accB(0, f)[1] + 2}:{accB(0, f)[1] + 3}], v{vFo[0]}, {srd(SB2)}, 0 offen offset:{32 * f}") for f in range(5)]


def b2_unpack():
    o = []
    for f in range(5):
        d = accB(0, f)[1]
        o += I(f"v_lshlrev_b32 v{d}, 16, v{d + 2}", f"v_and_b32 v{d + 1}, 0xffff0000, v{d + 2}", f"v_lshlrev_b32 v{d + 2}, 16, v{d + 3}", f"v_and_b32 v{d + 3}, 0xffff0000, v{d + 3}")
    return o


def ha_setup():
    o = I(f"s_sub_u32 s{sT0}, s{sHA}, s{sHB}")
    return [Bundle(o + I(*[f"v_add_u32 v{vH['A'][t]}, s{sT0}, v{vH['B'][t]}" for t in range(4)]))]


class Program:
    def __init__(s, kv):
        s.kv = kv
        if kv:
            s.tiles, s.T = ["K0", "K1", "MX", "V0", "V1", "Ha", "Hb"], 5
            s.aset = {t: t for t in range(7)}
        else:
            s.tiles, s.T = ["H0", "H1", "H2", "H3", "H4", "Q0", "Q1", "QM"], 4
            s.aset = {t: t for t in range(8)}
        s.spine, s.head, s.sides = [], [], []

    def at(s, idx):
        return s.head if idx < 0 else s.spine[idx]["pre"]

    def pin(s, idx, g):
        st = s.spine[max(idx, 0)]
        if st.get("pinned"):
            st["post"].extend(g)
        else:
            st["pre2"] = g[:-1]
            st["post"].append(g[-1])
        st["pinned"] = True
        st["budget"] -= len(g)

    def spread(s, gs, lo, hi):
        last = lo
        for i, g in enumerate(gs):
            last = lo + (i * max(hi - lo, 1)) // len(gs)
            s.pin(last, g)
        return last

    def w2_dma(s, kind, i, z):
        if kind == "E":
            base, k0, sr = (sWq, i, SW2) if i < 4 else (sW6, 0, SW2) if i == 4 else (sWk, i - 5, SW2)
        else:
            base, k0, sr = sWo, 4 * i, SWO
        x, so = [], base
        if k0:
            x, so = I(f"s_add_u32 s{sD2w}, s{base}, {k0 * 32 * LDX}"), sD2w
        after = s.zrd.get(z, [])
        gs = []
        for k in range(5):
            d = ins(f"buffer_load_dwordx4 v{vW2[k]}, {srd(sr)}, s{so} offen offset:{1024 * (k % 4)} lds", after=after if k == 0 else ())
            gs.append((x if k == 0 else []) + I(f"s_add_u32 m0, s{sW5}, {z + (4096 if k == 4 else 0)}") + [d])
        s.w2tok[(kind, i)] = [g[-1] for g in gs]
        s.w2z[(kind, i)] = z
        if OPT.get("lat") == f"{kind}{i}":
            x = stamp("lat0") + I("s_waitcnt vmcnt(0)", "s_nop 15", "s_nop 15") + stamp("lat1") + [y for g in gs for y in g] + I("s_waitcnt vmcnt(0)") + stamp("lat2") + I("s_nop 15", "s_nop 15", "s_nop 15", "s_nop 15")
            return [[Bundle(x)]]
        return gs

    def w2_reads(s, kind, i):
        x = []
        z = s.w2z[(kind, i)]
        for f in range(5):
            k, r = wfrag(kind, i, f)
            for h in range(2):
                ad = z + 32 * f + 1280 * h
                x.append(ins(f"ds_read_b64_tr_b16 {k}[{r + 2 * h}:{r + 2 * h + 1}], v{vT2[ad >> 16]} offset:{ad & 0xffff}", after=s.w2tok[(kind, i)]))
        s.zrd[z] = x
        return x

    def h_load(s, n, blk):
        kind, i = blk[0], int(blk[1])
        x = []
        if kind == "O":
            so, imm = sHo, 0
            if i:
                x = I(f"s_add_u32 s{sHo}, s{sHo}, 4096")
        else:
            so, imm = (sHq, 1024 * i) if i < 4 else (sH6, 0) if i == 4 else (sHk, 1024 * (i - 5))
        v = vH["A" if kind == "A" else "B"]
        return [(x if t == 1 else []) + I(f"buffer_load_dwordx4 a[{aH(n, t)}:{aH(n, t) + 3}], v{v[t]}, {srd(SWS)}, s{so} offen offset:{imm} sc1") for t in (1, 2, 3, 0)]

    def build(s, xs):
        kv, T, tiles = s.kv, s.T, s.tiles
        o = []
        a = lambda *t: o.extend(I(*t))
        if kv:
            a(f"s_lshl_b32 s{sT0}, s{sP}, 8", f"s_sub_u32 s{sU64}, s{sU64}, s{sT0}", f"s_add_u32 s{sKq}, s{sKq}, 1280", f"s_mov_b32 s{sLast}, 0", f"s_mov_b32 s{sU4}, 0")
            o += wk_setup(True)
        else:
            a(f"s_lshl_b32 s{sT0}, s{sP}, 7", f"s_sub_u32 s{sU64}, s{sU64}, s{sT0}", f"s_add_u32 s{sU64}, s{sU64}, 256")
            o += wp_setup()
        dma = lambda pre, m0, v, sr, imm: pre + I(f"s_add_u32 m0, {m0}", f"buffer_load_dwordx4 v{v}, {srd(sr)}, s{sDw} offen offset:{imm} lds")
        so = lambda base, off, last=False: I(f"s_add_u32 s{sDw}, s{base}, {off}") + (I(f"s_or_b32 s{sDw}, s{sDw}, s{sLast}") if last else [])
        two = lambda regs, ad: (regs[0], ad) if ad < 0x8000 else (regs[1], ad - 0x8000)

        def pair_dma(k, bases):
            return [dma(so(sU64, k * 64 * LD1) if (p, i) == (0, 0) else [], f"s{sW2k}, {b - 128 * p}", vWp[i], SW1, 128 * p + 1024 * i) for p, b in enumerate(bases) for i in range(2)]

        pair_step = lambda t, k, j, b, shift: dict(t=t, k=k, j=j, v=vTP[(t - (5 if kv else 0)) & 1], o1=b + 2048 * j - shift, d=512)
        stages = []
        for n in range(10):
            if kv:
                sl = (n % 4) * SLOT
                w = [dma(so(sKw, n * 64 * LDQ) if i == 0 else [], f"s{sW5}, {sl + 1024 * i}", vWk[i], SQKV, 0) for i in range(5)]
                st = []
                for t, (regs, col) in enumerate(((vTK, 0), (vTK, 64), (vTM, 0), (vTK, 2560), (vTK, 2624))):
                    for j in range(4):
                        v, off = two(regs, sl + 5120 * j + col)
                        st.append(dict(t=t, k=n, j=j, v=v, o1=off, d=640))
            else:
                sl = (n % 4) * 16384
                w = pair_dma(n, [sl, sl + 8192])
                st = [pair_step(t, n, j, sl + 8192 * (t >> 1), 0) for t in range(4) for j in range(4)]
            stages.append(dict(w=(dma_x(n) if n >= len(xs) else []) + w, steps=st, issue=n - 2, xtok=[g[-1] for g in xs[n]] if n < len(xs) else []))
        stages[9]["steps"] += [dict(t=t, extra=True) for t in range(T)]
        if kv:
            for m in range(10):
                b = RING2 + 8192 * m if m < 5 else 8192 * (m - 5)
                st = [pair_step(t, m, j, b, 0x8000 if m < 5 else 0) for t in (5, 6) for j in range(4)]
                for x in st:
                    x["v"] += 0 if m < 5 else 2
                stages.append(dict(w=pair_dma(m, [b]), steps=st, issue=8 if m < 2 else 9 if m < 5 else None))
            stages[-1]["steps"].insert(4, dict(t=5, extra=True))
            stages[-1]["steps"].append(dict(t=6, extra=True))
        else:
            for gq in range(5):
                w, st = [], []
                for m in (2 * gq, 2 * gq + 1):
                    w.append(dma(so(sU4, m * 64 * LD1, True), f"s{sWL}, {0x8000 + 4096 * m}", vW1, SW1, 0))
                    st += [dict(t=4, k=m, j=j, v=vTR, o1=4096 * m + 1024 * j, d=256) for j in range(4)]
                stages.append(dict(w=w, steps=st, issue=8 if gq < 2 else 9))
            stages[-1]["steps"].append(dict(t=4, extra=True))
            for qs in range(5):
                b = (qs % 4) * SLOT
                w = [dma(so(sKw, qs * 128 * LDQ) if i == 0 else [], f"s{sW5}, {b + (4096 if i == 4 else 0)}", vWk[i], SQKV, 1024 * (i % 4)) for i in range(5)]
                st = []
                for kk in range(2):
                    for t, regs, col in ((5, vTK, 0), (6, vTK, 64), (7, vTM, 0)):
                        for j in range(4):
                            v, off = two(regs, b + 2560 * (4 * kk + j) + col)
                            st.append(dict(t=t, k=2 * qs + kk, j=j, v=v, o1=off, d=640))
                        if qs == 4 and kk == 1:
                            st.append(dict(t=t, extra=True))
                stages.append(dict(w=w, steps=st, issue=(11, 12, 15, 16, 17)[qs]))
        w0 = [x for g in stages[0]["w"] for x in g]
        if not OPT["s0first"]:
            o += stamp("prew0") + w0 + stamp("w0")
        if kv:
            o += nonce_publish()
        a(f"s_lshl_b32 s{sWL}, s{sW}, 10")
        if not kv:
            a(f"s_lshr_b32 s{sT0}, s{sU}, 2", f"s_sub_u32 s{sT0}, s{sU}, s{sT0}", f"s_add_u32 s{sT0}, s{sT0}, 48", f"s_min_u32 s{sT0}, s{sT0}, 53", f"s_lshl_b32 s{sU4}, s{sT0}, 6",
              f"s_and_b32 s{sT0}, s{sU}, 3", f"s_cmp_eq_u32 s{sT0}, 3", f"s_cselect_b32 s{sLast}, {OOB}, 0")
        o += s0_addr(tiles)
        X = OPT["nos0"] or ()
        o += stamp("pres0")
        s0late = s0_mem() if OPT["s0late"] else []
        for g in ([] if OPT["s0late"] else s0_mem()): o += g
        if OPT["s0first"]:
            o += w0
        o += x_read_setup() + (tk_setup(True) if kv else tp_setup(0))
        if OPT["wsoff"]:
            a(f"s_add_u32 s{P_WS}, s{P_WS}, {OPT['wsoff'] << 20}", f"s_addc_u32 s{P_WS + 1}, s{P_WS + 1}, 0")
        o += make_srd(SWS, P_WS, WS_SIZE) + I(f"s_mov_b32 s{sOne0}, 0x3f80", f"s_mov_b32 s{sOne1}, 0x3f800000")
        first_mem = stages[1]["w"]
        if OPT["dma1_early"]:
            for g in first_mem: o += g
            first_mem = []
        s.prepos = len(o)
        o += stamp("issued")
        steps, first = [], {}
        for n, st in enumerate(stages):
            first[n] = len(steps)
            steps += st["steps"]
        n1 = len(steps)
        first[len(stages)] = n1
        end1 = first[10]
        s.spine = spine = [dict(pre=[], post=[], budget=OPT["b1p"] if q < end1 else OPT["b1"]) for q in range(n1)]
        reads, done, xfree = {}, {}, {}
        for q, st in enumerate(steps):
            fr = aW + 4 * (q % NRING)
            A = acc(s.aset[st["t"]])
            if st.get("extra"):
                reads[q] = I(f"ds_read_b128 a[{fr}:{fr + 3}], v{vEXr} offset:{512 * st['t']}")
                spine[q]["mfma"] = ins(f"v_mfma_f32_32x32x16_bf16 v[{A}:{A + 15}], a[{fr}:{fr + 3}], v[{vXE}:{vXE + 3}], v[{A}:{A + 15}]")
                done[tiles[st["t"]]] = q
            else:
                assert 0 <= st["o1"] and st["o1"] + st["d"] < 65536
                reads[q] = I(f"ds_read_b64_tr_b16 a[{fr}:{fr + 1}], v{st['v']} offset:{st['o1']}", f"ds_read_b64_tr_b16 a[{fr + 2}:{fr + 3}], v{st['v']} offset:{st['o1'] + st['d']}")
                xa = aX + 16 * st["k"] + 4 * st["j"]
                c = "0" if (st["k"] == 0 and st["j"] == 0) else f"v[{A}:{A + 15}]"
                spine[q]["mfma"] = ins(f"v_mfma_f32_32x32x16_bf16 v[{A}:{A + 15}], a[{fr}:{fr + 3}], a[{xa}:{xa + 3}], {c}")
                xfree[xa] = q
        seq = OPT["seq"].split()
        ngap = max(n for n, b in enumerate(seq) if b[0] == "A") + 1
        s.w2tok, s.w2z, s.zrd = {}, {}, {}
        p2first = {}
        s.gapbar = ins("s_barrier")
        if not kv:
            ow, owr = o_write()
            spine.append(dict(pre=[], post=[ins("s_barrier", after=owr)], mfma=None, budget=0))
            spine += o_steps()
            s.otk = []
            p2first["ofin"] = len(spine)
            spine.append(dict(pre=o_finish(s.otk) + stamp("ofin"), post=[ins("s_barrier")], mfma=None, budget=0))
        for n, blk in enumerate(seq):
            if n == ngap:
                p2first["gap"] = len(spine)
                spine.append(dict(pre=[], post=[s.gapbar], mfma=None, budget=0))
            p2first[n] = len(spine)
            kind, i = blk[0], int(blk[1])
            for t in (1, 2, 3, 0):
                for f in range(5):
                    d = ("v", accA(t, f)) if kind == "A" else accB(t, f)
                    zero = blk == "A0" or (blk == "B0" and t != 0)
                    assert seq.index("A0") == 0 and seq.index("B0") == min(k for k, b in enumerate(seq) if b[0] != "A")
                    m = ins(f"v_mfma_f32_16x16x32_bf16 {r4(d)}, {r4(wfrag('O' if kind == 'O' else 'E', i, f))}, a[{aH(n, t)}:{aH(n, t) + 3}], {'0' if zero else r4(d)}")
                    spine.append(dict(pre=[], post=[], mfma=m, budget=OPT["b2"]))
        nend = len(spine)
        p2first[len(seq)] = nend
        spine.append(dict(pre=[], post=[], mfma=None, budget=0))
        last_dma, bar = {}, {}
        for n in range(len(stages)):
            pos = first[n] - LOOK
            bar[n] = b = ins("s_barrier", after=[g[-1] for g in stages[n]["w"]] + stages[n].get("xtok", []))
            blk = [b] + (stamp(f"st{n}") if n in OPT["stages"] else [])
            if n < 10:
                for j in range(4):
                    xa = aX + 16 * n + 4 * j
                    blk += I(f"ds_read_b128 a[{xa}:{xa + 3}], v{vXR[j]} offset:{(n % 3) * 4096}")
            s.at(pos).extend(blk)
            gs = list(first_mem) + s0late if n == 0 else []
            gs += [g for st in stages[2:] if st["issue"] == n for g in st["w"]]
            for at, base in OPT["l2at"]:
                if n == at:
                    gs = l2_touch(kv, base) + gs
            if n == OPT["l2late"]:
                gs += l2_late(kv)
            if n == OPT["s0ld"]:
                gs += mall_touch()
            if gs:
                lo = max(pos + 1, 0)
                hi = first[n + 1] - LOOK
                last_dma[n] = s.spread(gs, lo, lo + int((hi - lo) * (1.0 if n < 10 else OPT["dspan"])))
        for q in range(n1):
            if q < LOOK:
                s.head.extend(reads[q])
            else:
                spine[q - LOOK]["post"][0:0] = reads[q]
            if q % 2 == 0 and q + 1 < n1:
                spine[q]["mfma"].after += reads[q + 1]
        S = OPT["s0k"] if kv else OPT["s0"]
        sides = s.sides
        s0m, s0st = s0_produce(kv)
        for q in range(first[S[0] + 1] - LOOK):
            spine[q]["budget"] += OPT["b0"] - OPT["b1p"]
        if "math" not in X:
            sides.append(side(s0m, start=OPT["s0start"] * T if S[0] == 0 else first[S[0]] - LOOK, end=last_dma[S[0]], name="s0math"))
        spine[last_dma[S[0]]]["post"] += I(f"buffer_load_dword v{vPoll2}, v{vPoll2}, {srd(SDBG)}, 0 offen sc1") + (s0st if "store" not in X else []) + stamp("s0b")
        later = (wp_setup() + tp_setup(0x8000) + I(f"v_subrev_u32 v{vTP[0] + 2}, 0x8000, v{vTP[0]}", f"v_subrev_u32 v{vTP[1] + 2}, 0x8000, v{vTP[1]}")) if kv else (w1_setup() + tr_setup(0x8000) + wk_setup(False) + tk_setup(False))
        s.RA, s.RB = ([Z1, Z2, Z0], [ZB, Z5, Z6]) if kv else ([Z2, Z5, ZA], [ZB, Z6, Z1])
        allset = bundled(late_setup() + tw_setup() + s0_consume_addr() + later + p2_setup(s.RA) + (kv_setup() if kv else o_setup()))
        npre = OPT["npre"][kv]
        o[s.prepos:s.prepos] = allset[:npre]
        n_l = len(bundled(late_setup() + tw_setup() + s0_consume_addr()))
        ls = side(allset[npre:max(n_l, npre)], start=0, end=last_dma[1], name="late")
        sides.append(ls)
        if "sig" not in X:
            spine[last_dma[S[1]]]["post"] += nonce_check(vPoll2) + signal(L_S0, s0st)
        p2s = side(allset[max(n_l, npre):], start=0, follow=ls, end=last_dma[7], name="p2setup")
        sides.append(p2s)
        if "poll" not in X:
            spine[last_dma[S[2]]]["post"] += [poll_issue(vRowF, vPoll), poll_issue(vColF, vPoll2)]
            spine[last_dma[S[3]]]["post"] += s0_consume_loads()
        assert S[4] > S[3]
        s.spread(b2_load(), last_dma[7] + 1, last_dma[7] + 6)
        cm, extok = s0_consume_math()
        s.b2 = b2_unpack() + ha_setup()
        exbar = end1 - T - LOOK - 1
        cms = side(cm, start=last_dma[S[4]] + 1, end=exbar - 1, follow=p2s, name="s0use")
        sides.append(cms)
        spine[exbar]["pre"].insert(0, ins("s_barrier", after=[extok]))
        spine[end1]["pre"] = stamp("pass1") + spine[end1]["pre"]
        spine[n1]["pre"] += stamp("mfma1")
        b2s = side(s.b2, start=exbar + 1, end=end1, follow=cms, name="b2")
        sides.append(b2s)
        flat = lambda gs: [x for g in gs for x in g]
        W = s.w2_dma
        gap = p2first["gap"]

        def RD(kind, i, lo, step=1):
            if kind == "E":
                assert lo > max(xfree[xa] for xa in range(20 * i, 20 * i + 20, 4)), (i, lo)
            for k, x in enumerate(s.w2_reads(kind, i)):
                spine[lo + k * step]["post"].append(x)
                spine[lo + k * step]["budget"] -= 1

        def cp(n, kl, ql):
            x = poll_check(vRow2, kl, ql) + stamp("cp" + seq[n])
            if OPT["touch_h"]:
                x += I(f"buffer_load_dword v{vTd}, v{vTch[dict(A0=0, A5=1, O0=2)[seq[n]]]}, {srd(SWS)}, 0 offen sc1")
            return x

        HL = lambda n: s.h_load(n, seq[n])
        if OPT["tlb"]:
            spine[first[OPT["tlb"][0]]]["post"] += tlb_warm(OPT["tlb"][1])
        k1 = len(stamp("pass1"))
        f = first
        if kv:
            epi0, epi, wr = kv_epilogue(s.aset, 0)
            prod, at = kv_product(wr)
            ha, ft = [], []
            rest = [g for m in range(15, 20) for g in stages[m]["w"]]
            spine[end1]["pre"][k1:k1] = [ins("s_barrier")] + sprinkle(epi0 + epi, rest + W("E", 0, Z0), 0, 0.9) + prod + stamp("kvdone")
            s.spread(W("E", 1, ZA) + W("E", 2, ZB), f[11], f[13] + 4)
            RD("E", 0, f[12] + 4)
            s.spread(W("E", 3, Z5) + W("E", 4, Z0), f[14], f[16])
            s.spread(W("E", 5, Z6), f[16], f[17] + 4)
            RD("E", 1, f[17]); RD("E", 2, n1 - 11)
            s.spread(W("E", 6, ZA), f[18] + 4, n1 - 2)
            jobs = [(acc(s.aset[5]), "Ha", ha), (acc(s.aset[6]), "Hb", ha)]
            one = lambda xs: [[x] for x in xs]
            if OPT["kvo"]:
                e1 = sprinkle(gelu_quads(jobs, 0, 8, True), one(s.w2_reads("E", 3) + s.w2_reads("E", 4) + s.w2_reads("E", 5))) + stamp("expo")
                x = s.w2_reads("E", 6)
                wo = W("O", 1, ZB) + W("O", 2, Z5) + W("O", 3, Z6) + W("O", 0, ZA)
                e1 += x + flat(wo[:OPT["sigpos"]]) + signal(L_HB, ha) + stamp("sigT") + flat(wo[OPT["sigpos"]:])
                e1 += [poll_issue(vRow2)] + cp(0, L_S0, L_HQ) + flat(HL(0) + HL(1) + HL(2) + HL(3))
            else:
                spine[n1 - 20]["post"].append(poll_issue(vRow2))
                e1 = sprinkle(gelu_quads(jobs, 0, 8, True), one(s.w2_reads("E", 3))) + stamp("expo")
                e1 += flat(W("O", 1, ZB)) + signal(L_HB, ha) + stamp("sigT") + cp(0, L_S0, L_HQ) + flat(HL(0) + HL(1) + HL(2) + HL(3))
                RD("E", 4, p2first[0], 2); RD("E", 5, p2first[2], 2); RD("E", 6, p2first[4], 2)
                s.spread(W("O", 2, Z5), p2first[1], p2first[3])
                s.spread(W("O", 3, Z6), p2first[3] + 1, p2first[5])
                s.spread(W("O", 0, ZA), p2first[5] + 1, p2first[7])
            s.sig = [(end1, L_KP, at, OPT["lagkp"])]
            zo4 = ZA
        else:
            tk = []
            jobs = [(acc(t), tiles[t], tk) for t in range(5)]
            nx = OPT["nx"]
            spine[end1]["pre"][k1:k1] = sprinkle(gelu_quads(jobs, 0, nx, True), W("E", 0, Z0) + W("E", 1, ZB), 0, 0.9) + stamp("x1")
            g3 = side(gelu_quads(jobs, nx, 16, False), start=end1, name="gelu3")
            g4 = side(gelu_quads(jobs, 16, 20, False), start=done["H4"] + 2, follow=g3, end=n1 - OPT["gend"], name="gelu4")
            sides += [g3, g4]
            s.spread(W("E", 2, ZA), f[13], f[15] - 5)
            RD("E", 0, f[16]); s.spread(W("E", 3, Z0), f[16] + 11, f[16] + 19)
            RD("E", 1, f[16] + 13); s.spread(W("E", 4, ZB), f[17] + 6, f[17] + 16)
            RD("E", 2, f[17] + 4)
            z, ztok = am_zero()
            bar[18].after += s.zrd[ZA]
            sides.append(side(z, start=f[18] - LOOK + 1, end=f[19] - LOOK - 1, follow=g4, name="amzero"))
            bar[19].after += ztok
            s.spread(W("E", 5, Z2), f[18], f[18] + 10)
            RD("E", 3, f[18] + 4)
            RD("E", 4, f[19] + 2)
            ko = n1 - OPT["hearly"]
            spine[ko - OPT["hpoll"]]["post"].append(poll_issue(vColK, vPoll2))
            kc, kl = o_load()
            spine[ko]["post"] += kc
            s.spread(kl, ko + 1, n1 - 1)
            spine[n1 - 1]["post"].append(poll_issue(vRow2))
            np0 = OPT["np0"]
            zo = [Z0, ZB, Z6, Z1]
            otb = OPT["otb"]
            wo = [W("O", i, zo[i]) for i in range(4)]
            e1 = sprinkle(phi_q(s.aset, True, 0, np0) + ow, W("E", 6, Z5) + (wo[0] if otb > 0 else []), 0.3, 1.0) + cp(0, L_S0, L_HQ)
            e1 += sprinkle(phi_q(s.aset, True, np0, 10), HL(0) + HL(1) + HL(2)) + stamp("gap")
            s.spread(HL(3) + flat(wo[1:min(otb, 3)]), n1 + 1, n1 + 16)
            if otb > 3:
                st = spine[p2first["ofin"]]
                st["pre"] = sprinkle(st["pre"], wo[3])
            RD("E", 5, p2first[0], 2); RD("E", 6, p2first[2], 2)
            for k, i in enumerate(range(otb, 4)):
                s.spread(wo[i], p2first[OPT["ost"] + 3 * k], p2first[OPT["ost"] + 3 * k + 3])
            zo4 = Z0
            s.sig = [(g4, L_HQ, tk, OPT["lag"]), (p2first["ofin"], L_O, s.otk, OPT["lag"])]
        spine[n1]["pre"] = [ins("s_barrier")] + stamp("tee") + e1 + spine[n1]["pre"]
        s.n1 = n1
        for n in range(HR, len(seq)):
            p = p2first[n - HR] + 4
            if seq[n] in ("A5", "O0"):
                spine[p2first[n - HR - OPT["pback"]] + 3]["post"].append(poll_issue(vRow2))
                spine[p]["pre"] += cp(n, L_HB, L_HQ if seq[n] == "A5" else L_O)
            elif n % 2 == 0 or OPT.get("allst"):
                spine[p]["pre"] += stamp("ld" + seq[n])
            for k, g in enumerate(HL(n)):
                s.pin(p + 5 * k, g)
        o0 = seq.index("O0")
        for i in range(5):
            RD("O", i, p2first[o0 + i - 1], 2)
            if i == 0:
                s.spread(W("O", 4, zo4), p2first[o0] + 1, p2first[o0 + 1])
        return o, seq, p2first, nend

    def finish(s, o, seq, p2first, nend):
        kv, spine, sides = s.kv, s.spine, s.sides
        a = lambda *t: o.extend(I(*t))
        aend = p2first["gap"]
        b0, rend = aend + 1 + OPT["gdel"], aend + 1 + OPT["ybar"]
        if OPT["gdel"]:
            spine[aend]["post"].remove(s.gapbar)
            spine[b0]["pre"].append(s.gapbar)
        RA, RB = s.RA, s.RB

        def red_write(get, R):
            x = []
            for t in (1, 2, 3):
                for f in range(5):
                    ad = R[t - 1] + 1024 * f
                    x.append(ins(f"ds_write_b128 v{vRW[ad >> 16]}, {r4(get(t, f))} offset:{ad & 0xffff}"))
            return x

        def red_read():
            x = []
            for t in (1, 2, 3):
                for f in range(5):
                    d = accA(t, f)
                    x += I(f"ds_read_b128 v[{d}:{d + 3}], v{vRR[t - 1]} offset:{1024 * f}")
            return x

        def red_add(own, pk):
            x = []
            for t in (1, 2, 3):
                for f in range(5):
                    for r in range(0, 4, 2 if pk else 1):
                        d, e = own(f) + r, accA(t, f) + r
                        x += I(f"v_pk_add_f32 {pr(d)}, {pr(d)}, {pr(e)}" if pk else f"v_add_f32 v{d}, v{d}, v{e}")
            return x

        wA = red_write(lambda t, f: ("v", accA(t, f)), RA)
        for q in list(range(aend - 15, aend)) + list(range(b0, rend)):
            spine[q]["budget"] += OPT["bred"]
        for k in range(3):
            sides.insert(k, side(wA[5 * k:5 * k + 5], start=aend - 12 + 5 * k, end=aend + OPT["gdel"] // 2, name=f"redAw{k}"))
        s.gapbar.after += wA
        xt = []
        xs = red_read() + red_add(lambda f: accA(0, f), False)
        P = accA(1, 0)
        for f in range(5):
            xs += cvt2(P + 2 * f, accA(0, f))
        for k, n in ((0, 4), (4, 4), (8, 4)):
            x = ins(f"buffer_store_dwordx{n} v[{P + k}:{P + k + n - 1}], v{vL16}, {srd(SWS)}, s{sXc} offen offset:{256 * k} sc1")
            xs.append(x); xt.append(x)
        xsd = side(xs, start=b0, end=rend, name="redA")
        sides.insert(3, xsd)
        s.sig.append((xsd, L_XCH, xt, OPT["lag"]))
        XR, PX = 152, 164
        fo = [(vW2[0], 0), (vW2[1], 1024), (vFo2, 2048)]
        s.spread([I(f"buffer_load_dwordx4 v[{XR + 4 * i}:{XR + 4 * i + 3}], v{fo[i][0]}, {srd(SX)}, s{sRow} offen offset:{fo[i][1]}") for i in range(3)], nend - 80, nend - 70)
        spine[nend - OPT["xch"] - 25]["post"].append(poll_issue(vPar))
        px = poll_check(vPar, L_XCH) + stamp("xch") + I(f"s_xor_b32 s{sT0}, s2, 2", f"s_sub_u32 s{sT0}, s{sT0}, s2", f"s_mul_i32 s{sT0}, s{sT0}, 12288", f"s_add_u32 s{sXc}, s{sXc}, s{sT0}")
        for k, n in ((0, 4), (4, 4), (8, 4)):
            px += I(f"buffer_load_dwordx{n} v[{PX + k}:{PX + k + n - 1}], v{vL16}, {srd(SWS)}, s{sXc} offen offset:{256 * k} sc1")
        spine[nend - OPT["xch"]]["post"] += px
        wB = red_write(accB, RB)
        for q in range(nend - 14, nend):
            spine[q]["budget"] += 0.6
        for k in range(3):
            sides.insert(k, side(wB[5 * k:5 * k + 5], start=nend - 12 + 5 * k, end=nend, name=f"redBw{k}"))
        sides.append(side(I(*[f"v_add_u32 v{vRR[t]}, {(RB[t] - RA[t]) & 0xffffffff}, v{vRR[t]}" for t in range(3)]), start=rend + 1, end=nend - 20, name="rr"))
        for st in spine:
            st["pre"].extend(st.pop("pre2", []))
        import copy
        dry = copy.deepcopy(sides)
        merge(spine, dry, 0)
        ends = {d["name"]: d.get("done", 0) if not d.get("late") else (d["end"] or nend) for d in dry}
        if OPT["verbose"]:
            print("KV" if kv else "Q", {d["name"]: (d["start"], ends[d["name"]], d.get("late", 0)) for d in dry}, "p2first", p2first)
        n1 = s.n1
        for sd, level, tk, lag in s.sig:
            idx, t = (sd if isinstance(sd, int) else ends[sd["name"]]), 0
            while t < lag and idx < nend - 1:
                t += 36 if idx < n1 else 18
                idx += 1
            if idx == n1:
                idx -= 1
            spine[idx]["post"] += signal(level, tk)
        o = drop_m0(o + s.head + merge(spine, sides, 0))
        XX = OPT["x"]
        if "nohst" in XX:
            o = [y for y in o if not (y.text.startswith("buffer_store_dwordx4") and f"v{vHst}," in y.text)]
        if "now2" in XX:
            o = [y for y in o if not (y.kind == "dma" and (srd(SW2) in y.text or srd(SWO) in y.text))]
        if "nochk" in XX:
            o = [y for y in o if not (isinstance(y.note, tuple) and y.note[0] == "chk" and max(y.note[1:3]) > 1)]
        if "nopoll" in XX:
            o = [y for y in o if not (y.text.startswith("buffer_load_dword v") and (f"v{vRow2}," in y.text or f"v{vPar}," in y.text))]
        if "noH" in XX:
            o = [y for y in o if not y.text.startswith("buffer_load_dwordx4 a[")]
        if "nosc1H" in XX:
            for y in o:
                if y.text.startswith("buffer_load_dwordx4 a["):
                    y.text = y.text.replace(" sc1", "")
        if "nononce" in XX:
            o = [y for y in o if srd(SDBG) not in y.text]
        if "nosig" in XX:
            o = [y for y in o if not (isinstance(y.note, tuple) and y.note[0] == "sig" and y.note[1] > 1)]
        if "noat" in XX:
            o = [y for y in o if not y.text.startswith("buffer_atomic")]
        if "nomf2" in XX:
            o = [y for y in o if "16x16x32" not in y.text]
        if "nomf1" in XX:
            o = [y for y in o if "32x32x16" not in y.text]
        if "novalu" in XX:
            o = [y for y in o if not (y.kind in ("valu", "trans") and y.text.split()[0] in ("v_pk_mul_f32", "v_pk_fma_f32", "v_exp_f32", "v_rcp_f32", "v_exp_f32_e64", "v_max_f32", "v_pk_add_f32", "v_fma_f32", "v_mul_f32", "v_dot2_f32_bf16", "v_add_f32"))]
        if "notr" in XX:
            o = [y for y in o if not y.text.startswith("ds_read_b64_tr")]
        if "nowdma" in XX:
            o = [y for y in o if not (y.kind == "dma" and (srd(SW1) in y.text or srd(SQKV) in y.text))]
        if "noxdma" in XX:
            o = [y for y in o if not (y.kind == "dma" and srd(SX) in y.text)]
        import re as _re
        for y in o:
            hot = (("hot1" in XX and y.kind == "dma" and any(srd(z) in y.text for z in (SX, SQKV, SW1))) or
                   ("hot2" in XX and y.kind == "dma" and any(srd(z) in y.text for z in (SW2, SWO))) or
                   ("hotH" in XX and y.text.startswith("buffer_load_dwordx4 a[")))
            if hot:
                y.text = _re.sub(r"\], s\d+ offen", "], 0 offen", y.text)
        if "notrans" in XX:
            o = [y for y in o if y.kind != "trans"]
        if OPT["stop"]:
            cut = [i for i, x in enumerate(o) if getattr(x, "kind", "") == "stamp" and x.text in (OPT["stop"], "rt_" + OPT["stop"])][0]
            o = o[:cut + 1] + I("s_waitcnt vmcnt(0) lgkmcnt(0)")
            return s.tail(o)
        o += stamp("mfma2")
        o.append(ins("s_barrier", after=wB))
        own = lambda f: accB(0, f)[1]
        o += red_read()
        for f in range(5):
            for r in range(4):
                a(f"v_dot2_f32_bf16 v{own(f) + r}, v{PX + 2 * f + r // 2}, s{sOne1 if r & 1 else sOne0}, v{own(f) + r}")
        o += red_add(own, True)
        for f in range(5):
            a(f"ds_write_b128 v{vTw}, v[{own(f)}:{own(f) + 3}] offset:{64 * f}")
        FO = 48

        def fin_store(i):
            x = I(*[f"v_cvt_pk_bf16_f32 v{FO + 8 * i + k}, v{FO + 8 * i + 2 * k}, v{FO + 8 * i + 2 * k + 1}" for k in range(4)])
            return x + I(f"buffer_store_dwordx4 v[{FO + 8 * i}:{FO + 8 * i + 3}], v{fo[i][0]}, {srd(SOUT)}, s{sRow} offen offset:{fo[i][1]} {OPT['outf']}")

        for i in range(3):
            for h in range(2):
                a(f"ds_read_b128 v[{FO + 8 * i + 4 * h}:{FO + 8 * i + 4 * h + 3}], v{vTr[i]} offset:{16 * h}")
        for i in range(3):
            for k in range(4):
                d = FO + 8 * i + 2 * k
                a(f"v_dot2_f32_bf16 v{d}, v{XR + 4 * i + k}, s{sOne0}, v{d}", f"v_dot2_f32_bf16 v{d + 1}, v{XR + 4 * i + k}, s{sOne1}, v{d + 1}")
            if i:
                o += fin_store(i - 1)
        o += I("s_nop 1") + fin_store(2)
        return s.tail(o)

    def tail(s, o):
        if OPT["prof"]:
            o += stamp("end") + stamp("rt1")
            last = Ins("x", "stamp"); last.note = "last"
            o.append(last)
            o += I(f"s_lshl_b32 s{sT0}, s2, 2", f"s_add_u32 s{sT0}, s{sT0}, s{sW}", f"s_lshl_b32 s{sT0}, s{sT0}, 8", f"s_add_u32 s{sT0}, s{sT0}, {TS}",
                   f"v_lshlrev_b32 v30, 2, v{vL}", f"buffer_store_dword v31, v30, {srd(SWS)}, s{sT0} offen")
        return o + I("s_endpgm")


def check_no_deadlock(progs):
    ev = [[x.note for x in p if isinstance(x.note, tuple)] for p in progs]
    pos, lvl = [0, 0], [0, 0]
    moved = True
    while moved:
        moved = False
        for k in (0, 1):
            while pos[k] < len(ev[k]):
                e = ev[k][pos[k]]
                if e[0] == "sig":
                    assert e[1] > lvl[k], (k, e, lvl)
                    lvl[k] = e[1]
                elif lvl[0] < e[1] or lvl[1] < e[2]:
                    break
                pos[k] += 1
                moved = True
    assert pos == [len(e) for e in ev], f"circular wait: KV stuck at {ev[0][pos[0]:pos[0] + 1]}, Q at {ev[1][pos[1]:pos[1] + 1]}"


def drop_m0(items):
    out, cur = [], None
    for x in items:
        for y in (x.items if isinstance(x, Bundle) else [x]):
            if y.kind == "vmem" and y.wr == {("v", vTd)}:
                y.wr = set()
            if ("m0", 0) in y.wr:
                if y.text == cur:
                    continue
                cur = y.text
            out.append(y)
    return out


def build():
    st = {}
    pro, xs = prologue()
    pro += I("s_bitcmp1_b32 s2, 6", "s_cbranch_scc1 L_q")
    progs = []
    for kv in (True, False):
        p = Program(kv)
        body = p.finish(*p.build(xs))
        full = pro + ([] if kv else I("L_q:")) + body
        if OPT["prof"]:
            full = resolve_stamps(full, ts_names, sTS, 31)
        progs.append(finalize(full, stats=st))
    a_kv, a_q = progs
    if not OPT["stop"] and not OPT["x"]:
        check_no_deadlock(progs)
    iq = [i for i, x in enumerate(a_q) if x.text == "L_q:"][0]
    assert [x.text for x in a_q[:iq]] == [x.text for x in a_kv[:iq]]
    body = a_kv + a_q[iq:] + I("L_end:", "s_endpgm")
    used = {x.text.split()[1] for x in body if x.kind == "branch"}
    for sp in slow_paths:
        if sp[0].text[:-1] in used:
            body += finalize(sp)
    txt = text_of(body)
    ref = open("parallel_sum__linear_attn_block__mixer_channel_mlp__prompt.s.ref").read().split("\n")
    hdr = [l for l in ref if l.startswith(";") and "@launch" not in l and not l.startswith("; Override") and not l.startswith("; grid=")]
    src = "\n".join(hdr) + f"""
; @launch grid=(256,1,1) block=(256,1,1) lds={LDS_SIZE}
.amdgcn_target "amdgcn-amd-amdhsa--gfx950"
.text
.globl {NAME}
.p2align 8
.type {NAME},@function
{NAME}:
{txt}
L_code_end:
.fill 65536 / 4, 4, 0xbf810000
.section .rodata,"a"
.p2align 6
.amdhsa_kernel {NAME}
  .amdhsa_next_free_vgpr 512
  .amdhsa_next_free_sgpr 102
  .amdhsa_accum_offset 256
  .amdhsa_group_segment_fixed_size 0
  .amdhsa_kernarg_size 88
  .amdhsa_user_sgpr_count 2
  .amdhsa_user_sgpr_kernarg_segment_ptr 1
  .amdhsa_system_sgpr_workgroup_id_x 1
.end_amdhsa_kernel
"""
    return src, st, len(a_kv), len(a_q)


if __name__ == "__main__":
    out = sys.argv[1]
    for kvp in sys.argv[2:]:
        k, v = kvp.split("=", 1)
        OPT[k] = eval(v) if v[0] in "0123456789TFN-([" else v
    src, st, n1, n2 = build()
    open(out, "w").write(src)
    if OPT["prof"]:
        open(out + ".ts", "w").write("\n".join(ts_names))
    print("instructions", n1, n2, st)
```

```python
import sys, os, struct
sys.path.insert(0, os.path.dirname(os.path.abspath(__file__)))
from asmlib import *

NAME = "parallel_sum__linear_attn_block__mixer_channel_mlp__prompt_kernel"
OPT = dict(prof=False, only=None, b1=3.0, b1p=4.5, touch_w=True, hbsig=10, hop=4, hopp=30, hopq=(3, 7), lagkp=700, nx=14, gend=70, hpoll=30, lback=4, ybar=54, twa=(2, 9), twb=((10, 18), (10, 18)), bred=0.7, xch=6, g01end=30, oload=36, gpoll=30, kvsig=4, hearly=24, ost=0, zpad=False, sw1=False, rot2=False, rotk=False, tb=0, mtq=False, csp=6, b2at=2, xpost=True, wsoff=0, ft=False, map2=1, s0late=False, npre=(100, 100), l2='', l2at=((1, 4), (4, 8)), l2late=6, otb=1, kvo=True, outf='', np0=3, tlb=None, seq="A0 A1 A2 A3 A4 B0 B1 A5 A6 B2 B3 B4 B5 B6 O0 O1 O2 O3 O4", plag=700, pback=2, touch_h=False, b0=40, lag=1000, nphi=7, b2=1.6, touch_code=True, tq=4, s0=(0, 1, 6, 7, 8), s0k=(0, 1, 5, 6, 7), gdel=8, sigpos=2, s0ld=2, s0start=2, xearly=1, s0first=False, sleep=4, dma1_early=False, dspan=0.4,
           nsq=10, nsk=2, stages=(0, 1, 2, 3, 4, 5, 6, 7, 8, 9), verbose=False, x=(), stop=None, nos0=False)

LDQ, LD1, LDX = 3840, 3456, 1280
FLAGS, STATS, CSUM, KVF, XCH, KVP, HB, TS = 0x0, 0x8000, 0x10000, 0x60000, 0x80000, 0x400000, 0x800000, 0x1200000
WS_SIZE = 0x1400000
OOB = 0x40000000
NB = 74
SLOT = 20480
RING2, NR2 = 2 * SLOT, 10
XS, EX, SCR, LDS_SIZE = 81920, 131072, 135168, 163840
KVT, KVT_LD = XS, 328
AM, AM_LD = XS, 176
Z0, Z1, Z2, Z5, Z6, ZA, ZB = 143360, 0, SLOT, 2 * SLOT, 3 * SLOT, XS, XS + SLOT
P_X, P_QKV, P_WO, P_BX, P_W1, P_B1, P_W2, P_B2 = 4, 6, 8, 10, 12, 14, 16, 18
P_OUT, P_DBG, P_WS = 20, 22, 24
sR2, sJ160, sBq, sBk, sE, sHA, sHB, sL6, sRow, sB6, sD2w, sD2h, sXc = range(4, 17)
sHq, sHk, sH6, sHo, sWq, sWk, sW6, sWo = range(17, 25)
sOne0, sOne1 = 88, 89
sKw, sW2k, sH4 = 90, 91, 95
sTa, sTb, sTc, sTe = 96, 97, 98, 72
sK1, sK2 = 99, 77
SX, SQKV, SW1, SWO, SW2, SWS, SOUT, SB1, SB2, SDBG = 28, 32, 36, 40, 44, 48, 52, 56, 60, 64
sW, sR, sU, sG, sP, sUnit, sNonce, sWL = 68, 69, 70, 71, 72, 73, 74, 75
sXo, sKq, sH, sT0, sT1, sT2, sT3, sLast = 76, 77, 78, 79, 80, 81, 82, 83
sEps, sHst, sXw, sCnt = 84, 85, 86, 87
sA_lo, sA_hi, sB_lo, sB_hi, sLdA, sLdB, sOffA, sOffB, sMixA, sMixB = 40, 41, 42, 43, 44, 45, 46, 47, 52, 53
sBA, sBB, sW5 = 92, 93, 94
sDx, sDw, sU64, sTS, sOst = 100, 101, 3, 26, 25
sSwX, sSwQ, sSw1 = 98, 0, 1
sRot, sR10 = 7, 6
sU4 = 73
srd = lambda b: f"s[{b}:{b + 3}]"
vL = 1
vX = [2, 3, 4, 5]
vXR = [6, 7, 8, 9]
vWk = [10, 11, 12, 13, 14]
vWp = [46, 47]
vTK, vTM, vTP, vW1, vTR = [208, 209], [210, 211], [212, 213], 214, 215
vHst, vFl, vRowF, vColF, vEXr = 15, 16, 17, 18, 19
vKf, vK2, vKA, vKB, vAt, vOnes = 20, 21, 22, 23, 24, 25
vAM, vOl0, vOl1, vOw0, vOw1, vOw2, vOw3 = 20, 21, 22, 23, 24, 25, 177
vColK, vB1 = 176, 178
vFd, vPoll, vLvl, vHiM = 26, 27, 28, 29
vRs1, vRl1, vA1, vA3, vIrs = 32, 34, 36, 38, 44
vIsQ, vPar, vL16, vTd = 33, 35, 37, 39
vXE = 40
vPoll2 = 45
acc = lambda i: 48 + 16 * i
TMP = 176
vW2 = [180, 181, 182, 183, 184]
vH = {'B': [185, 186, 187, 188], 'A': [2, 3, 4, 5]}
vT2 = [189, 190, 191]
vRW = [192, 193, 207]
vRR = [194, 195, 196]
vFo2, vTw = 197, 198
vFo = [199]
vTch = [200, 201, 206]
vTr = [202, 203, 204]
vRow2 = 205
vTW = 179
ET = 244
T0, T1, T2, T3 = 252, 253, 254, 255
aX, aW, NRING, LOOK = 0, 160, 8, 5
accA = lambda t, f: (48 + 4 * (5 * t + f)) if 5 * t + f < 16 else (208 + 4 * (5 * t + f - 16))


def accB(t, f):
    if t == 0:
        return ("v", 224 + 4 * f)
    g = 5 * (t - 1) + f
    return ("a", 140 + 4 * g) if g < 13 else ("v", 6 + 4 * (g - 13))


HR = 4
aH = lambda n, t: 192 + 16 * (n % HR) + 4 * t
wfrag = lambda kind, i, f: ("a", 20 * i + 4 * f) if kind == "E" else ("v", 112 + 20 * (i % 2) + 4 * f)
r4 = lambda x: f"{x[0]}[{x[1]}:{x[1] + 3}]"
f2u = lambda f: struct.unpack("<I", struct.pack("<f", f))[0]
LOG2E = 1.4426950408889634
C1 = -2.0 * 0.7978845608028654 * LOG2E
C3 = C1 * 0.044715
L_S0, L_KP, L_KV, L_HB = 1, 2, 3, 4
L_HQ, L_O, L_XCH = 2, 5, 6

slow_paths, ts_names, _uid = [], [], [0]


def uid(p):
    _uid[0] += 1
    return f"L_{p}{_uid[0]}"


def I(*ts):
    return [ins(t) for t in ts]


def stamp(name):
    if not OPT["prof"]:
        return []
    if OPT.get("fine"):
        if name not in ("rt0", "rt1", "start", "end") and not name.startswith("q"):
            return []
    elif OPT["only"] == "clk":
        if name not in ("rt0", "rt1", "start", "end"):
            return []
    elif OPT["only"] is not None:
        if name.startswith("rt") or (OPT["only"] != "all" and name not in OPT["only"]):
            return []
        name = "rt_" + name
    if name not in ts_names:
        ts_names.append(name)
    return [Ins(name, "stamp")]


def make_srd(b, ptr, nbytes):
    return I(f"s_mov_b32 s{b}, s{ptr}", f"s_mov_b32 s{b + 1}, s{ptr + 1}", f"s_mov_b32 s{b + 2}, {nbytes}", f"s_mov_b32 s{b + 3}, 0x20000")


def signal(level, toks):
    o = I(f"s_add_u32 s{sT3}, s{sNonce}, {level}", f"v_mov_b32 v{vFd}, s{sT3}")
    st = ins(f"buffer_store_dword v{vFd}, v{vFl}, {srd(SWS)}, 0 offen sc1", after=toks)
    st.note = ("sig", level)
    return [Bundle(o), st]


def poll_issue(vaddr, dst=vPoll):
    return ins(f"buffer_load_dword v{dst}, v{vaddr}, {srd(SWS)}, 0 offen sc1")


def poll_check(vaddr, level, qlevel=None, dst=vPoll, who="both"):
    slow, back, loop = uid("slow"), uid("back"), uid("loop")

    def test():
        o = I(f"s_add_u32 s{sT3}, s{sNonce}, {level}", f"v_subrev_u32 v{vLvl}, s{sT3}, v{dst}")
        if qlevel is not None and qlevel != level:
            o += I(f"v_mad_i32_i24 v{vLvl}, v{vIsQ}, {level - qlevel}, v{vLvl}")
        return o + I(f"v_cmp_lt_u32 vcc, 63, v{vLvl}")

    sp = I(f"{slow}:", f"s_mov_b32 s{sCnt}, 20000", f"{loop}:", f"s_sleep {OPT['sleep']}") + [poll_issue(vaddr, dst)] + I("s_waitcnt vmcnt(0)") + test()
    sp += I(f"s_cbranch_vccz {back}", f"s_sub_u32 s{sCnt}, s{sCnt}, 1", f"s_cmp_lg_u32 s{sCnt}, 0", f"s_cbranch_scc1 {loop}", f"s_branch {back}")
    slow_paths.append(sp)
    br = ins(f"s_cbranch_vccnz {slow}")
    br.note = ("chk", level if who != "q" else 0, (qlevel if qlevel is not None else level) if who != "kv" else 0, who)
    return [Bundle(test() + [br] + I(f"{back}:"))]


def nonce_check(dst):
    slow, back, loop = uid("nslow"), uid("nback"), uid("nloop")
    sp = I(f"{slow}:", f"s_mov_b32 s{sCnt}, 20000", f"{loop}:", f"s_sleep {OPT['sleep']}", f"v_mov_b32 v{dst}, 0",
           f"buffer_load_dword v{dst}, v{dst}, {srd(SDBG)}, 0 offen sc1", "s_waitcnt vmcnt(0)",
           f"v_readfirstlane_b32 s{sNonce}, v{dst}", f"s_cmp_lg_u32 s{sNonce}, 0", f"s_cbranch_scc1 {back}",
           f"s_sub_u32 s{sCnt}, s{sCnt}, 1", f"s_cmp_lg_u32 s{sCnt}, 0", f"s_cbranch_scc1 {loop}", f"s_branch {back}")
    slow_paths.append(sp)
    return [Bundle(I(f"v_readfirstlane_b32 s{sNonce}, v{dst}", f"s_cmp_eq_u32 s{sNonce}, 0", f"s_cbranch_scc1 {slow}", f"{back}:"))]


def flag_addr_row(dst, sr, t2, t3):
    return I(f"s_lshr_b32 s{sT0}, s{sr}, 3", f"s_and_b32 s{sT1}, s{sr}, 7", f"s_lshl_b32 s{sT1}, s{sT1}, 3", f"s_add_u32 s{sT0}, s{sT0}, s{sT1}",
             f"v_lshrrev_b32 v{t2}, 4, v{vL}", f"v_lshlrev_b32 v{t2}, 1, v{t2}", f"v_bfe_u32 v{t3}, v{vL}, 2, 2", f"v_lshl_add_u32 v{t2}, v{t3}, 6, v{t2}",
             f"v_add_u32 v{t2}, s{sT0}, v{t2}", f"v_and_b32 v{t3}, 3, v{vL}", f"v_lshlrev_b32 v{t3}, 2, v{t3}", f"v_lshl_add_u32 v{dst}, v{t2}, 7, v{t3}")


def flag_addr_col(dst, sg, t2, t3):
    return I(f"s_lshr_b32 s{sT0}, s{sg}, 2", f"s_lshl_b32 s{sT0}, s{sT0}, 1", f"s_and_b32 s{sT1}, s{sg}, 3", f"s_lshl_b32 s{sT1}, s{sT1}, 6", f"s_add_u32 s{sT0}, s{sT0}, s{sT1}",
             f"v_lshrrev_b32 v{t2}, 5, v{vL}", f"v_bfe_u32 v{t3}, v{vL}, 2, 3", f"v_lshl_add_u32 v{t2}, v{t3}, 3, v{t2}",
             f"v_add_u32 v{t2}, s{sT0}, v{t2}", f"v_and_b32 v{t3}, 3, v{vL}", f"v_lshlrev_b32 v{t3}, 2, v{t3}", f"v_lshl_add_u32 v{dst}, v{t2}, 7, v{t3}")


def swap(dst, sw, n):
    return I(f"s_{'sub' if n & 1 else 'add'}_u32 s{dst}, s{dst}, s{sw}") if OPT["sw1"] else []


def dma_x(n):
    g = []
    for i in range(4):
        pre = I(f"s_add_u32 s{sDx}, s{sXo}, {128 * n}") + swap(sDx, sSwX, n) if i == 0 else []
        g.append(pre + I(f"s_add_u32 m0, s{sXw}, {(n % 3) * 4096}", f"buffer_load_dwordx4 v{vX[i]}, {srd(SX)}, s{sDx} offen offset:{1024 * i} lds"))
    return g


def prologue():
    o = []
    a = lambda *t: o.extend(I(*t))
    a("s_cmp_ge_u32 s2, 256", "s_cbranch_scc1 L_end")
    a("s_load_dwordx16 s[4:19], s[0:1], 0", "s_load_dwordx4 s[20:23], s[0:1], 64", "s_load_dwordx2 s[24:25], s[0:1], 80")
    a(f"s_memrealtime s[{sNonce}:{sNonce + 1}]")
    if OPT["touch_code"]:
        o += touch_code()
        o[-2].wr = set()
    if OPT["prof"]:
        a("v_mov_b32 v31, 0")
        if OPT.get("kst"):
            a("s_memtime s[42:43]", "s_memrealtime s[44:45]")
            ts_names.extend(["rt0", "start"])
        else:
            o += stamp("rt0") + stamp("start")
    t0, t1, t2 = T0, T1, T2
    a(f"v_lshrrev_b32 v{t0}, 6, v0", f"v_and_b32 v{vL}, 63, v0", f"v_readfirstlane_b32 s{sW}, v{t0}")
    a(f"s_and_b32 s{sT0}, s2, 1", f"s_lshl_b32 s{sT0}, s{sT0}, 3", f"s_bfe_u32 s{sT1}, s2, 0x30003", f"s_add_u32 s{sR}, s{sT0}, s{sT1}")
    a(f"v_lshrrev_b32 v{t0}, 3, v{vL}", f"v_lshrrev_b32 v{t1}, 4, v{vL}", f"v_and_b32 v{t2}, 7, v{vL}", f"v_xor_b32 v{t2}, v{t2}, v{t1}",
      f"v_lshlrev_b32 v{t2}, 4, v{t2}", f"v_mul_u32_u24 v{t0}, {LDX}, v{t0}", f"v_add_u32 v{vX[0]}, v{t0}, v{t2}",
      f"v_xor_b32 v{vX[1]}, 64, v{vX[0]}", f"v_add_u32 v{vX[1]}, {8 * LDX - 1024}, v{vX[1]}",
      f"v_add_u32 v{vX[2]}, {16 * LDX - 2048}, v{vX[0]}", f"v_add_u32 v{vX[3]}, {16 * LDX - 2048}, v{vX[1]}")
    a(f"s_lshl_b32 s{sT0}, s{sR}, 2", f"s_add_u32 s{sT0}, s{sT0}, s{sW}", f"s_mul_i32 s{sXo}, s{sT0}, {32 * LDX}")
    a(f"s_mul_i32 s{sXw}, s{sW}, 12288", f"s_add_u32 s{sXw}, s{sXw}, {XS}")
    a("s_mov_b32 s30, 2621440", "s_mov_b32 s31, 0x20000")
    a(f"s_bfe_u32 s{sT0}, s2, 0x20001", f"s_lshr_b32 s{sT1}, s2, 6",
      f"s_lshl_b32 s{sG}, s{sT0}, 2", f"s_add_u32 s{sG}, s{sG}, s{sT1}", f"s_lshr_b32 s{sP}, s{sT1}, 1",
      f"s_lshl_b32 s{sU}, s{sT0}, 1", f"s_add_u32 s{sU}, s{sU}, s{sP}",
      f"s_mul_i32 s{sKq}, s{sU}, 160", f"s_mul_i32 s{sU64}, s{sU}, 384")
    if OPT["sw1"]:
        a(f"s_xor_b32 s{sT0}, s{sR}, s{sP}", f"s_and_b32 s{sT0}, s{sT0}, 1", f"s_lshl_b32 s{sSwX}, s{sT0}, 7")
    assert (SX, SQKV, SW1) == (28, 32, 36)
    if OPT.get("kst"):
        a("s_memtime s[40:41]")
    a("s_waitcnt lgkmcnt(0)", f"s_mov_b32 s28, s{P_X}", f"s_mov_b32 s29, s{P_X + 1}")
    if OPT.get("kst"):
        ts_names.append("prek")
        a(f"v_writelane_b32 v31, s40, {len(ts_names) - 1}", "v_writelane_b32 v31, s44, 0", "v_writelane_b32 v31, s42, 1")
    o += stamp("karg")
    xs = [dma_x(n) for n in range(OPT["xearly"])]
    for x in xs[:1]:
        for g in x:
            o += g
    o += make_srd(SQKV, P_QKV, 640 * LDQ) + make_srd(SW1, P_W1, 640 * LD1)
    if OPT["sw1"]:
        a(f"s_mul_i32 s{sSwQ}, s{sSwX}, {LDQ // 2}", f"s_mul_i32 s{sSw1}, s{sSwX}, {LD1 // 2}")
    if OPT["ft"]:
        o += first_touch()
    for x in xs[1:]:
        for g in x:
            o += g
    return o, xs


def nonce_publish():
    o = I(f"s_or_b32 s{sT0}, s2, s{sW}", f"s_cmp_lg_u32 s{sT0}, 0", "s_cbranch_scc1 L_nn",
          f"s_max_u32 s{sT0}, s{sNonce}, 1", f"v_mov_b32 v{T0}, s{sT0}", f"v_mov_b32 v{T1}, 0",
          f"global_store_dword v{T1}, v{T0}, s[{P_DBG}:{P_DBG + 1}] sc1")
    o[-1].ghost = True
    return o + I("L_nn:")


def div10(q, row, ch):
    return I(f"v_mul_u32_u24 v{row}, 6554, v{q}", f"v_lshrrev_b32 v{row}, 16, v{row}", f"v_mul_u32_u24 v{ch}, 10, v{row}", f"v_sub_u32 v{ch}, v{q}, v{ch}", f"v_lshlrev_b32 v{ch}, 4, v{ch}")


def wk_setup(kv):
    o = []
    for i in range(5):
        o += I(f"v_add_u32 v{T0}, {64 * i}, v{vL}") + div10(T0, T1, T2)
        if kv:
            o += I(f"v_lshrrev_b32 v{T0}, 4, v{T1}", f"v_and_b32 v{T1}, 15, v{T1}", f"v_mul_u32_u24 v{T0}, 1280, v{T0}", f"v_add_u32 v{T2}, v{T2}, v{T0}")
        o += I(f"v_mul_u32_u24 v{T1}, {LDQ}, v{T1}", f"v_add_u32 v{vWk[i]}, v{T1}, v{T2}")
        if not kv and i in (1, 2, 3):
            o += I(f"v_subrev_u32 v{vWk[i]}, {1024 * i}, v{vWk[i]}")
    if OPT["sw1"] and not kv:
        return o + I(f"s_lshr_b32 s{sT0}, s{sSwX}, 6", f"s_xor_b32 s{sT0}, s{sT0}, s{sW}", f"s_mul_i32 s{sT0}, s{sT0}, {32 * LDQ}", f"s_add_u32 s{sKw}, s{sKq}, s{sT0}", f"s_mul_i32 s{sW5}, s{sW}, 5120")
    return o + I(f"s_mul_i32 s{sT0}, s{sW}, {(16 if kv else 32) * LDQ}", f"s_add_u32 s{sKw}, s{sKq}, s{sT0}", f"s_mul_i32 s{sW5}, s{sW}, 5120")


def wp_setup():
    return I(f"v_lshrrev_b32 v{T0}, 3, v{vL}", f"s_lshl_b32 s{sT0}, s{sW}, 4", f"v_add_u32 v{T0}, s{sT0}, v{T0}", f"v_mul_u32_u24 v{T0}, {LD1}, v{T0}",
             f"v_bfe_u32 v{T1}, v{vL}, 4, 1", f"v_lshlrev_b32 v{T1}, 2, v{T1}", f"v_and_b32 v{T2}, 7, v{vL}", f"v_xor_b32 v{T1}, v{T1}, v{T2}",
             f"v_lshl_add_u32 v{vWp[0]}, v{T1}, 4, v{T0}", f"v_add_u32 v{vWp[1]}, {8 * LD1 - 1024}, v{vWp[0]}", f"s_lshl_b32 s{sW2k}, s{sW}, 11")


def w1_setup():
    return I(f"v_lshrrev_b32 v{T0}, 2, v0", f"v_and_b32 v{T1}, 3, v{vL}", f"v_mul_u32_u24 v{T0}, {LD1}, v{T0}", f"v_lshl_add_u32 v{vW1}, v{T1}, 4, v{T0}")


def x_read_setup():
    o = I(f"v_and_b32 v{T0}, 31, v{vL}", f"v_lshrrev_b32 v{T1}, 5, v{vL}", f"v_bfe_u32 v{T2}, v{vL}, 1, 3", f"v_xor_b32 v{T2}, v{T2}, v{T1}",
          f"v_lshlrev_b32 v{T2}, 4, v{T2}", f"v_lshl_add_u32 v{T2}, v{T0}, 7, v{T2}")
    for j in range(4):
        o += I(f"v_xor_b32 v{vXR[j]}, {32 * j}, v{T2}", f"v_add_u32 v{vXR[j]}, s{sXw}, v{vXR[j]}")
    return o


def tr_parts():
    return I(f"v_lshrrev_b32 v{T1}, 5, v{vL}", f"v_bfe_u32 v{T0}, v{vL}, 2, 2", f"v_lshl_add_u32 v{T0}, v{T1}, 3, v{T0}",
             f"v_bfe_u32 v{T1}, v{vL}, 4, 1", f"v_and_b32 v{T2}, 3, v{vL}", f"v_lshlrev_b32 v{T2}, 3, v{T2}")


def tk_setup(kv):
    o = tr_parts() + I(f"v_mul_u32_u24 v{T0}, 160, v{T0}", f"v_add_u32 v{T0}, v{T0}, v{T2}", f"v_lshl_add_u32 v{vTK[0]}, v{T1}, 5, v{T0}", f"v_add_u32 v{vTM[0]}, 128, v{T0}")
    if kv or OPT["zpad"]:
        o += I(f"v_mul_u32_u24 v{T1}, {2560 if kv else LDS_SIZE}, v{T1}", f"v_add_u32 v{vTM[0]}, v{vTM[0]}, v{T1}")
    return o + I(f"v_add_u32 v{vTK[1]}, 0x8000, v{vTK[0]}", f"v_add_u32 v{vTM[1]}, 0x8000, v{vTM[0]}")


def tp_setup(base):
    return tr_parts() + I(f"v_lshl_add_u32 v{T2}, v{T1}, 5, v{T2}", f"v_lshl_add_u32 v{T2}, v{T0}, 7, v{T2}", f"v_bfe_u32 v{T1}, v{vL}, 3, 1",
                          f"v_lshl_add_u32 v{T2}, v{T1}, 6, v{T2}", f"v_add_u32 v{vTP[0]}, {base}, v{T2}", f"v_xor_b32 v{vTP[1]}, 64, v{vTP[0]}")


def tr_setup(base):
    return tr_parts() + I(f"v_lshl_add_u32 v{T2}, v{T1}, 5, v{T2}", f"v_lshl_add_u32 v{T2}, v{T0}, 6, v{T2}", f"v_add_u32 v{vTR}, {base}, v{T2}")


def late_setup():
    o = []
    a = lambda *t: o.extend(I(*t))
    t0, t1, t2, t3 = T0, T1, T2, T3
    o += make_srd(SDBG, P_DBG, 256)
    a(f"v_mov_b32 v{vPoll2}, 0")
    o += make_srd(SB1, P_B1, 1728 * 2)
    o += make_srd(SWO, P_WO, 640 * LDX) + make_srd(SW2, P_W2, 1728 * LDX) + make_srd(SOUT, P_OUT, 2048 * LDX) + make_srd(SB2, P_B2, 1280)
    a(f"v_and_b32 v{t0}, 31, v{vL}", f"v_lshrrev_b32 v{t1}, 5, v{vL}")
    a(f"v_lshlrev_b32 v{vEXr}, 4, v{t0}", f"v_add_u32 v{vEXr}, {EX}, v{vEXr}", f"v_sub_u32 v{vHiM}, 0, v{t1}")
    a(f"v_bfe_u32 v{t2}, v{vL}, 4, 1", f"v_mul_u32_u24 v{t2}, {NB * 1024}, v{t2}", f"v_and_b32 v{t3}, 15, v{vL}",
      f"v_lshl_add_u32 v{t3}, v{t1}, 4, v{t3}", f"v_lshl_add_u32 v{vHst}, v{t3}, 4, v{t2}")
    a(f"s_lshl_b32 s{sT0}, s{sR}, 2", f"s_add_u32 s{sT0}, s{sT0}, s{sW}", f"s_mul_i32 s{sHst}, s{sT0}, {2 * NB * 1024}", f"s_add_u32 s{sHst}, s{sHst}, {HB}",
      f"s_mul_i32 s{sOst}, s{sU}, 2560", f"s_add_u32 s{sOst}, s{sOst}, s{sHst}",
      f"s_add_u32 s{sHst}, s{sHst}, {20 * 1024}", f"s_lshl_b32 s{sT0}, s{sU4}, 4", f"s_add_u32 s{sH4}, s{sHst}, s{sT0}", f"s_or_b32 s{sH4}, s{sH4}, s{sLast}",
      f"s_lshl_b32 s{sT0}, s{sU64}, 4", f"s_add_u32 s{sHst}, s{sHst}, s{sT0}")
    a(f"s_lshl_b32 s{sT0}, s2, 7", f"s_lshl_b32 s{sT1}, s{sW}, 2", f"s_add_u32 s{sT0}, s{sT0}, s{sT1}",
      f"v_mov_b32 v{vFl}, {OOB}", f"v_writelane_b32 v{vFl}, s{sT0}, 0")
    a(f"s_mov_b32 s{sEps}, {f2u(1e-6)}")
    return o


def touch_code():
    return I(f"s_getpc_b64 s[{sT0 + 1}:{sT0 + 2}]", f"s_and_b32 s{sT0}, s2, 0xf8", f"s_lshl_b32 s{sT0}, s{sT0}, 8", f"v_and_b32 v{T1}, 0xc3, v0", f"v_lshrrev_b32 v{T2}, 4, v{T1}",
             f"v_and_or_b32 v{T1}, v{T1}, 3, v{T2}", f"v_lshl_add_u32 v{T1}, v{T1}, 7, s{sT0}", "s_mov_b64 exec, 15",
             f"global_load_dword v{vTd}, v{T1}, s[{sT0 + 1}:{sT0 + 2}]", "s_mov_b64 exec, -1")


def first_touch():
    o = I(f"s_lshl_b32 s{sT0}, s2, 2", f"s_add_u32 s{sT0}, s{sT0}, s{sW}", f"s_lshl_b32 s{sT1}, s{sT0}, 7", f"s_mul_i32 s{sT0}, s{sT0}, {2 * LDX}",
          f"v_lshlrev_b32 v{T0}, 17, v{vL}", f"v_lshrrev_b32 v{T1}, 1, v{vL}", f"v_and_b32 v{T2}, 1, v{vL}", f"v_mul_u32_u24 v{T2}, {LDX}, v{T2}", f"v_lshl_add_u32 v{T1}, v{T1}, 7, v{T2}",
          "s_mov_b64 exec, 0xfffff",
          f"buffer_load_dword v{vTd}, v{T0}, {srd(SQKV)}, s{sT1} offen", f"buffer_load_dword v{vTd}, v{T0}, {srd(SW1)}, s{sT1} offen",
          f"buffer_load_dword v{vTd}, v{T1}, {srd(SX)}, s{sT0} offen", "s_mov_b64 exec, -1")
    for x in o:
        if x.kind == "vmem":
            x.wr = set()
    return o


CB = 128
ST, CS, CAD, SAD, SST = CB, CB + 10, CB + 30, CB + 45, CB + 44
PA = 216


def s0_wave_params(tiles):
    o = []
    done = uid("s0p")
    for w in range(4):
        nxt = uid("s0p")
        if w < 3:
            o += I(f"s_cmp_lg_u32 s{sW}, {w}", f"s_cbranch_scc1 {nxt}")
        for name, (lo, hi, ld, off, mx, sb) in zip((tiles + ["--"])[2 * w:2 * w + 2], ((sA_lo, sA_hi, sLdA, sOffA, sMixA, sBA), (sB_lo, sB_hi, sLdB, sOffB, sMixB, sBB))):
            ish = name[0] in "H-"
            p = P_W1 if ish else P_QKV
            o += I(f"s_mov_b32 s{lo}, s{p}", f"s_mov_b32 s{hi}, s{p + 1}", f"s_mov_b32 s{ld}, {LD1 if ish else LDQ}",
                   f"s_mov_b32 s{mx}, {dict(MX=1248, QM=-32).get(name, 0)}")
            if not ish:
                o += I(f"s_add_u32 s{off}, s{sKq}, {QCOL[name]}", f"s_mov_b32 s{sb}, {OOB}")
            elif name == "--":
                o += I(f"s_mov_b32 s{off}, 0", f"s_mov_b32 s{sb}, {OOB}")
            elif name == "H4":
                o += I(f"s_or_b32 s{sb}, s{sU4}, s{sLast}", f"s_mov_b32 s{off}, s{sU4}")
            else:
                o += I(f"s_add_u32 s{off}, s{sU64}, {64 * HUNIT[name]}", f"s_mov_b32 s{sb}, s{off}")
        if w < 3:
            o += I(f"s_branch {done}", f"{nxt}:")
    o += I(f"{done}:")
    return o


QCOL = {"K0": 0, "K1": 64, "MX": 128, "V0": 1280, "V1": 1344, "Q0": 0, "Q1": 64, "QM": 128}
HUNIT = {"Ha": 0, "Hb": 1, "H0": 0, "H1": 1, "H2": 2, "H3": 3, "H4": 4}


def s0_addr(tiles):
    o = []
    a = lambda *t: o.extend(I(*t))
    t0, t1, t2, t3 = T0, T1, T2, T3
    a(f"s_lshl_b32 s{sT0}, s{sR}, 7", f"s_lshl_b32 s{sT1}, s{sG}, 3", f"s_add_u32 s{sT0}, s{sT0}, s{sT1}", f"s_lshl_b32 s{sT1}, s{sW}, 1",
      f"s_add_u32 s{sT2}, s{sT0}, s{sT1}", f"s_mul_i32 s{sH}, s{sT2}, {LDX}",
      f"v_lshrrev_b32 v{t0}, 5, v{vL}", f"v_mul_u32_u24 v{t1}, {LDX}, v{t0}", f"v_and_b32 v{t2}, 31, v{vL}", f"v_lshl_add_u32 v{SAD}, v{t2}, 3, v{t1}",
      f"v_add_u32 v{SST}, s{sT2}, v{t0}")
    o += s0_wave_params(tiles)
    ad, ld = CAD, CB + 46
    a(f"v_and_b32 v{t0}, 4, v{vL}", f"v_cmp_ne_u32 vcc, 0, v{t0}",
      f"v_mov_b32 v{ld}, s{sLdA}", f"v_mov_b32 v{t1}, s{sLdB}", f"v_cndmask_b32 v{ld}, v{ld}, v{t1}, vcc", f"v_mov_b32 v{ld + 1}, 0",
      f"v_mov_b32 v{t2}, s{sOffA}", f"v_mov_b32 v{t1}, s{sOffB}", f"v_cndmask_b32 v{t2}, v{t2}, v{t1}, vcc",
      f"v_mov_b32 v{t3}, s{sMixA}", f"v_mov_b32 v{t1}, s{sMixB}", f"v_cndmask_b32 v{t3}, v{t3}, v{t1}, vcc",
      f"v_mov_b32 v{ad}, s{sA_lo}", f"v_mov_b32 v{t1}, s{sB_lo}", f"v_cndmask_b32 v{ad}, v{ad}, v{t1}, vcc",
      f"v_mov_b32 v{ad + 1}, s{sA_hi}", f"v_mov_b32 v{t1}, s{sB_hi}", f"v_cndmask_b32 v{ad + 1}, v{ad + 1}, v{t1}, vcc",
      f"v_bfe_u32 v{t0}, v{vL}, 1, 1", f"v_mad_i32_i24 v{t2}, v{t0}, v{t3}, v{t2}",
      f"v_and_b32 v{t0}, 3, v{vL}", f"v_lshl_add_u32 v{t2}, v{t0}, 4, v{t2}",
      f"v_lshrrev_b32 v{t0}, 3, v{vL}", f"v_mul_u32_u24 v{t0}, 5, v{t0}", f"s_mul_i32 s{sT0}, s{sR}, 40", f"v_add_u32 v{t0}, s{sT0}, v{t0}",
      f"v_mad_u32_u24 v{t2}, v{t0}, v{ld}, v{t2}", f"v_mov_b32 v{t3}, 0",
      f"v_lshl_add_u64 v[{ad}:{ad + 1}], v[{t2}:{t3}], 0, v[{ad}:{ad + 1}]")
    for i in range(4):
        a(f"v_lshl_add_u64 v[{ad + 2 * i + 2}:{ad + 2 * i + 3}], v[{ld}:{ld + 1}], 0, v[{ad + 2 * i}:{ad + 2 * i + 1}]")
    return o


def s0_mem():
    o = [I(f"buffer_load_dwordx2 v[{ST + 2 * m}:{ST + 2 * m + 1}], v{SAD}, {srd(SX)}, s{sH} offen offset:{256 * m}") for m in range(5)]
    o += [I(f"global_load_dwordx4 v[{CS + 4 * i}:{CS + 4 * i + 3}], v[{CAD + 2 * i}:{CAD + 2 * i + 1}], off") for i in range(5)]
    return o


def reduce32(x, t):
    o = []
    for n in (8, 4, 2, 1):
        o += I(f"v_add_f32_dpp v{x}, v{x}, v{x} row_ror:{n} row_mask:0xf bank_mask:0xf")
    return o + I(f"v_mov_b32 v{t}, v{x}", f"v_permlane16_swap_b32 v{x}, v{t}", f"v_add_f32 v{x}, v{x}, v{t}")


def weave(*streams):
    out, streams = [], [list(s) for s in streams]
    while any(streams):
        for s in streams:
            if s:
                out.append(s.pop(0))
    return out


def s0_produce(kv):
    st, cs, stores = [], [], []
    a = lambda *t: st.extend(I(*t))
    s0, s1, t = CB + 40, CB + 41, CB + 42
    a(f"s_mov_b32 s{sCnt}, 0x3f803f80")
    for m in range(10):
        a(f"v_dot2_f32_bf16 v{s0}, v{ST + m}, s{sCnt}, {'0' if m == 0 else 'v%d' % s0}", f"v_dot2_f32_bf16 v{s1}, v{ST + m}, v{ST + m}, {'0' if m == 0 else 'v%d' % s1}")
    a(f"v_lshlrev_b32 v{SST}, 3, v{SST}", f"v_add_u32 v{SST}, {STATS}, v{SST}", f"v_and_b32 v{t}, 31, v{vL}", f"v_min_u32 v{t}, 1, v{t}", f"v_lshl_add_u32 v{SST}, v{t}, 30, v{SST}")
    red = weave(reduce32(s0, t), reduce32(s1, CB + 43))
    red += I(f"v_mul_f32 v{s0}, {f2u(1 / 640)}, v{s0}", f"v_mul_f32 v{s1}, {f2u(1 / 640)}, v{s1}", f"v_fma_f32 v{s1}, -v{s0}, v{s0}, v{s1}", f"v_max_f32 v{s1}, 0, v{s1}")
    stores.append(ins(f"buffer_store_dwordx2 v[{s0}:{s1}], v{SST}, {srd(SWS)}, 0 offen sc1"))
    a = lambda *t: cs.extend(I(*t))
    A, ta, tb = CAD, CB + 46, CB + 47
    for i in range(5):
        for k in range(4):
            for h in range(2):
                d = A + 2 * k + h
                a(f"v_dot2_f32_bf16 v{d}, v{CS + 4 * i + k}, s{sOne1 if h else sOne0}, {'0' if i == 0 else 'v%d' % d}")
    n1 = len(cs)
    a(f"v_and_b32 v{ta}, 7, v{vL}", f"v_lshlrev_b32 v{ta}, 5, v{ta}", f"v_lshrrev_b32 v{tb}, 5, v{vL}", f"v_lshl_add_u32 v{ta}, v{tb}, 4, v{ta}")
    for i in range(4):
        a(f"v_permlane32_swap_b32 v{A + i}, v{A + i + 4}")
    for i in range(4):
        a(f"v_add_f32 v{A + i}, v{A + i}, v{A + i + 4}")
    a(f"v_bfe_u32 v{tb}, v{vL}, 4, 1", f"v_lshl_add_u32 v{ta}, v{tb}, 3, v{ta}")
    for i in range(2):
        a(f"v_permlane16_swap_b32 v{A + i}, v{A + i + 2}")
    for i in range(2):
        a(f"v_add_f32 v{A + i}, v{A + i}, v{A + i + 2}")
    a(f"v_bfe_u32 v{tb}, v{vL}, 3, 1", f"v_lshl_add_u32 v{ta}, v{tb}, 30, v{ta}")
    for i in range(2):
        a(f"v_add_f32_dpp v{A + i}, v{A + i}, v{A + i} row_ror:8 row_mask:0xf bank_mask:0xf")
    a(f"s_lshl_b32 s{sH}, s{sG}, 4", f"s_add_u32 s{sH}, s{sH}, s{sR}", f"s_lshl_b32 s{sH}, s{sH}, 2", f"s_add_u32 s{sH}, s{sH}, s{sW}",
      f"s_lshl_b32 s{sH}, s{sH}, 8", f"s_add_u32 s{sH}, s{sH}, {CSUM}", f"v_add_u32 v{ta}, s{sH}, v{ta}")
    stores.append(ins(f"buffer_store_dwordx2 v[{A}:{A + 1}], v{ta}, {srd(SWS)}, 0 offen sc1"))
    return st + cs[:n1] + weave(red, bundled(cs[n1:])), stores


def s0_consume_loads():
    o = stamp("prepoll") + poll_check(vRowF, L_S0, dst=vPoll) + poll_check(vColF, L_S0, dst=vPoll2) + stamp("polled")
    a = lambda *t: o.extend(I(*t))
    a(f"buffer_load_dwordx2 v[{CB}:{CB + 1}], v{PA}, {srd(SWS)}, 0 offen sc1")
    for m in range(4):
        a(f"buffer_load_dwordx4 v[{CB + 4 + 4 * m}:{CB + 7 + 4 * m}], v{PA + 1 + m}, {srd(SWS)}, 0 offen sc1")
    return o


def bias_loads():
    return [I(f"buffer_load_ushort v{vB1}, v{PA + 5}, {srd(SB1)}, 0 offen")] + b2_load()


def s0_consume_addr():
    o = []
    a = lambda *t: o.extend(I(*t))
    t0, t1 = T0, T1
    o += flag_addr_row(vRowF, sR, t0, t1) + flag_addr_col(vColF, sG, t0, t1)
    a(f"v_and_b32 v{t0}, 31, v{vL}", f"v_lshlrev_b32 v{t0}, 3, v{t0}", f"s_lshl_b32 s{sT0}, s{sR}, 2", f"s_add_u32 s{sT0}, s{sT0}, s{sW}",
      f"s_lshl_b32 s{sT0}, s{sT0}, 8", f"s_add_u32 s{sT0}, s{sT0}, {STATS}", f"v_add_u32 v{PA}, s{sT0}, v{t0}")
    a(f"v_lshrrev_b32 v{t0}, 4, v{vL}", f"v_lshlrev_b32 v{t0}, 10, v{t0}", f"v_and_b32 v{t1}, 15, v{vL}", f"v_lshl_add_u32 v{t0}, v{t1}, 4, v{t0}",
      f"s_lshl_b32 s{sT0}, s{sG}, 14", f"s_lshl_b32 s{sT1}, s{sW}, 8", f"s_add_u32 s{sT0}, s{sT0}, s{sT1}", f"s_add_u32 s{sT0}, s{sT0}, {CSUM}",
      f"v_add_u32 v{PA + 1}, s{sT0}, v{t0}")
    for m in range(1, 4):
        a(f"v_add_u32 v{PA + 1 + m}, {4096 * m}, v{PA + 1}")
    p = PA + 6
    a(f"v_lshlrev_b32 v{p}, 2, v{t1}", f"v_lshrrev_b32 v{t0}, 5, v{vL}", f"v_lshl_add_u32 v{p}, v{t0}, 1, v{p}", f"v_bfe_u32 v{t0}, v{vL}, 4, 1", f"v_add_u32 v{p}, v{p}, v{t0}",
      f"v_cmp_le_u32 vcc, 32, v{p}", f"v_mov_b32 v{t0}, s{sBA}", f"v_mov_b32 v{t1}, s{sBB}", f"v_cndmask_b32 v{t0}, v{t0}, v{t1}, vcc",
      f"v_and_b32 v{t1}, 31, v{p}", f"v_lshl_add_u32 v{PA + 5}, v{t1}, 1, v{t0}",
      f"v_lshlrev_b32 v{p}, 4, v{p}", f"v_add_u32 v{p}, s{sWL}, v{p}", f"v_add_u32 v{p}, {EX}, v{p}")
    return o


def s0_consume_math():
    x, y = [], []
    a = lambda *t: x.extend(I(*t))
    m, var = CB, CB + 1
    t0, t1, t2, t3 = CB + 28, CB + 29, CB + 30, CB + 31
    e5 = f2u(1e-5)
    a(f"v_add_f32 v{t0}, {e5}, v{var}", f"v_rsq_f32 v{vRs1}, v{t0}", f"v_mul_f32 v{t1}, v{var}, v{vRs1}", f"v_mul_f32 v{t1}, v{t1}, v{vRs1}",
      f"v_add_f32 v{t1}, {e5}, v{t1}", f"v_rsq_f32 v{t1}, v{t1}", f"v_mul_f32 v{vRl1}, {f2u(LOG2E)}, v{vRs1}", f"v_mul_f32 v{t1}, v{t1}, v{vRs1}",
      f"v_rcp_f32 v{vIrs}, v{t1}", f"v_mul_f32 v{vA1}, {f2u(C1)}, v{t1}", f"v_mul_f32 v{t2}, v{t1}, v{t1}", f"v_mul_f32 v{t2}, v{t2}, v{t1}",
      f"v_mul_f32 v{vA3}, {f2u(C3)}, v{t2}")
    a(f"v_sub_f32 v{m}, 0, v{m}", f"v_cvt_pk_bf16_f32 v{t0}, v{m}, v{m}", f"v_and_b32 v{t0}, 0xffff0000, v{t0}", f"v_sub_f32 v{t2}, v{m}, v{t0}",
      f"v_cvt_pk_bf16_f32 v{vXE}, v{t0}, v{t2}",
      f"v_cvt_pk_bf16_f32 v{t0}, v{vIrs}, v{vIrs}", f"v_and_b32 v{t0}, 0xffff0000, v{t0}", f"v_sub_f32 v{t2}, v{vIrs}, v{t0}",
      f"v_cvt_pk_bf16_f32 v{vXE + 2}, v{t0}, v{t2}", f"v_and_b32 v{t0}, 0xffff0000, v{vXE + 2}", f"v_sub_f32 v{t2}, v{t2}, v{t0}",
      f"v_cvt_pk_bf16_f32 v{vXE + 3}, v{t2}, 0",
      f"v_not_b32 v{t3}, v{vHiM}", f"v_and_b32 v{vXE}, v{vXE}, v{t3}", f"v_and_b32 v{vXE + 2}, v{vXE + 2}, v{t3}", f"v_and_b32 v{vXE + 3}, v{vXE + 3}, v{t3}",
      f"v_mov_b32 v{vXE + 1}, v{vXE}")
    a = lambda *t: y.extend(I(*t))
    B, u0 = CB + 4, CB + 32
    for mm in range(1, 4):
        for k in range(4):
            a(f"v_add_f32 v{B + k}, v{B + k}, v{B + 4 * mm + k}")
    a(f"v_permlane32_swap_b32 v{B}, v{B + 2}", f"v_permlane32_swap_b32 v{B + 1}, v{B + 3}",
      f"v_add_f32 v{B}, v{B}, v{B + 2}", f"v_add_f32 v{B + 1}, v{B + 1}, v{B + 3}",
      f"v_permlane16_swap_b32 v{B}, v{B + 1}", f"v_add_f32 v{B}, v{B}, v{B + 1}")
    Rr = CB + 24
    a(f"v_cvt_pk_bf16_f32 v{Rr}, v{B}, v{B}", f"v_and_b32 v{u0}, 0xffff0000, v{Rr}", f"v_sub_f32 v{u0}, v{B}, v{u0}",
      f"v_cvt_pk_bf16_f32 v{Rr + 1}, v{u0}, v{u0}", f"v_lshl_or_b32 v{Rr + 2}, v{vB1}, 16, v{vB1}", f"v_mov_b32 v{Rr + 3}, v{vB1}")
    w = ins(f"ds_write_b128 v{PA + 6}, v[{Rr}:{Rr + 3}]")
    return weave(y + [w], x), w


pr = lambda r: f"v[{r}:{r + 1}]"


def cvt2(dst, tb):
    return I(f"v_cvt_pk_bf16_f32 v{dst}, v{tb}, v{tb + 1}", f"v_cvt_pk_bf16_f32 v{dst + 1}, v{tb + 2}, v{tb + 3}")


def gelu_quad(A, dst, tb, pk=False):
    o = []
    each = lambda f, n=4, s=1: [o.extend(I(f(i))) for i in range(0, n, s)]
    if pk:
        each(lambda i: f"v_pk_mul_f32 {pr(tb + i)}, {pr(A + i)}, {pr(A + i)}", 4, 2)
        each(lambda i: f"v_pk_fma_f32 {pr(tb + i)}, {pr(tb + i)}, {pr(vA3)}, {pr(vA1)} op_sel_hi:[1,0,0]", 4, 2)
        each(lambda i: f"v_pk_mul_f32 {pr(tb + i)}, {pr(tb + i)}, {pr(A + i)}", 4, 2)
        each(lambda i: f"v_exp_f32 v{tb + i}, v{tb + i}")
        each(lambda i: f"v_pk_fma_f32 {pr(tb + i)}, {pr(tb + i)}, {pr(vIrs)}, {pr(vIrs)} op_sel_hi:[1,0,0]", 4, 2)
        each(lambda i: f"v_rcp_f32 v{tb + i}, v{tb + i}")
        each(lambda i: f"v_pk_mul_f32 {pr(tb + i)}, {pr(tb + i)}, {pr(A + i)}", 4, 2)
    else:
        each(lambda i: f"v_mul_f32 v{tb + i}, v{A + i}, v{A + i}")
        each(lambda i: f"v_fma_f32 v{tb + i}, v{tb + i}, v{vA3}, v{vA1}")
        each(lambda i: f"v_mul_f32 v{tb + i}, v{tb + i}, v{A + i}")
        each(lambda i: f"v_exp_f32 v{tb + i}, v{tb + i}")
        each(lambda i: f"v_fma_f32 v{tb + i}, v{tb + i}, v{vIrs}, v{vIrs}")
        each(lambda i: f"v_rcp_f32 v{tb + i}, v{tb + i}")
        each(lambda i: f"v_mul_f32 v{tb + i}, v{tb + i}, v{A + i}")
    return o + cvt2(dst, tb)


def phi_quad(A, dst, tb, pk=False):
    o = []
    each = lambda f, n=4, s=1: [o.extend(I(f(i))) for i in range(0, n, s)]
    if pk:
        each(lambda i: f"v_pk_mul_f32 {pr(tb + i)}, {pr(A + i)}, {pr(vRl1)} op_sel_hi:[1,0]", 4, 2)
        each(lambda i: f"v_pk_fma_f32 {pr(A + i)}, {pr(A + i)}, {pr(vRs1)}, 1.0 op_sel_hi:[1,0,0]", 4, 2)
    else:
        each(lambda i: f"v_mul_f32 v{tb + i}, v{A + i}, v{vRl1}")
        each(lambda i: f"v_fma_f32 v{A + i}, v{A + i}, v{vRs1}, 1.0")
    each(lambda i: f"v_exp_f32_e64 v{tb + i}, v{tb + i} clamp")
    each(lambda i: f"v_max_f32 v{tb + i}, v{tb + i}, v{A + i}")
    if pk:
        each(lambda i: f"v_pk_add_f32 {pr(tb + i)}, {pr(tb + i)}, s[{sEps}:{sEps + 1}] op_sel_hi:[1,0]", 4, 2)
    else:
        each(lambda i: f"v_add_f32 v{tb + i}, s{sEps}, v{tb + i}")
    return o + cvt2(dst, tb)


def lin_quad(A, dst, tb, pk=False):
    o = []
    if pk:
        for i in (0, 2): o += I(f"v_pk_mul_f32 {pr(tb + i)}, {pr(A + i)}, {pr(vRs1)} op_sel_hi:[1,0]")
    else:
        for i in range(4): o += I(f"v_mul_f32 v{tb + i}, v{A + i}, v{vRs1}")
    return o + cvt2(dst, tb)


def gelu_quads(jobs, lo, hi, pk):
    o = []
    for n in range(lo, hi):
        A, name, toks = jobs[n // 4]
        gq, h = n % 4, (n % 4) // 2
        if gq == 0 or n == lo:
            pass
        o += gelu_quad(A + 4 * gq, A + 8 * h + 2 * (gq & 1), ET + 4 * (gq & 1), pk)
        if gq & 1:
            x = ins(f"buffer_store_dwordx4 v[{A + 8 * h}:{A + 8 * h + 3}], v{vHst}, {srd(SWS)}, s{sH4 if name == 'H4' else sHst} offen offset:{512 * h + 1024 * (HUNIT[name] % 4)} sc1")
            o.append(x); toks.append(x)
    return o


def kv_setup():
    o = []
    a = lambda *t: o.extend(I(*t))
    t0, t1, t2 = T0, T1, T2
    a(f"v_and_b32 v{t0}, 31, v{vL}", f"s_lshl_b32 s{sT0}, s{sW}, 5", f"v_add_u32 v{t0}, s{sT0}, v{t0}", f"v_mul_u32_u24 v{t0}, {KVT_LD}, v{t0}",
      f"v_add_u32 v{t0}, {KVT}, v{t0}", f"v_add_u32 v{vOnes}, 320, v{t0}",
      f"v_lshrrev_b32 v{t1}, 5, v{vL}", f"v_lshl_add_u32 v{vKf}, v{t1}, 3, v{t0}")
    a(f"v_bfe_u32 v{t0}, v{vL}, 2, 2", f"v_lshl_add_u32 v{t0}, v{t1}, 3, v{t0}", f"v_mul_u32_u24 v{t0}, {KVT_LD}, v{t0}", f"v_add_u32 v{t0}, {KVT}, v{t0}",
      f"v_bfe_u32 v{t1}, v{vL}, 4, 1", f"v_and_b32 v{t2}, 3, v{vL}", f"v_lshl_add_u32 v{t1}, v{t1}, 2, v{t2}",
      f"s_mul_i32 s{sT0}, s{sW}, 40", f"v_lshl_add_u32 v{vKB}, v{t1}, 3, v{t0}", f"v_add_u32 v{vKB}, s{sT0}, v{vKB}",
      f"v_add_u32 v{vKA}, 160, v{vKB}", f"v_add_u32 v{t0}, 320, v{t0}", f"v_cmp_eq_u32 vcc, 5, v{t1}", f"v_cndmask_b32 v{vKA}, v{vKA}, v{t0}, vcc")
    a(f"v_and_b32 v{t0}, 31, v{vL}", f"v_cmp_gt_u32 vcc, 24, v{t0}", f"v_lshlrev_b32 v{t0}, 3, v{t0}", f"v_and_b32 v{t1}, 192, v{vHiM}", f"v_add_u32 v{t0}, v{t0}, v{t1}",
      f"s_lshl_b32 s{sT0}, s{sU}, 2", f"s_add_u32 s{sT0}, s{sT0}, s{sW}", f"s_lshl_b32 s{sT0}, s{sT0}, 4", f"s_add_u32 s{sT0}, s{sT0}, s{sR}", f"s_mul_i32 s{sT0}, s{sT0}, 1280",
      f"s_add_u32 s{sT0}, s{sT0}, {KVP}", f"v_add_u32 v{t0}, s{sT0}, v{t0}", f"v_mov_b32 v{vAt}, {OOB}", f"v_cndmask_b32 v{vAt}, v{vAt}, v{t0}, vcc")
    return o


def kv_epilogue(aset, nshadow):
    blk = I(f"v_mov_b32 v{T2}, 0x3f803f80", f"v_mov_b32 v{T3}, 0x3f803f80")
    ones = ins(f"ds_write_b64 v{vOnes}, v[{T2}:{T3}]")
    blk.append(ones)
    wr, parts, n = [ones], [blk, []], 0
    for t, kind, cb in [(0, "k", 0), (1, "k", 64), (2, "m", 128), (3, "v", 160), (4, "v", 224)]:
        A = acc(aset[t])
        for g in range(4):
            isk = kind == "k" or (kind == "m" and g < 2)
            pk = n >= nshadow
            off = cb + 16 * g if kind != "m" else cb + (16 * g if g < 2 else 160 + 16 * (g - 2))
            x = ins(f"ds_write_b64 v{vKf}, v[{A + 4 * g}:{A + 4 * g + 1}] offset:{off}")
            parts[pk] += (phi_quad if isk else lin_quad)(A + 4 * g, A + 4 * g, ET + 4 * (g & 1), pk) + [x]
            wr.append(x)
            n += 1
    return parts[0], parts[1], wr


def kv_product(wr):
    blk = [ins("s_barrier", after=wr)]
    KA, FR = acc(1), acc(2)
    rd = []
    for j in range(8):
        f = FR + 8 * (j % 4)
        rd.append(I(f"ds_read_b64_tr_b16 v[{f}:{f + 1}], v{vKA} offset:{16 * j * KVT_LD}", f"ds_read_b64_tr_b16 v[{f + 2}:{f + 3}], v{vKA} offset:{(16 * j + 4) * KVT_LD}",
                    f"ds_read_b64_tr_b16 v[{f + 4}:{f + 5}], v{vKB} offset:{16 * j * KVT_LD}", f"ds_read_b64_tr_b16 v[{f + 6}:{f + 7}], v{vKB} offset:{(16 * j + 4) * KVT_LD}"))
    blk += rd[0] + rd[1] + rd[2]
    for j in range(8):
        f = FR + 8 * (j % 4)
        c = "0" if j == 0 else f"v[{KA}:{KA + 15}]"
        blk += I(f"v_mfma_f32_32x32x16_bf16 v[{KA}:{KA + 15}], v[{f + 4}:{f + 7}], v[{f}:{f + 3}], {c}")
        if j + 3 < 8:
            blk += rd[j + 3]
    at = []
    for q in range(3):
        at.append(ins(f"buffer_store_dwordx2 v[{KA + 4 * q}:{KA + 4 * q + 1}], v{vAt}, {srd(SWS)}, 0 offen offset:{384 * q} sc1"))
        blk += cvt2(KA + 4 * q, KA + 4 * q) + at[-1:]
    return blk, at


PQ = 128
OA = [112, 148, 164]


def o_setup():
    o = []
    a = lambda *t: o.extend(I(*t))
    t0, t1, t2, t3 = T0, T1, T2, T3
    a(f"s_sub_u32 s{sT2}, s{sG}, 1")
    o += flag_addr_col(vColK, sT2, t2, t3)
    a(f"s_lshl_b32 s{sK1}, s{sU}, 2", f"s_add_u32 s{sK1}, s{sK1}, s{sW}", f"s_mul_i32 s{sK1}, s{sK1}, 20480", f"s_add_u32 s{sK1}, s{sK1}, {KVP}",
      f"v_cmp_gt_u32 vcc, 60, v{vL}", f"v_lshlrev_b32 v{t0}, 4, v{vL}", f"v_mov_b32 v{vOl0}, {OOB}", f"v_cndmask_b32 v{vOl0}, v{vOl0}, v{t0}, vcc")
    for i, vw in enumerate((vOw0, vOw1)):
        a(f"v_lshl_add_u32 v{t0}, v{vL}, 1, {i}", f"v_mul_u32_u24 v{t2}, 2731, v{t0}", f"v_lshrrev_b32 v{t2}, 16, v{t2}",
          f"v_mul_u32_u24 v{t1}, 24, v{t2}", f"v_sub_u32 v{t1}, v{t0}, v{t1}",
          f"v_mul_u32_u24 v{t0}, 5, v{t2}", f"v_subrev_u32 v{t0}, 4, v{t0}", f"v_max_i32 v{t0}, v{t0}, v{t1}")
        a(f"s_mul_i32 s{sT0}, s{sW}, 5", f"v_add_u32 v{t2}, s{sT0}, v{t2}",
          f"v_lshrrev_b32 v{t3}, 2, v{t2}", f"v_lshlrev_b32 v{vw}, 5, v{t3}", f"v_and_b32 v{t3}, 1, v{t2}", f"v_lshl_add_u32 v{vw}, v{t3}, 4, v{vw}",
          f"v_bfe_u32 v{t3}, v{t2}, 1, 1", f"v_lshl_add_u32 v{vw}, v{t3}, 3, v{vw}", f"v_add_u32 v{vw}, {AM}, v{vw}")
        v2 = (vOw2, vOw3)[i]
        a(f"s_mul_i32 s{sT0}, s{sW}, 20", f"v_add_u32 v{t2}, s{sT0}, v{t1}",
          f"s_add_u32 s{sT0}, s{sW}, 80", f"v_mov_b32 v{t3}, s{sT0}", f"v_cmp_eq_u32 vcc, 20, v{t1}", f"v_cndmask_b32 v{t2}, v{t2}, v{t3}, vcc",
          f"v_mul_u32_u24 v{t2}, {AM_LD}, v{t2}", f"v_add_u32 v{vw}, v{vw}, v{t2}",
          f"v_add_u32 v{t2}, {4 * AM_LD}, v{vw}", f"v_cndmask_b32 v{v2}, v{vw}, v{t2}, vcc")
        a(f"v_cmp_lt_u32 vcc, 20, v{t0}", f"v_mov_b32 v{t2}, {SCR}", f"v_cndmask_b32 v{vw}, v{vw}, v{t2}, vcc", f"v_cndmask_b32 v{v2}, v{v2}, v{t2}, vcc")
    a(f"v_and_b32 v{t0}, 31, v{vL}", f"v_mul_u32_u24 v{t0}, {AM_LD}, v{t0}", f"v_and_b32 v{t1}, 16, v{vHiM}", f"v_add_u32 v{t0}, v{t0}, v{t1}", f"v_add_u32 v{vAM}, {AM}, v{t0}")
    return o


def am_zero():
    o = I(*[f"v_mov_b32 v{ET + k}, 0" for k in range(4)], f"v_lshlrev_b32 v{ET + 4}, 4, v0", f"v_add_u32 v{ET + 4}, {AM}, v{ET + 4}")
    tk = [ins(f"ds_write_b128 v{ET + 4}, v[{ET}:{ET + 3}] offset:{4096 * k}") for k in range(5)]
    return o + tk, tk


def phi_q(aset, pk, lo, hi):
    o = []
    for n in range(lo, hi):
        A = acc(aset[5 + n // 4]) + 4 * (n % 4)
        o += phi_quad(A, PQ + 2 * n, ET + 4 * (n & 1), pk)
    return o


KL, KS = 48, 112


def o_load():
    g = []
    for r in range(16):
        pre = I(f"s_and_b32 s{sH}, s{sR}, {3 if OPT['rotk'] else 0}", f"s_xor_b32 s{sH}, s{sH}, {r // 4}", f"s_mul_i32 s{sH}, s{sH}, 5120", f"s_add_u32 s{sH}, s{sH}, s{sK1}") if r % 4 == 0 else []
        g.append(pre + I(f"buffer_load_dwordx4 v[{KL + 4 * r}:{KL + 4 * r + 3}], v{vOl0}, {srd(SWS)}, s{sH} offen offset:{1280 * (r % 4)} sc1"))
    return poll_check(vColK, L_KP, dst=vPoll2, who="kv") + stamp("kvseen"), g


def o_write():
    o = []
    for r in range(16):
        for k in range(8):
            o += I(f"v_dot2_f32_bf16 v{KS + k}, v{KL + 4 * r + k // 2}, s{sOne1 if k & 1 else sOne0}, {'0' if r == 0 else 'v%d' % (KS + k)}")
    o += cvt2(KS, KS) + cvt2(KS + 2, KS + 4)
    wr = [ins(f"ds_write_b64 v{vw}, v[{KS + 2 * i}:{KS + 2 * i + 1}]") for i, vw in ((0, vOw0), (0, vOw2), (1, vOw1), (1, vOw3))]
    return o + wr, wr


def o_steps():
    seq = [(T, k) for T in (2, 0, 1) for k in range(5)]
    fr = lambda n: r4([("v", ET), ("v", ET + 4), ("v", T0)][n % 3])
    rd = lambda n: I(f"ds_read_b128 {fr(n)}, v{vAM} offset:{seq[n][0] * 32 * AM_LD + 32 * seq[n][1]}")
    steps = []
    for n, (T, k) in enumerate(seq):
        pre = []
        if n == 0:
            pre = rd(0) + rd(1)
        c = "0" if k == 0 else f"v[{OA[T]}:{OA[T] + 15}]"
        m = ins(f"v_mfma_f32_32x32x16_bf16 v[{OA[T]}:{OA[T] + 15}], {fr(n)}, v[{PQ + 4 * k}:{PQ + 4 * k + 3}], {c}")
        steps.append(dict(pre=pre, mfma=m, post=rd(n + 2) if n + 2 < 15 else [], budget=0))
    return steps


def o_finish(toks):
    o = []
    a = lambda *t: o.extend(I(*t))
    rc = ET
    for h in range(4): a(f"v_add_f32 v{rc + h}, s{sEps}, v{OA[2] + 8 + h}")
    for h in range(4): a(f"v_rcp_f32 v{rc + h}, v{rc + h}")
    a(f"v_bfi_b32 v{rc + 4}, v{vHiM}, v{rc + 1}, v{rc}", f"v_bfi_b32 v{rc + 5}, v{vHiM}, v{rc + 3}, v{rc + 2}")
    for i in (4, 0, 1, 2, 3):
        A = OA[i >> 1] + 8 * (i & 1)
        for gq in range(2):
            e0 = 16 * i + 8 * gq
            rr = {16: rc + 4, 56: rc + 5}.get(e0, rc + e0 // 20)
            sel = "op_sel:[0,1] op_sel_hi:[1,1]" if rr & 1 else "op_sel_hi:[1,0]"
            for k in (0, 2): a(f"v_pk_mul_f32 {pr(A + 4 * gq + k)}, {pr(A + 4 * gq + k)}, {pr(rr & ~1)} {sel}")
            o += cvt2(A + 2 * gq, A + 4 * gq)
        x = ins(f"buffer_store_dwordx4 v[{A}:{A + 3}], v{vHst}, {srd(SWS)}, s{sOst} offen offset:{512 * i} sc1")
        o.append(x); toks.append(x)
    return o


def p2_setup(RA):
    o = []
    a = lambda *t: o.extend(I(*t))
    t0, t1, t2 = T0, T1, T2
    a(f"s_and_b32 s{sT0}, s2, 1", f"s_lshl_b32 s{sT0}, s{sT0}, 3", f"s_and_b32 s{sT1}, s2, 4", f"s_add_u32 s{sT0}, s{sT0}, s{sT1}",
      *([f"s_bfe_u32 s{sT1}, s2, 0x20003", f"s_add_u32 s{sR2}, s{sT0}, s{sT1}", f"s_lshr_b32 s{sT1}, s2, 5"] if OPT["map2"] == 0 else
        [f"s_lshr_b32 s{sT1}, s2, 6", f"s_bfe_u32 s{sT2}, s2, {0x10003 if OPT['map2'] == 1 else 0x10008}", f"s_xor_b32 s{sT1}, s{sT1}, s{sT2}", f"s_add_u32 s{sR2}, s{sT0}, s{sT1}",
         f"s_bfe_u32 s{sT1}, s2, 0x30003"]),
      f"s_mul_i32 s{sJ160}, s{sT1}, 160", f"s_mov_b32 s{sD2h}, s{sT1}",
      f"s_bfe_u32 s{sT2}, s2, 0x10001",
      f"s_lshl_b32 s{sE}, s{sT2}, 2", f"s_add_u32 s{sE}, s{sE}, s{sW}",
      f"s_and_b32 s{sT0}, s{sW}, 1", f"s_lshl_b32 s{sT0}, s{sT0}, 1", f"s_mul_i32 s{sBq}, s{sE}, 6", f"s_sub_u32 s{sBq}, s{sBq}, s{sT0}",
      f"s_sub_u32 s{sBk}, s{sBq}, s{sT0}", f"s_add_u32 s{sBq}, s{sBq}, 4",
      f"s_sub_u32 s{sB6}, s{sE}, s{sT2}", f"s_add_u32 s{sB6}, s{sB6}, 48", f"s_cmp_eq_u32 s{sW}, 3", f"s_cselect_b32 s{sL6}, {OOB}, 0",
      f"s_lshl_b32 s{sT0}, s{sR2}, 1", f"s_add_u32 s{sT1}, s{sT0}, s{sT2}",
      f"s_mul_i32 s{sHB}, s{sT1}, {4 * NB * 1024}", f"s_add_u32 s{sHB}, s{sHB}, {HB}",
      f"s_lshl_b32 s{sRow}, s{sT1}, 2", f"s_add_u32 s{sRow}, s{sRow}, s{sW}", f"s_mul_i32 s{sRow}, s{sRow}, {16 * LDX}", f"s_add_u32 s{sRow}, s{sRow}, s{sJ160}",
      f"s_xor_b32 s{sT1}, s{sT1}, 1", f"s_mul_i32 s{sHA}, s{sT1}, {4 * NB * 1024}", f"s_add_u32 s{sHA}, s{sHA}, {HB}")
    a(f"s_add_u32 s{sT0}, s{sBq}, 20", f"s_lshl_b32 s{sHq}, s{sT0}, 10", f"s_add_u32 s{sT0}, s{sBk}, 20", f"s_lshl_b32 s{sHk}, s{sT0}, 10",
      f"s_add_u32 s{sT0}, s{sB6}, 20", f"s_lshl_b32 s{sH6}, s{sT0}, 10", f"s_or_b32 s{sH6}, s{sH6}, s{sL6}", f"s_lshl_b32 s{sHo}, s{sW}, 10",
      f"s_mul_i32 s{sWq}, s{sBq}, {32 * LDX}", f"s_add_u32 s{sWq}, s{sWq}, s{sJ160}", f"s_mul_i32 s{sWk}, s{sBk}, {32 * LDX}", f"s_add_u32 s{sWk}, s{sWk}, s{sJ160}",
      f"s_mul_i32 s{sW6}, s{sB6}, {32 * LDX}", f"s_add_u32 s{sW6}, s{sW6}, s{sJ160}", f"s_or_b32 s{sW6}, s{sW6}, s{sL6}", f"s_mul_i32 s{sWo}, s{sW}, {32 * LDX}", f"s_add_u32 s{sWo}, s{sWo}, s{sJ160}")
    for i in range(5):
        a(f"v_add_u32 v{t0}, {64 * i}, v{vL}", f"v_mul_u32_u24 v{t1}, 6554, v{t0}", f"v_lshrrev_b32 v{t1}, 16, v{t1}",
          f"v_mul_u32_u24 v{t2}, 10, v{t1}", f"v_sub_u32 v{t2}, v{t0}, v{t2}", f"v_lshlrev_b32 v{t2}, 4, v{t2}",
          f"v_mul_u32_u24 v{vW2[i]}, {LDX}, v{t1}", f"v_add_u32 v{vW2[i]}, v{vW2[i]}, v{t2}")
        if i < 3:
            a(f"v_mul_u32_u24 v{vTr[i]}, 336, v{t1}", f"v_lshl_add_u32 v{vTr[i]}, v{t2}, 1, v{vTr[i]}",
              f"s_mul_i32 s{sT0}, s{sW}, 5632", f"s_add_u32 s{sT0}, s{sT0}, {FIN}", f"v_add_u32 v{vTr[i]}, s{sT0}, v{vTr[i]}")
        if i in (1, 2, 3):
            a(f"v_subrev_u32 v{vW2[i]}, {1024 * i}, v{vW2[i]}")
    a(f"v_lshlrev_b32 v{vL16}, 4, v{vL}")
    for t in range(4):
        a(f"s_add_u32 s{sT0}, s{sW}, {t}", f"s_and_b32 s{sT0}, s{sT0}, 3", f"s_mul_i32 s{sT0}, s{sT0}, {NB * 1024}", f"s_add_u32 s{sT0}, s{sT0}, s{sHB}",
          f"v_add_u32 v{vH['B'][t]}, s{sT0}, v{vL16}")
    a(f"v_lshrrev_b32 v{t0}, 5, v{vL}", f"v_lshlrev_b32 v{t0}, 4, v{t0}", f"v_bfe_u32 v{t1}, v{vL}, 4, 1", f"v_lshl_add_u32 v{t0}, v{t1}, 2, v{t0}",
      f"v_bfe_u32 v{t1}, v{vL}, 2, 2", f"v_add_u32 v{t0}, v{t0}, v{t1}", f"v_mul_u32_u24 v{t0}, 160, v{t0}", f"v_and_b32 v{t1}, 3, v{vL}",
      f"v_lshl_add_u32 v{t0}, v{t1}, 3, v{t0}", f"v_add_u32 v{vT2[0]}, s{sW5}, v{t0}",
      f"v_add_u32 v{vT2[1]}, 0x10000, v{vT2[0]}", f"v_add_u32 v{vT2[2]}, 0x20000, v{vT2[0]}")
    o += flag_addr_row(vRow2, sR2, t0, t1)
    a(f"v_bfe_u32 v{vIsQ}, v{vL}, 2, 1")
    a(f"s_add_u32 s{sRot}, s{sR2}, s{sD2h}", f"s_and_b32 s{sRot}, s{sRot}, {3 if OPT['rot2'] else 0}", f"s_lshl_b32 s{sR10}, s{sRot}, 10")
    a(f"s_lshl_b32 s{sT0}, s{sR2}, 3", f"s_add_u32 s{sT0}, s{sT0}, s{sD2h}", f"s_mul_i32 s{sT0}, s{sT0}, {NB * 1024}", f"s_add_u32 s{sT0}, s{sT0}, {HB}",
      f"v_and_b32 v{t0}, 31, v{vL}", f"v_lshlrev_b32 v{t0}, 7, v{t0}", f"v_add_u32 v{t2}, s{sT0}, v{t0}",
      f"v_cmp_gt_u32 vcc, 32, v{vL}", f"v_mov_b32 v{t1}, s{sH6}", f"v_mov_b32 v{vTch[0]}, s{sHq}", f"v_cndmask_b32 v{vTch[0]}, v{t1}, v{vTch[0]}, vcc",
      f"v_cmp_gt_u32 vcc, 40, v{vL}", f"v_mov_b32 v{t1}, {OOB}", f"v_cndmask_b32 v{vTch[0]}, v{t1}, v{vTch[0]}, vcc", f"v_add_u32 v{vTch[0]}, v{vTch[0]}, v{t2}",
      f"v_add_u32 v{t2}, s{sHk}, v{t2}", f"v_cmp_gt_u32 vcc, 16, v{vL}", f"v_cndmask_b32 v{vTch[1]}, v{t1}, v{t2}, vcc",
      f"s_mul_i32 s{sT0}, s{sW}, {NB * 1024}", f"s_add_u32 s{sT0}, s{sT0}, s{sHB}", f"s_lshl_b32 s{sT1}, s{sJ160}, 4", f"s_add_u32 s{sT0}, s{sT0}, s{sT1}",
      f"v_lshlrev_b32 v{t0}, 7, v{vL}", f"v_add_u32 v{t0}, s{sT0}, v{t0}", f"v_cmp_gt_u32 vcc, 20, v{vL}", f"v_cndmask_b32 v{vTch[2]}, v{t1}, v{t0}, vcc")
    a(f"v_add_u32 v{vRW[0]}, s{sW5}, v{vL16}", f"v_add_u32 v{vRW[1]}, 0x10000, v{vRW[0]}", f"v_add_u32 v{vRW[2]}, 0x20000, v{vRW[0]}")
    for t in range(1, 4):
        a(f"s_sub_u32 s{sT0}, s{sW}, {t}", f"s_and_b32 s{sT0}, s{sT0}, 3", f"s_mul_i32 s{sT0}, s{sT0}, 5120", f"s_add_u32 s{sT0}, s{sT0}, {RA[t - 1]}",
          f"v_add_u32 v{vRR[t - 1]}, s{sT0}, v{vL16}")
    a(f"s_xor_b32 s{sT0}, s2, 2", f"s_lshl_b32 s{sT1}, s{sT0}, 7", f"s_lshl_b32 s{sT2}, s{sW}, 2", f"s_add_u32 s{sT1}, s{sT1}, s{sT2}", f"v_mov_b32 v{vPar}, s{sT1}")
    a(f"s_lshl_b32 s{sXc}, s2, 2", f"s_add_u32 s{sXc}, s{sXc}, s{sW}", f"s_mul_i32 s{sXc}, s{sXc}, 3072", f"s_add_u32 s{sXc}, s{sXc}, {XCH}")
    a(f"v_and_b32 v{vFo2}, {OOB}, v{vHiM}", f"v_or_b32 v{vFo2}, v{vFo2}, v{vW2[2]}")
    a(f"v_lshrrev_b32 v{t0}, 4, v{vL}", f"v_lshlrev_b32 v{t0}, 3, v{t0}", f"v_add_u32 v{vFo[0]}, s{sJ160}, v{t0}")
    a(f"v_and_b32 v{t0}, 15, v{vL}", f"v_mul_u32_u24 v{t0}, 336, v{t0}", f"v_lshrrev_b32 v{t1}, 4, v{vL}", f"v_lshl_add_u32 v{t0}, v{t1}, 4, v{t0}",
      f"s_mul_i32 s{sT0}, s{sW}, 5632", f"s_add_u32 s{sT0}, s{sT0}, {FIN}", f"v_add_u32 v{vTw}, s{sT0}, v{t0}")
    return o


FIN = 141312


def tw_setup():
    if OPT["mtq"]:
        return I(f"s_and_b32 s{sT0}, s2, 63", f"s_lshr_b32 s{sT1}, s2, 7", f"s_lshl_b32 s{sT1}, s{sT1}, 6", f"s_add_u32 s{sT0}, s{sT0}, s{sT1}",
                 f"s_lshl_b32 s{sT0}, s{sT0}, 2", f"s_add_u32 s{sT0}, s{sT0}, s{sW}", f"s_mul_i32 s{sTa}, s{sT0}, {34 * 128}", f"s_mul_i32 s{sTb}, s{sT0}, {13 * 128}",
                 f"v_lshlrev_b32 v{vTW}, 7, v{vL}")
    return I(f"s_lshl_b32 s{sT0}, s2, 2", f"s_add_u32 s{sT0}, s{sT0}, s{sW}", f"s_mul_i32 s{sTa}, s{sT0}, {17 * 128}", f"s_mul_i32 s{sTb}, s{sT0}, {7 * 128}",
             f"v_lshlrev_b32 v{vTW}, 7, v{vL}")


def masked(n, *body):
    lo, hi = ((1 << n) - 1) & 0xffffffff, ((1 << n) - 1) >> 32
    pre = [f"s_mov_b32 exec_hi, {hi}"] + ([f"s_mov_b32 exec_lo, {lo}"] if n < 32 else [])
    return [Bundle(I(*pre, *body, "s_mov_b64 exec, -1"))]


def mall_touch(kv):
    if not OPT["touch_w"] or (kv and OPT["mtq"]):
        return []
    return [masked(n, f"buffer_load_dword v{vTd}, v{vTW}, {srd(sr)}, s{so} offen") for sr, so, n in ((SW2, sTa, 34 if OPT["mtq"] else 17), (SWO, sTb, 13 if OPT["mtq"] else 7))]


def tlb_warm(shift):
    o = I(f"v_lshlrev_b32 v178, {shift}, v{vL}")
    for sr in (SWS, SOUT, SW2, SWO):
        o += I(f"buffer_load_dword v{vTd}, v178, {srd(sr)}, 0 offen")
    return [Bundle(o)]


def sprinkle(valu, groups, lo=0.0, hi=1.0):
    valu, out, k = bundled(valu), [], 0
    for i, x in enumerate(valu):
        while k < len(groups) and i >= len(valu) * (lo + (hi - lo) * k / len(groups)):
            out += groups[k]
            k += 1
        out.append(x)
    return out + [y for g in groups[k:] for y in g]


def b2_load():
    return [I(f"buffer_load_dwordx2 v[{accB(0, f)[1] + 2}:{accB(0, f)[1] + 3}], v{vFo[0]}, {srd(SB2)}, 0 offen offset:{32 * f}") for f in range(5)]


def b2_unpack():
    o = []
    for f in range(5):
        d = accB(0, f)[1]
        o += I(f"v_lshlrev_b32 v{d}, 16, v{d + 2}", f"v_and_b32 v{d + 1}, 0xffff0000, v{d + 2}", f"v_lshlrev_b32 v{d + 2}, 16, v{d + 3}", f"v_and_b32 v{d + 3}, 0xffff0000, v{d + 3}")
    return o


def ha_setup():
    o = I(f"s_sub_u32 s{sT0}, s{sHA}, s{sHB}")
    return [Bundle(o + I(*[f"v_add_u32 v{vH['A'][t]}, s{sT0}, v{vH['B'][t]}" for t in range(4)]))]


class Program:
    def __init__(s, kv):
        s.kv = kv
        if kv:
            s.tiles, s.T = ["K0", "K1", "MX", "V0", "V1", "Ha", "Hb"], 5
            s.aset = {t: t for t in range(7)}
        else:
            s.tiles, s.T = ["H0", "H1", "H2", "H3", "H4", "Q0", "Q1", "QM"], 4
            s.aset = {t: t for t in range(8)}
        s.spine, s.head, s.sides = [], [], []

    def at(s, idx):
        return s.head if idx < 0 else s.spine[idx]["pre"]

    def pin(s, idx, g):
        st = s.spine[max(idx, 0)]
        if st.get("pinned"):
            st["post"].extend(g)
        else:
            st["pre2"] = g[:-1]
            st["post"].append(g[-1])
        st["pinned"] = True
        st["budget"] -= len(g)

    def spread(s, gs, lo, hi):
        last = lo
        for i, g in enumerate(gs):
            last = lo + (i * max(hi - lo, 1)) // len(gs)
            s.pin(last, g)
        return last

    def w2_dma(s, kind, i, z):
        if kind == "E":
            base, k0, sr = (sWq, i, SW2) if i < 4 else (sW6, 0, SW2) if i == 4 else (sWk, i - 5, SW2)
        else:
            base, k0, sr = sWo, 4 * i, SWO
        x, so = [], base
        if OPT["rot2"] and i != 4:
            m, mul = (3, 1) if kind == "E" and i < 4 else (1, 1) if kind == "E" else (3, 4)
            x = (I(f"s_and_b32 s{sD2w}, s{sRot}, 1", f"s_xor_b32 s{sD2w}, s{sD2w}, {k0}") if m == 1 else I(f"s_xor_b32 s{sD2w}, s{sRot}, {k0 // mul}"))
            x += I(f"s_mul_i32 s{sD2w}, s{sD2w}, {mul * 32 * LDX}", f"s_add_u32 s{sD2w}, s{sD2w}, s{base}")
            so = sD2w
        elif k0:
            x, so = I(f"s_add_u32 s{sD2w}, s{base}, {k0 * 32 * LDX}"), sD2w
        after = s.zrd.get(z, [])
        gs = []
        for k in range(5):
            d = ins(f"buffer_load_dwordx4 v{vW2[k]}, {srd(sr)}, s{so} offen offset:{1024 * (k % 4)} lds", after=after if k == 0 else ())
            gs.append((x if k == 0 else []) + I(f"s_add_u32 m0, s{sW5}, {z + (4096 if k == 4 else 0)}") + [d])
        s.w2tok[(kind, i)] = [g[-1] for g in gs]
        s.w2z[(kind, i)] = z
        if OPT.get("lat") == f"{kind}{i}":
            x = stamp("lat0") + I("s_waitcnt vmcnt(0)", "s_nop 15", "s_nop 15") + stamp("lat1") + [y for g in gs for y in g] + I("s_waitcnt vmcnt(0)") + stamp("lat2") + I("s_nop 15", "s_nop 15", "s_nop 15", "s_nop 15")
            return [[Bundle(x)]]
        return gs

    def w2_reads(s, kind, i):
        x = []
        z = s.w2z[(kind, i)]
        for f in range(5):
            k, r = wfrag(kind, i, f)
            for h in range(2):
                ad = z + 32 * f + 1280 * h
                x.append(ins(f"ds_read_b64_tr_b16 {k}[{r + 2 * h}:{r + 2 * h + 1}], v{vT2[ad >> 16]} offset:{ad & 0xffff}", after=s.w2tok[(kind, i)]))
        s.zrd[z] = x
        return x

    def h_load(s, n, blk):
        kind, i = blk[0], int(blk[1])
        x = []
        if i == 4:
            x, so, imm = (I(f"s_add_u32 s{sD2h}, s{sHo}, 16384"), sD2h, 0) if kind == "O" else ([], sH6, 0)
        elif kind == "O":
            x, so, imm = I(f"s_xor_b32 s{sD2h}, s{sRot}, {i}", f"s_lshl_b32 s{sD2h}, s{sD2h}, 12", f"s_add_u32 s{sD2h}, s{sD2h}, s{sHo}"), sD2h, 0
        elif not OPT["rot2"]:
            so, imm = (sHq, 1024 * i) if i < 4 else (sHk, 1024 * (i - 5))
        elif i < 4:
            x, so, imm = I(f"s_xor_b32 s{sD2h}, s{sR10}, {1024 * i}", f"s_add_u32 s{sD2h}, s{sD2h}, s{sHq}"), sD2h, 0
        else:
            x, so, imm = I(f"s_and_b32 s{sD2h}, s{sR10}, 1024", f"s_xor_b32 s{sD2h}, s{sD2h}, {1024 * (i - 5)}", f"s_add_u32 s{sD2h}, s{sD2h}, s{sHk}"), sD2h, 0
        v = vH["A" if kind == "A" else "B"]
        return [(x if t == 1 else []) + I(f"buffer_load_dwordx4 a[{aH(n, t)}:{aH(n, t) + 3}], v{v[t]}, {srd(SWS)}, s{so} offen offset:{imm} sc1") for t in (1, 2, 3, 0)]

    def build(s, xs):
        kv, T, tiles = s.kv, s.T, s.tiles
        o = []
        a = lambda *t: o.extend(I(*t))
        if kv:
            a(f"s_lshl_b32 s{sT0}, s{sP}, 8", f"s_sub_u32 s{sU64}, s{sU64}, s{sT0}", f"s_add_u32 s{sKq}, s{sKq}, 1280", f"s_mov_b32 s{sLast}, 0", f"s_mov_b32 s{sU4}, 0")
            o += wk_setup(True)
        else:
            a(f"s_lshl_b32 s{sT0}, s{sP}, 7", f"s_sub_u32 s{sU64}, s{sU64}, s{sT0}", f"s_add_u32 s{sU64}, s{sU64}, 256")
            o += wp_setup()
        dma = lambda pre, m0, v, sr, imm: pre + I(f"s_add_u32 m0, {m0}", f"buffer_load_dwordx4 v{v}, {srd(sr)}, s{sDw} offen offset:{imm} lds")
        so = lambda base, off, last=False: I(f"s_add_u32 s{sDw}, s{base}, {off}") + (I(f"s_or_b32 s{sDw}, s{sDw}, s{sLast}") if last else [])
        two = lambda regs, ad: (regs[0], ad) if ad < 0x8000 else (regs[1], ad - 0x8000)

        def pair_dma(k, bases):
            return [dma(so(sU64, k * 64 * LD1) + swap(sDw, sSw1, k) if (p, i) == (0, 0) else [], f"s{sW2k}, {b - 128 * p}", vWp[i], SW1, 128 * p + 1024 * i) for p, b in enumerate(bases) for i in range(2)]

        pair_step = lambda t, k, j, b, shift: dict(t=t, k=k, j=j, v=vTP[(t - (5 if kv else 0)) & 1], o1=b + 2048 * j - shift, d=512)
        stages = []
        for n in range(10):
            if kv:
                sl = (n % 4) * SLOT
                w = [dma(so(sKw, n * 64 * LDQ) + swap(sDw, sSwQ, n) if i == 0 else [], f"s{sW5}, {sl + 1024 * i}", vWk[i], SQKV, 0) for i in range(5)]
                st = []
                for t, (regs, col) in enumerate(((vTK, 0), (vTK, 64), (vTM, 0), (vTK, 2560), (vTK, 2624))):
                    for j in range(4):
                        v, off = two(regs, sl + 5120 * j + col)
                        st.append(dict(t=t, k=n, j=j, v=v, o1=off, d=640))
            else:
                sl = (n % 4) * 16384
                w = pair_dma(n, [sl, sl + 8192])
                st = [pair_step(t, n, j, sl + 8192 * (t >> 1), 0) for t in range(4) for j in range(4)]
            stages.append(dict(w=(dma_x(n) if n >= len(xs) else []) + w, steps=st, issue=n - 2, xtok=[g[-1] for g in xs[n]] if n < len(xs) else []))
        stages[9]["steps"] += [dict(t=t, extra=True) for t in range(T)]
        if kv:
            for m in range(10):
                b = RING2 + 8192 * m if m < 5 else 8192 * (m - 5)
                st = [pair_step(t, m, j, b, 0x8000 if m < 5 else 0) for t in (5, 6) for j in range(4)]
                for x in st:
                    x["v"] += 0 if m < 5 else 2
                stages.append(dict(w=pair_dma(m, [b]), steps=st, issue=8 if m < 2 else 9 if m < 5 else None))
            stages[-1]["steps"].insert(4, dict(t=5, extra=True))
            stages[-1]["steps"].append(dict(t=6, extra=True))
        else:
            for gq in range(5):
                w, st = [], []
                for m in (2 * gq, 2 * gq + 1):
                    w.append(dma(so(sU4, m * 64 * LD1) + swap(sDw, sSw1, m) + I(f"s_or_b32 s{sDw}, s{sDw}, s{sLast}"), f"s{sWL}, {0x8000 + 4096 * m}", vW1, SW1, 0))
                    st += [dict(t=4, k=m, j=j, v=vTR, o1=4096 * m + 1024 * j, d=256) for j in range(4)]
                stages.append(dict(w=w, steps=st, issue=8 if gq < 2 else 9))
            stages[-1]["steps"].append(dict(t=4, extra=True))
            for qs in range(5):
                b = (qs % 4) * SLOT
                w = [dma(so(sKw, qs * 128 * LDQ) if i == 0 else [], f"s{sW5}, {b + (4096 if i == 4 else 0)}", vWk[i], SQKV, 1024 * (i % 4)) for i in range(5)]
                st = []
                for kk in range(2):
                    for t, regs, col in ((5, vTK, 0), (6, vTK, 64), (7, vTM, 0)):
                        for j in range(4):
                            v, off = two(regs, b + 2560 * (4 * kk + j) + col)
                            st.append(dict(t=t, k=2 * qs + kk, j=j, v=v, o1=off, d=640))
                        if qs == 4 and kk == 1:
                            st.append(dict(t=t, extra=True))
                stages.append(dict(w=w, steps=st, issue=(11, 12, 15, 16, 17)[qs]))
        w0 = [x for g in stages[0]["w"] for x in g]
        if not OPT["s0first"]:
            o += stamp("prew0") + w0 + stamp("w0")
        if kv:
            o += nonce_publish()
        a(f"s_lshl_b32 s{sWL}, s{sW}, 10")
        if not kv:
            a(f"s_lshr_b32 s{sT0}, s{sU}, 2", f"s_sub_u32 s{sT0}, s{sU}, s{sT0}", f"s_add_u32 s{sT0}, s{sT0}, 48", f"s_min_u32 s{sT0}, s{sT0}, 53", f"s_lshl_b32 s{sU4}, s{sT0}, 6",
              f"s_and_b32 s{sT0}, s{sU}, 3", f"s_cmp_eq_u32 s{sT0}, 3", f"s_cselect_b32 s{sLast}, {OOB}, 0")
        o += s0_addr(tiles)
        X = OPT["nos0"] or ()
        o += stamp("pres0")
        s0late = s0_mem() if OPT["s0late"] else []
        for g in ([] if OPT["s0late"] else s0_mem()): o += g
        if OPT["s0first"]:
            o += w0
        o += x_read_setup() + (tk_setup(True) if kv else tp_setup(0))
        if OPT["wsoff"]:
            a(f"s_add_u32 s{P_WS}, s{P_WS}, {OPT['wsoff'] << 20}", f"s_addc_u32 s{P_WS + 1}, s{P_WS + 1}, 0")
        o += make_srd(SWS, P_WS, WS_SIZE) + I(f"s_mov_b32 s{sOne0}, 0x3f80", f"s_mov_b32 s{sOne1}, 0x3f800000")
        first_mem = stages[1]["w"]
        if OPT["dma1_early"]:
            for g in first_mem: o += g
            first_mem = []
        s.prepos = len(o)
        o += stamp("issued")
        steps, first = [], {}
        for n, st in enumerate(stages):
            first[n] = len(steps)
            steps += st["steps"]
        n1 = len(steps)
        first[len(stages)] = n1
        end1 = first[10]
        s.spine = spine = [dict(pre=[], post=[], budget=OPT["b1p"] if q < end1 else OPT["b1"]) for q in range(n1)]
        reads, done, xfree = {}, {}, {}
        for q, st in enumerate(steps):
            fr = aW + 4 * (q % NRING)
            A = acc(s.aset[st["t"]])
            if st.get("extra"):
                reads[q] = I(f"ds_read_b128 a[{fr}:{fr + 3}], v{vEXr} offset:{512 * st['t']}")
                spine[q]["mfma"] = ins(f"v_mfma_f32_32x32x16_bf16 v[{A}:{A + 15}], a[{fr}:{fr + 3}], v[{vXE}:{vXE + 3}], v[{A}:{A + 15}]")
                done[tiles[st["t"]]] = q
            else:
                assert 0 <= st["o1"] and st["o1"] + st["d"] < 65536
                reads[q] = I(f"ds_read_b64_tr_b16 a[{fr}:{fr + 1}], v{st['v']} offset:{st['o1']}", f"ds_read_b64_tr_b16 a[{fr + 2}:{fr + 3}], v{st['v']} offset:{st['o1'] + st['d']}")
                xa = aX + 16 * st["k"] + 4 * st["j"]
                c = "0" if (st["k"] == 0 and st["j"] == 0) else f"v[{A}:{A + 15}]"
                spine[q]["mfma"] = ins(f"v_mfma_f32_32x32x16_bf16 v[{A}:{A + 15}], a[{fr}:{fr + 3}], a[{xa}:{xa + 3}], {c}")
                xfree[xa] = q
        seq = OPT["seq"].split()
        ngap = max(n for n, b in enumerate(seq) if b[0] == "A") + 1
        s.w2tok, s.w2z, s.zrd = {}, {}, {}
        p2first = {}
        s.gapbar = ins("s_barrier")
        if not kv:
            ow, owr = o_write()
            spine.append(dict(pre=[], post=[ins("s_barrier", after=owr)], mfma=None, budget=0))
            spine += o_steps()
            s.otk = []
            p2first["ofin"] = len(spine)
            spine.append(dict(pre=o_finish(s.otk) + stamp("ofin"), post=[ins("s_barrier")], mfma=None, budget=0))
        for n, blk in enumerate(seq):
            if n == ngap:
                p2first["gap"] = len(spine)
                spine.append(dict(pre=[], post=[s.gapbar], mfma=None, budget=0))
            p2first[n] = len(spine)
            kind, i = blk[0], int(blk[1])
            for t in (1, 2, 3, 0):
                for f in range(5):
                    d = ("v", accA(t, f)) if kind == "A" else accB(t, f)
                    zero = blk == "A0" or (blk == "B0" and t != 0)
                    assert seq.index("A0") == 0 and seq.index("B0") == min(k for k, b in enumerate(seq) if b[0] != "A")
                    m = ins(f"v_mfma_f32_16x16x32_bf16 {r4(d)}, {r4(wfrag('O' if kind == 'O' else 'E', i, f))}, a[{aH(n, t)}:{aH(n, t) + 3}], {'0' if zero else r4(d)}")
                    spine.append(dict(pre=[], post=[], mfma=m, budget=OPT["b2"]))
        nend = len(spine)
        p2first[len(seq)] = nend
        spine.append(dict(pre=[], post=[], mfma=None, budget=0))
        last_dma, bar = {}, {}
        for n in range(len(stages)):
            pos = first[n] - LOOK
            bar[n] = b = ins("s_barrier", after=[g[-1] for g in stages[n]["w"]] + stages[n].get("xtok", []))
            blk = [b] + (stamp(f"st{n}") if n in OPT["stages"] else [])
            if n < 10:
                for j in range(4):
                    xa = aX + 16 * n + 4 * j
                    x = I(f"ds_read_b128 a[{xa}:{xa + 3}], v{vXR[j]} offset:{(n % 3) * 4096}")
                    if n and OPT["xpost"]:
                        spine[pos + j]["post"] += x
                        spine[pos + j]["budget"] -= 1
                    else:
                        blk += x
            s.at(pos).extend(blk)
            gs = list(first_mem) + s0late if n == 0 else []
            gs += [g for st in stages[2:] if st["issue"] == n for g in st["w"]]
            if n == OPT["s0ld"]:
                gs += mall_touch(kv)
            if gs:
                lo = max(pos + 1, 0)
                hi = first[n + 1] - LOOK
                last_dma[n] = s.spread(gs, lo, lo + int((hi - lo) * (1.0 if n < 10 else OPT["dspan"])))
        for q in range(n1):
            if q < LOOK:
                s.head.extend(reads[q])
            else:
                spine[q - LOOK]["post"][0:0] = reads[q]
            if q % 2 == 0 and q + 1 < n1:
                spine[q]["mfma"].after += reads[q + 1]
        S = OPT["s0k"] if kv else OPT["s0"]
        sides = s.sides
        s0m, s0st = s0_produce(kv)
        for q in range(first[S[0] + 1] - LOOK):
            spine[q]["budget"] += OPT["b0"] - OPT["b1p"]
        if "math" not in X:
            sides.append(side(s0m, start=OPT["s0start"] * T if S[0] == 0 else first[S[0]] - LOOK, end=last_dma[S[0]], name="s0math"))
        spine[last_dma[S[0]]]["post"] += I(f"buffer_load_dword v{vPoll2}, v{vPoll2}, {srd(SDBG)}, 0 offen sc1") + (s0st if "store" not in X else []) + stamp("s0b")
        later = (wp_setup() + tp_setup(0x8000) + I(f"v_subrev_u32 v{vTP[0] + 2}, 0x8000, v{vTP[0]}", f"v_subrev_u32 v{vTP[1] + 2}, 0x8000, v{vTP[1]}")) if kv else (w1_setup() + tr_setup(0x8000) + wk_setup(False) + tk_setup(False))
        s.RA, s.RB = ([Z1, Z2, Z0], [ZB, Z5, Z6]) if kv else ([Z2, Z5, ZA], [ZB, Z6, Z1])
        allset = bundled(late_setup() + tw_setup() + s0_consume_addr() + later + p2_setup(s.RA) + (kv_setup() if kv else o_setup()))
        npre = OPT["npre"][kv]
        o[s.prepos:s.prepos] = allset[:npre]
        n_l = len(bundled(late_setup() + tw_setup() + s0_consume_addr()))
        ls = side(allset[npre:max(n_l, npre)], start=0, end=last_dma[1], name="late")
        sides.append(ls)
        if "sig" not in X:
            spine[last_dma[S[1]]]["post"] += nonce_check(vPoll2) + signal(L_S0, s0st)
        p2s = side(allset[max(n_l, npre):], start=0, follow=ls, end=last_dma[OPT["b2at"]], name="p2setup")
        sides.append(p2s)
        if "poll" not in X:
            spine[last_dma[S[2]]]["post"] += [poll_issue(vRowF, vPoll), poll_issue(vColF, vPoll2)]
            cl = s0_consume_loads()
            spine[last_dma[S[3]]]["post"] += cl[:-5]
            s.spread([[x] for x in cl[-5:]], last_dma[S[3]], last_dma[S[3]] + OPT["csp"])
        assert S[4] > S[3]
        s.spread(bias_loads(), last_dma[OPT['b2at']] + 1, last_dma[OPT['b2at']] + 7)
        cm, extok = s0_consume_math()
        s.b2 = b2_unpack() + ha_setup()
        exbar = end1 - T - LOOK - 1
        cms = side(cm, start=last_dma[S[4]] + 1, end=exbar - 1, follow=p2s, name="s0use")
        sides.append(cms)
        spine[exbar]["pre"].insert(0, ins("s_barrier", after=[extok]))
        spine[end1]["pre"] = stamp("pass1") + spine[end1]["pre"]
        spine[n1]["pre"] += stamp("mfma1")
        b2s = side(s.b2, start=exbar + 1, end=end1, follow=cms, name="b2")
        sides.append(b2s)
        flat = lambda gs: [x for g in gs for x in g]
        W = s.w2_dma
        gap = p2first["gap"]

        def RD(kind, i, lo, step=1):
            if kind == "E":
                assert lo > max(xfree[xa] for xa in range(20 * i, 20 * i + 20, 4)), (i, lo)
            for k, x in enumerate(s.w2_reads(kind, i)):
                spine[lo + k * step]["post"].append(x)
                spine[lo + k * step]["budget"] -= 1

        def cp(n, kl, ql):
            x = poll_check(vRow2, kl, ql) + stamp("cp" + seq[n])
            if OPT["touch_h"]:
                x += I(f"buffer_load_dword v{vTd}, v{vTch[dict(A0=0, A5=1, O0=2)[seq[n]]]}, {srd(SWS)}, 0 offen sc1")
            return x

        HL = lambda n: s.h_load(n, seq[n])
        if OPT["tlb"]:
            spine[first[OPT["tlb"][0]]]["post"] += tlb_warm(OPT["tlb"][1])
        k1 = len(stamp("pass1"))
        f = first
        if kv:
            epi0, epi, wr = kv_epilogue(s.aset, 0)
            prod, at = kv_product(wr)
            ha, ft = [], []
            rest = [g for m in range(15, 20) for g in stages[m]["w"]]
            spine[end1]["pre"][k1:k1] = [ins("s_barrier")] + sprinkle(epi0 + epi, rest + W("E", 0, Z0), 0, 0.9) + prod + stamp("kvdone")
            s.spread(W("E", 1, ZA) + W("E", 2, ZB), f[11], f[13] + 4)
            RD("E", 0, f[12] + 4)
            s.spread(W("E", 3, Z5) + W("E", 4, Z0), f[14], f[16])
            s.spread(W("E", 5, Z6), f[16], f[17] + 4)
            RD("E", 1, f[17]); RD("E", 2, n1 - 11)
            s.spread(W("E", 6, ZA), f[18] + 4, n1 - 2)
            jobs = [(acc(s.aset[5]), "Ha", ha), (acc(s.aset[6]), "Hb", ha)]
            one = lambda xs: [[x] for x in xs]
            if OPT["kvo"]:
                e1 = sprinkle(gelu_quads(jobs, 0, 8, True), one(s.w2_reads("E", 3) + s.w2_reads("E", 4) + s.w2_reads("E", 5))) + stamp("expo")
                x = s.w2_reads("E", 6)
                wo = W("O", 1, ZB) + W("O", 2, Z5) + W("O", 3, Z6) + W("O", 0, ZA)
                e1 += x + flat(wo[:OPT["sigpos"]]) + signal(L_HB, ha) + stamp("sigT") + flat(wo[OPT["sigpos"]:])
                e1 += [poll_issue(vRow2)] + cp(0, L_S0, L_HQ) + flat(HL(0) + HL(1) + HL(2) + HL(3))
            else:
                spine[n1 - 20]["post"].append(poll_issue(vRow2))
                e1 = sprinkle(gelu_quads(jobs, 0, 8, True), one(s.w2_reads("E", 3))) + stamp("expo")
                e1 += flat(W("O", 1, ZB)) + signal(L_HB, ha) + stamp("sigT") + cp(0, L_S0, L_HQ) + flat(HL(0) + HL(1) + HL(2) + HL(3))
                RD("E", 4, p2first[0], 2); RD("E", 5, p2first[2], 2); RD("E", 6, p2first[4], 2)
                s.spread(W("O", 2, Z5), p2first[1], p2first[3])
                s.spread(W("O", 3, Z6), p2first[3] + 1, p2first[5])
                s.spread(W("O", 0, ZA), p2first[5] + 1, p2first[7])
            s.sig = [(end1, L_KP, at, OPT["lagkp"])]
            zo4 = ZA
        else:
            tk = []
            jobs = [(acc(t), tiles[t], tk) for t in range(5)]
            nx = OPT["nx"]
            spine[end1]["pre"][k1:k1] = sprinkle(gelu_quads(jobs, 0, nx, True), W("E", 0, Z0) + W("E", 1, ZB), 0, 0.9) + stamp("x1")
            g3 = side(gelu_quads(jobs, nx, 16, False), start=end1, name="gelu3")
            g4 = side(gelu_quads(jobs, 16, 20, False), start=done["H4"] + 2, follow=g3, end=n1 - OPT["gend"], name="gelu4")
            sides += [g3, g4]
            s.spread(W("E", 2, ZA), f[13], f[15] - 5)
            RD("E", 0, f[16]); s.spread(W("E", 3, Z0), f[16] + 11, f[16] + 19)
            RD("E", 1, f[16] + 13); s.spread(W("E", 4, ZB), f[17] + 6, f[17] + 16)
            RD("E", 2, f[17] + 4)
            z, ztok = am_zero()
            bar[18].after += s.zrd[ZA]
            sides.append(side(z, start=f[18] - LOOK + 1, end=f[19] - LOOK - 1, follow=g4, name="amzero"))
            bar[19].after += ztok
            s.spread(W("E", 5, Z2), f[18], f[18] + 10)
            RD("E", 3, f[18] + 4)
            RD("E", 4, f[19] + 2)
            ko = n1 - OPT["hearly"]
            spine[ko - OPT["hpoll"]]["post"].append(poll_issue(vColK, vPoll2))
            kc, kl = o_load()
            spine[ko]["post"] += kc
            s.spread(kl, ko + 1, n1 - 1)
            spine[n1 - 1]["post"].append(poll_issue(vRow2))
            np0 = OPT["np0"]
            zo = [Z0, ZB, Z6, Z1]
            otb = OPT["otb"]
            wo = [W("O", i, zo[i]) for i in range(4)]
            if OPT["tb"] == 0:
                e1 = sprinkle(phi_q(s.aset, True, 0, np0) + ow, W("E", 6, Z5) + (wo[0] if otb > 0 else []), 0.3, 1.0) + cp(0, L_S0, L_HQ)
                e1 += sprinkle(phi_q(s.aset, True, np0, 10), HL(0) + HL(1) + HL(2)) + stamp("gap")
                s.spread(HL(3) + flat(wo[1:min(otb, 3)]), n1 + 1, n1 + 16)
                if otb > 3:
                    st = spine[p2first["ofin"]]
                    st["pre"] = sprinkle(st["pre"], wo[3])
                RD("E", 5, p2first[0], 2); RD("E", 6, p2first[2], 2)
            else:
                lo = OPT["tb"] / 10
                e1 = phi_q(s.aset, True, 0, 10) + stamp("q_phi") + ow[:int(128 * lo)] + cp(0, L_S0, L_HQ) + sprinkle(ow[int(128 * lo):], HL(0) + HL(1)) + stamp("gap")
                s.spread(HL(2) + HL(3) + W("E", 6, Z5), n1 + 1, n1 + 16)
                if otb:
                    st = spine[p2first["ofin"]]
                    st["pre"] = sprinkle(st["pre"], flat(wo[:otb]))
                RD("E", 5, p2first[0], 2); RD("E", 6, p2first[4], 2)
            for k, i in enumerate(range(otb, 4)):
                s.spread(wo[i], p2first[OPT["ost"] + 3 * k], p2first[OPT["ost"] + 3 * k + 3])
            zo4 = Z0
            s.sig = [(g4, L_HQ, tk, OPT["lag"]), (p2first["ofin"], L_O, s.otk, OPT["lag"])]
        spine[n1]["pre"] = [ins("s_barrier")] + stamp("tee") + e1 + spine[n1]["pre"]
        s.n1 = n1
        for n in range(HR, len(seq)):
            p = p2first[n - HR] + 4
            if seq[n] in ("A5", "O0"):
                spine[p2first[n - HR - OPT["pback"]] + 3]["post"].append(poll_issue(vRow2))
                spine[p]["pre"] += cp(n, L_HB, L_HQ if seq[n] == "A5" else L_O)
            elif n % 2 == 0 or OPT.get("allst"):
                spine[p]["pre"] += stamp("ld" + seq[n])
            for k, g in enumerate(HL(n)):
                s.pin(p + 5 * k, g)
        o0 = seq.index("O0")
        for i in range(5):
            RD("O", i, p2first[o0 + i - 1], 2)
            if i == 0:
                s.spread(W("O", 4, zo4), p2first[o0] + 1, p2first[o0 + 1])
        return o, seq, p2first, nend

    def finish(s, o, seq, p2first, nend):
        kv, spine, sides = s.kv, s.spine, s.sides
        a = lambda *t: o.extend(I(*t))
        aend = p2first["gap"]
        b0, rend = aend + 1 + OPT["gdel"], aend + 1 + OPT["ybar"]
        if OPT["gdel"]:
            spine[aend]["post"].remove(s.gapbar)
            spine[b0]["pre"].append(s.gapbar)
        RA, RB = s.RA, s.RB

        def red_write(get, R):
            x = []
            for t in (1, 2, 3):
                for f in range(5):
                    ad = R[t - 1] + 1024 * f
                    x.append(ins(f"ds_write_b128 v{vRW[ad >> 16]}, {r4(get(t, f))} offset:{ad & 0xffff}"))
            return x

        def red_read():
            x = []
            for t in (1, 2, 3):
                for f in range(5):
                    d = accA(t, f)
                    x += I(f"ds_read_b128 v[{d}:{d + 3}], v{vRR[t - 1]} offset:{1024 * f}")
            return x

        def red_add(own, pk):
            x = []
            for t in (1, 2, 3):
                for f in range(5):
                    for r in range(0, 4, 2 if pk else 1):
                        d, e = own(f) + r, accA(t, f) + r
                        x += I(f"v_pk_add_f32 {pr(d)}, {pr(d)}, {pr(e)}" if pk else f"v_add_f32 v{d}, v{d}, v{e}")
            return x

        wA = red_write(lambda t, f: ("v", accA(t, f)), RA)
        for q in list(range(aend - 15, aend)) + list(range(b0, rend)):
            spine[q]["budget"] += OPT["bred"]
        for k in range(3):
            sides.insert(k, side(wA[5 * k:5 * k + 5], start=aend - 12 + 5 * k, end=aend + OPT["gdel"] // 2, name=f"redAw{k}"))
        s.gapbar.after += wA
        xt = []
        xs = red_read() + red_add(lambda f: accA(0, f), False)
        P = accA(1, 0)
        for f in range(5):
            xs += cvt2(P + 2 * f, accA(0, f))
        for k, n in ((0, 4), (4, 4), (8, 4)):
            x = ins(f"buffer_store_dwordx{n} v[{P + k}:{P + k + n - 1}], v{vL16}, {srd(SWS)}, s{sXc} offen offset:{256 * k} sc1")
            xs.append(x); xt.append(x)
        xsd = side(xs, start=b0, end=rend, name="redA")
        sides.insert(3, xsd)
        s.sig.append((xsd, L_XCH, xt, OPT["lag"]))
        XR, PX = 152, 164
        fo = [(vW2[0], 0), (vW2[1], 1024), (vFo2, 2048)]
        s.spread([I(f"buffer_load_dwordx4 v[{XR + 4 * i}:{XR + 4 * i + 3}], v{fo[i][0]}, {srd(SX)}, s{sRow} offen offset:{fo[i][1]}") for i in range(3)], nend - 80, nend - 70)
        spine[nend - OPT["xch"] - 25]["post"].append(poll_issue(vPar))
        px = poll_check(vPar, L_XCH) + stamp("xch") + I(f"s_xor_b32 s{sT0}, s2, 2", f"s_sub_u32 s{sT0}, s{sT0}, s2", f"s_mul_i32 s{sT0}, s{sT0}, 12288", f"s_add_u32 s{sXc}, s{sXc}, s{sT0}")
        for k, n in ((0, 4), (4, 4), (8, 4)):
            px += I(f"buffer_load_dwordx{n} v[{PX + k}:{PX + k + n - 1}], v{vL16}, {srd(SWS)}, s{sXc} offen offset:{256 * k} sc1")
        spine[nend - OPT["xch"]]["post"] += px
        wB = red_write(accB, RB)
        for q in range(nend - 14, nend):
            spine[q]["budget"] += 0.6
        for k in range(3):
            sides.insert(k, side(wB[5 * k:5 * k + 5], start=nend - 12 + 5 * k, end=nend, name=f"redBw{k}"))
        sides.append(side(I(*[f"v_add_u32 v{vRR[t]}, {(RB[t] - RA[t]) & 0xffffffff}, v{vRR[t]}" for t in range(3)]), start=rend + 1, end=nend - 20, name="rr"))
        for st in spine:
            st["pre"].extend(st.pop("pre2", []))
        if OPT.get("fine") and not kv:
            for q in range(*OPT["fine"]):
                spine[q]["pre"] = stamp(f"q{q}") + spine[q]["pre"]
        import copy
        dry = copy.deepcopy(sides)
        merge(spine, dry, 0)
        ends = {d["name"]: d.get("done", 0) if not d.get("late") else (d["end"] or nend) for d in dry}
        if OPT["verbose"]:
            print("KV" if kv else "Q", {d["name"]: (d["start"], ends[d["name"]], d.get("late", 0)) for d in dry}, "p2first", p2first)
        n1 = s.n1
        for sd, level, tk, lag in s.sig:
            idx, t = (sd if isinstance(sd, int) else ends[sd["name"]]), 0
            while t < lag and idx < nend - 1:
                t += 36 if idx < n1 else 18
                idx += 1
            if idx == n1:
                idx -= 1
            spine[idx]["post"] += signal(level, tk)
        o = drop_m0(o + s.head + merge(spine, sides, 0))
        XX = OPT["x"]
        if "nohst" in XX:
            o = [y for y in o if not (y.text.startswith("buffer_store_dwordx4") and f"v{vHst}," in y.text)]
        if "now2" in XX:
            o = [y for y in o if not (y.kind == "dma" and (srd(SW2) in y.text or srd(SWO) in y.text))]
        if "nochk" in XX:
            o = [y for y in o if not (isinstance(y.note, tuple) and y.note[0] == "chk" and max(y.note[1:3]) > 1)]
        if "nopoll" in XX:
            o = [y for y in o if not (y.text.startswith("buffer_load_dword v") and (f"v{vRow2}," in y.text or f"v{vPar}," in y.text))]
        if "noH" in XX:
            o = [y for y in o if not y.text.startswith("buffer_load_dwordx4 a[")]
        if "nosc1H" in XX:
            for y in o:
                if y.text.startswith("buffer_load_dwordx4 a["):
                    y.text = y.text.replace(" sc1", "")
        if "nononce" in XX:
            o = [y for y in o if srd(SDBG) not in y.text]
        if "nosig" in XX:
            o = [y for y in o if not (isinstance(y.note, tuple) and y.note[0] == "sig" and y.note[1] > 1)]
        if "noat" in XX:
            o = [y for y in o if not y.text.startswith("buffer_atomic")]
        if "nomf2" in XX:
            o = [y for y in o if "16x16x32" not in y.text]
        if "nomf1" in XX:
            o = [y for y in o if "32x32x16" not in y.text]
        if "novalu" in XX:
            o = [y for y in o if not (y.kind in ("valu", "trans") and y.text.split()[0] in ("v_pk_mul_f32", "v_pk_fma_f32", "v_exp_f32", "v_rcp_f32", "v_exp_f32_e64", "v_max_f32", "v_pk_add_f32", "v_fma_f32", "v_mul_f32", "v_dot2_f32_bf16", "v_add_f32"))]
        if "notr" in XX:
            o = [y for y in o if not y.text.startswith("ds_read_b64_tr")]
        if "nowdma" in XX:
            o = [y for y in o if not (y.kind == "dma" and (srd(SW1) in y.text or srd(SQKV) in y.text))]
        if "noxdma" in XX:
            o = [y for y in o if not (y.kind == "dma" and srd(SX) in y.text)]
        import re as _re
        for y in o:
            if "lin2" in XX and y.kind == "dma" and any(srd(z) in y.text for z in (SW2, SWO)):
                y.text = _re.sub(r"dwordx4 v\d+,", f"dwordx4 v{vL16},", y.text)
            if "nokvl" in XX and y.text.startswith("buffer_load_dwordx4 v") and f", v{vOl0}," in y.text and not kv:
                y.text = "s_nop 0"; y.kind = "nop"; y.q = None; y.wr = set(); y.rd = set()
        for y in o:
            hot = (("hot1" in XX and y.kind == "dma" and any(srd(z) in y.text for z in (SX, SQKV, SW1))) or
                   ("hot2" in XX and y.kind == "dma" and any(srd(z) in y.text for z in (SW2, SWO))) or
                   ("hotH" in XX and y.text.startswith("buffer_load_dwordx4 a[")))
            if hot:
                y.text = _re.sub(r"\], s\d+ offen", "], 0 offen", y.text)
        if "notrans" in XX:
            o = [y for y in o if y.kind != "trans"]
        if OPT["stop"]:
            cut = [i for i, x in enumerate(o) if getattr(x, "kind", "") == "stamp" and x.text in (OPT["stop"], "rt_" + OPT["stop"])][0]
            o = o[:cut + 1] + I("s_waitcnt vmcnt(0) lgkmcnt(0)")
            return s.tail(o)
        o += stamp("mfma2")
        o.append(ins("s_barrier", after=wB))
        own = lambda f: accB(0, f)[1]
        o += red_read()
        for f in range(5):
            for r in range(4):
                a(f"v_dot2_f32_bf16 v{own(f) + r}, v{PX + 2 * f + r // 2}, s{sOne1 if r & 1 else sOne0}, v{own(f) + r}")
        o += red_add(own, True)
        for f in range(5):
            a(f"ds_write_b128 v{vTw}, v[{own(f)}:{own(f) + 3}] offset:{64 * f}")
        FO = 48

        def fin_store(i):
            x = I(*[f"v_cvt_pk_bf16_f32 v{FO + 8 * i + k}, v{FO + 8 * i + 2 * k}, v{FO + 8 * i + 2 * k + 1}" for k in range(4)])
            return x + I(f"buffer_store_dwordx4 v[{FO + 8 * i}:{FO + 8 * i + 3}], v{fo[i][0]}, {srd(SOUT)}, s{sRow} offen offset:{fo[i][1]} {OPT['outf']}")

        for i in range(3):
            for h in range(2):
                a(f"ds_read_b128 v[{FO + 8 * i + 4 * h}:{FO + 8 * i + 4 * h + 3}], v{vTr[i]} offset:{16 * h}")
        for i in range(3):
            for k in range(4):
                d = FO + 8 * i + 2 * k
                a(f"v_dot2_f32_bf16 v{d}, v{XR + 4 * i + k}, s{sOne0}, v{d}", f"v_dot2_f32_bf16 v{d + 1}, v{XR + 4 * i + k}, s{sOne1}, v{d + 1}")
            if i:
                o += fin_store(i - 1)
        o += I("s_nop 1") + fin_store(2)
        return s.tail(o)

    def tail(s, o):
        if OPT["prof"]:
            o += stamp("end") + stamp("rt1")
            last = Ins("x", "stamp"); last.note = "last"
            o.append(last)
            o += I(f"s_lshl_b32 s{sT0}, s2, 2", f"s_add_u32 s{sT0}, s{sT0}, s{sW}", f"s_lshl_b32 s{sT0}, s{sT0}, 8", f"s_add_u32 s{sT0}, s{sT0}, {TS}",
                   f"v_lshlrev_b32 v30, 2, v{vL}", f"buffer_store_dword v31, v30, {srd(SWS)}, s{sT0} offen")
        return o + I("s_endpgm")


def check_no_deadlock(progs):
    ev = [[x.note for x in p if isinstance(x.note, tuple)] for p in progs]
    pos, lvl = [0, 0], [0, 0]
    moved = True
    while moved:
        moved = False
        for k in (0, 1):
            while pos[k] < len(ev[k]):
                e = ev[k][pos[k]]
                if e[0] == "sig":
                    assert e[1] > lvl[k], (k, e, lvl)
                    lvl[k] = e[1]
                elif lvl[0] < e[1] or lvl[1] < e[2]:
                    break
                pos[k] += 1
                moved = True
    assert pos == [len(e) for e in ev], f"circular wait: KV stuck at {ev[0][pos[0]:pos[0] + 1]}, Q at {ev[1][pos[1]:pos[1] + 1]}"


def drop_m0(items):
    out, cur = [], None
    for x in items:
        for y in (x.items if isinstance(x, Bundle) else [x]):
            if y.kind == "vmem" and y.wr == {("v", vTd)}:
                y.wr = set()
            if ("m0", 0) in y.wr:
                if y.text == cur:
                    continue
                cur = y.text
            out.append(y)
    return out


def build():
    st = {}
    pro, xs = prologue()
    pro += I("s_bitcmp1_b32 s2, 6", "s_cbranch_scc1 L_q")
    progs = []
    for kv in (True, False):
        p = Program(kv)
        body = p.finish(*p.build(xs))
        full = pro + ([] if kv else I("L_q:")) + body
        if OPT["prof"]:
            full = resolve_stamps(full, ts_names, sTS, 31)
        progs.append(finalize(full, stats=st))
    a_kv, a_q = progs
    if not OPT["stop"] and not OPT["x"]:
        check_no_deadlock(progs)
    iq = [i for i, x in enumerate(a_q) if x.text == "L_q:"][0]
    assert [x.text for x in a_q[:iq]] == [x.text for x in a_kv[:iq]]
    body = a_kv + a_q[iq:] + I("L_end:", "s_endpgm")
    used = {x.text.split()[1] for x in body if x.kind == "branch"}
    for sp in slow_paths:
        if sp[0].text[:-1] in used:
            body += finalize(sp)
    txt = text_of(body)
    ref = open("parallel_sum__linear_attn_block__mixer_channel_mlp__prompt.s.ref").read().split("\n")
    hdr = [l for l in ref if l.startswith(";") and "@launch" not in l and not l.startswith("; Override") and not l.startswith("; grid=")]
    src = "\n".join(hdr) + f"""
; @launch grid=(256,1,1) block=(256,1,1) lds={LDS_SIZE}
.amdgcn_target "amdgcn-amd-amdhsa--gfx950"
.text
.globl {NAME}
.p2align 8
.type {NAME},@function
{NAME}:
{txt}
L_code_end:
.fill 65536 / 4, 4, 0xbf810000
.section .rodata,"a"
.p2align 6
.amdhsa_kernel {NAME}
  .amdhsa_next_free_vgpr 512
  .amdhsa_next_free_sgpr 102
  .amdhsa_accum_offset 256
  .amdhsa_group_segment_fixed_size 0
  .amdhsa_kernarg_size 88
  .amdhsa_user_sgpr_count 2
  .amdhsa_user_sgpr_kernarg_segment_ptr 1
  .amdhsa_system_sgpr_workgroup_id_x 1
.end_amdhsa_kernel
"""
    return src, st, len(a_kv), len(a_q)


if __name__ == "__main__":
    out = sys.argv[1]
    for kvp in sys.argv[2:]:
        k, v = kvp.split("=", 1)
        OPT[k] = eval(v) if v[0] in "0123456789TFN-([" else v
    src, st, n1, n2 = build()
    open(out, "w").write(src)
    if OPT["prof"]:
        open(out + ".ts", "w").write("\n".join(ts_names))
    print("instructions", n1, n2, st)
```

```python
import sys, os, struct
sys.path.insert(0, os.path.dirname(os.path.abspath(__file__)))
from asmlib import *

NAME = "parallel_sum__linear_attn_block__mixer_channel_mlp__prompt_kernel"
OPT = dict(prof=False, only=None, b1=3.0, b1p=4.5, touch_w=True, hbsig=10, hop=4, hopp=30, hopq=(3, 7), lagkp=700, nx=14, gend=70, hpoll=30, lback=4, ybar=54, twa=(2, 9), twb=((10, 18), (10, 18)), bred=0.7, xch=6, g01end=30, oload=36, gpoll=30, kvsig=4, hearly=30, ost=0, wavesig=(6,), bt=2, dspan1=1.0, look=5, hb=1, pg=0, zpad=False, sw1=False, rot2=False, rotk=False, tb=0, mtq=False, csp=6, b2at=2, xpost=True, wsoff=0, ft=False, map2=1, s0late=False, npre=(100, 100), l2='', l2at=((1, 4), (4, 8)), l2late=6, otb=1, kvo=True, outf='', np0=3, tlb=None, seq="A0 A1 A2 A3 A4 B0 B1 A5 A6 B2 B3 B4 B5 B6 O0 O1 O2 O3 O4", plag=700, pback=2, touch_h=False, b0=40, lag=1000, nphi=7, b2=1.6, touch_code=True, tq=4, s0=(0, 1, 6, 7, 8), s0k=(0, 1, 5, 6, 7), gdel=8, sigpos=2, s0ld=2, s0start=2, xearly=1, s0first=False, sleep=4, dma1_early=False, dspan=0.4,
           nsq=10, nsk=2, stages=(0, 1, 2, 3, 4, 5, 6, 7, 8, 9), verbose=False, x=(), stop=None, nos0=False)

LDQ, LD1, LDX = 3840, 3456, 1280
FLAGS, STATS, CSUM, KVF, XCH, KVP, HB, TS = 0x500000, 0x0, 0x10000, 0x60000, 0x80000, 0x400000, 0x800000, 0x1200000
WS_SIZE = 0x1400000
OOB = 0x40000000
NB = 74
SLOT = 20480
RING2, NR2 = 2 * SLOT, 10
XS, EX, SCR, LDS_SIZE = 81920, 131072, 135168, 163840
KVT, KVT_LD = XS, 328
AM, AM_LD = XS, 176
Z0, Z1, Z2, Z5, Z6, ZA, ZB = 143360, 0, SLOT, 2 * SLOT, 3 * SLOT, XS, XS + SLOT
P_X, P_QKV, P_WO, P_BX, P_W1, P_B1, P_W2, P_B2 = 4, 6, 8, 10, 12, 14, 16, 18
P_OUT, P_DBG, P_WS = 20, 22, 24
sR2, sJ160, sBq, sBk, sE, sHA, sHB, sL6, sRow, sB6, sD2w, sD2h, sXc = range(4, 17)
sHq, sHk, sH6, sHo, sWq, sWk, sW6, sWo = range(17, 25)
sOne0, sOne1 = 88, 89
sKw, sW2k, sH4 = 90, 91, 95
sTa, sTb, sTc, sTe = 96, 97, 98, 72
sK1, sK2 = 99, 77
SX, SQKV, SW1, SWO, SW2, SWS, SOUT, SB1, SB2, SDBG = 28, 32, 36, 40, 44, 48, 52, 56, 60, 64
sW, sR, sU, sG, sP, sUnit, sNonce, sWL = 68, 69, 70, 71, 72, 73, 74, 75
sXo, sKq, sH, sT0, sT1, sT2, sT3, sLast = 76, 77, 78, 79, 80, 81, 82, 83
sEps, sHst, sXw, sCnt = 84, 85, 86, 87
sA_lo, sA_hi, sB_lo, sB_hi, sLdA, sLdB, sOffA, sOffB, sMixA, sMixB = 40, 41, 42, 43, 44, 45, 46, 47, 52, 53
sBA, sBB, sW5 = 92, 93, 94
sDx, sDw, sU64, sTS, sOst = 100, 101, 3, 26, 25
sSwX, sSwQ, sSw1 = 98, 0, 1
sRot, sR10 = 7, 6
sU4 = 73
srd = lambda b: f"s[{b}:{b + 3}]"
vL = 1
vX = [2, 3, 4, 5]
vXR = [6, 7, 8, 9]
vWk = [10, 11, 12, 13, 14]
vWp = [46, 47]
vTK, vTM, vTP, vW1, vTR = [208, 209], [210, 211], [212, 213], 214, 215
vHst, vFl, vRowF, vColF, vEXr = 15, 16, 17, 18, 19
vKf, vK2, vKA, vKB, vAt, vOnes = 20, 21, 22, 23, 24, 25
vAM, vOl0, vOl1, vOw0, vOw1, vOw2, vOw3 = 20, 21, 22, 23, 24, 25, 177
vColK, vB1 = 176, 178
vCnt, vOne, vFl0 = 200, 201, 206
vFd, vPoll, vLvl, vHiM = 26, 27, 28, 29
vRs1, vRl1, vA1, vA3, vIrs = 32, 34, 36, 38, 44
vRow2K, vPar, vL16, vTd = 33, 35, 37, 39
vXE = 40
vPoll2 = 45
acc = lambda i: 48 + 16 * i
TMP = 176
vW2 = [180, 181, 182, 183, 184]
vH = {'B': [185, 186, 187, 188], 'A': [2, 3, 4, 5]}
vT2 = [189, 190, 191]
vRW = [192, 193, 207]
vRR = [194, 195, 196]
vFo2, vTw = 197, 198
vFo = [199]
vTch = [200, 201, 206]
vTr = [202, 203, 204]
vRow2 = 205
vTW = 179
ET = 244
T0, T1, T2, T3 = 252, 253, 254, 255
aX, aW, NRING, LOOK = 0, 160, 8, 5
accA = lambda t, f: (48 + 4 * (5 * t + f)) if 5 * t + f < 16 else (208 + 4 * (5 * t + f - 16))


def accB(t, f):
    if t == 0:
        return ("v", 224 + 4 * f)
    g = 5 * (t - 1) + f
    return ("a", 140 + 4 * g) if g < 13 else ("v", 6 + 4 * (g - 13))


HR = 4
aH = lambda n, t: 192 + 16 * (n % HR) + 4 * t
wfrag = lambda kind, i, f: ("a", 20 * i + 4 * f) if kind == "E" else ("v", 112 + 20 * (i % 2) + 4 * f)
r4 = lambda x: f"{x[0]}[{x[1]}:{x[1] + 3}]"
f2u = lambda f: struct.unpack("<I", struct.pack("<f", f))[0]
LOG2E = 1.4426950408889634
C1 = -2.0 * 0.7978845608028654 * LOG2E
C3 = C1 * 0.044715
L_S0, L_KP, L_KV, L_HB = 1, 2, 3, 4
L_HQ, L_O, L_XCH = 2, 5, 6

slow_paths, ts_names, _uid = [], [], [0]


def uid(p):
    _uid[0] += 1
    return f"L_{p}{_uid[0]}"


def I(*ts):
    return [ins(t) for t in ts]


def stamp(name):
    if not OPT["prof"]:
        return []
    if OPT.get("fine"):
        if name not in ("rt0", "rt1", "start", "end") and not name.startswith("q"):
            return []
    elif OPT["only"] == "clk":
        if name not in ("rt0", "rt1", "start", "end"):
            return []
    elif OPT["only"] is not None:
        if name.startswith("rt") or (OPT["only"] != "all" and name not in OPT["only"]):
            return []
        name = "rt_" + name
    if name not in ts_names:
        ts_names.append(name)
    return [Ins(name, "stamp")]


def make_srd(b, ptr, nbytes):
    return I(f"s_mov_b32 s{b}, s{ptr}", f"s_mov_b32 s{b + 1}, s{ptr + 1}", f"s_mov_b32 s{b + 2}, {nbytes}", f"s_mov_b32 s{b + 3}, 0x20000")


fl = lambda level: FLAGS + 32768 * level


CNT = SCR + 512


def signal(level, toks):
    if level in OPT["wavesig"]:
        o = I(f"s_add_u32 s{sT3}, s{sNonce}, {level}", f"v_mov_b32 v{vFd}, s{sT3}", f"s_mov_b32 s{sT3}, {fl(level)}")
        st = ins(f"buffer_store_dword v{vFd}, v{vFl}, {srd(SWS)}, s{sT3} offen sc1", after=toks)
        st.note = ("sig", level)
        return [], [Bundle(o + [st])]
    add = ins(f"ds_add_rtn_u32 v{vFd}, v{vCnt}, v{vOne} offset:{4 * level}")
    arrive = [Bundle([Ins("", "pseudo", after=toks)] + I("s_mov_b64 exec, 1") + [add] + I("s_mov_b64 exec, -1"))]
    skip = uid("sig")
    st = ins(f"buffer_store_dword v{vFd}, v{vFl0}, {srd(SWS)}, s{sT3} offen sc1")
    st.ghost = True
    st.note = ("sig", level)
    pub = I(f"v_readfirstlane_b32 s{sT3}, v{vFd}", f"s_cmp_lg_u32 s{sT3}, 3", f"s_cbranch_scc1 {skip}",
            f"s_add_u32 s{sT3}, s{sNonce}, {level}", f"v_mov_b32 v{vFd}, s{sT3}", f"s_mov_b32 s{sT3}, {fl(level)}") + [st] + I(f"{skip}:")
    return arrive, [Bundle(pub)]


def signal_now(level, toks):
    a, p = signal(level, toks)
    return a + p


def poll_issue(vaddr, level, dst=vPoll):
    return Bundle(I(f"s_mov_b32 s{sT3}, {fl(level)}", f"buffer_load_dword v{dst}, v{vaddr}, {srd(SWS)}, s{sT3} offen sc1"))


def poll_check(vaddr, level, who, dst=vPoll):
    slow, back, loop = uid("slow"), uid("back"), uid("loop")
    test = lambda: I(f"s_add_u32 s{sT3}, s{sNonce}, {level}", f"v_cmp_ne_u32 vcc, s{sT3}, v{dst}")
    sp = I(f"{slow}:", f"s_mov_b32 s{sCnt}, 20000", f"{loop}:", f"s_sleep {OPT['sleep']}") + [poll_issue(vaddr, level, dst)] + I("s_waitcnt vmcnt(0)") + test()
    sp += I(f"s_cbranch_vccz {back}", f"s_sub_u32 s{sCnt}, s{sCnt}, 1", f"s_cmp_lg_u32 s{sCnt}, 0", f"s_cbranch_scc1 {loop}", f"s_branch {back}")
    slow_paths.append(sp)
    br = ins(f"s_cbranch_vccnz {slow}")
    br.note = ("chk", level if who != "q" else 0, level if who != "kv" else 0, who)
    return [Bundle(test() + [br] + I(f"{back}:"))]


def nonce_check(dst):
    slow, back, loop = uid("nslow"), uid("nback"), uid("nloop")
    sp = I(f"{slow}:", f"s_mov_b32 s{sCnt}, 20000", f"{loop}:", f"s_sleep {OPT['sleep']}", f"v_mov_b32 v{dst}, 0",
           f"buffer_load_dword v{dst}, v{dst}, {srd(SDBG)}, 0 offen sc1", "s_waitcnt vmcnt(0)",
           f"v_readfirstlane_b32 s{sNonce}, v{dst}", f"s_cmp_lg_u32 s{sNonce}, 0", f"s_cbranch_scc1 {back}",
           f"s_sub_u32 s{sCnt}, s{sCnt}, 1", f"s_cmp_lg_u32 s{sCnt}, 0", f"s_cbranch_scc1 {loop}", f"s_branch {back}")
    slow_paths.append(sp)
    return [Bundle(I(f"v_readfirstlane_b32 s{sNonce}, v{dst}", f"s_cmp_eq_u32 s{sNonce}, 0", f"s_cbranch_scc1 {slow}", f"{back}:"))]


def flag_sc_row(sr):
    return I(f"s_lshr_b32 s{sT0}, s{sr}, 3", f"s_and_b32 s{sT1}, s{sr}, 7", f"s_lshl_b32 s{sT1}, s{sT1}, 3", f"s_add_u32 s{sT0}, s{sT0}, s{sT1}", f"s_lshl_b32 s{sT0}, s{sT0}, 7")


def flag_addr_row(dst, sr, t2, t3):
    return flag_sc_row(sr) + I(f"v_and_b32 v{t2}, 48, v{vL}", f"v_lshlrev_b32 v{t2}, 4, v{t2}", f"v_bfe_u32 v{t3}, v{vL}, 2, 2", f"v_lshl_add_u32 v{t2}, v{t3}, 13, v{t2}",
                               f"v_add_u32 v{dst}, s{sT0}, v{t2}")


def flag_addr_col(dst, sg, t2, t3):
    return I(f"s_lshr_b32 s{sT0}, s{sg}, 2", f"s_lshl_b32 s{sT0}, s{sT0}, 8", f"s_and_b32 s{sT1}, s{sg}, 3", f"s_lshl_b32 s{sT1}, s{sT1}, 13", f"s_add_u32 s{sT0}, s{sT0}, s{sT1}",
             f"v_and_b32 v{t2}, 32, v{vL}", f"v_lshlrev_b32 v{t2}, 2, v{t2}", f"v_bfe_u32 v{t3}, v{vL}, 2, 3", f"v_lshl_add_u32 v{t2}, v{t3}, 10, v{t2}",
             f"v_add_u32 v{dst}, s{sT0}, v{t2}")


def swap(dst, sw, n):
    return I(f"s_{'sub' if n & 1 else 'add'}_u32 s{dst}, s{dst}, s{sw}") if OPT["sw1"] else []


def dma_x(n):
    g = []
    for i in range(4):
        pre = I(f"s_add_u32 s{sDx}, s{sXo}, {128 * n}") + swap(sDx, sSwX, n) if i == 0 else []
        g.append(pre + I(f"s_add_u32 m0, s{sXw}, {(n % 3) * 4096}", f"buffer_load_dwordx4 v{vX[i]}, {srd(SX)}, s{sDx} offen offset:{1024 * i} lds"))
    return g


def prologue():
    o = []
    a = lambda *t: o.extend(I(*t))
    a("s_cmp_ge_u32 s2, 256", "s_cbranch_scc1 L_end")
    a("s_load_dwordx16 s[4:19], s[0:1], 0", "s_load_dwordx4 s[20:23], s[0:1], 64", "s_load_dwordx2 s[24:25], s[0:1], 80")
    a(f"s_memrealtime s[{sNonce}:{sNonce + 1}]")
    if OPT["touch_code"]:
        o += touch_code()
        o[-2].wr = set()
    if OPT["prof"]:
        a("v_mov_b32 v31, 0")
        if OPT.get("kst"):
            a("s_memtime s[42:43]", "s_memrealtime s[44:45]")
            ts_names.extend(["rt0", "start"])
        else:
            o += stamp("rt0") + stamp("start")
    t0, t1, t2 = T0, T1, T2
    a(f"v_lshrrev_b32 v{t0}, 6, v0", f"v_and_b32 v{vL}, 63, v0", f"v_readfirstlane_b32 s{sW}, v{t0}", f"v_lshlrev_b32 v{vL16}, 4, v{vL}")
    a(f"s_and_b32 s{sT0}, s2, 1", f"s_lshl_b32 s{sT0}, s{sT0}, 3", f"s_bfe_u32 s{sT1}, s2, 0x30003", f"s_add_u32 s{sR}, s{sT0}, s{sT1}")
    a(f"v_lshrrev_b32 v{t0}, 3, v{vL}", f"v_lshrrev_b32 v{t1}, 4, v{vL}", f"v_and_b32 v{t2}, 7, v{vL}", f"v_xor_b32 v{t2}, v{t2}, v{t1}",
      f"v_lshlrev_b32 v{t2}, 4, v{t2}", f"v_mul_u32_u24 v{t0}, {LDX}, v{t0}", f"v_add_u32 v{vX[0]}, v{t0}, v{t2}",
      f"v_xor_b32 v{vX[1]}, 64, v{vX[0]}", f"v_add_u32 v{vX[1]}, {8 * LDX - 1024}, v{vX[1]}",
      f"v_add_u32 v{vX[2]}, {16 * LDX - 2048}, v{vX[0]}", f"v_add_u32 v{vX[3]}, {16 * LDX - 2048}, v{vX[1]}")
    a(f"s_lshl_b32 s{sT0}, s{sR}, 2", f"s_add_u32 s{sT0}, s{sT0}, s{sW}", f"s_mul_i32 s{sXo}, s{sT0}, {32 * LDX}")
    a(f"s_mul_i32 s{sXw}, s{sW}, 12288", f"s_add_u32 s{sXw}, s{sXw}, {XS}", f"s_mul_i32 s{sW5}, s{sW}, 5120")
    a("s_mov_b32 s30, 2621440", "s_mov_b32 s31, 0x20000")
    a(f"s_bfe_u32 s{sT0}, s2, 0x20001", f"s_lshr_b32 s{sT1}, s2, 6",
      f"s_lshl_b32 s{sG}, s{sT0}, 2", f"s_add_u32 s{sG}, s{sG}, s{sT1}", f"s_lshr_b32 s{sP}, s{sT1}, 1",
      f"s_lshl_b32 s{sU}, s{sT0}, 1", f"s_add_u32 s{sU}, s{sU}, s{sP}",
      f"s_mul_i32 s{sKq}, s{sU}, 160", f"s_mul_i32 s{sU64}, s{sU}, 384")
    if OPT["sw1"]:
        a(f"s_xor_b32 s{sT0}, s{sR}, s{sP}", f"s_and_b32 s{sT0}, s{sT0}, 1", f"s_lshl_b32 s{sSwX}, s{sT0}, 7")
    assert (SX, SQKV, SW1) == (28, 32, 36)
    if OPT.get("kst"):
        a("s_memtime s[40:41]")
    a("s_waitcnt lgkmcnt(0)", f"s_mov_b32 s28, s{P_X}", f"s_mov_b32 s29, s{P_X + 1}")
    if OPT.get("kst"):
        ts_names.append("prek")
        a(f"v_writelane_b32 v31, s40, {len(ts_names) - 1}", "v_writelane_b32 v31, s44, 0", "v_writelane_b32 v31, s42, 1")
    o += stamp("karg")
    xs = [dma_x(n) for n in range(OPT["xearly"])]
    for x in xs[:1]:
        for g in x:
            o += g
    o += make_srd(SQKV, P_QKV, 640 * LDQ) + make_srd(SW1, P_W1, 640 * LD1)
    if OPT["sw1"]:
        a(f"s_mul_i32 s{sSwQ}, s{sSwX}, {LDQ // 2}", f"s_mul_i32 s{sSw1}, s{sSwX}, {LD1 // 2}")
    if OPT["ft"]:
        o += first_touch()
    if OPT["pg"]:
        x = I(f"v_lshlrev_b32 v{T0}, 21, v{vL}", "s_mov_b64 exec, 3", f"buffer_load_dword v{vTd}, v{T0}, {srd(SQKV)}, 0 offen", f"buffer_load_dword v{vTd}, v{T0}, {srd(SW1)}, 0 offen")
        if OPT["pg"] > 1:
            x += I(f"global_load_dword v{vTd}, v{T0}, s[{P_WS}:{P_WS + 1}]", f"global_load_dword v{vTd}, v{T0}, s[{P_W2}:{P_W2 + 1}]")
        x += I("s_mov_b64 exec, -1")
        for y in x:
            if y.kind == "vmem":
                y.wr = set()
        o += x
    for x in xs[1:]:
        for g in x:
            o += g
    return o, xs


def nonce_publish():
    o = I(f"s_or_b32 s{sT0}, s2, s{sW}", f"s_cmp_lg_u32 s{sT0}, 0", "s_cbranch_scc1 L_nn",
          f"s_max_u32 s{sT0}, s{sNonce}, 1", f"v_mov_b32 v{T0}, s{sT0}", f"v_mov_b32 v{T1}, 0",
          f"global_store_dword v{T1}, v{T0}, s[{P_DBG}:{P_DBG + 1}] sc1")
    o[-1].ghost = True
    return o + I("L_nn:")


def row10(i, dst):
    return (I(f"v_add_u32 v{dst}, {64 * i * 6554}, v{T3}") if i else []) + I(f"v_lshrrev_b32 v{dst}, 16, v{dst if i else T3}")


def wk_setup(kv):
    o = I(f"v_mul_u32_u24 v{T3}, 6554, v{vL}", f"s_mov_b32 s{sT1}, {LDQ - 160}")
    back = 16 * LDQ - 1280
    for i in range(5):
        o += row10(i, T1) + I(f"v_mad_u32_u24 v{vWk[i]}, v{T1}, s{sT1}, v{vL16}")
        add = (1024 * i - (back if i > 2 else 0)) if kv else (4096 if i == 4 else 0)
        if add:
            o += I(f"v_add_u32 v{vWk[i]}, {add & 0xffffffff}, v{vWk[i]}")
        if kv and i == 2:
            o += I(f"v_lshrrev_b32 v{T1}, 4, v{T1}", f"v_mul_u32_u24 v{T1}, {back}, v{T1}", f"v_sub_u32 v{vWk[i]}, v{vWk[i]}, v{T1}")
    return o + I(f"s_mul_i32 s{sT0}, s{sW}, {(16 if kv else 32) * LDQ}", f"s_add_u32 s{sKw}, s{sKq}, s{sT0}")


def wp_setup():
    return I(f"v_lshrrev_b32 v{T0}, 3, v{vL}", f"s_lshl_b32 s{sT0}, s{sW}, 4", f"v_add_u32 v{T0}, s{sT0}, v{T0}", f"v_mul_u32_u24 v{T0}, {LD1}, v{T0}",
             f"v_bfe_u32 v{T1}, v{vL}, 4, 1", f"v_lshlrev_b32 v{T1}, 2, v{T1}", f"v_and_b32 v{T2}, 7, v{vL}", f"v_xor_b32 v{T1}, v{T1}, v{T2}",
             f"v_lshl_add_u32 v{vWp[0]}, v{T1}, 4, v{T0}", f"v_add_u32 v{vWp[1]}, {8 * LD1 - 1024}, v{vWp[0]}", f"s_lshl_b32 s{sW2k}, s{sW}, 11")


def w1_setup():
    return I(f"v_lshrrev_b32 v{T0}, 2, v0", f"v_and_b32 v{T1}, 3, v{vL}", f"v_mul_u32_u24 v{T0}, {LD1}, v{T0}", f"v_lshl_add_u32 v{vW1}, v{T1}, 4, v{T0}")


def x_read_setup():
    o = I(f"v_and_b32 v{T0}, 31, v{vL}", f"v_lshrrev_b32 v{T1}, 5, v{vL}", f"v_bfe_u32 v{T2}, v{vL}, 1, 3", f"v_xor_b32 v{T2}, v{T2}, v{T1}",
          f"v_lshlrev_b32 v{T2}, 4, v{T2}", f"v_lshl_add_u32 v{T2}, v{T0}, 7, v{T2}")
    for j in range(4):
        o += I(f"v_xor_b32 v{vXR[j]}, {32 * j}, v{T2}", f"v_add_u32 v{vXR[j]}, s{sXw}, v{vXR[j]}")
    return o


def tr_parts():
    return I(f"v_lshrrev_b32 v{T1}, 5, v{vL}", f"v_bfe_u32 v{T0}, v{vL}, 2, 2", f"v_lshl_add_u32 v{T0}, v{T1}, 3, v{T0}",
             f"v_bfe_u32 v{T1}, v{vL}, 4, 1", f"v_and_b32 v{T2}, 3, v{vL}", f"v_lshlrev_b32 v{T2}, 3, v{T2}")


def tk_setup(kv):
    o = tr_parts() + I(f"v_mul_u32_u24 v{T0}, 160, v{T0}", f"v_add_u32 v{T0}, v{T0}, v{T2}", f"v_lshl_add_u32 v{vTK[0]}, v{T1}, 5, v{T0}", f"v_add_u32 v{vTM[0]}, 128, v{T0}")
    if kv or OPT["zpad"]:
        o += I(f"v_mul_u32_u24 v{T1}, {2560 if kv else LDS_SIZE}, v{T1}", f"v_add_u32 v{vTM[0]}, v{vTM[0]}, v{T1}")
    return o + I(f"v_add_u32 v{vTK[1]}, 0x8000, v{vTK[0]}", f"v_add_u32 v{vTM[1]}, 0x8000, v{vTM[0]}")


def tp_setup(base):
    return tr_parts() + I(f"v_lshl_add_u32 v{T2}, v{T1}, 5, v{T2}", f"v_lshl_add_u32 v{T2}, v{T0}, 7, v{T2}", f"v_bfe_u32 v{T1}, v{vL}, 3, 1",
                          f"v_lshl_add_u32 v{T2}, v{T1}, 6, v{T2}", f"v_add_u32 v{vTP[0]}, {base}, v{T2}", f"v_xor_b32 v{vTP[1]}, 64, v{vTP[0]}")


def tr_setup(base):
    return tr_parts() + I(f"v_lshl_add_u32 v{T2}, v{T1}, 5, v{T2}", f"v_lshl_add_u32 v{T2}, v{T0}, 6, v{T2}", f"v_add_u32 v{vTR}, {base}, v{T2}")


def late_setup():
    o = []
    a = lambda *t: o.extend(I(*t))
    t0, t1, t2, t3 = T0, T1, T2, T3
    o += make_srd(SDBG, P_DBG, 256)
    a(f"v_mov_b32 v{vPoll2}, 0")
    o += make_srd(SB1, P_B1, 1728 * 2)
    o += make_srd(SWO, P_WO, 640 * LDX) + make_srd(SW2, P_W2, 1728 * LDX) + make_srd(SOUT, P_OUT, 2048 * LDX) + make_srd(SB2, P_B2, 1280)
    a(f"v_and_b32 v{t0}, 31, v{vL}", f"v_lshrrev_b32 v{t1}, 5, v{vL}")
    a(f"v_lshlrev_b32 v{vEXr}, 4, v{t0}", f"v_add_u32 v{vEXr}, {EX}, v{vEXr}", f"v_sub_u32 v{vHiM}, 0, v{t1}")
    a(f"v_bfe_u32 v{t2}, v{vL}, 4, 1", f"v_mul_u32_u24 v{t2}, {NB * 1024}, v{t2}", f"v_and_b32 v{t3}, 15, v{vL}",
      f"v_lshl_add_u32 v{t3}, v{t1}, 4, v{t3}", f"v_lshl_add_u32 v{vHst}, v{t3}, 4, v{t2}")
    a(f"s_lshl_b32 s{sT0}, s{sR}, 2", f"s_add_u32 s{sT0}, s{sT0}, s{sW}", f"s_mul_i32 s{sHst}, s{sT0}, {2 * NB * 1024}", f"s_add_u32 s{sHst}, s{sHst}, {HB}",
      f"s_mul_i32 s{sOst}, s{sU}, 2560", f"s_add_u32 s{sOst}, s{sOst}, s{sHst}",
      f"s_add_u32 s{sHst}, s{sHst}, {20 * 1024}", f"s_lshl_b32 s{sT0}, s{sU4}, 4", f"s_add_u32 s{sH4}, s{sHst}, s{sT0}", f"s_or_b32 s{sH4}, s{sH4}, s{sLast}",
      f"s_lshl_b32 s{sT0}, s{sU64}, 4", f"s_add_u32 s{sHst}, s{sHst}, s{sT0}")
    a(f"s_lshl_b32 s{sT0}, s2, 7", f"s_lshl_b32 s{sT1}, s{sW}, 2", f"s_add_u32 s{sT0}, s{sT0}, s{sT1}",
      f"v_mov_b32 v{vFl}, {OOB}", f"v_writelane_b32 v{vFl}, s{sT0}, 0", f"v_and_b32 v{vFl0}, -16, v{vFl}",
      f"v_mov_b32 v{vOne}, 0", f"v_lshlrev_b32 v{vCnt}, 2, v{vL}", f"v_add_u32 v{vCnt}, {CNT}, v{vCnt}", f"ds_write_b32 v{vCnt}, v{vOne}", f"v_mov_b32 v{vOne}, 1")
    a(f"s_mov_b32 s{sEps}, {f2u(1e-6)}")
    return o


def touch_code():
    return I(f"s_getpc_b64 s[{sT0 + 1}:{sT0 + 2}]", f"s_and_b32 s{sT0}, s2, 0xf8", f"s_lshl_b32 s{sT0}, s{sT0}, 8", f"v_and_b32 v{T1}, 0xc3, v0", f"v_lshrrev_b32 v{T2}, 4, v{T1}",
             f"v_and_or_b32 v{T1}, v{T1}, 3, v{T2}", f"v_lshl_add_u32 v{T1}, v{T1}, 7, s{sT0}", "s_mov_b64 exec, 15",
             f"global_load_dword v{vTd}, v{T1}, s[{sT0 + 1}:{sT0 + 2}]", "s_mov_b64 exec, -1")


def first_touch():
    o = I(f"s_lshl_b32 s{sT0}, s2, 2", f"s_add_u32 s{sT0}, s{sT0}, s{sW}", f"s_lshl_b32 s{sT1}, s{sT0}, 7", f"s_mul_i32 s{sT0}, s{sT0}, {2 * LDX}",
          f"v_lshlrev_b32 v{T0}, 17, v{vL}", f"v_lshrrev_b32 v{T1}, 1, v{vL}", f"v_and_b32 v{T2}, 1, v{vL}", f"v_mul_u32_u24 v{T2}, {LDX}, v{T2}", f"v_lshl_add_u32 v{T1}, v{T1}, 7, v{T2}",
          "s_mov_b64 exec, 0xfffff",
          f"buffer_load_dword v{vTd}, v{T0}, {srd(SQKV)}, s{sT1} offen", f"buffer_load_dword v{vTd}, v{T0}, {srd(SW1)}, s{sT1} offen",
          f"buffer_load_dword v{vTd}, v{T1}, {srd(SX)}, s{sT0} offen", "s_mov_b64 exec, -1")
    for x in o:
        if x.kind == "vmem":
            x.wr = set()
    return o


CB = 128
ST, CS, CAD, SAD, SST = CB, CB + 10, CB + 30, CB + 45, CB + 44
PA = 216


def s0_wave_params(tiles):
    o = []
    done = uid("s0p")
    for w in range(4):
        nxt = uid("s0p")
        if w < 3:
            o += I(f"s_cmp_lg_u32 s{sW}, {w}", f"s_cbranch_scc1 {nxt}")
        for name, (lo, hi, ld, off, mx, sb) in zip((tiles + ["--"])[2 * w:2 * w + 2], ((sA_lo, sA_hi, sLdA, sOffA, sMixA, sBA), (sB_lo, sB_hi, sLdB, sOffB, sMixB, sBB))):
            ish = name[0] in "H-"
            p = P_W1 if ish else P_QKV
            o += I(f"s_mov_b32 s{lo}, s{p}", f"s_mov_b32 s{hi}, s{p + 1}", f"s_mov_b32 s{ld}, {LD1 if ish else LDQ}",
                   f"s_mov_b32 s{mx}, {dict(MX=1248, QM=-32).get(name, 0)}")
            if not ish:
                o += I(f"s_add_u32 s{off}, s{sKq}, {QCOL[name]}", f"s_mov_b32 s{sb}, {OOB}")
            elif name == "--":
                o += I(f"s_mov_b32 s{off}, 0", f"s_mov_b32 s{sb}, {OOB}")
            elif name == "H4":
                o += I(f"s_or_b32 s{sb}, s{sU4}, s{sLast}", f"s_mov_b32 s{off}, s{sU4}")
            else:
                o += I(f"s_add_u32 s{off}, s{sU64}, {64 * HUNIT[name]}", f"s_mov_b32 s{sb}, s{off}")
        if w < 3:
            o += I(f"s_branch {done}", f"{nxt}:")
    o += I(f"{done}:")
    return o


QCOL = {"K0": 0, "K1": 64, "MX": 128, "V0": 1280, "V1": 1344, "Q0": 0, "Q1": 64, "QM": 128}
HUNIT = {"Ha": 0, "Hb": 1, "H0": 0, "H1": 1, "H2": 2, "H3": 3, "H4": 4}


def s0_addr(tiles):
    o = []
    a = lambda *t: o.extend(I(*t))
    t0, t1, t2, t3 = T0, T1, T2, T3
    a(f"s_lshl_b32 s{sT0}, s{sR}, 7", f"s_lshl_b32 s{sT1}, s{sG}, 3", f"s_add_u32 s{sT0}, s{sT0}, s{sT1}", f"s_lshl_b32 s{sT1}, s{sW}, 1",
      f"s_add_u32 s{sT2}, s{sT0}, s{sT1}", f"s_mul_i32 s{sH}, s{sT2}, {LDX}",
      f"v_lshrrev_b32 v{t0}, 5, v{vL}", f"v_mul_u32_u24 v{t1}, {LDX}, v{t0}", f"v_and_b32 v{t2}, 31, v{vL}", f"v_lshl_add_u32 v{SAD}, v{t2}, 3, v{t1}",
      f"v_add_u32 v{SST}, s{sT2}, v{t0}")
    o += s0_wave_params(tiles)
    ad, ld = CAD, CB + 46
    a(f"v_and_b32 v{t0}, 4, v{vL}", f"v_cmp_ne_u32 vcc, 0, v{t0}",
      f"v_mov_b32 v{ld}, s{sLdA}", f"v_mov_b32 v{t1}, s{sLdB}", f"v_cndmask_b32 v{ld}, v{ld}, v{t1}, vcc", f"v_mov_b32 v{ld + 1}, 0",
      f"v_mov_b32 v{t2}, s{sOffA}", f"v_mov_b32 v{t1}, s{sOffB}", f"v_cndmask_b32 v{t2}, v{t2}, v{t1}, vcc",
      f"v_mov_b32 v{t3}, s{sMixA}", f"v_mov_b32 v{t1}, s{sMixB}", f"v_cndmask_b32 v{t3}, v{t3}, v{t1}, vcc",
      f"v_mov_b32 v{ad}, s{sA_lo}", f"v_mov_b32 v{t1}, s{sB_lo}", f"v_cndmask_b32 v{ad}, v{ad}, v{t1}, vcc",
      f"v_mov_b32 v{ad + 1}, s{sA_hi}", f"v_mov_b32 v{t1}, s{sB_hi}", f"v_cndmask_b32 v{ad + 1}, v{ad + 1}, v{t1}, vcc",
      f"v_bfe_u32 v{t0}, v{vL}, 1, 1", f"v_mad_i32_i24 v{t2}, v{t0}, v{t3}, v{t2}",
      f"v_and_b32 v{t0}, 3, v{vL}", f"v_lshl_add_u32 v{t2}, v{t0}, 4, v{t2}",
      f"v_lshrrev_b32 v{t0}, 3, v{vL}", f"v_mul_u32_u24 v{t0}, 5, v{t0}", f"s_mul_i32 s{sT0}, s{sR}, 40", f"v_add_u32 v{t0}, s{sT0}, v{t0}",
      f"v_mad_u32_u24 v{t2}, v{t0}, v{ld}, v{t2}", f"v_mov_b32 v{t3}, 0",
      f"v_lshl_add_u64 v[{ad}:{ad + 1}], v[{t2}:{t3}], 0, v[{ad}:{ad + 1}]")
    for i in range(4):
        a(f"v_lshl_add_u64 v[{ad + 2 * i + 2}:{ad + 2 * i + 3}], v[{ld}:{ld + 1}], 0, v[{ad + 2 * i}:{ad + 2 * i + 1}]")
    return o


def s0_mem():
    o = [I(f"buffer_load_dwordx2 v[{ST + 2 * m}:{ST + 2 * m + 1}], v{SAD}, {srd(SX)}, s{sH} offen offset:{256 * m}") for m in range(5)]
    o += [I(f"global_load_dwordx4 v[{CS + 4 * i}:{CS + 4 * i + 3}], v[{CAD + 2 * i}:{CAD + 2 * i + 1}], off") for i in range(5)]
    return o


def reduce32(x, t):
    o = []
    for n in (8, 4, 2, 1):
        o += I(f"v_add_f32_dpp v{x}, v{x}, v{x} row_ror:{n} row_mask:0xf bank_mask:0xf")
    return o + I(f"v_mov_b32 v{t}, v{x}", f"v_permlane16_swap_b32 v{x}, v{t}", f"v_add_f32 v{x}, v{x}, v{t}")


def weave(*streams):
    out, streams = [], [list(s) for s in streams]
    while any(streams):
        for s in streams:
            if s:
                out.append(s.pop(0))
    return out


def s0_produce(kv):
    st, cs, stores = [], [], []
    a = lambda *t: st.extend(I(*t))
    s0, s1, t = CB + 40, CB + 41, CB + 42
    a(f"s_mov_b32 s{sCnt}, 0x3f803f80")
    for m in range(10):
        a(f"v_dot2_f32_bf16 v{s0}, v{ST + m}, s{sCnt}, {'0' if m == 0 else 'v%d' % s0}", f"v_dot2_f32_bf16 v{s1}, v{ST + m}, v{ST + m}, {'0' if m == 0 else 'v%d' % s1}")
    a(f"v_lshrrev_b32 v{t}, 3, v{SST}", f"v_lshlrev_b32 v{SST}, 3, v{SST}", f"v_lshl_add_u32 v{SST}, v{t}, 6, v{SST}", f"v_add_u32 v{SST}, {STATS}, v{SST}", f"v_and_b32 v{t}, 31, v{vL}", f"v_min_u32 v{t}, 1, v{t}", f"v_lshl_add_u32 v{SST}, v{t}, 30, v{SST}")
    red = weave(reduce32(s0, t), reduce32(s1, CB + 43))
    red += I(f"v_mul_f32 v{s0}, {f2u(1 / 640)}, v{s0}", f"v_mul_f32 v{s1}, {f2u(1 / 640)}, v{s1}", f"v_fma_f32 v{s1}, -v{s0}, v{s0}, v{s1}", f"v_max_f32 v{s1}, 0, v{s1}")
    stores.append(ins(f"buffer_store_dwordx2 v[{s0}:{s1}], v{SST}, {srd(SWS)}, 0 offen sc1"))
    a = lambda *t: cs.extend(I(*t))
    A, ta, tb = CAD, CB + 46, CB + 47
    for i in range(5):
        for k in range(4):
            for h in range(2):
                d = A + 2 * k + h
                a(f"v_dot2_f32_bf16 v{d}, v{CS + 4 * i + k}, s{sOne1 if h else sOne0}, {'0' if i == 0 else 'v%d' % d}")
    n1 = len(cs)
    a(f"v_and_b32 v{ta}, 7, v{vL}", f"v_lshlrev_b32 v{ta}, 5, v{ta}", f"v_lshrrev_b32 v{tb}, 5, v{vL}", f"v_lshl_add_u32 v{ta}, v{tb}, 4, v{ta}")
    for i in range(4):
        a(f"v_permlane32_swap_b32 v{A + i}, v{A + i + 4}")
    for i in range(4):
        a(f"v_add_f32 v{A + i}, v{A + i}, v{A + i + 4}")
    a(f"v_bfe_u32 v{tb}, v{vL}, 4, 1", f"v_lshl_add_u32 v{ta}, v{tb}, 3, v{ta}")
    for i in range(2):
        a(f"v_permlane16_swap_b32 v{A + i}, v{A + i + 2}")
    for i in range(2):
        a(f"v_add_f32 v{A + i}, v{A + i}, v{A + i + 2}")
    a(f"v_bfe_u32 v{tb}, v{vL}, 3, 1", f"v_lshl_add_u32 v{ta}, v{tb}, 30, v{ta}")
    for i in range(2):
        a(f"v_add_f32_dpp v{A + i}, v{A + i}, v{A + i} row_ror:8 row_mask:0xf bank_mask:0xf")
    a(f"s_lshl_b32 s{sH}, s{sG}, 4", f"s_add_u32 s{sH}, s{sH}, s{sR}", f"s_lshl_b32 s{sH}, s{sH}, 2", f"s_add_u32 s{sH}, s{sH}, s{sW}",
      f"s_lshl_b32 s{sH}, s{sH}, 8", f"s_add_u32 s{sH}, s{sH}, {CSUM}", f"v_add_u32 v{ta}, s{sH}, v{ta}")
    stores.append(ins(f"buffer_store_dwordx2 v[{A}:{A + 1}], v{ta}, {srd(SWS)}, 0 offen sc1"))
    return st + cs[:n1] + weave(red, bundled(cs[n1:])), stores


def s0_consume_loads():
    o = stamp("prepoll") + poll_check(vRowF, L_S0, "both", dst=vPoll) + poll_check(vColF, L_S0, "both", dst=vPoll2) + stamp("polled")
    a = lambda *t: o.extend(I(*t))
    a(f"buffer_load_dwordx2 v[{CB}:{CB + 1}], v{PA}, {srd(SWS)}, 0 offen sc1")
    for m in range(4):
        a(f"buffer_load_dwordx4 v[{CB + 4 + 4 * m}:{CB + 7 + 4 * m}], v{PA + 1 + m}, {srd(SWS)}, 0 offen sc1")
    return o


def bias_loads():
    return [I(f"buffer_load_ushort v{vB1}, v{PA + 5}, {srd(SB1)}, 0 offen")] + b2_load()


def s0_consume_addr():
    o = []
    a = lambda *t: o.extend(I(*t))
    t0, t1 = T0, T1
    o += flag_addr_row(vRowF, sR, t0, t1) + flag_addr_col(vColF, sG, t0, t1)
    a(f"v_and_b32 v{t0}, 31, v{vL}", f"v_and_b32 v{t1}, 24, v{vL}", f"v_add_lshl_u32 v{t0}, v{t0}, v{t1}, 3", f"s_lshl_b32 s{sT0}, s{sR}, 2", f"s_add_u32 s{sT0}, s{sT0}, s{sW}",
      f"s_lshl_b32 s{sT0}, s{sT0}, 9", f"s_add_u32 s{sT0}, s{sT0}, {STATS}", f"v_add_u32 v{PA}, s{sT0}, v{t0}")
    a(f"v_lshrrev_b32 v{t0}, 4, v{vL}", f"v_lshlrev_b32 v{t0}, 10, v{t0}", f"v_and_b32 v{t1}, 15, v{vL}", f"v_lshl_add_u32 v{t0}, v{t1}, 4, v{t0}",
      f"s_lshl_b32 s{sT0}, s{sG}, 14", f"s_lshl_b32 s{sT1}, s{sW}, 8", f"s_add_u32 s{sT0}, s{sT0}, s{sT1}", f"s_add_u32 s{sT0}, s{sT0}, {CSUM}",
      f"v_add_u32 v{PA + 1}, s{sT0}, v{t0}")
    for m in range(1, 4):
        a(f"v_add_u32 v{PA + 1 + m}, {4096 * m}, v{PA + 1}")
    p = PA + 6
    a(f"v_lshlrev_b32 v{p}, 2, v{t1}", f"v_lshrrev_b32 v{t0}, 5, v{vL}", f"v_lshl_add_u32 v{p}, v{t0}, 1, v{p}", f"v_bfe_u32 v{t0}, v{vL}, 4, 1", f"v_add_u32 v{p}, v{p}, v{t0}",
      f"v_cmp_le_u32 vcc, 32, v{p}", f"v_mov_b32 v{t0}, s{sBA}", f"v_mov_b32 v{t1}, s{sBB}", f"v_cndmask_b32 v{t0}, v{t0}, v{t1}, vcc",
      f"v_and_b32 v{t1}, 31, v{p}", f"v_lshl_add_u32 v{PA + 5}, v{t1}, 1, v{t0}",
      f"v_lshlrev_b32 v{p}, 4, v{p}", f"v_add_u32 v{p}, s{sWL}, v{p}", f"v_add_u32 v{p}, {EX}, v{p}")
    return o


def s0_consume_math():
    x, y = [], []
    a = lambda *t: x.extend(I(*t))
    m, var = CB, CB + 1
    t0, t1, t2, t3 = CB + 28, CB + 29, CB + 30, CB + 31
    e5 = f2u(1e-5)
    a(f"v_add_f32 v{t0}, {e5}, v{var}", f"v_rsq_f32 v{vRs1}, v{t0}", f"v_mul_f32 v{t1}, v{var}, v{vRs1}", f"v_mul_f32 v{t1}, v{t1}, v{vRs1}",
      f"v_add_f32 v{t1}, {e5}, v{t1}", f"v_rsq_f32 v{t1}, v{t1}", f"v_mul_f32 v{vRl1}, {f2u(LOG2E)}, v{vRs1}", f"v_mul_f32 v{t1}, v{t1}, v{vRs1}",
      f"v_rcp_f32 v{vIrs}, v{t1}", f"v_mul_f32 v{vA1}, {f2u(C1)}, v{t1}", f"v_mul_f32 v{t2}, v{t1}, v{t1}", f"v_mul_f32 v{t2}, v{t2}, v{t1}",
      f"v_mul_f32 v{vA3}, {f2u(C3)}, v{t2}")
    a(f"v_sub_f32 v{m}, 0, v{m}", f"v_cvt_pk_bf16_f32 v{t0}, v{m}, v{m}", f"v_and_b32 v{t0}, 0xffff0000, v{t0}", f"v_sub_f32 v{t2}, v{m}, v{t0}",
      f"v_cvt_pk_bf16_f32 v{vXE}, v{t0}, v{t2}",
      f"v_cvt_pk_bf16_f32 v{t0}, v{vIrs}, v{vIrs}", f"v_and_b32 v{t0}, 0xffff0000, v{t0}", f"v_sub_f32 v{t2}, v{vIrs}, v{t0}",
      f"v_cvt_pk_bf16_f32 v{vXE + 2}, v{t0}, v{t2}", f"v_and_b32 v{t0}, 0xffff0000, v{vXE + 2}", f"v_sub_f32 v{t2}, v{t2}, v{t0}",
      f"v_cvt_pk_bf16_f32 v{vXE + 3}, v{t2}, 0",
      f"v_not_b32 v{t3}, v{vHiM}", f"v_and_b32 v{vXE}, v{vXE}, v{t3}", f"v_and_b32 v{vXE + 2}, v{vXE + 2}, v{t3}", f"v_and_b32 v{vXE + 3}, v{vXE + 3}, v{t3}",
      f"v_mov_b32 v{vXE + 1}, v{vXE}")
    a = lambda *t: y.extend(I(*t))
    B, u0 = CB + 4, CB + 32
    for mm in range(1, 4):
        for k in range(4):
            a(f"v_add_f32 v{B + k}, v{B + k}, v{B + 4 * mm + k}")
    a(f"v_permlane32_swap_b32 v{B}, v{B + 2}", f"v_permlane32_swap_b32 v{B + 1}, v{B + 3}",
      f"v_add_f32 v{B}, v{B}, v{B + 2}", f"v_add_f32 v{B + 1}, v{B + 1}, v{B + 3}",
      f"v_permlane16_swap_b32 v{B}, v{B + 1}", f"v_add_f32 v{B}, v{B}, v{B + 1}")
    Rr = CB + 24
    a(f"v_cvt_pk_bf16_f32 v{Rr}, v{B}, v{B}", f"v_and_b32 v{u0}, 0xffff0000, v{Rr}", f"v_sub_f32 v{u0}, v{B}, v{u0}",
      f"v_cvt_pk_bf16_f32 v{Rr + 1}, v{u0}, v{u0}", f"v_lshl_or_b32 v{Rr + 2}, v{vB1}, 16, v{vB1}", f"v_mov_b32 v{Rr + 3}, v{vB1}")
    w = ins(f"ds_write_b128 v{PA + 6}, v[{Rr}:{Rr + 3}]")
    return weave(y + [w], x), w


pr = lambda r: f"v[{r}:{r + 1}]"


def cvt2(dst, tb):
    return I(f"v_cvt_pk_bf16_f32 v{dst}, v{tb}, v{tb + 1}", f"v_cvt_pk_bf16_f32 v{dst + 1}, v{tb + 2}, v{tb + 3}")


def gelu_quad(A, dst, tb, pk=False):
    o = []
    each = lambda f, n=4, s=1: [o.extend(I(f(i))) for i in range(0, n, s)]
    if pk:
        each(lambda i: f"v_pk_mul_f32 {pr(tb + i)}, {pr(A + i)}, {pr(A + i)}", 4, 2)
        each(lambda i: f"v_pk_fma_f32 {pr(tb + i)}, {pr(tb + i)}, {pr(vA3)}, {pr(vA1)} op_sel_hi:[1,0,0]", 4, 2)
        each(lambda i: f"v_pk_mul_f32 {pr(tb + i)}, {pr(tb + i)}, {pr(A + i)}", 4, 2)
        each(lambda i: f"v_exp_f32 v{tb + i}, v{tb + i}")
        each(lambda i: f"v_pk_fma_f32 {pr(tb + i)}, {pr(tb + i)}, {pr(vIrs)}, {pr(vIrs)} op_sel_hi:[1,0,0]", 4, 2)
        each(lambda i: f"v_rcp_f32 v{tb + i}, v{tb + i}")
        each(lambda i: f"v_pk_mul_f32 {pr(tb + i)}, {pr(tb + i)}, {pr(A + i)}", 4, 2)
    else:
        each(lambda i: f"v_mul_f32 v{tb + i}, v{A + i}, v{A + i}")
        each(lambda i: f"v_fma_f32 v{tb + i}, v{tb + i}, v{vA3}, v{vA1}")
        each(lambda i: f"v_mul_f32 v{tb + i}, v{tb + i}, v{A + i}")
        each(lambda i: f"v_exp_f32 v{tb + i}, v{tb + i}")
        each(lambda i: f"v_fma_f32 v{tb + i}, v{tb + i}, v{vIrs}, v{vIrs}")
        each(lambda i: f"v_rcp_f32 v{tb + i}, v{tb + i}")
        each(lambda i: f"v_mul_f32 v{tb + i}, v{tb + i}, v{A + i}")
    return o + cvt2(dst, tb)


def phi_quad(A, dst, tb, pk=False):
    o = []
    each = lambda f, n=4, s=1: [o.extend(I(f(i))) for i in range(0, n, s)]
    if pk:
        each(lambda i: f"v_pk_mul_f32 {pr(tb + i)}, {pr(A + i)}, {pr(vRl1)} op_sel_hi:[1,0]", 4, 2)
        each(lambda i: f"v_pk_fma_f32 {pr(A + i)}, {pr(A + i)}, {pr(vRs1)}, 1.0 op_sel_hi:[1,0,0]", 4, 2)
    else:
        each(lambda i: f"v_mul_f32 v{tb + i}, v{A + i}, v{vRl1}")
        each(lambda i: f"v_fma_f32 v{A + i}, v{A + i}, v{vRs1}, 1.0")
    each(lambda i: f"v_exp_f32_e64 v{tb + i}, v{tb + i} clamp")
    each(lambda i: f"v_max_f32 v{tb + i}, v{tb + i}, v{A + i}")
    if pk:
        each(lambda i: f"v_pk_add_f32 {pr(tb + i)}, {pr(tb + i)}, s[{sEps}:{sEps + 1}] op_sel_hi:[1,0]", 4, 2)
    else:
        each(lambda i: f"v_add_f32 v{tb + i}, s{sEps}, v{tb + i}")
    return o + cvt2(dst, tb)


def lin_quad(A, dst, tb, pk=False):
    o = []
    if pk:
        for i in (0, 2): o += I(f"v_pk_mul_f32 {pr(tb + i)}, {pr(A + i)}, {pr(vRs1)} op_sel_hi:[1,0]")
    else:
        for i in range(4): o += I(f"v_mul_f32 v{tb + i}, v{A + i}, v{vRs1}")
    return o + cvt2(dst, tb)


def gelu_quads(jobs, lo, hi, pk):
    o = []
    for n in range(lo, hi):
        A, name, toks = jobs[n // 4]
        gq, h = n % 4, (n % 4) // 2
        if gq == 0 or n == lo:
            pass
        o += gelu_quad(A + 4 * gq, A + 8 * h + 2 * (gq & 1), ET + 4 * (gq & 1), pk)
        if gq & 1:
            x = ins(f"buffer_store_dwordx4 v[{A + 8 * h}:{A + 8 * h + 3}], v{vHst}, {srd(SWS)}, s{sH4 if name == 'H4' else sHst} offen offset:{512 * h + 1024 * (HUNIT[name] % 4)} sc1")
            o.append(x); toks.append(x)
    return o


def kv_setup():
    o = []
    a = lambda *t: o.extend(I(*t))
    t0, t1, t2 = T0, T1, T2
    a(f"v_and_b32 v{t0}, 31, v{vL}", f"s_lshl_b32 s{sT0}, s{sW}, 5", f"v_add_u32 v{t0}, s{sT0}, v{t0}", f"v_mul_u32_u24 v{t0}, {KVT_LD}, v{t0}",
      f"v_add_u32 v{t0}, {KVT}, v{t0}", f"v_add_u32 v{vOnes}, 320, v{t0}",
      f"v_lshrrev_b32 v{t1}, 5, v{vL}", f"v_lshl_add_u32 v{vKf}, v{t1}, 3, v{t0}")
    a(f"v_bfe_u32 v{t0}, v{vL}, 2, 2", f"v_lshl_add_u32 v{t0}, v{t1}, 3, v{t0}", f"v_mul_u32_u24 v{t0}, {KVT_LD}, v{t0}", f"v_add_u32 v{t0}, {KVT}, v{t0}",
      f"v_bfe_u32 v{t1}, v{vL}, 4, 1", f"v_and_b32 v{t2}, 3, v{vL}", f"v_lshl_add_u32 v{t1}, v{t1}, 2, v{t2}",
      f"s_mul_i32 s{sT0}, s{sW}, 40", f"v_lshl_add_u32 v{vKB}, v{t1}, 3, v{t0}", f"v_add_u32 v{vKB}, s{sT0}, v{vKB}",
      f"v_add_u32 v{vKA}, 160, v{vKB}", f"v_add_u32 v{t0}, 320, v{t0}", f"v_cmp_eq_u32 vcc, 5, v{t1}", f"v_cndmask_b32 v{vKA}, v{vKA}, v{t0}, vcc")
    a(f"v_and_b32 v{t0}, 31, v{vL}", f"v_cmp_gt_u32 vcc, 24, v{t0}", f"v_lshlrev_b32 v{t0}, 3, v{t0}", f"v_and_b32 v{t1}, 192, v{vHiM}", f"v_add_u32 v{t0}, v{t0}, v{t1}",
      f"s_lshl_b32 s{sT0}, s{sU}, 2", f"s_add_u32 s{sT0}, s{sT0}, s{sW}", f"s_lshl_b32 s{sT0}, s{sT0}, 4", f"s_add_u32 s{sT0}, s{sT0}, s{sR}", f"s_mul_i32 s{sT0}, s{sT0}, 1280",
      f"s_add_u32 s{sT0}, s{sT0}, {KVP}", f"v_add_u32 v{t0}, s{sT0}, v{t0}", f"v_mov_b32 v{vAt}, {OOB}", f"v_cndmask_b32 v{vAt}, v{vAt}, v{t0}, vcc")
    return o


def kv_epilogue(aset, nshadow):
    blk = I(f"v_mov_b32 v{T2}, 0x3f803f80", f"v_mov_b32 v{T3}, 0x3f803f80")
    ones = ins(f"ds_write_b64 v{vOnes}, v[{T2}:{T3}]")
    blk.append(ones)
    wr, parts, n = [ones], [blk, []], 0
    for t, kind, cb in [(0, "k", 0), (1, "k", 64), (2, "m", 128), (3, "v", 160), (4, "v", 224)]:
        A = acc(aset[t])
        for g in range(4):
            isk = kind == "k" or (kind == "m" and g < 2)
            pk = n >= nshadow
            off = cb + 16 * g if kind != "m" else cb + (16 * g if g < 2 else 160 + 16 * (g - 2))
            x = ins(f"ds_write_b64 v{vKf}, v[{A + 4 * g}:{A + 4 * g + 1}] offset:{off}")
            parts[pk] += (phi_quad if isk else lin_quad)(A + 4 * g, A + 4 * g, ET + 4 * (g & 1), pk) + [x]
            wr.append(x)
            n += 1
    return parts[0], parts[1], wr


def kv_product(wr):
    blk = [ins("s_barrier", after=wr)]
    KA, FR = acc(1), acc(2)
    rd = []
    for j in range(8):
        f = FR + 8 * (j % 4)
        rd.append(I(f"ds_read_b64_tr_b16 v[{f}:{f + 1}], v{vKA} offset:{16 * j * KVT_LD}", f"ds_read_b64_tr_b16 v[{f + 2}:{f + 3}], v{vKA} offset:{(16 * j + 4) * KVT_LD}",
                    f"ds_read_b64_tr_b16 v[{f + 4}:{f + 5}], v{vKB} offset:{16 * j * KVT_LD}", f"ds_read_b64_tr_b16 v[{f + 6}:{f + 7}], v{vKB} offset:{(16 * j + 4) * KVT_LD}"))
    blk += rd[0] + rd[1] + rd[2]
    for j in range(8):
        f = FR + 8 * (j % 4)
        c = "0" if j == 0 else f"v[{KA}:{KA + 15}]"
        blk += I(f"v_mfma_f32_32x32x16_bf16 v[{KA}:{KA + 15}], v[{f + 4}:{f + 7}], v[{f}:{f + 3}], {c}")
        if j + 3 < 8:
            blk += rd[j + 3]
    at = []
    for q in range(3):
        at.append(ins(f"buffer_store_dwordx2 v[{KA + 4 * q}:{KA + 4 * q + 1}], v{vAt}, {srd(SWS)}, 0 offen offset:{384 * q} sc1"))
        blk += cvt2(KA + 4 * q, KA + 4 * q) + at[-1:]
    return blk, at


PQ = 128
OA = [112, 148, 164]


def o_setup():
    o = []
    a = lambda *t: o.extend(I(*t))
    t0, t1, t2, t3 = T0, T1, T2, T3
    a(f"v_subrev_u32 v{vColK}, 8192, v{vColF}")
    a(f"s_lshl_b32 s{sK1}, s{sU}, 2", f"s_add_u32 s{sK1}, s{sK1}, s{sW}", f"s_mul_i32 s{sK1}, s{sK1}, 20480", f"s_add_u32 s{sK1}, s{sK1}, {KVP}",
      f"v_cmp_gt_u32 vcc, 60, v{vL}", f"v_lshlrev_b32 v{t0}, 4, v{vL}", f"v_mov_b32 v{vOl0}, {OOB}", f"v_cndmask_b32 v{vOl0}, v{vOl0}, v{t0}, vcc")
    for i, vw in enumerate((vOw0, vOw1)):
        a(f"v_lshl_add_u32 v{t0}, v{vL}, 1, {i}", f"v_mul_u32_u24 v{t2}, 2731, v{t0}", f"v_lshrrev_b32 v{t2}, 16, v{t2}",
          f"v_mul_u32_u24 v{t1}, 24, v{t2}", f"v_sub_u32 v{t1}, v{t0}, v{t1}",
          f"v_mul_u32_u24 v{t0}, 5, v{t2}", f"v_subrev_u32 v{t0}, 4, v{t0}", f"v_max_i32 v{t0}, v{t0}, v{t1}")
        a(f"s_mul_i32 s{sT0}, s{sW}, 5", f"v_add_u32 v{t2}, s{sT0}, v{t2}",
          f"v_lshrrev_b32 v{t3}, 2, v{t2}", f"v_lshlrev_b32 v{vw}, 5, v{t3}", f"v_and_b32 v{t3}, 1, v{t2}", f"v_lshl_add_u32 v{vw}, v{t3}, 4, v{vw}",
          f"v_bfe_u32 v{t3}, v{t2}, 1, 1", f"v_lshl_add_u32 v{vw}, v{t3}, 3, v{vw}", f"v_add_u32 v{vw}, {AM}, v{vw}")
        v2 = (vOw2, vOw3)[i]
        a(f"s_mul_i32 s{sT0}, s{sW}, 20", f"v_add_u32 v{t2}, s{sT0}, v{t1}",
          f"s_add_u32 s{sT0}, s{sW}, 80", f"v_mov_b32 v{t3}, s{sT0}", f"v_cmp_eq_u32 vcc, 20, v{t1}", f"v_cndmask_b32 v{t2}, v{t2}, v{t3}, vcc",
          f"v_mul_u32_u24 v{t2}, {AM_LD}, v{t2}", f"v_add_u32 v{vw}, v{vw}, v{t2}",
          f"v_add_u32 v{t2}, {4 * AM_LD}, v{vw}", f"v_cndmask_b32 v{v2}, v{vw}, v{t2}, vcc")
        a(f"v_cmp_lt_u32 vcc, 20, v{t0}", f"v_mov_b32 v{t2}, {SCR}", f"v_cndmask_b32 v{vw}, v{vw}, v{t2}, vcc", f"v_cndmask_b32 v{v2}, v{v2}, v{t2}, vcc")
    a(f"v_and_b32 v{t0}, 31, v{vL}", f"v_mul_u32_u24 v{t0}, {AM_LD}, v{t0}", f"v_and_b32 v{t1}, 16, v{vHiM}", f"v_add_u32 v{t0}, v{t0}, v{t1}", f"v_add_u32 v{vAM}, {AM}, v{t0}")
    return o


def am_zero():
    o = I(*[f"v_mov_b32 v{ET + k}, 0" for k in range(4)], f"v_lshlrev_b32 v{ET + 4}, 4, v0", f"v_add_u32 v{ET + 4}, {AM}, v{ET + 4}")
    tk = [ins(f"ds_write_b128 v{ET + 4}, v[{ET}:{ET + 3}] offset:{4096 * k}") for k in range(5)]
    return o + tk, tk


def phi_q(aset, pk, lo, hi):
    o = []
    for n in range(lo, hi):
        A = acc(aset[5 + n // 4]) + 4 * (n % 4)
        o += phi_quad(A, PQ + 2 * n, ET + 4 * (n & 1), pk)
    return o


KL, KS = 48, 112


def o_load():
    g = []
    for r in range(16):
        pre = I(f"s_add_u32 s{sH}, s{sK1}, {5120 * (r // 4)}") if r % 4 == 0 else []
        g.append(pre + I(f"buffer_load_dwordx4 v[{KL + 4 * r}:{KL + 4 * r + 3}], v{vOl0}, {srd(SWS)}, s{sH} offen offset:{1280 * (r % 4)} sc1"))
    return poll_check(vColK, L_KP, "kv", dst=vPoll2) + stamp("kvseen"), g


def o_write():
    o = []
    for r in range(16):
        for k in range(8):
            o += I(f"v_dot2_f32_bf16 v{KS + k}, v{KL + 4 * r + k // 2}, s{sOne1 if k & 1 else sOne0}, {'0' if r == 0 else 'v%d' % (KS + k)}")
    o += cvt2(KS, KS) + cvt2(KS + 2, KS + 4)
    wr = [ins(f"ds_write_b64 v{vw}, v[{KS + 2 * i}:{KS + 2 * i + 1}]") for i, vw in ((0, vOw0), (0, vOw2), (1, vOw1), (1, vOw3))]
    return o + wr, wr


def o_steps():
    seq = [(T, k) for T in (2, 0, 1) for k in range(5)]
    fr = lambda n: r4([("v", ET), ("v", ET + 4), ("v", T0)][n % 3])
    rd = lambda n: I(f"ds_read_b128 {fr(n)}, v{vAM} offset:{seq[n][0] * 32 * AM_LD + 32 * seq[n][1]}")
    steps = []
    for n, (T, k) in enumerate(seq):
        pre = []
        if n == 0:
            pre = rd(0) + rd(1)
        c = "0" if k == 0 else f"v[{OA[T]}:{OA[T] + 15}]"
        m = ins(f"v_mfma_f32_32x32x16_bf16 v[{OA[T]}:{OA[T] + 15}], {fr(n)}, v[{PQ + 4 * k}:{PQ + 4 * k + 3}], {c}")
        steps.append(dict(pre=pre, mfma=m, post=rd(n + 2) if n + 2 < 15 else [], budget=0))
    return steps


def o_finish(toks):
    o = []
    a = lambda *t: o.extend(I(*t))
    rc = ET
    for h in range(4): a(f"v_add_f32 v{rc + h}, s{sEps}, v{OA[2] + 8 + h}")
    for h in range(4): a(f"v_rcp_f32 v{rc + h}, v{rc + h}")
    a(f"v_bfi_b32 v{rc + 4}, v{vHiM}, v{rc + 1}, v{rc}", f"v_bfi_b32 v{rc + 5}, v{vHiM}, v{rc + 3}, v{rc + 2}")
    for i in (4, 0, 1, 2, 3):
        A = OA[i >> 1] + 8 * (i & 1)
        for gq in range(2):
            e0 = 16 * i + 8 * gq
            rr = {16: rc + 4, 56: rc + 5}.get(e0, rc + e0 // 20)
            sel = "op_sel:[0,1] op_sel_hi:[1,1]" if rr & 1 else "op_sel_hi:[1,0]"
            for k in (0, 2): a(f"v_pk_mul_f32 {pr(A + 4 * gq + k)}, {pr(A + 4 * gq + k)}, {pr(rr & ~1)} {sel}")
            o += cvt2(A + 2 * gq, A + 4 * gq)
        x = ins(f"buffer_store_dwordx4 v[{A}:{A + 3}], v{vHst}, {srd(SWS)}, s{sOst} offen offset:{512 * i} sc1")
        o.append(x); toks.append(x)
    return o


def p2_setup(RA):
    o = []
    a = lambda *t: o.extend(I(*t))
    t0, t1, t2 = T0, T1, T2
    a(f"s_and_b32 s{sT0}, s2, 1", f"s_lshl_b32 s{sT0}, s{sT0}, 3", f"s_and_b32 s{sT1}, s2, 4", f"s_add_u32 s{sT0}, s{sT0}, s{sT1}",
      *([f"s_bfe_u32 s{sT1}, s2, 0x20003", f"s_add_u32 s{sR2}, s{sT0}, s{sT1}", f"s_lshr_b32 s{sT1}, s2, 5"] if OPT["map2"] == 0 else
        [f"s_lshr_b32 s{sT1}, s2, 6", f"s_bfe_u32 s{sT2}, s2, {0x10003 if OPT['map2'] == 1 else 0x10008}", f"s_xor_b32 s{sT1}, s{sT1}, s{sT2}", f"s_add_u32 s{sR2}, s{sT0}, s{sT1}",
         f"s_bfe_u32 s{sT1}, s2, 0x30003"]),
      f"s_mul_i32 s{sJ160}, s{sT1}, 160", f"s_mov_b32 s{sD2h}, s{sT1}",
      f"s_bfe_u32 s{sT2}, s2, 0x10001",
      f"s_lshl_b32 s{sE}, s{sT2}, 2", f"s_add_u32 s{sE}, s{sE}, s{sW}",
      f"s_and_b32 s{sT0}, s{sW}, 1", f"s_lshl_b32 s{sT0}, s{sT0}, 1", f"s_mul_i32 s{sBq}, s{sE}, 6", f"s_sub_u32 s{sBq}, s{sBq}, s{sT0}",
      f"s_sub_u32 s{sBk}, s{sBq}, s{sT0}", f"s_add_u32 s{sBq}, s{sBq}, 4",
      f"s_sub_u32 s{sB6}, s{sE}, s{sT2}", f"s_add_u32 s{sB6}, s{sB6}, 48", f"s_cmp_eq_u32 s{sW}, 3", f"s_cselect_b32 s{sL6}, {OOB}, 0",
      f"s_lshl_b32 s{sT0}, s{sR2}, 1", f"s_add_u32 s{sT1}, s{sT0}, s{sT2}",
      f"s_mul_i32 s{sHB}, s{sT1}, {4 * NB * 1024}", f"s_add_u32 s{sHB}, s{sHB}, {HB}",
      f"s_lshl_b32 s{sRow}, s{sT1}, 2", f"s_add_u32 s{sRow}, s{sRow}, s{sW}", f"s_mul_i32 s{sRow}, s{sRow}, {16 * LDX}", f"s_add_u32 s{sRow}, s{sRow}, s{sJ160}",
      f"s_xor_b32 s{sT1}, s{sT1}, 1", f"s_mul_i32 s{sHA}, s{sT1}, {4 * NB * 1024}", f"s_add_u32 s{sHA}, s{sHA}, {HB}")
    a(f"s_add_u32 s{sT0}, s{sBq}, 20", f"s_lshl_b32 s{sHq}, s{sT0}, 10", f"s_add_u32 s{sT0}, s{sBk}, 20", f"s_lshl_b32 s{sHk}, s{sT0}, 10",
      f"s_add_u32 s{sT0}, s{sB6}, 20", f"s_lshl_b32 s{sH6}, s{sT0}, 10", f"s_or_b32 s{sH6}, s{sH6}, s{sL6}", f"s_lshl_b32 s{sHo}, s{sW}, 10",
      f"s_mul_i32 s{sWq}, s{sBq}, {32 * LDX}", f"s_add_u32 s{sWq}, s{sWq}, s{sJ160}", f"s_mul_i32 s{sWk}, s{sBk}, {32 * LDX}", f"s_add_u32 s{sWk}, s{sWk}, s{sJ160}",
      f"s_mul_i32 s{sW6}, s{sB6}, {32 * LDX}", f"s_add_u32 s{sW6}, s{sW6}, s{sJ160}", f"s_or_b32 s{sW6}, s{sW6}, s{sL6}", f"s_mul_i32 s{sWo}, s{sW}, {32 * LDX}", f"s_add_u32 s{sWo}, s{sWo}, s{sJ160}")
    a(f"v_mul_u32_u24 v{T3}, 6554, v{vL}", f"s_mov_b32 s{sT1}, {LDX - 160}", f"s_mul_i32 s{sT0}, s{sW}, 5632", f"s_add_u32 s{sT0}, s{sT0}, {FIN}",
      f"v_lshl_add_u32 v{t2}, v{vL}, 5, s{sT0}")
    for i in range(5):
        o += row10(i, t1) + I(f"v_mad_u32_u24 v{vW2[i]}, v{t1}, s{sT1}, v{vL16}")
        if i < 3:
            a(f"v_lshl_add_u32 v{vTr[i]}, v{t1}, 4, v{t2}")
    a(f"v_add_u32 v{vW2[4]}, 4096, v{vW2[4]}")
    a(f"v_and_b32 v{t1}, 15, v{vL}", f"v_mul_u32_u24 v{t1}, 336, v{t1}", f"v_and_b32 v{t2}, 48, v{vL}", f"v_add3_u32 v{vTw}, v{t1}, v{t2}, s{sT0}")
    for t in range(4):
        a(f"s_add_u32 s{sT0}, s{sW}, {t}", f"s_and_b32 s{sT0}, s{sT0}, 3", f"s_mul_i32 s{sT0}, s{sT0}, {NB * 1024}", f"s_add_u32 s{sT0}, s{sT0}, s{sHB}",
          f"v_add_u32 v{vH['B'][t]}, s{sT0}, v{vL16}")
    a(f"v_lshrrev_b32 v{t0}, 5, v{vL}", f"v_lshlrev_b32 v{t0}, 4, v{t0}", f"v_bfe_u32 v{t1}, v{vL}, 4, 1", f"v_lshl_add_u32 v{t0}, v{t1}, 2, v{t0}",
      f"v_bfe_u32 v{t1}, v{vL}, 2, 2", f"v_add_u32 v{t0}, v{t0}, v{t1}", f"v_mul_u32_u24 v{t0}, 160, v{t0}", f"v_and_b32 v{t1}, 3, v{vL}",
      f"v_lshl_add_u32 v{t0}, v{t1}, 3, v{t0}", f"v_add_u32 v{vT2[0]}, s{sW5}, v{t0}",
      f"v_add_u32 v{vT2[1]}, 0x10000, v{vT2[0]}", f"v_add_u32 v{vT2[2]}, 0x20000, v{vT2[0]}")
    o += flag_sc_row(sR) + I(f"v_subrev_u32 v{vRow2}, s{sT0}, v{vRowF}") + flag_sc_row(sR2) + I(f"v_add_u32 v{vRow2}, s{sT0}, v{vRow2}")
    a(f"v_and_b32 v{vRow2K}, 0xffffdfff, v{vRow2}", f"v_or_b32 v{vRow2}, 0x2000, v{vRow2}")
    a(f"s_mov_b32 s{sRot}, 0")
    a(f"v_add_u32 v{vRW[0]}, s{sW5}, v{vL16}", f"v_add_u32 v{vRW[1]}, 0x10000, v{vRW[0]}", f"v_add_u32 v{vRW[2]}, 0x20000, v{vRW[0]}")
    for t in range(1, 4):
        a(f"s_sub_u32 s{sT0}, s{sW}, {t}", f"s_and_b32 s{sT0}, s{sT0}, 3", f"s_mul_i32 s{sT0}, s{sT0}, 5120", f"s_add_u32 s{sT0}, s{sT0}, {RA[t - 1]}",
          f"v_add_u32 v{vRR[t - 1]}, s{sT0}, v{vL16}")
    a(f"s_xor_b32 s{sT0}, s2, 2", f"s_lshl_b32 s{sT1}, s{sT0}, 7", f"s_lshl_b32 s{sT2}, s{sW}, 2", f"s_add_u32 s{sT1}, s{sT1}, s{sT2}", f"v_mov_b32 v{vPar}, s{sT1}")
    a(f"s_lshl_b32 s{sXc}, s2, 2", f"s_add_u32 s{sXc}, s{sXc}, s{sW}", f"s_mul_i32 s{sXc}, s{sXc}, 3072", f"s_add_u32 s{sXc}, s{sXc}, {XCH}")
    a(f"v_and_b32 v{vFo2}, {OOB}, v{vHiM}", f"v_or_b32 v{vFo2}, v{vFo2}, v{vW2[2]}")
    a(f"v_lshrrev_b32 v{t0}, 4, v{vL}", f"v_lshlrev_b32 v{t0}, 3, v{t0}", f"v_add_u32 v{vFo[0]}, s{sJ160}, v{t0}")
    return o


FIN = 141312


def tw_setup():
    if OPT["mtq"]:
        return I(f"s_and_b32 s{sT0}, s2, 63", f"s_lshr_b32 s{sT1}, s2, 7", f"s_lshl_b32 s{sT1}, s{sT1}, 6", f"s_add_u32 s{sT0}, s{sT0}, s{sT1}",
                 f"s_lshl_b32 s{sT0}, s{sT0}, 2", f"s_add_u32 s{sT0}, s{sT0}, s{sW}", f"s_mul_i32 s{sTa}, s{sT0}, {34 * 128}", f"s_mul_i32 s{sTb}, s{sT0}, {13 * 128}",
                 f"v_lshlrev_b32 v{vTW}, 7, v{vL}")
    return I(f"s_lshl_b32 s{sT0}, s2, 2", f"s_add_u32 s{sT0}, s{sT0}, s{sW}", f"s_mul_i32 s{sTa}, s{sT0}, {17 * 128}", f"s_mul_i32 s{sTb}, s{sT0}, {7 * 128}",
             f"v_lshlrev_b32 v{vTW}, 7, v{vL}")


def masked(n, *body):
    lo, hi = ((1 << n) - 1) & 0xffffffff, ((1 << n) - 1) >> 32
    pre = [f"s_mov_b32 exec_hi, {hi}"] + ([f"s_mov_b32 exec_lo, {lo}"] if n < 32 else [])
    return [Bundle(I(*pre, *body, "s_mov_b64 exec, -1"))]


def mall_touch(kv):
    if not OPT["touch_w"] or (kv and OPT["mtq"]):
        return []
    return [masked(n, f"buffer_load_dword v{vTd}, v{vTW}, {srd(sr)}, s{so} offen") for sr, so, n in ((SW2, sTa, 34 if OPT["mtq"] else 17), (SWO, sTb, 13 if OPT["mtq"] else 7))]


def tlb_warm(shift):
    o = I(f"v_lshlrev_b32 v178, {shift}, v{vL}")
    for sr in (SWS, SOUT, SW2, SWO):
        o += I(f"buffer_load_dword v{vTd}, v178, {srd(sr)}, 0 offen")
    return [Bundle(o)]


def sprinkle(valu, groups, lo=0.0, hi=1.0):
    valu, out, k = bundled(valu), [], 0
    for i, x in enumerate(valu):
        while k < len(groups) and i >= len(valu) * (lo + (hi - lo) * k / len(groups)):
            out += groups[k]
            k += 1
        out.append(x)
    return out + [y for g in groups[k:] for y in g]


def b2_load():
    return [I(f"buffer_load_dwordx2 v[{accB(0, f)[1] + 2}:{accB(0, f)[1] + 3}], v{vFo[0]}, {srd(SB2)}, 0 offen offset:{32 * f}") for f in range(5)]


def b2_unpack():
    o = []
    for f in range(5):
        d = accB(0, f)[1]
        o += I(f"v_lshlrev_b32 v{d}, 16, v{d + 2}", f"v_and_b32 v{d + 1}, 0xffff0000, v{d + 2}", f"v_lshlrev_b32 v{d + 2}, 16, v{d + 3}", f"v_and_b32 v{d + 3}, 0xffff0000, v{d + 3}")
    return o


def ha_setup():
    o = I(f"s_sub_u32 s{sT0}, s{sHA}, s{sHB}")
    return [Bundle(o + I(*[f"v_add_u32 v{vH['A'][t]}, s{sT0}, v{vH['B'][t]}" for t in range(4)]))]


class Program:
    def __init__(s, kv):
        s.kv = kv
        if kv:
            s.tiles, s.T = ["K0", "K1", "MX", "V0", "V1", "Ha", "Hb"], 5
            s.aset = {t: t for t in range(7)}
        else:
            s.tiles, s.T = ["H0", "H1", "H2", "H3", "H4", "Q0", "Q1", "QM"], 4
            s.aset = {t: t for t in range(8)}
        s.spine, s.head, s.sides = [], [], []

    def at(s, idx):
        return s.head if idx < 0 else s.spine[idx]["pre"]

    def pin(s, idx, g):
        st = s.spine[max(idx, 0)]
        if st.get("pinned"):
            st["post"].extend(g)
        else:
            st["pre2"] = g[:-1]
            st["post"].append(g[-1])
        st["pinned"] = True
        st["budget"] -= len(g)

    def spread(s, gs, lo, hi):
        last = lo
        for i, g in enumerate(gs):
            last = lo + (i * max(hi - lo, 1)) // len(gs)
            s.pin(last, g)
        return last

    def w2_dma(s, kind, i, z):
        if kind == "E":
            base, k0, sr = (sWq, i, SW2) if i < 4 else (sW6, 0, SW2) if i == 4 else (sWk, i - 5, SW2)
        else:
            base, k0, sr = sWo, 4 * i, SWO
        x, so = [], base
        if OPT["rot2"] and i != 4:
            m, mul = (3, 1) if kind == "E" and i < 4 else (1, 1) if kind == "E" else (3, 4)
            x = (I(f"s_and_b32 s{sD2w}, s{sRot}, 1", f"s_xor_b32 s{sD2w}, s{sD2w}, {k0}") if m == 1 else I(f"s_xor_b32 s{sD2w}, s{sRot}, {k0 // mul}"))
            x += I(f"s_mul_i32 s{sD2w}, s{sD2w}, {mul * 32 * LDX}", f"s_add_u32 s{sD2w}, s{sD2w}, s{base}")
            so = sD2w
        elif k0:
            x, so = I(f"s_add_u32 s{sD2w}, s{base}, {k0 * 32 * LDX}"), sD2w
        after = s.zrd.get(z, [])
        gs = []
        for k in range(5):
            d = ins(f"buffer_load_dwordx4 v{vW2[k]}, {srd(sr)}, s{so} offen offset:{1024 * (k % 4)} lds", after=after if k == 0 else ())
            gs.append((x if k == 0 else []) + I(f"s_add_u32 m0, s{sW5}, {z + (4096 if k == 4 else 0)}") + [d])
        s.w2tok[(kind, i)] = [g[-1] for g in gs]
        s.w2z[(kind, i)] = z
        if OPT.get("lat") == f"{kind}{i}":
            x = stamp("lat0") + I("s_waitcnt vmcnt(0)", "s_nop 15", "s_nop 15") + stamp("lat1") + [y for g in gs for y in g] + I("s_waitcnt vmcnt(0)") + stamp("lat2") + I("s_nop 15", "s_nop 15", "s_nop 15", "s_nop 15")
            return [[Bundle(x)]]
        return gs

    def w2_reads(s, kind, i):
        x = []
        z = s.w2z[(kind, i)]
        for f in range(5):
            k, r = wfrag(kind, i, f)
            for h in range(2):
                ad = z + 32 * f + 1280 * h
                x.append(ins(f"ds_read_b64_tr_b16 {k}[{r + 2 * h}:{r + 2 * h + 1}], v{vT2[ad >> 16]} offset:{ad & 0xffff}", after=s.w2tok[(kind, i)]))
        s.zrd[z] = x
        return x

    def h_load(s, n, blk):
        kind, i = blk[0], int(blk[1])
        x = []
        if i == 4:
            x, so, imm = (I(f"s_add_u32 s{sD2h}, s{sHo}, 16384"), sD2h, 0) if kind == "O" else ([], sH6, 0)
        elif kind == "O":
            x, so, imm = I(f"s_add_u32 s{sD2h}, s{sHo}, {4096 * i}"), sD2h, 0
        elif not OPT["rot2"]:
            so, imm = (sHq, 1024 * i) if i < 4 else (sHk, 1024 * (i - 5))
        elif i < 4:
            x, so, imm = I(f"s_xor_b32 s{sD2h}, s{sR10}, {1024 * i}", f"s_add_u32 s{sD2h}, s{sD2h}, s{sHq}"), sD2h, 0
        else:
            x, so, imm = I(f"s_and_b32 s{sD2h}, s{sR10}, 1024", f"s_xor_b32 s{sD2h}, s{sD2h}, {1024 * (i - 5)}", f"s_add_u32 s{sD2h}, s{sD2h}, s{sHk}"), sD2h, 0
        v = vH["A" if kind == "A" else "B"]
        return [(x if t == 1 else []) + I(f"buffer_load_dwordx4 a[{aH(n, t)}:{aH(n, t) + 3}], v{v[t]}, {srd(SWS)}, s{so} offen offset:{imm} sc1") for t in (1, 2, 3, 0)]

    def build(s, xs):
        kv, T, tiles = s.kv, s.T, s.tiles
        o = []
        a = lambda *t: o.extend(I(*t))
        if kv:
            a(f"s_lshl_b32 s{sT0}, s{sP}, 8", f"s_sub_u32 s{sU64}, s{sU64}, s{sT0}", f"s_add_u32 s{sKq}, s{sKq}, 1280", f"s_mov_b32 s{sLast}, 0", f"s_mov_b32 s{sU4}, 0")
            o += wk_setup(True)
        else:
            a(f"s_lshl_b32 s{sT0}, s{sP}, 7", f"s_sub_u32 s{sU64}, s{sU64}, s{sT0}", f"s_add_u32 s{sU64}, s{sU64}, 256")
            o += wp_setup()
        dma = lambda pre, m0, v, sr, imm: pre + I(f"s_add_u32 m0, {m0}", f"buffer_load_dwordx4 v{v}, {srd(sr)}, s{sDw} offen offset:{imm} lds")
        so = lambda base, off, last=False: I(f"s_add_u32 s{sDw}, s{base}, {off}") + (I(f"s_or_b32 s{sDw}, s{sDw}, s{sLast}") if last else [])
        two = lambda regs, ad: (regs[0], ad) if ad < 0x8000 else (regs[1], ad - 0x8000)

        def pair_dma(k, bases):
            return [dma(so(sU64, k * 64 * LD1) + swap(sDw, sSw1, k) if (p, i) == (0, 0) else [], f"s{sW2k}, {b - 128 * p}", vWp[i], SW1, 128 * p + 1024 * i) for p, b in enumerate(bases) for i in range(2)]

        pair_step = lambda t, k, j, b, shift: dict(t=t, k=k, j=j, v=vTP[(t - (5 if kv else 0)) & 1], o1=b + 2048 * j - shift, d=512)
        stages = []
        for n in range(10):
            if kv:
                sl = (n % 4) * SLOT
                w = [dma(so(sKw, n * 64 * LDQ) + swap(sDw, sSwQ, n) if i == 0 else [], f"s{sW5}, {sl + 1024 * i}", vWk[i], SQKV, 0) for i in range(5)]
                st = []
                for t, (regs, col) in enumerate(((vTK, 0), (vTK, 64), (vTM, 0), (vTK, 2560), (vTK, 2624))):
                    for j in range(4):
                        v, off = two(regs, sl + 5120 * j + col)
                        st.append(dict(t=t, k=n, j=j, v=v, o1=off, d=640))
            else:
                sl = (n % 4) * 16384
                w = pair_dma(n, [sl, sl + 8192])
                st = [pair_step(t, n, j, sl + 8192 * (t >> 1), 0) for t in range(4) for j in range(4)]
            stages.append(dict(w=(dma_x(n) if n >= len(xs) else []) + w, steps=st, issue=n - 2, xtok=[g[-1] for g in xs[n]] if n < len(xs) else []))
        stages[9]["steps"] += [dict(t=t, extra=True) for t in range(T)]
        if kv:
            for m in range(10):
                b = RING2 + 8192 * m if m < 5 else 8192 * (m - 5)
                st = [pair_step(t, m, j, b, 0x8000 if m < 5 else 0) for t in (5, 6) for j in range(4)]
                for x in st:
                    x["v"] += 0 if m < 5 else 2
                stages.append(dict(w=pair_dma(m, [b]), steps=st, issue=8 if m < 2 else 9 if m < 5 else None))
            stages[-1]["steps"].insert(4, dict(t=5, extra=True))
            stages[-1]["steps"].append(dict(t=6, extra=True))
        else:
            for gq in range(5):
                w, st = [], []
                for m in (2 * gq, 2 * gq + 1):
                    w.append(dma(so(sU4, m * 64 * LD1) + swap(sDw, sSw1, m) + I(f"s_or_b32 s{sDw}, s{sDw}, s{sLast}"), f"s{sWL}, {0x8000 + 4096 * m}", vW1, SW1, 0))
                    st += [dict(t=4, k=m, j=j, v=vTR, o1=4096 * m + 1024 * j, d=256) for j in range(4)]
                stages.append(dict(w=w, steps=st, issue=8 if gq < 2 else 9))
            stages[-1]["steps"].append(dict(t=4, extra=True))
            for qs in range(5):
                b = (qs % 4) * SLOT
                w = [dma(so(sKw, qs * 128 * LDQ) if i == 0 else [], f"s{sW5}, {b + (4096 if i == 4 else 0)}", vWk[i], SQKV, 1024 * (i % 4)) for i in range(5)]
                st = []
                for kk in range(2):
                    for t, regs, col in ((5, vTK, 0), (6, vTK, 64), (7, vTM, 0)):
                        for j in range(4):
                            v, off = two(regs, b + 2560 * (4 * kk + j) + col)
                            st.append(dict(t=t, k=2 * qs + kk, j=j, v=v, o1=off, d=640))
                        if qs == 4 and kk == 1:
                            st.append(dict(t=t, extra=True))
                stages.append(dict(w=w, steps=st, issue=(11, 12, 15, 16, 17)[qs]))
        w0 = [x for g in stages[0]["w"] for x in g]
        if not OPT["s0first"]:
            o += stamp("prew0") + w0 + stamp("w0")
        if kv:
            o += nonce_publish()
        a(f"s_lshl_b32 s{sWL}, s{sW}, 10")
        if not kv:
            a(f"s_lshr_b32 s{sT0}, s{sU}, 2", f"s_sub_u32 s{sT0}, s{sU}, s{sT0}", f"s_add_u32 s{sT0}, s{sT0}, 48", f"s_min_u32 s{sT0}, s{sT0}, 53", f"s_lshl_b32 s{sU4}, s{sT0}, 6",
              f"s_and_b32 s{sT0}, s{sU}, 3", f"s_cmp_eq_u32 s{sT0}, 3", f"s_cselect_b32 s{sLast}, {OOB}, 0")
        o += s0_addr(tiles)
        X = OPT["nos0"] or ()
        o += stamp("pres0")
        s0late = s0_mem() if OPT["s0late"] else []
        for g in ([] if OPT["s0late"] else s0_mem()): o += g
        if OPT["s0first"]:
            o += w0
        o += x_read_setup() + (tk_setup(True) if kv else tp_setup(0))
        if OPT["wsoff"]:
            a(f"s_add_u32 s{P_WS}, s{P_WS}, {OPT['wsoff'] << 20}", f"s_addc_u32 s{P_WS + 1}, s{P_WS + 1}, 0")
        o += make_srd(SWS, P_WS, WS_SIZE) + I(f"s_mov_b32 s{sOne0}, 0x3f80", f"s_mov_b32 s{sOne1}, 0x3f800000")
        first_mem = stages[1]["w"]
        if OPT["dma1_early"]:
            for g in first_mem: o += g
            first_mem = []
        s.prepos = len(o)
        o += stamp("issued")
        steps, first = [], {}
        for n, st in enumerate(stages):
            first[n] = len(steps)
            steps += st["steps"]
        n1 = len(steps)
        first[len(stages)] = n1
        end1 = first[10]
        s.spine = spine = [dict(pre=[], post=[], budget=OPT["b1p"] if q < end1 else OPT["b1"]) for q in range(n1)]
        reads, done, xfree = {}, {}, {}
        for q, st in enumerate(steps):
            fr = aW + 4 * (q % NRING)
            A = acc(s.aset[st["t"]])
            if st.get("extra"):
                reads[q] = I(f"ds_read_b128 a[{fr}:{fr + 3}], v{vEXr} offset:{512 * st['t']}")
                spine[q]["mfma"] = ins(f"v_mfma_f32_32x32x16_bf16 v[{A}:{A + 15}], a[{fr}:{fr + 3}], v[{vXE}:{vXE + 3}], v[{A}:{A + 15}]")
                done[tiles[st["t"]]] = q
            else:
                assert 0 <= st["o1"] and st["o1"] + st["d"] < 65536
                reads[q] = I(f"ds_read_b64_tr_b16 a[{fr}:{fr + 1}], v{st['v']} offset:{st['o1']}", f"ds_read_b64_tr_b16 a[{fr + 2}:{fr + 3}], v{st['v']} offset:{st['o1'] + st['d']}")
                xa = aX + 16 * st["k"] + 4 * st["j"]
                c = "0" if (st["k"] == 0 and st["j"] == 0) else f"v[{A}:{A + 15}]"
                spine[q]["mfma"] = ins(f"v_mfma_f32_32x32x16_bf16 v[{A}:{A + 15}], a[{fr}:{fr + 3}], a[{xa}:{xa + 3}], {c}")
                xfree[xa] = q
        seq = OPT["seq"].split()
        ngap = max(n for n, b in enumerate(seq) if b[0] == "A") + 1
        s.w2tok, s.w2z, s.zrd = {}, {}, {}
        p2first = {}
        s.gapbar = ins("s_barrier")
        if not kv:
            ow, owr = o_write()
            spine.append(dict(pre=[], post=[ins("s_barrier", after=owr)], mfma=None, budget=0))
            spine += o_steps()
            s.otk = []
            p2first["ofin"] = len(spine)
            spine.append(dict(pre=o_finish(s.otk) + stamp("ofin"), post=[ins("s_barrier")], mfma=None, budget=0))
        for n, blk in enumerate(seq):
            if n == ngap:
                p2first["gap"] = len(spine)
                spine.append(dict(pre=[], post=[s.gapbar], mfma=None, budget=0))
            p2first[n] = len(spine)
            kind, i = blk[0], int(blk[1])
            for t in (1, 2, 3, 0):
                for f in range(5):
                    d = ("v", accA(t, f)) if kind == "A" else accB(t, f)
                    zero = blk == "A0" or (blk == "B0" and t != 0)
                    assert seq.index("A0") == 0 and seq.index("B0") == min(k for k, b in enumerate(seq) if b[0] != "A")
                    m = ins(f"v_mfma_f32_16x16x32_bf16 {r4(d)}, {r4(wfrag('O' if kind == 'O' else 'E', i, f))}, a[{aH(n, t)}:{aH(n, t) + 3}], {'0' if zero else r4(d)}")
                    spine.append(dict(pre=[], post=[], mfma=m, budget=OPT["b2"]))
        nend = len(spine)
        p2first[len(seq)] = nend
        spine.append(dict(pre=[], post=[], mfma=None, budget=0))
        last_dma, bar = {}, {}
        for n in range(len(stages)):
            pos = first[n] - LOOK
            bar[n] = b = ins("s_barrier", after=[g[-1] for g in stages[n]["w"]] + stages[n].get("xtok", []))
            blk = [b] + (stamp(f"st{n}") if n in OPT["stages"] else [])
            if n < 10:
                for j in range(4):
                    xa = aX + 16 * n + 4 * j
                    x = I(f"ds_read_b128 a[{xa}:{xa + 3}], v{vXR[j]} offset:{(n % 3) * 4096}")
                    if n and OPT["xpost"]:
                        spine[pos + j]["post"] += x
                        spine[pos + j]["budget"] -= 1
                    else:
                        blk += x
            s.at(pos).extend(blk)
            gs = list(first_mem) + s0late if n == 0 else []
            gs += [g for st in stages[2:] if st["issue"] == n for g in st["w"]]
            if n == OPT["s0ld"]:
                gs += mall_touch(kv)
            if gs:
                lo = max(pos + 1, 0)
                hi = first[n + 1] - LOOK
                last_dma[n] = s.spread(gs, lo, lo + int((hi - lo) * (1.0 if n == 0 else OPT["dspan1"] if n < 10 else OPT["dspan"])))
        for q in range(n1):
            if q < LOOK:
                s.head.extend(reads[q])
            else:
                spine[q - LOOK]["post"][0:0] = reads[q]
            if q % OPT["bt"] == 0:
                for z in range(q + 1, min(q + OPT["bt"], n1)):
                    spine[q]["mfma"].after += reads[z]
        S = OPT["s0k"] if kv else OPT["s0"]
        sides = s.sides
        s0m, s0st = s0_produce(kv)
        for q in range(first[S[0] + 1] - LOOK):
            spine[q]["budget"] += OPT["b0"] - OPT["b1p"]
        if "math" not in X:
            sides.append(side(s0m, start=OPT["s0start"] * T if S[0] == 0 else first[S[0]] - LOOK, end=last_dma[S[0]], name="s0math"))
        spine[last_dma[S[0]]]["post"] += I(f"buffer_load_dword v{vPoll2}, v{vPoll2}, {srd(SDBG)}, 0 offen sc1") + (s0st if "store" not in X else []) + stamp("s0b")
        later = (wp_setup() + tp_setup(0x8000) + I(f"v_subrev_u32 v{vTP[0] + 2}, 0x8000, v{vTP[0]}", f"v_subrev_u32 v{vTP[1] + 2}, 0x8000, v{vTP[1]}")) if kv else (w1_setup() + tr_setup(0x8000) + wk_setup(False) + tk_setup(False))
        s.RA, s.RB = ([Z1, Z2, Z0], [ZB, Z5, Z6]) if kv else ([Z2, Z5, ZA], [ZB, Z6, Z1])
        allset = bundled(late_setup() + tw_setup() + s0_consume_addr() + later + p2_setup(s.RA) + (kv_setup() if kv else o_setup()))
        npre = OPT["npre"][kv]
        o[s.prepos:s.prepos] = allset[:npre]
        zero = [x for x in allset[:npre] if getattr(x, "text", "").startswith("ds_write_b32")]
        assert len(zero) == 1
        bar[0].after += zero
        n_l = len(bundled(late_setup() + tw_setup() + s0_consume_addr()))
        ls = side(allset[npre:max(n_l, npre)], start=0, end=last_dma[1], name="late")
        sides.append(ls)
        if "sig" not in X:
            spine[last_dma[S[1]]]["post"] += nonce_check(vPoll2) + signal_now(L_S0, s0st)
        p2s = side(allset[max(n_l, npre):], start=0, follow=ls, end=last_dma[OPT["b2at"]], name="p2setup")
        sides.append(p2s)
        if "poll" not in X:
            spine[last_dma[S[2]]]["post"] += [poll_issue(vRowF, L_S0, vPoll), poll_issue(vColF, L_S0, vPoll2)]
            cl = s0_consume_loads()
            spine[last_dma[S[3]]]["post"] += cl[:-5]
            s.spread([[x] for x in cl[-5:]], last_dma[S[3]], last_dma[S[3]] + OPT["csp"])
        assert S[4] > S[3]
        s.spread(bias_loads(), last_dma[OPT['b2at']] + 1, last_dma[OPT['b2at']] + 7)
        cm, extok = s0_consume_math()
        s.b2 = b2_unpack() + ha_setup()
        exbar = end1 - T - LOOK - 1
        cms = side(cm, start=last_dma[S[4]] + 1, end=exbar - 1, follow=p2s, name="s0use")
        sides.append(cms)
        spine[exbar]["pre"].insert(0, ins("s_barrier", after=[extok]))
        spine[end1]["pre"] = stamp("pass1") + spine[end1]["pre"]
        spine[n1]["pre"] += stamp("mfma1")
        b2s = side(s.b2, start=exbar + 1, end=end1, follow=cms, name="b2")
        sides.append(b2s)
        flat = lambda gs: [x for g in gs for x in g]
        W = s.w2_dma
        gap = p2first["gap"]

        def RD(kind, i, lo, step=1):
            if kind == "E":
                assert lo > max(xfree[xa] for xa in range(20 * i, 20 * i + 20, 4)), (i, lo)
            for k, x in enumerate(s.w2_reads(kind, i)):
                spine[lo + k * step]["post"].append(x)
                spine[lo + k * step]["budget"] -= 1

        CP = dict(A0=(vRow2, L_HQ, "q"), A5=(vRow2K, L_HB, "kv"), O0=(vRow2, L_O, "q"))

        def cp(n, kl=None, ql=None):
            x = poll_check(*CP[seq[n]]) + stamp("cp" + seq[n])
            if OPT["touch_h"]:
                x += I(f"buffer_load_dword v{vTd}, v{vTch[dict(A0=0, A5=1, O0=2)[seq[n]]]}, {srd(SWS)}, 0 offen sc1")
            return x

        HL = lambda n: s.h_load(n, seq[n])
        if OPT["tlb"]:
            spine[first[OPT["tlb"][0]]]["post"] += tlb_warm(OPT["tlb"][1])
        k1 = len(stamp("pass1"))
        f = first
        if kv:
            epi0, epi, wr = kv_epilogue(s.aset, 0)
            prod, at = kv_product(wr)
            ha, ft = [], []
            rest = [g for m in range(15, 20) for g in stages[m]["w"]]
            spine[end1]["pre"][k1:k1] = [ins("s_barrier")] + sprinkle(epi0 + epi, rest + W("E", 0, Z0), 0, 0.9) + prod + stamp("kvdone")
            s.spread(W("E", 1, ZA) + W("E", 2, ZB), f[11], f[13] + 4)
            RD("E", 0, f[12] + 4)
            s.spread(W("E", 3, Z5) + W("E", 4, Z0), f[14], f[16])
            s.spread(W("E", 5, Z6), f[16], f[17] + 4)
            RD("E", 1, f[17]); RD("E", 2, n1 - 11)
            s.spread(W("E", 6, ZA), f[18] + 4, n1 - 2)
            jobs = [(acc(s.aset[5]), "Ha", ha), (acc(s.aset[6]), "Hb", ha)]
            one = lambda xs: [[x] for x in xs]
            if OPT["kvo"]:
                e1 = sprinkle(gelu_quads(jobs, 0, 8, True), one(s.w2_reads("E", 3) + s.w2_reads("E", 4) + s.w2_reads("E", 5))) + stamp("expo")
                x = s.w2_reads("E", 6)
                wo = W("O", 1, ZB) + W("O", 2, Z5) + W("O", 3, Z6) + W("O", 0, ZA)
                e1 += x + flat(wo[:OPT["sigpos"]]) + signal_now(L_HB, ha) + stamp("sigT") + flat(wo[OPT["sigpos"]:])
                e1 += [poll_issue(vRow2, L_HQ)] + cp(0, L_S0, L_HQ) + flat(HL(0) + HL(1) + HL(2) + HL(3))
            else:
                spine[n1 - 20]["post"].append(poll_issue(vRow2, L_HQ))
                e1 = sprinkle(gelu_quads(jobs, 0, 8, True), one(s.w2_reads("E", 3))) + stamp("expo")
                e1 += flat(W("O", 1, ZB)) + signal_now(L_HB, ha) + stamp("sigT") + cp(0, L_S0, L_HQ) + flat(HL(0) + HL(1) + HL(2) + HL(3))
                RD("E", 4, p2first[0], 2); RD("E", 5, p2first[2], 2); RD("E", 6, p2first[4], 2)
                s.spread(W("O", 2, Z5), p2first[1], p2first[3])
                s.spread(W("O", 3, Z6), p2first[3] + 1, p2first[5])
                s.spread(W("O", 0, ZA), p2first[5] + 1, p2first[7])
            s.sig = [(end1, L_KP, at, OPT["lagkp"])]
            zo4 = ZA
        else:
            tk = []
            jobs = [(acc(t), tiles[t], tk) for t in range(5)]
            nx = OPT["nx"]
            spine[end1]["pre"][k1:k1] = sprinkle(gelu_quads(jobs, 0, nx, True), W("E", 0, Z0) + W("E", 1, ZB), 0, 0.9) + stamp("x1")
            g3 = side(gelu_quads(jobs, nx, 16, False), start=end1, name="gelu3")
            g4 = side(gelu_quads(jobs, 16, 20, False), start=done["H4"] + 2, follow=g3, end=n1 - OPT["gend"], name="gelu4")
            sides += [g3, g4]
            s.spread(W("E", 2, ZA), f[13], f[15] - 5)
            RD("E", 0, f[16]); s.spread(W("E", 3, Z0), f[16] + 11, f[16] + 19)
            RD("E", 1, f[16] + 13); s.spread(W("E", 4, ZB), f[17] + 6, f[17] + 16)
            RD("E", 2, f[17] + 4)
            z, ztok = am_zero()
            bar[18].after += s.zrd[ZA]
            sides.append(side(z, start=f[18] - LOOK + 1, end=f[19] - LOOK - 1, follow=g4, name="amzero"))
            bar[19].after += ztok
            s.spread(W("E", 5, Z2), f[18], f[18] + 10)
            RD("E", 3, f[18] + 4)
            RD("E", 4, f[19] + 2)
            ko = n1 - OPT["hearly"]
            spine[ko - OPT["hpoll"]]["post"].append(poll_issue(vColK, L_KP, vPoll2))
            kc, kl = o_load()
            spine[ko]["post"] += kc
            s.spread(kl, ko + 1, n1 - 1)
            spine[n1 - 1]["post"].append(poll_issue(vRow2, L_HQ))
            np0 = OPT["np0"]
            zo = [Z0, ZB, Z6, Z1]
            otb = OPT["otb"]
            wo = [W("O", i, zo[i]) for i in range(4)]
            if OPT["tb"] == 0:
                e1 = sprinkle(phi_q(s.aset, True, 0, np0) + ow, W("E", 6, Z5) + (wo[0] if otb > 0 else []), 0.3, 1.0) + cp(0, L_S0, L_HQ)
                e1 += sprinkle(phi_q(s.aset, True, np0, 10), HL(0) + HL(1) + HL(2)) + stamp("gap")
                s.spread(HL(3) + flat(wo[1:min(otb, 3)]), n1 + 1, n1 + 16)
                if otb > 3:
                    st = spine[p2first["ofin"]]
                    st["pre"] = sprinkle(st["pre"], wo[3])
                RD("E", 5, p2first[0], 2); RD("E", 6, p2first[2], 2)
            else:
                lo = OPT["tb"] / 10
                e1 = phi_q(s.aset, True, 0, 10) + stamp("q_phi") + ow[:int(128 * lo)] + cp(0, L_S0, L_HQ) + sprinkle(ow[int(128 * lo):], HL(0) + HL(1)) + stamp("gap")
                s.spread(HL(2) + HL(3) + W("E", 6, Z5), n1 + 1, n1 + 16)
                if otb:
                    st = spine[p2first["ofin"]]
                    st["pre"] = sprinkle(st["pre"], flat(wo[:otb]))
                RD("E", 5, p2first[0], 2); RD("E", 6, p2first[4], 2)
            for k, i in enumerate(range(otb, 4)):
                s.spread(wo[i], p2first[OPT["ost"] + 3 * k], p2first[OPT["ost"] + 3 * k + 3])
            zo4 = Z0
            s.sig = [(g4, L_HQ, tk, OPT["lag"]), (p2first["ofin"], L_O, s.otk, OPT["lag"])]
        spine[n1]["pre"] = [ins("s_barrier")] + stamp("tee") + e1 + spine[n1]["pre"]
        s.n1 = n1
        for n in range(HR, len(seq)):
            p = p2first[n - HR] + 4
            if seq[n] in ("A5", "O0"):
                spine[p2first[n - HR - OPT["pback"]] + 3]["post"].append(poll_issue(*CP[seq[n]][:2]))
                spine[p]["pre"] += cp(n, L_HB, L_HQ if seq[n] == "A5" else L_O)
            elif n % 2 == 0 or OPT.get("allst"):
                spine[p]["pre"] += stamp("ld" + seq[n])
            for k, g in enumerate(HL(n)):
                s.pin(p + 5 * k, g)
        o0 = seq.index("O0")
        for i in range(5):
            RD("O", i, p2first[o0 + i - 1], 2)
            if i == 0:
                s.spread(W("O", 4, zo4), p2first[o0] + 1, p2first[o0 + 1])
        return o, seq, p2first, nend

    def finish(s, o, seq, p2first, nend):
        kv, spine, sides = s.kv, s.spine, s.sides
        a = lambda *t: o.extend(I(*t))
        aend = p2first["gap"]
        b0, rend = aend + 1 + OPT["gdel"], aend + 1 + OPT["ybar"]
        if OPT["gdel"]:
            spine[aend]["post"].remove(s.gapbar)
            spine[b0]["pre"].append(s.gapbar)
        RA, RB = s.RA, s.RB

        def red_write(get, R):
            x = []
            for t in (1, 2, 3):
                for f in range(5):
                    ad = R[t - 1] + 1024 * f
                    x.append(ins(f"ds_write_b128 v{vRW[ad >> 16]}, {r4(get(t, f))} offset:{ad & 0xffff}"))
            return x

        def red_read():
            x = []
            for t in (1, 2, 3):
                for f in range(5):
                    d = accA(t, f)
                    x += I(f"ds_read_b128 v[{d}:{d + 3}], v{vRR[t - 1]} offset:{1024 * f}")
            return x

        def red_add(own, pk):
            x = []
            for t in (1, 2, 3):
                for f in range(5):
                    for r in range(0, 4, 2 if pk else 1):
                        d, e = own(f) + r, accA(t, f) + r
                        x += I(f"v_pk_add_f32 {pr(d)}, {pr(d)}, {pr(e)}" if pk else f"v_add_f32 v{d}, v{d}, v{e}")
            return x

        wA = red_write(lambda t, f: ("v", accA(t, f)), RA)
        for q in list(range(aend - 15, aend)) + list(range(b0, rend)):
            spine[q]["budget"] += OPT["bred"]
        for k in range(3):
            sides.insert(k, side(wA[5 * k:5 * k + 5], start=aend - 12 + 5 * k, end=aend + OPT["gdel"] // 2, name=f"redAw{k}"))
        s.gapbar.after += wA
        xt = []
        xs = red_read() + red_add(lambda f: accA(0, f), False)
        P = accA(1, 0)
        for f in range(5):
            xs += cvt2(P + 2 * f, accA(0, f))
        for k, n in ((0, 4), (4, 4), (8, 4)):
            x = ins(f"buffer_store_dwordx{n} v[{P + k}:{P + k + n - 1}], v{vL16}, {srd(SWS)}, s{sXc} offen offset:{256 * k} sc1")
            xs.append(x); xt.append(x)
        xsd = side(xs, start=b0, end=rend, name="redA")
        sides.insert(3, xsd)
        s.sig.append((xsd, L_XCH, xt, OPT["lag"]))
        XR, PX = 152, 164
        fo = [(vW2[0], 0), (vW2[1], 1024), (vFo2, 2048)]
        s.spread([I(f"buffer_load_dwordx4 v[{XR + 4 * i}:{XR + 4 * i + 3}], v{fo[i][0]}, {srd(SX)}, s{sRow} offen offset:{fo[i][1]}") for i in range(3)], nend - 80, nend - 70)
        spine[nend - OPT["xch"] - 25]["post"].append(poll_issue(vPar, L_XCH))
        px = poll_check(vPar, L_XCH, "kv" if kv else "q") + stamp("xch") + I(f"s_xor_b32 s{sT0}, s2, 2", f"s_sub_u32 s{sT0}, s{sT0}, s2", f"s_mul_i32 s{sT0}, s{sT0}, 12288", f"s_add_u32 s{sXc}, s{sXc}, s{sT0}")
        for k, n in ((0, 4), (4, 4), (8, 4)):
            px += I(f"buffer_load_dwordx{n} v[{PX + k}:{PX + k + n - 1}], v{vL16}, {srd(SWS)}, s{sXc} offen offset:{256 * k} sc1")
        spine[nend - OPT["xch"]]["post"] += px
        wB = red_write(accB, RB)
        for q in range(nend - 14, nend):
            spine[q]["budget"] += 0.6
        for k in range(3):
            sides.insert(k, side(wB[5 * k:5 * k + 5], start=nend - 12 + 5 * k, end=nend, name=f"redBw{k}"))
        sides.append(side(I(*[f"v_add_u32 v{vRR[t]}, {(RB[t] - RA[t]) & 0xffffffff}, v{vRR[t]}" for t in range(3)]), start=rend + 1, end=nend - 20, name="rr"))
        for st in spine:
            st["pre"].extend(st.pop("pre2", []))
        if OPT.get("fine") and not kv:
            for q in range(*OPT["fine"]):
                spine[q]["pre"] = stamp(f"q{q}") + spine[q]["pre"]
        import copy
        dry = copy.deepcopy(sides)
        merge(spine, dry, 0)
        ends = {d["name"]: d.get("done", 0) if not d.get("late") else (d["end"] or nend) for d in dry}
        if OPT["verbose"]:
            print("KV" if kv else "Q", {d["name"]: (d["start"], ends[d["name"]], d.get("late", 0)) for d in dry}, "p2first", p2first)
        n1 = s.n1
        for sd, level, tk, lag in s.sig:
            idx, t = (sd if isinstance(sd, int) else ends[sd["name"]]), 0
            while t < lag and idx < nend - 1:
                t += 36 if idx < n1 else 18
                idx += 1
            if idx == n1:
                idx -= 1
            arrive, pub = signal(level, tk)
            late = min(idx + (3 if idx < n1 else 6), nend - 1) if arrive else idx
            if idx < n1 <= late:
                late = n1 - 1
            spine[idx]["post"] += arrive
            spine[late]["post"] += pub
        o = drop_m0(o + s.head + merge(spine, sides, 0))
        if OPT.get("jitter"):
            import random
            rnd, o2 = random.Random(OPT["jitter"]), []
            for i, y in enumerate(o):
                prev = o[i - 1] if i else y
                ok = not (("scc", 0) in prev.wr and ("scc", 0) in y.rd) and y.kind in ("barrier", "vmem", "dma", "ds") and i > 60
                live = any(("scc", 0) in z.rd for z in o[i:i + 3])
                if ok and not live and rnd.random() < (0.5 if y.kind == "barrier" or isinstance(y.note, tuple) else 0.03):
                    l = uid("jit")
                    o2 += I(f"s_lshl_b32 s{sTS}, s2, 2", f"s_add_u32 s{sTS}, s{sTS}, s{sW}", f"s_mul_i32 s{sTS}, s{sTS}, {rnd.randrange(1 << 20) | 1}",
                            f"s_bfe_u32 s{sTS}, s{sTS}, {0x30000 + rnd.randrange(4, 12)}", f"s_cmp_lg_u32 s{sTS}, 0", f"s_cbranch_scc1 {l}", f"s_sleep {rnd.choice((4, 16, 60))}", f"{l}:")
                o2.append(y)
            o = o2
        XX = OPT["x"]
        if "nohst" in XX:
            o = [y for y in o if not (y.text.startswith("buffer_store_dwordx4") and f"v{vHst}," in y.text)]
        if "now2" in XX:
            o = [y for y in o if not (y.kind == "dma" and (srd(SW2) in y.text or srd(SWO) in y.text))]
        if "nochk" in XX:
            o = [y for y in o if not (isinstance(y.note, tuple) and y.note[0] == "chk" and max(y.note[1:3]) > 1)]
        if "nopoll" in XX:
            o = [y for y in o if not (y.text.startswith("buffer_load_dword v") and (f"v{vRow2}," in y.text or f"v{vPar}," in y.text))]
        if "noH" in XX:
            o = [y for y in o if not y.text.startswith("buffer_load_dwordx4 a[")]
        if "nosc1H" in XX:
            for y in o:
                if y.text.startswith("buffer_load_dwordx4 a["):
                    y.text = y.text.replace(" sc1", "")
        if "nononce" in XX:
            o = [y for y in o if srd(SDBG) not in y.text]
        if "nosig" in XX:
            o = [y for y in o if not (isinstance(y.note, tuple) and y.note[0] == "sig" and y.note[1] > 1)]
        if "noat" in XX:
            o = [y for y in o if not y.text.startswith("buffer_atomic")]
        if "nomf2" in XX:
            o = [y for y in o if "16x16x32" not in y.text]
        if "nomf1" in XX:
            o = [y for y in o if "32x32x16" not in y.text]
        if "novalu" in XX:
            o = [y for y in o if not (y.kind in ("valu", "trans") and y.text.split()[0] in ("v_pk_mul_f32", "v_pk_fma_f32", "v_exp_f32", "v_rcp_f32", "v_exp_f32_e64", "v_max_f32", "v_pk_add_f32", "v_fma_f32", "v_mul_f32", "v_dot2_f32_bf16", "v_add_f32"))]
        if "notr" in XX:
            o = [y for y in o if not y.text.startswith("ds_read_b64_tr")]
        if "nowdma" in XX:
            o = [y for y in o if not (y.kind == "dma" and (srd(SW1) in y.text or srd(SQKV) in y.text))]
        if "noxdma" in XX:
            o = [y for y in o if not (y.kind == "dma" and srd(SX) in y.text)]
        import re as _re
        if "fake16" in XX:
            o2, cnt = [], 0
            for y in o:
                m = _re.match(r"v_mfma_f32_32x32x16_bf16 v\[(\d+):\d+\], (a\[\d+:\d+\]), a\[(\d+):\d+\], (.*)", y.text)
                if m:
                    A, w, xa, c = int(m.group(1)), m.group(2), int(m.group(3)), m.group(4)
                    j = (xa >> 2) & 1
                    for h in range(2):
                        d = A + 8 * j + 4 * h
                        z = ins(f"v_mfma_f32_16x16x32_bf16 v[{d}:{d + 3}], {w}, a[{xa ^ (4 * h)}:{(xa ^ (4 * h)) + 3}], {'0' if xa < 8 else 'v[%d:%d]' % (d, d + 3)}")
                        z.after = y.after if h == 0 else []
                        o2.append(z)
                else:
                    o2.append(y)
            o = o2
        for y in o:
            if "lin2" in XX and y.kind == "dma" and any(srd(z) in y.text for z in (SW2, SWO)):
                y.text = _re.sub(r"dwordx4 v\d+,", f"dwordx4 v{vL16},", y.text)
            if "nokvl" in XX and y.text.startswith("buffer_load_dwordx4 v") and f", v{vOl0}," in y.text and not kv:
                y.text = "s_nop 0"; y.kind = "nop"; y.q = None; y.wr = set(); y.rd = set()
        for y in o:
            hot = (("hot1" in XX and y.kind == "dma" and any(srd(z) in y.text for z in (SX, SQKV, SW1))) or
                   ("hot2" in XX and y.kind == "dma" and any(srd(z) in y.text for z in (SW2, SWO))) or
                   ("hotH" in XX and y.text.startswith("buffer_load_dwordx4 a[")))
            if hot:
                y.text = _re.sub(r"\], s\d+ offen", "], 0 offen", y.text)
        if "notrans" in XX:
            o = [y for y in o if y.kind != "trans"]
        if OPT["stop"]:
            cut = [i for i, x in enumerate(o) if getattr(x, "kind", "") == "stamp" and x.text in (OPT["stop"], "rt_" + OPT["stop"])][0]
            o = o[:cut + 1] + I("s_waitcnt vmcnt(0) lgkmcnt(0)")
            return s.tail(o)
        o += stamp("mfma2")
        o.append(ins("s_barrier", after=wB))
        own = lambda f: accB(0, f)[1]
        o += red_read()
        for f in range(5):
            for r in range(4):
                a(f"v_dot2_f32_bf16 v{own(f) + r}, v{PX + 2 * f + r // 2}, s{sOne1 if r & 1 else sOne0}, v{own(f) + r}")
        o += red_add(own, True)
        for f in range(5):
            a(f"ds_write_b128 v{vTw}, v[{own(f)}:{own(f) + 3}] offset:{64 * f}")
        FO = 48

        def fin_store(i):
            x = I(*[f"v_cvt_pk_bf16_f32 v{FO + 8 * i + k}, v{FO + 8 * i + 2 * k}, v{FO + 8 * i + 2 * k + 1}" for k in range(4)])
            return x + I(f"buffer_store_dwordx4 v[{FO + 8 * i}:{FO + 8 * i + 3}], v{fo[i][0]}, {srd(SOUT)}, s{sRow} offen offset:{fo[i][1]} {OPT['outf']}")

        for i in range(3):
            for h in range(2):
                a(f"ds_read_b128 v[{FO + 8 * i + 4 * h}:{FO + 8 * i + 4 * h + 3}], v{vTr[i]} offset:{16 * h + 2048 * i}")
        for i in range(3):
            for k in range(4):
                d = FO + 8 * i + 2 * k
                a(f"v_dot2_f32_bf16 v{d}, v{XR + 4 * i + k}, s{sOne0}, v{d}", f"v_dot2_f32_bf16 v{d + 1}, v{XR + 4 * i + k}, s{sOne1}, v{d + 1}")
            if i:
                o += fin_store(i - 1)
        o += I("s_nop 1") + fin_store(2)
        return s.tail(o)

    def tail(s, o):
        if OPT["prof"]:
            o += stamp("end") + stamp("rt1")
            last = Ins("x", "stamp"); last.note = "last"
            o.append(last)
            o += I(f"s_lshl_b32 s{sT0}, s2, 2", f"s_add_u32 s{sT0}, s{sT0}, s{sW}", f"s_lshl_b32 s{sT0}, s{sT0}, 8", f"s_add_u32 s{sT0}, s{sT0}, {TS}",
                   f"v_lshlrev_b32 v30, 2, v{vL}", f"buffer_store_dword v31, v30, {srd(SWS)}, s{sT0} offen")
        return o + I("s_endpgm")


def check_no_deadlock(progs):
    ev = [[x.note for x in p if isinstance(x.note, tuple)] for p in progs]
    pos, lvl = [0, 0], [0, 0]
    moved = True
    while moved:
        moved = False
        for k in (0, 1):
            while pos[k] < len(ev[k]):
                e = ev[k][pos[k]]
                if e[0] == "sig":
                    assert e[1] > lvl[k], (k, e, lvl)
                    lvl[k] = e[1]
                elif lvl[0] < e[1] or lvl[1] < e[2]:
                    break
                pos[k] += 1
                moved = True
    assert pos == [len(e) for e in ev], f"circular wait: KV stuck at {ev[0][pos[0]:pos[0] + 1]}, Q at {ev[1][pos[1]:pos[1] + 1]}"


def drop_m0(items):
    out, cur = [], None
    for x in items:
        for y in (x.items if isinstance(x, Bundle) else [x]):
            if y.kind == "vmem" and y.wr == {("v", vTd)}:
                y.wr = set()
            if ("m0", 0) in y.wr:
                if y.text == cur:
                    continue
                cur = y.text
            out.append(y)
    return out


def build():
    st = {}
    pro, xs = prologue()
    pro += I("s_bitcmp1_b32 s2, 6", "s_cbranch_scc1 L_q")
    progs = []
    for kv in (True, False):
        p = Program(kv)
        body = p.finish(*p.build(xs))
        full = pro + ([] if kv else I("L_q:")) + body
        if OPT["prof"]:
            full = resolve_stamps(full, ts_names, sTS, 31)
        progs.append(finalize(full, stats=st))
    a_kv, a_q = progs
    if not OPT["stop"] and not OPT["x"]:
        check_no_deadlock(progs)
    iq = [i for i, x in enumerate(a_q) if x.text == "L_q:"][0]
    assert [x.text for x in a_q[:iq]] == [x.text for x in a_kv[:iq]]
    body = a_kv + a_q[iq:] + I("L_end:", "s_endpgm")
    used = {x.text.split()[1] for x in body if x.kind == "branch"}
    for sp in slow_paths:
        if sp[0].text[:-1] in used:
            body += finalize(sp)
    txt = text_of(body)
    ref = open("parallel_sum__linear_attn_block__mixer_channel_mlp__prompt.s.ref").read().split("\n")
    hdr = [l for l in ref if l.startswith(";") and "@launch" not in l and not l.startswith("; Override") and not l.startswith("; grid=")]
    src = "\n".join(hdr) + f"""
; @launch grid=(256,1,1) block=(256,1,1) lds={LDS_SIZE}
.amdgcn_target "amdgcn-amd-amdhsa--gfx950"
.text
.globl {NAME}
.p2align 8
.type {NAME},@function
{NAME}:
{txt}
L_code_end:
.fill 65536 / 4, 4, 0xbf810000
.section .rodata,"a"
.p2align 6
.amdhsa_kernel {NAME}
  .amdhsa_next_free_vgpr 512
  .amdhsa_next_free_sgpr 102
  .amdhsa_accum_offset 256
  .amdhsa_group_segment_fixed_size 0
  .amdhsa_kernarg_size 88
  .amdhsa_user_sgpr_count 2
  .amdhsa_user_sgpr_kernarg_segment_ptr 1
  .amdhsa_system_sgpr_workgroup_id_x 1
.end_amdhsa_kernel
"""
    return src, st, len(a_kv), len(a_q)


if __name__ == "__main__":
    out = sys.argv[1]
    for kvp in sys.argv[2:]:
        k, v = kvp.split("=", 1)
        OPT[k] = eval(v) if v[0] in "0123456789TFN-([" else v
    LOOK = OPT["look"]
    src, st, n1, n2 = build()
    open(out, "w").write(src)
    if OPT["prof"]:
        open(out + ".ts", "w").write("\n".join(ts_names))
    print("instructions", n1, n2, st)
```

```python
import sys, os, struct
sys.path.insert(0, os.path.dirname(os.path.abspath(__file__)))
from asmlib import *

NAME = "parallel_sum__linear_attn_block__mixer_channel_mlp__prompt_kernel"
OPT = dict(prof=False, only=None, b1=3.0, b1p=4.5, touch_w=True, hbsig=10, hop=4, hopp=30, hopq=(3, 7), lagkp=700, nx=14, gend=70, hpoll=30, lback=4, ybar=54, twa=(2, 9), twb=((10, 18), (10, 18)), bred=0.7, xch=6, g01end=30, oload=36, gpoll=30, kvsig=4, hearly=30, ost=0, wavesig=(6,), bt=2, dspan1=1.0, look=5, hb=1, pg=0, zpad=False, sw1=False, rot2=False, rotk=False, tb=0, mtq=False, csp=6, b2at=2, xpost=True, wsoff=0, ft=False, map2=1, s0late=False, npre=(100, 100), l2='', l2at=((1, 4), (4, 8)), l2late=6, otb=1, kvo=True, outf='', np0=3, tlb=None, seq="A0 A1 A2 A3 A4 B0 B1 A5 A6 B2 B3 B4 B5 B6 O0 O1 O2 O3 O4", plag=700, pback=2, touch_h=False, b0=40, lag=1000, nphi=7, b2=1.6, touch_code=True, tq=4, s0=(0, 1, 6, 7, 8), s0k=(0, 1, 5, 6, 7), gdel=8, sigpos=2, s0ld=2, s0start=2, xearly=1, s0first=False, sleep=4, dma1_early=False, dspan=0.4,
           nsq=10, nsk=2, stages=(0, 1, 2, 3, 4, 5, 6, 7, 8, 9), verbose=False, x=(), stop=None, nos0=False)

LDQ, LD1, LDX = 3840, 3456, 1280
FLAGS, STATS, CSUM, KVF, XCH, KVP, HB, TS = 0x500000, 0x600000, 0x10000, 0x60000, 0x80000, 0x400000, 0x800000, 0x1200000
WS_SIZE = 0x1400000
OOB = 0x40000000
NB = 74
SLOT = 20480
RING2, NR2 = 2 * SLOT, 10
XS, EX, SCR, LDS_SIZE = 81920, 131072, 135168, 163840
KVT, KVT_LD = XS, 328
AM, AM_LD = XS, 176
Z0, Z1, Z2, Z5, Z6, ZA, ZB = 143360, 0, SLOT, 2 * SLOT, 3 * SLOT, XS, XS + SLOT
P_X, P_QKV, P_WO, P_BX, P_W1, P_B1, P_W2, P_B2 = 4, 6, 8, 10, 12, 14, 16, 18
P_OUT, P_DBG, P_WS = 20, 22, 24
sR2, sJ160, sBq, sBk, sE, sHA, sHB, sL6, sRow, sB6, sD2w, sD2h, sXc = range(4, 17)
sHq, sHk, sH6, sHo, sWq, sWk, sW6, sWo = range(17, 25)
sOne0, sOne1 = 88, 89
sKw, sW2k, sH4 = 90, 91, 95
sTa, sTb, sTc, sTe = 96, 97, 98, 72
sK1, sK2 = 99, 77
SX, SQKV, SW1, SWO, SW2, SWS, SOUT, SB1, SB2, SDBG = 28, 32, 36, 40, 44, 48, 52, 56, 60, 64
sW, sR, sU, sG, sP, sUnit, sNonce, sWL = 68, 69, 70, 71, 72, 73, 74, 75
sXo, sKq, sH, sT0, sT1, sT2, sT3, sLast = 76, 77, 78, 79, 80, 81, 82, 83
sEps, sHst, sXw, sCnt = 84, 85, 86, 87
sA_lo, sA_hi, sB_lo, sB_hi, sLdA, sLdB, sOffA, sOffB, sMixA, sMixB = 40, 41, 42, 43, 44, 45, 46, 47, 52, 53
sBA, sBB, sW5 = 92, 93, 94
sDx, sDw, sU64, sTS, sOst = 100, 101, 3, 26, 25
sSwX, sSwQ, sSw1 = 98, 0, 1
sRot, sR10 = 7, 6
sU4 = 73
srd = lambda b: f"s[{b}:{b + 3}]"
vL = 1
vX = [2, 3, 4, 5]
vXR = [6, 7, 8, 9]
vWk = [10, 11, 12, 13, 14]
vWp = [46, 47]
vTK, vTM, vTP, vW1, vTR = [208, 209], [210, 211], [212, 213], 214, 215
vHst, vFl, vRowF, vColF, vEXr = 15, 16, 17, 18, 19
vKf, vK2, vKA, vKB, vAt, vOnes = 20, 21, 22, 23, 24, 25
vAM, vOl0, vOl1, vOw0, vOw1, vOw2, vOw3 = 20, 21, 22, 23, 24, 25, 177
vColK, vB1 = 176, 178
vCnt, vOne, vFl0 = 200, 201, 206
vFd, vPoll, vLvl, vHiM = 26, 27, 28, 29
vRs1, vRl1, vA1, vA3, vIrs = 32, 34, 36, 38, 44
vRow2K, vPar, vL16, vTd = 33, 35, 37, 39
vXE = 40
vPoll2 = 45
acc = lambda i: 48 + 16 * i
TMP = 176
vW2 = [180, 181, 182, 183, 184]
vH = {'B': [185, 186, 187, 188], 'A': [2, 3, 4, 5]}
vT2 = [189, 190, 191]
vRW = [192, 193, 207]
vRR = [194, 195, 196]
vFo2, vTw = 197, 198
vFo = [199]
vTch = [200, 201, 206]
vTr = [202, 203, 204]
vRow2 = 205
vTW = 179
ET = 244
T0, T1, T2, T3 = 252, 253, 254, 255
aX, aW, NRING, LOOK = 0, 160, 8, 5
accA = lambda t, f: (48 + 4 * (5 * t + f)) if 5 * t + f < 16 else (208 + 4 * (5 * t + f - 16))


def accB(t, f):
    if t == 0:
        return ("v", 224 + 4 * f)
    g = 5 * (t - 1) + f
    return ("a", 140 + 4 * g) if g < 13 else ("v", 6 + 4 * (g - 13))


HR = 4
aH = lambda n, t: 192 + 16 * (n % HR) + 4 * t
wfrag = lambda kind, i, f: ("a", 20 * i + 4 * f) if kind == "E" else ("v", 112 + 20 * (i % 2) + 4 * f)
r4 = lambda x: f"{x[0]}[{x[1]}:{x[1] + 3}]"
f2u = lambda f: struct.unpack("<I", struct.pack("<f", f))[0]
LOG2E = 1.4426950408889634
C1 = -2.0 * 0.7978845608028654 * LOG2E
C3 = C1 * 0.044715
L_S0, L_KP, L_KV, L_HB = 1, 2, 3, 4
L_HQ, L_O, L_XCH = 2, 5, 6

slow_paths, ts_names, _uid = [], [], [0]


def uid(p):
    _uid[0] += 1
    return f"L_{p}{_uid[0]}"


def I(*ts):
    return [ins(t) for t in ts]


def stamp(name):
    if not OPT["prof"]:
        return []
    if OPT.get("fine"):
        if name not in ("rt0", "rt1", "start", "end") and not name.startswith("q"):
            return []
    elif OPT["only"] == "clk":
        if name not in ("rt0", "rt1", "start", "end"):
            return []
    elif OPT["only"] is not None:
        if name.startswith("rt") or (OPT["only"] != "all" and name not in OPT["only"]):
            return []
        name = "rt_" + name
    if name not in ts_names:
        ts_names.append(name)
    return [Ins(name, "stamp")]


def make_srd(b, ptr, nbytes):
    return I(f"s_mov_b32 s{b}, s{ptr}", f"s_mov_b32 s{b + 1}, s{ptr + 1}", f"s_mov_b32 s{b + 2}, {nbytes}", f"s_mov_b32 s{b + 3}, 0x20000")


fl = lambda level: FLAGS + 32768 * level


CNT = SCR + 512


def signal(level, toks):
    if level in OPT["wavesig"]:
        o = I(f"s_add_u32 s{sT3}, s{sNonce}, {level}", f"v_mov_b32 v{vFd}, s{sT3}", f"s_mov_b32 s{sT3}, {fl(level)}")
        st = ins(f"buffer_store_dword v{vFd}, v{vFl}, {srd(SWS)}, s{sT3} offen sc1", after=toks)
        st.note = ("sig", level)
        return [], [Bundle(o + [st])]
    add = ins(f"ds_add_rtn_u32 v{vFd}, v{vCnt}, v{vOne} offset:{4 * level}")
    arrive = [Bundle([Ins("", "pseudo", after=toks)] + I("s_mov_b64 exec, 1") + [add] + I("s_mov_b64 exec, -1"))]
    skip = uid("sig")
    st = ins(f"buffer_store_dword v{vFd}, v{vFl0}, {srd(SWS)}, s{sT3} offen sc1")
    st.ghost = True
    st.note = ("sig", level)
    pub = I(f"v_readfirstlane_b32 s{sT3}, v{vFd}", f"s_cmp_lg_u32 s{sT3}, 3", f"s_cbranch_scc1 {skip}",
            f"s_add_u32 s{sT3}, s{sNonce}, {level}", f"v_mov_b32 v{vFd}, s{sT3}", f"s_mov_b32 s{sT3}, {fl(level)}") + [st] + I(f"{skip}:")
    return arrive, [Bundle(pub)]


def signal_now(level, toks):
    a, p = signal(level, toks)
    return a + p


def poll_issue(vaddr, level, dst=vPoll):
    return Bundle(I(f"s_mov_b32 s{sT3}, {fl(level)}", f"buffer_load_dword v{dst}, v{vaddr}, {srd(SWS)}, s{sT3} offen sc1"))


def poll_check(vaddr, level, who, dst=vPoll):
    slow, back, loop = uid("slow"), uid("back"), uid("loop")
    test = lambda: I(f"s_add_u32 s{sT3}, s{sNonce}, {level}", f"v_cmp_ne_u32 vcc, s{sT3}, v{dst}")
    sp = I(f"{slow}:", f"s_mov_b32 s{sCnt}, 20000", f"{loop}:", f"s_sleep {OPT['sleep']}") + [poll_issue(vaddr, level, dst)] + I("s_waitcnt vmcnt(0)") + test()
    sp += I(f"s_cbranch_vccz {back}", f"s_sub_u32 s{sCnt}, s{sCnt}, 1", f"s_cmp_lg_u32 s{sCnt}, 0", f"s_cbranch_scc1 {loop}", f"s_branch {back}")
    slow_paths.append(sp)
    br = ins(f"s_cbranch_vccnz {slow}")
    br.note = ("chk", level if who != "q" else 0, level if who != "kv" else 0, who)
    return [Bundle(test() + [br] + I(f"{back}:"))]


def nonce_check(dst):
    slow, back, loop = uid("nslow"), uid("nback"), uid("nloop")
    sp = I(f"{slow}:", f"s_mov_b32 s{sCnt}, 20000", f"{loop}:", f"s_sleep {OPT['sleep']}", f"v_mov_b32 v{dst}, 0",
           f"buffer_load_dword v{dst}, v{dst}, {srd(SDBG)}, 0 offen sc1", "s_waitcnt vmcnt(0)",
           f"v_readfirstlane_b32 s{sNonce}, v{dst}", f"s_cmp_lg_u32 s{sNonce}, 0", f"s_cbranch_scc1 {back}",
           f"s_sub_u32 s{sCnt}, s{sCnt}, 1", f"s_cmp_lg_u32 s{sCnt}, 0", f"s_cbranch_scc1 {loop}", f"s_branch {back}")
    slow_paths.append(sp)
    return [Bundle(I(f"v_readfirstlane_b32 s{sNonce}, v{dst}", f"s_cmp_eq_u32 s{sNonce}, 0", f"s_cbranch_scc1 {slow}", f"{back}:"))]


def flag_sc_row(sr):
    return I(f"s_lshr_b32 s{sT0}, s{sr}, 3", f"s_and_b32 s{sT1}, s{sr}, 7", f"s_lshl_b32 s{sT1}, s{sT1}, 3", f"s_add_u32 s{sT0}, s{sT0}, s{sT1}", f"s_lshl_b32 s{sT0}, s{sT0}, 7")


def flag_addr_row(dst, sr, t2, t3):
    return flag_sc_row(sr) + I(f"v_and_b32 v{t2}, 48, v{vL}", f"v_lshlrev_b32 v{t2}, 4, v{t2}", f"v_bfe_u32 v{t3}, v{vL}, 2, 2", f"v_lshl_add_u32 v{t2}, v{t3}, 13, v{t2}",
                               f"v_add_u32 v{dst}, s{sT0}, v{t2}")


def flag_addr_col(dst, sg, t2, t3):
    return I(f"s_lshr_b32 s{sT0}, s{sg}, 2", f"s_lshl_b32 s{sT0}, s{sT0}, 8", f"s_and_b32 s{sT1}, s{sg}, 3", f"s_lshl_b32 s{sT1}, s{sT1}, 13", f"s_add_u32 s{sT0}, s{sT0}, s{sT1}",
             f"v_and_b32 v{t2}, 32, v{vL}", f"v_lshlrev_b32 v{t2}, 2, v{t2}", f"v_bfe_u32 v{t3}, v{vL}, 2, 3", f"v_lshl_add_u32 v{t2}, v{t3}, 10, v{t2}",
             f"v_add_u32 v{dst}, s{sT0}, v{t2}")


def swap(dst, sw, n):
    return I(f"s_{'sub' if n & 1 else 'add'}_u32 s{dst}, s{dst}, s{sw}") if OPT["sw1"] else []


def dma_x(n):
    g = []
    for i in range(4):
        pre = I(f"s_add_u32 s{sDx}, s{sXo}, {128 * n}") + swap(sDx, sSwX, n) if i == 0 else []
        g.append(pre + I(f"s_add_u32 m0, s{sXw}, {(n % 3) * 4096}", f"buffer_load_dwordx4 v{vX[i]}, {srd(SX)}, s{sDx} offen offset:{1024 * i} lds"))
    return g


def prologue():
    o = []
    a = lambda *t: o.extend(I(*t))
    a("s_cmp_ge_u32 s2, 256", "s_cbranch_scc1 L_end")
    a("s_load_dwordx16 s[4:19], s[0:1], 0", "s_load_dwordx4 s[20:23], s[0:1], 64", "s_load_dwordx2 s[24:25], s[0:1], 80")
    a(f"s_memrealtime s[{sNonce}:{sNonce + 1}]")
    if OPT["touch_code"]:
        o += touch_code()
        o[-2].wr = set()
    if OPT["prof"]:
        a("v_mov_b32 v31, 0")
        if OPT.get("kst"):
            a("s_memtime s[42:43]", "s_memrealtime s[44:45]")
            ts_names.extend(["rt0", "start"])
        else:
            o += stamp("rt0") + stamp("start")
    t0, t1, t2 = T0, T1, T2
    a(f"v_lshrrev_b32 v{t0}, 6, v0", f"v_and_b32 v{vL}, 63, v0", f"v_readfirstlane_b32 s{sW}, v{t0}", f"v_lshlrev_b32 v{vL16}, 4, v{vL}")
    a(f"s_and_b32 s{sT0}, s2, 1", f"s_lshl_b32 s{sT0}, s{sT0}, 3", f"s_bfe_u32 s{sT1}, s2, 0x30003", f"s_add_u32 s{sR}, s{sT0}, s{sT1}")
    a(f"v_lshrrev_b32 v{t0}, 3, v{vL}", f"v_lshrrev_b32 v{t1}, 4, v{vL}", f"v_and_b32 v{t2}, 7, v{vL}", f"v_xor_b32 v{t2}, v{t2}, v{t1}",
      f"v_lshlrev_b32 v{t2}, 4, v{t2}", f"v_mul_u32_u24 v{t0}, {LDX}, v{t0}", f"v_add_u32 v{vX[0]}, v{t0}, v{t2}",
      f"v_xor_b32 v{vX[1]}, 64, v{vX[0]}", f"v_add_u32 v{vX[1]}, {8 * LDX - 1024}, v{vX[1]}",
      f"v_add_u32 v{vX[2]}, {16 * LDX - 2048}, v{vX[0]}", f"v_add_u32 v{vX[3]}, {16 * LDX - 2048}, v{vX[1]}")
    a(f"s_lshl_b32 s{sT0}, s{sR}, 2", f"s_add_u32 s{sT0}, s{sT0}, s{sW}", f"s_mul_i32 s{sXo}, s{sT0}, {32 * LDX}")
    a(f"s_mul_i32 s{sXw}, s{sW}, 12288", f"s_add_u32 s{sXw}, s{sXw}, {XS}", f"s_mul_i32 s{sW5}, s{sW}, 5120")
    a("s_mov_b32 s30, 2621440", "s_mov_b32 s31, 0x20000")
    a(f"s_bfe_u32 s{sT0}, s2, 0x20001", f"s_lshr_b32 s{sT1}, s2, 6",
      f"s_lshl_b32 s{sG}, s{sT0}, 2", f"s_add_u32 s{sG}, s{sG}, s{sT1}", f"s_lshr_b32 s{sP}, s{sT1}, 1",
      f"s_lshl_b32 s{sU}, s{sT0}, 1", f"s_add_u32 s{sU}, s{sU}, s{sP}",
      f"s_mul_i32 s{sKq}, s{sU}, 160", f"s_mul_i32 s{sU64}, s{sU}, 384")
    if OPT["sw1"]:
        a(f"s_xor_b32 s{sT0}, s{sR}, s{sP}", f"s_and_b32 s{sT0}, s{sT0}, 1", f"s_lshl_b32 s{sSwX}, s{sT0}, 7")
    assert (SX, SQKV, SW1) == (28, 32, 36)
    if OPT.get("kst"):
        a("s_memtime s[40:41]")
    a("s_waitcnt lgkmcnt(0)", f"s_mov_b32 s28, s{P_X}", f"s_mov_b32 s29, s{P_X + 1}")
    if OPT.get("kst"):
        ts_names.append("prek")
        a(f"v_writelane_b32 v31, s40, {len(ts_names) - 1}", "v_writelane_b32 v31, s44, 0", "v_writelane_b32 v31, s42, 1")
    o += stamp("karg")
    xs = [dma_x(n) for n in range(OPT["xearly"])]
    for x in xs[:1]:
        for g in x:
            o += g
    o += make_srd(SQKV, P_QKV, 640 * LDQ) + make_srd(SW1, P_W1, 640 * LD1)
    if OPT["sw1"]:
        a(f"s_mul_i32 s{sSwQ}, s{sSwX}, {LDQ // 2}", f"s_mul_i32 s{sSw1}, s{sSwX}, {LD1 // 2}")
    if OPT["ft"]:
        o += first_touch()
    if OPT["pg"]:
        x = I(f"v_lshlrev_b32 v{T0}, 21, v{vL}", "s_mov_b64 exec, 3", f"buffer_load_dword v{vTd}, v{T0}, {srd(SQKV)}, 0 offen", f"buffer_load_dword v{vTd}, v{T0}, {srd(SW1)}, 0 offen")
        if OPT["pg"] > 1:
            x += I(f"global_load_dword v{vTd}, v{T0}, s[{P_WS}:{P_WS + 1}]", f"global_load_dword v{vTd}, v{T0}, s[{P_W2}:{P_W2 + 1}]")
        x += I("s_mov_b64 exec, -1")
        for y in x:
            if y.kind == "vmem":
                y.wr = set()
        o += x
    for x in xs[1:]:
        for g in x:
            o += g
    return o, xs


def nonce_publish():
    o = I(f"s_or_b32 s{sT0}, s2, s{sW}", f"s_cmp_lg_u32 s{sT0}, 0", "s_cbranch_scc1 L_nn",
          f"s_max_u32 s{sT0}, s{sNonce}, 1", f"v_mov_b32 v{T0}, s{sT0}", f"v_lshlrev_b32 v{T1}, 2, v{vL}",
          f"global_store_dword v{T1}, v{T0}, s[{P_DBG}:{P_DBG + 1}] sc1")
    o[-1].ghost = True
    return o + I("L_nn:")


def row10(i, dst):
    return (I(f"v_add_u32 v{dst}, {64 * i * 6554}, v{T3}") if i else []) + I(f"v_lshrrev_b32 v{dst}, 16, v{dst if i else T3}")


def wk_setup(kv):
    o = I(f"v_mul_u32_u24 v{T3}, 6554, v{vL}", f"s_mov_b32 s{sT1}, {LDQ - 160}")
    back = 16 * LDQ - 1280
    for i in range(5):
        o += row10(i, T1) + I(f"v_mad_u32_u24 v{vWk[i]}, v{T1}, s{sT1}, v{vL16}")
        add = (1024 * i - (back if i > 2 else 0)) if kv else (4096 if i == 4 else 0)
        if add:
            o += I(f"v_add_u32 v{vWk[i]}, {add & 0xffffffff}, v{vWk[i]}")
        if kv and i == 2:
            o += I(f"v_lshrrev_b32 v{T1}, 4, v{T1}", f"v_mul_u32_u24 v{T1}, {back}, v{T1}", f"v_sub_u32 v{vWk[i]}, v{vWk[i]}, v{T1}")
    return o + I(f"s_mul_i32 s{sT0}, s{sW}, {(16 if kv else 32) * LDQ}", f"s_add_u32 s{sKw}, s{sKq}, s{sT0}")


def wp_setup():
    return I(f"v_lshrrev_b32 v{T0}, 3, v{vL}", f"s_lshl_b32 s{sT0}, s{sW}, 4", f"v_add_u32 v{T0}, s{sT0}, v{T0}", f"v_mul_u32_u24 v{T0}, {LD1}, v{T0}",
             f"v_bfe_u32 v{T1}, v{vL}, 4, 1", f"v_lshlrev_b32 v{T1}, 2, v{T1}", f"v_and_b32 v{T2}, 7, v{vL}", f"v_xor_b32 v{T1}, v{T1}, v{T2}",
             f"v_lshl_add_u32 v{vWp[0]}, v{T1}, 4, v{T0}", f"v_add_u32 v{vWp[1]}, {8 * LD1 - 1024}, v{vWp[0]}", f"s_lshl_b32 s{sW2k}, s{sW}, 11")


def w1_setup():
    return I(f"v_lshrrev_b32 v{T0}, 2, v0", f"v_and_b32 v{T1}, 3, v{vL}", f"v_mul_u32_u24 v{T0}, {LD1}, v{T0}", f"v_lshl_add_u32 v{vW1}, v{T1}, 4, v{T0}")


def x_read_setup():
    o = I(f"v_and_b32 v{T0}, 31, v{vL}", f"v_lshrrev_b32 v{T1}, 5, v{vL}", f"v_bfe_u32 v{T2}, v{vL}, 1, 3", f"v_xor_b32 v{T2}, v{T2}, v{T1}",
          f"v_lshlrev_b32 v{T2}, 4, v{T2}", f"v_lshl_add_u32 v{T2}, v{T0}, 7, v{T2}")
    for j in range(4):
        o += I(f"v_xor_b32 v{vXR[j]}, {32 * j}, v{T2}", f"v_add_u32 v{vXR[j]}, s{sXw}, v{vXR[j]}")
    return o


def tr_parts():
    return I(f"v_lshrrev_b32 v{T1}, 5, v{vL}", f"v_bfe_u32 v{T0}, v{vL}, 2, 2", f"v_lshl_add_u32 v{T0}, v{T1}, 3, v{T0}",
             f"v_bfe_u32 v{T1}, v{vL}, 4, 1", f"v_and_b32 v{T2}, 3, v{vL}", f"v_lshlrev_b32 v{T2}, 3, v{T2}")


def tk_setup(kv):
    o = tr_parts() + I(f"v_mul_u32_u24 v{T0}, 160, v{T0}", f"v_add_u32 v{T0}, v{T0}, v{T2}", f"v_lshl_add_u32 v{vTK[0]}, v{T1}, 5, v{T0}", f"v_add_u32 v{vTM[0]}, 128, v{T0}")
    if kv or OPT["zpad"]:
        o += I(f"v_mul_u32_u24 v{T1}, {2560 if kv else LDS_SIZE}, v{T1}", f"v_add_u32 v{vTM[0]}, v{vTM[0]}, v{T1}")
    return o + I(f"v_add_u32 v{vTK[1]}, 0x8000, v{vTK[0]}", f"v_add_u32 v{vTM[1]}, 0x8000, v{vTM[0]}")


def tp_setup(base):
    return tr_parts() + I(f"v_lshl_add_u32 v{T2}, v{T1}, 5, v{T2}", f"v_lshl_add_u32 v{T2}, v{T0}, 7, v{T2}", f"v_bfe_u32 v{T1}, v{vL}, 3, 1",
                          f"v_lshl_add_u32 v{T2}, v{T1}, 6, v{T2}", f"v_add_u32 v{vTP[0]}, {base}, v{T2}", f"v_xor_b32 v{vTP[1]}, 64, v{vTP[0]}")


def tr_setup(base):
    return tr_parts() + I(f"v_lshl_add_u32 v{T2}, v{T1}, 5, v{T2}", f"v_lshl_add_u32 v{T2}, v{T0}, 6, v{T2}", f"v_add_u32 v{vTR}, {base}, v{T2}")


def late_setup():
    o = []
    a = lambda *t: o.extend(I(*t))
    t0, t1, t2, t3 = T0, T1, T2, T3
    o += make_srd(SDBG, P_DBG, 256)
    a(f"v_mov_b32 v{vPoll2}, 0")
    o += make_srd(SB1, P_B1, 1728 * 2)
    o += make_srd(SWO, P_WO, 640 * LDX) + make_srd(SW2, P_W2, 1728 * LDX) + make_srd(SOUT, P_OUT, 2048 * LDX) + make_srd(SB2, P_B2, 1280)
    a(f"v_and_b32 v{t0}, 31, v{vL}", f"v_lshrrev_b32 v{t1}, 5, v{vL}")
    a(f"v_lshlrev_b32 v{vEXr}, 4, v{t0}", f"v_add_u32 v{vEXr}, {EX}, v{vEXr}", f"v_sub_u32 v{vHiM}, 0, v{t1}")
    a(f"v_bfe_u32 v{t2}, v{vL}, 4, 1", f"v_mul_u32_u24 v{t2}, {NB * 1024}, v{t2}", f"v_and_b32 v{t3}, 15, v{vL}",
      f"v_lshl_add_u32 v{t3}, v{t1}, 4, v{t3}", f"v_lshl_add_u32 v{vHst}, v{t3}, 4, v{t2}")
    a(f"s_lshl_b32 s{sT0}, s{sR}, 2", f"s_add_u32 s{sT0}, s{sT0}, s{sW}", f"s_mul_i32 s{sHst}, s{sT0}, {2 * NB * 1024}", f"s_add_u32 s{sHst}, s{sHst}, {HB}",
      f"s_mul_i32 s{sOst}, s{sU}, 2560", f"s_add_u32 s{sOst}, s{sOst}, s{sHst}",
      f"s_add_u32 s{sHst}, s{sHst}, {20 * 1024}", f"s_lshl_b32 s{sT0}, s{sU4}, 4", f"s_add_u32 s{sH4}, s{sHst}, s{sT0}", f"s_or_b32 s{sH4}, s{sH4}, s{sLast}",
      f"s_lshl_b32 s{sT0}, s{sU64}, 4", f"s_add_u32 s{sHst}, s{sHst}, s{sT0}")
    a(f"s_lshl_b32 s{sT0}, s2, 7", f"v_and_b32 v{t2}, {OOB}, v{vHiM}", f"v_lshl_add_u32 v{t2}, v{t0}, 2, v{t2}", f"v_add_u32 v{vFl0}, s{sT0}, v{t2}",
      f"s_lshl_b32 s{sT0}, s2, 9", f"s_lshl_b32 s{sT1}, s{sW}, 7", f"s_add_u32 s{sT0}, s{sT0}, s{sT1}", f"v_add_u32 v{vFl}, s{sT0}, v{t2}",
      f"v_mov_b32 v{vOne}, 0", f"v_lshlrev_b32 v{vCnt}, 2, v{vL}", f"v_add_u32 v{vCnt}, {CNT}, v{vCnt}", f"ds_write_b32 v{vCnt}, v{vOne}", f"v_mov_b32 v{vOne}, 1")
    a(f"s_mov_b32 s{sEps}, {f2u(1e-6)}")
    return o


def touch_code():
    return I(f"s_getpc_b64 s[{sT0 + 1}:{sT0 + 2}]", f"s_and_b32 s{sT0}, s2, 0xf8", f"s_lshl_b32 s{sT0}, s{sT0}, 8", f"v_and_b32 v{T1}, 0xc3, v0", f"v_lshrrev_b32 v{T2}, 4, v{T1}",
             f"v_and_or_b32 v{T1}, v{T1}, 3, v{T2}", f"v_lshl_add_u32 v{T1}, v{T1}, 7, s{sT0}", "s_mov_b64 exec, 15",
             f"global_load_dword v{vTd}, v{T1}, s[{sT0 + 1}:{sT0 + 2}]", "s_mov_b64 exec, -1")


def first_touch():
    o = I(f"s_lshl_b32 s{sT0}, s2, 2", f"s_add_u32 s{sT0}, s{sT0}, s{sW}", f"s_lshl_b32 s{sT1}, s{sT0}, 7", f"s_mul_i32 s{sT0}, s{sT0}, {2 * LDX}",
          f"v_lshlrev_b32 v{T0}, 17, v{vL}", f"v_lshrrev_b32 v{T1}, 1, v{vL}", f"v_and_b32 v{T2}, 1, v{vL}", f"v_mul_u32_u24 v{T2}, {LDX}, v{T2}", f"v_lshl_add_u32 v{T1}, v{T1}, 7, v{T2}",
          "s_mov_b64 exec, 0xfffff",
          f"buffer_load_dword v{vTd}, v{T0}, {srd(SQKV)}, s{sT1} offen", f"buffer_load_dword v{vTd}, v{T0}, {srd(SW1)}, s{sT1} offen",
          f"buffer_load_dword v{vTd}, v{T1}, {srd(SX)}, s{sT0} offen", "s_mov_b64 exec, -1")
    for x in o:
        if x.kind == "vmem":
            x.wr = set()
    return o


CB = 128
ST, CS, CAD, SAD, SST = CB, CB + 10, CB + 30, CB + 45, CB + 44
PA = 216


def s0_wave_params(tiles):
    o = []
    done = uid("s0p")
    for w in range(4):
        nxt = uid("s0p")
        if w < 3:
            o += I(f"s_cmp_lg_u32 s{sW}, {w}", f"s_cbranch_scc1 {nxt}")
        for name, (lo, hi, ld, off, mx, sb) in zip((tiles + ["--"])[2 * w:2 * w + 2], ((sA_lo, sA_hi, sLdA, sOffA, sMixA, sBA), (sB_lo, sB_hi, sLdB, sOffB, sMixB, sBB))):
            ish = name[0] in "H-"
            p = P_W1 if ish else P_QKV
            o += I(f"s_mov_b32 s{lo}, s{p}", f"s_mov_b32 s{hi}, s{p + 1}", f"s_mov_b32 s{ld}, {LD1 if ish else LDQ}",
                   f"s_mov_b32 s{mx}, {dict(MX=1248, QM=-32).get(name, 0)}")
            if not ish:
                o += I(f"s_add_u32 s{off}, s{sKq}, {QCOL[name]}", f"s_mov_b32 s{sb}, {OOB}")
            elif name == "--":
                o += I(f"s_mov_b32 s{off}, 0", f"s_mov_b32 s{sb}, {OOB}")
            elif name == "H4":
                o += I(f"s_or_b32 s{sb}, s{sU4}, s{sLast}", f"s_mov_b32 s{off}, s{sU4}")
            else:
                o += I(f"s_add_u32 s{off}, s{sU64}, {64 * HUNIT[name]}", f"s_mov_b32 s{sb}, s{off}")
        if w < 3:
            o += I(f"s_branch {done}", f"{nxt}:")
    o += I(f"{done}:")
    return o


QCOL = {"K0": 0, "K1": 64, "MX": 128, "V0": 1280, "V1": 1344, "Q0": 0, "Q1": 64, "QM": 128}
HUNIT = {"Ha": 0, "Hb": 1, "H0": 0, "H1": 1, "H2": 2, "H3": 3, "H4": 4}


def s0_addr(tiles):
    o = []
    a = lambda *t: o.extend(I(*t))
    t0, t1, t2, t3 = T0, T1, T2, T3
    a(f"s_lshl_b32 s{sT0}, s{sR}, 7", f"s_lshl_b32 s{sT1}, s{sG}, 3", f"s_add_u32 s{sT0}, s{sT0}, s{sT1}", f"s_lshl_b32 s{sT1}, s{sW}, 1",
      f"s_add_u32 s{sT2}, s{sT0}, s{sT1}", f"s_mul_i32 s{sH}, s{sT2}, {LDX}",
      f"v_lshrrev_b32 v{t0}, 5, v{vL}", f"v_mul_u32_u24 v{t1}, {LDX}, v{t0}", f"v_and_b32 v{t2}, 31, v{vL}", f"v_lshl_add_u32 v{SAD}, v{t2}, 3, v{t1}",
      f"v_add_u32 v{SST}, s{sT2}, v{t0}")
    o += s0_wave_params(tiles)
    ad, ld = CAD, CB + 46
    a(f"v_and_b32 v{t0}, 4, v{vL}", f"v_cmp_ne_u32 vcc, 0, v{t0}",
      f"v_mov_b32 v{ld}, s{sLdA}", f"v_mov_b32 v{t1}, s{sLdB}", f"v_cndmask_b32 v{ld}, v{ld}, v{t1}, vcc", f"v_mov_b32 v{ld + 1}, 0",
      f"v_mov_b32 v{t2}, s{sOffA}", f"v_mov_b32 v{t1}, s{sOffB}", f"v_cndmask_b32 v{t2}, v{t2}, v{t1}, vcc",
      f"v_mov_b32 v{t3}, s{sMixA}", f"v_mov_b32 v{t1}, s{sMixB}", f"v_cndmask_b32 v{t3}, v{t3}, v{t1}, vcc",
      f"v_mov_b32 v{ad}, s{sA_lo}", f"v_mov_b32 v{t1}, s{sB_lo}", f"v_cndmask_b32 v{ad}, v{ad}, v{t1}, vcc",
      f"v_mov_b32 v{ad + 1}, s{sA_hi}", f"v_mov_b32 v{t1}, s{sB_hi}", f"v_cndmask_b32 v{ad + 1}, v{ad + 1}, v{t1}, vcc",
      f"v_bfe_u32 v{t0}, v{vL}, 1, 1", f"v_mad_i32_i24 v{t2}, v{t0}, v{t3}, v{t2}",
      f"v_and_b32 v{t0}, 3, v{vL}", f"v_lshl_add_u32 v{t2}, v{t0}, 4, v{t2}",
      f"v_lshrrev_b32 v{t0}, 3, v{vL}", f"v_mul_u32_u24 v{t0}, 5, v{t0}", f"s_mul_i32 s{sT0}, s{sR}, 40", f"v_add_u32 v{t0}, s{sT0}, v{t0}",
      f"v_mad_u32_u24 v{t2}, v{t0}, v{ld}, v{t2}", f"v_mov_b32 v{t3}, 0",
      f"v_lshl_add_u64 v[{ad}:{ad + 1}], v[{t2}:{t3}], 0, v[{ad}:{ad + 1}]")
    for i in range(4):
        a(f"v_lshl_add_u64 v[{ad + 2 * i + 2}:{ad + 2 * i + 3}], v[{ld}:{ld + 1}], 0, v[{ad + 2 * i}:{ad + 2 * i + 1}]")
    return o


def s0_mem():
    o = [I(f"buffer_load_dwordx2 v[{ST + 2 * m}:{ST + 2 * m + 1}], v{SAD}, {srd(SX)}, s{sH} offen offset:{256 * m}") for m in range(5)]
    o += [I(f"global_load_dwordx4 v[{CS + 4 * i}:{CS + 4 * i + 3}], v[{CAD + 2 * i}:{CAD + 2 * i + 1}], off") for i in range(5)]
    return o


def reduce32(x, t):
    o = []
    for n in (8, 4, 2, 1):
        o += I(f"v_add_f32_dpp v{x}, v{x}, v{x} row_ror:{n} row_mask:0xf bank_mask:0xf")
    return o + I(f"v_mov_b32 v{t}, v{x}", f"v_permlane16_swap_b32 v{x}, v{t}", f"v_add_f32 v{x}, v{x}, v{t}")


def weave(*streams):
    out, streams = [], [list(s) for s in streams]
    while any(streams):
        for s in streams:
            if s:
                out.append(s.pop(0))
    return out


def s0_produce(kv):
    st, cs, stores = [], [], []
    a = lambda *t: st.extend(I(*t))
    s0, s1, t = CB + 40, CB + 41, CB + 42
    a(f"s_mov_b32 s{sCnt}, 0x3f803f80")
    for m in range(10):
        a(f"v_dot2_f32_bf16 v{s0}, v{ST + m}, s{sCnt}, {'0' if m == 0 else 'v%d' % s0}", f"v_dot2_f32_bf16 v{s1}, v{ST + m}, v{ST + m}, {'0' if m == 0 else 'v%d' % s1}")
    a(f"v_lshlrev_b32 v{SST}, 6, v{SST}", f"v_add_u32 v{SST}, {STATS}, v{SST}", f"v_and_b32 v{t}, 7, v{vL}", f"v_lshl_add_u32 v{SST}, v{t}, 3, v{SST}",
      f"v_bfe_u32 v{t}, v{vL}, 3, 2", f"v_min_u32 v{t}, 1, v{t}", f"v_lshl_add_u32 v{SST}, v{t}, 30, v{SST}")
    red = weave(reduce32(s0, t), reduce32(s1, CB + 43))
    red += I(f"v_mul_f32 v{s0}, {f2u(1 / 640)}, v{s0}", f"v_mul_f32 v{s1}, {f2u(1 / 640)}, v{s1}", f"v_fma_f32 v{s1}, -v{s0}, v{s0}, v{s1}", f"v_max_f32 v{s1}, 0, v{s1}")
    stores.append(ins(f"buffer_store_dwordx2 v[{s0}:{s1}], v{SST}, {srd(SWS)}, 0 offen sc1"))
    a = lambda *t: cs.extend(I(*t))
    A, ta, tb = CAD, CB + 46, CB + 47
    for i in range(5):
        for k in range(4):
            for h in range(2):
                d = A + 2 * k + h
                a(f"v_dot2_f32_bf16 v{d}, v{CS + 4 * i + k}, s{sOne1 if h else sOne0}, {'0' if i == 0 else 'v%d' % d}")
    n1 = len(cs)
    a(f"v_and_b32 v{ta}, 7, v{vL}", f"v_lshlrev_b32 v{ta}, 5, v{ta}", f"v_lshrrev_b32 v{tb}, 5, v{vL}", f"v_lshl_add_u32 v{ta}, v{tb}, 4, v{ta}")
    for i in range(4):
        a(f"v_permlane32_swap_b32 v{A + i}, v{A + i + 4}")
    for i in range(4):
        a(f"v_add_f32 v{A + i}, v{A + i}, v{A + i + 4}")
    a(f"v_bfe_u32 v{tb}, v{vL}, 4, 1", f"v_lshl_add_u32 v{ta}, v{tb}, 3, v{ta}")
    for i in range(2):
        a(f"v_permlane16_swap_b32 v{A + i}, v{A + i + 2}")
    for i in range(2):
        a(f"v_add_f32 v{A + i}, v{A + i}, v{A + i + 2}")
    a(f"v_bfe_u32 v{tb}, v{vL}, 3, 1", f"v_lshl_add_u32 v{ta}, v{tb}, 30, v{ta}")
    for i in range(2):
        a(f"v_add_f32_dpp v{A + i}, v{A + i}, v{A + i} row_ror:8 row_mask:0xf bank_mask:0xf")
    a(f"s_lshl_b32 s{sH}, s{sG}, 4", f"s_add_u32 s{sH}, s{sH}, s{sR}", f"s_lshl_b32 s{sH}, s{sH}, 2", f"s_add_u32 s{sH}, s{sH}, s{sW}",
      f"s_lshl_b32 s{sH}, s{sH}, 8", f"s_add_u32 s{sH}, s{sH}, {CSUM}", f"v_add_u32 v{ta}, s{sH}, v{ta}")
    stores.append(ins(f"buffer_store_dwordx2 v[{A}:{A + 1}], v{ta}, {srd(SWS)}, 0 offen sc1"))
    return st + cs[:n1] + weave(red, bundled(cs[n1:])), stores


def s0_consume_loads():
    o = stamp("prepoll") + poll_check(vRowF, L_S0, "both", dst=vPoll) + poll_check(vColF, L_S0, "both", dst=vPoll2) + stamp("polled")
    a = lambda *t: o.extend(I(*t))
    a(f"buffer_load_dwordx2 v[{CB}:{CB + 1}], v{PA}, {srd(SWS)}, 0 offen sc1")
    for m in range(4):
        a(f"buffer_load_dwordx4 v[{CB + 4 + 4 * m}:{CB + 7 + 4 * m}], v{PA + 1 + m}, {srd(SWS)}, 0 offen sc1")
    return o


def bias_loads():
    return [I(f"buffer_load_ushort v{vB1}, v{PA + 5}, {srd(SB1)}, 0 offen")] + b2_load()


def s0_consume_addr():
    o = []
    a = lambda *t: o.extend(I(*t))
    t0, t1 = T0, T1
    o += flag_addr_row(vRowF, sR, t0, t1) + flag_addr_col(vColF, sG, t0, t1)
    a(f"v_and_b32 v{t0}, 31, v{vL}", f"v_lshlrev_b32 v{t0}, 6, v{t0}", f"s_lshl_b32 s{sT0}, s{sR}, 2", f"s_add_u32 s{sT0}, s{sT0}, s{sW}",
      f"s_lshl_b32 s{sT0}, s{sT0}, 11", f"s_add_u32 s{sT0}, s{sT0}, {STATS}", f"v_add_u32 v{PA}, s{sT0}, v{t0}")
    a(f"v_lshrrev_b32 v{t0}, 4, v{vL}", f"v_lshlrev_b32 v{t0}, 10, v{t0}", f"v_and_b32 v{t1}, 15, v{vL}", f"v_lshl_add_u32 v{t0}, v{t1}, 4, v{t0}",
      f"s_lshl_b32 s{sT0}, s{sG}, 14", f"s_lshl_b32 s{sT1}, s{sW}, 8", f"s_add_u32 s{sT0}, s{sT0}, s{sT1}", f"s_add_u32 s{sT0}, s{sT0}, {CSUM}",
      f"v_add_u32 v{PA + 1}, s{sT0}, v{t0}")
    for m in range(1, 4):
        a(f"v_add_u32 v{PA + 1 + m}, {4096 * m}, v{PA + 1}")
    p = PA + 6
    a(f"v_lshlrev_b32 v{p}, 2, v{t1}", f"v_lshrrev_b32 v{t0}, 5, v{vL}", f"v_lshl_add_u32 v{p}, v{t0}, 1, v{p}", f"v_bfe_u32 v{t0}, v{vL}, 4, 1", f"v_add_u32 v{p}, v{p}, v{t0}",
      f"v_cmp_le_u32 vcc, 32, v{p}", f"v_mov_b32 v{t0}, s{sBA}", f"v_mov_b32 v{t1}, s{sBB}", f"v_cndmask_b32 v{t0}, v{t0}, v{t1}, vcc",
      f"v_and_b32 v{t1}, 31, v{p}", f"v_lshl_add_u32 v{PA + 5}, v{t1}, 1, v{t0}",
      f"v_lshlrev_b32 v{p}, 4, v{p}", f"v_add_u32 v{p}, s{sWL}, v{p}", f"v_add_u32 v{p}, {EX}, v{p}")
    return o


def s0_consume_math():
    x, y = [], []
    a = lambda *t: x.extend(I(*t))
    m, var = CB, CB + 1
    t0, t1, t2, t3 = CB + 28, CB + 29, CB + 30, CB + 31
    e5 = f2u(1e-5)
    a(f"v_add_f32 v{t0}, {e5}, v{var}", f"v_rsq_f32 v{vRs1}, v{t0}", f"v_mul_f32 v{t1}, v{var}, v{vRs1}", f"v_mul_f32 v{t1}, v{t1}, v{vRs1}",
      f"v_add_f32 v{t1}, {e5}, v{t1}", f"v_rsq_f32 v{t1}, v{t1}", f"v_mul_f32 v{vRl1}, {f2u(LOG2E)}, v{vRs1}", f"v_mul_f32 v{t1}, v{t1}, v{vRs1}",
      f"v_rcp_f32 v{vIrs}, v{t1}", f"v_mul_f32 v{vA1}, {f2u(C1)}, v{t1}", f"v_mul_f32 v{t2}, v{t1}, v{t1}", f"v_mul_f32 v{t2}, v{t2}, v{t1}",
      f"v_mul_f32 v{vA3}, {f2u(C3)}, v{t2}")
    a(f"v_sub_f32 v{m}, 0, v{m}", f"v_cvt_pk_bf16_f32 v{t0}, v{m}, v{m}", f"v_and_b32 v{t0}, 0xffff0000, v{t0}", f"v_sub_f32 v{t2}, v{m}, v{t0}",
      f"v_cvt_pk_bf16_f32 v{vXE}, v{t0}, v{t2}",
      f"v_cvt_pk_bf16_f32 v{t0}, v{vIrs}, v{vIrs}", f"v_and_b32 v{t0}, 0xffff0000, v{t0}", f"v_sub_f32 v{t2}, v{vIrs}, v{t0}",
      f"v_cvt_pk_bf16_f32 v{vXE + 2}, v{t0}, v{t2}", f"v_and_b32 v{t0}, 0xffff0000, v{vXE + 2}", f"v_sub_f32 v{t2}, v{t2}, v{t0}",
      f"v_cvt_pk_bf16_f32 v{vXE + 3}, v{t2}, 0",
      f"v_not_b32 v{t3}, v{vHiM}", f"v_and_b32 v{vXE}, v{vXE}, v{t3}", f"v_and_b32 v{vXE + 2}, v{vXE + 2}, v{t3}", f"v_and_b32 v{vXE + 3}, v{vXE + 3}, v{t3}",
      f"v_mov_b32 v{vXE + 1}, v{vXE}")
    a = lambda *t: y.extend(I(*t))
    B, u0 = CB + 4, CB + 32
    for mm in range(1, 4):
        for k in range(4):
            a(f"v_add_f32 v{B + k}, v{B + k}, v{B + 4 * mm + k}")
    a(f"v_permlane32_swap_b32 v{B}, v{B + 2}", f"v_permlane32_swap_b32 v{B + 1}, v{B + 3}",
      f"v_add_f32 v{B}, v{B}, v{B + 2}", f"v_add_f32 v{B + 1}, v{B + 1}, v{B + 3}",
      f"v_permlane16_swap_b32 v{B}, v{B + 1}", f"v_add_f32 v{B}, v{B}, v{B + 1}")
    Rr = CB + 24
    a(f"v_cvt_pk_bf16_f32 v{Rr}, v{B}, v{B}", f"v_and_b32 v{u0}, 0xffff0000, v{Rr}", f"v_sub_f32 v{u0}, v{B}, v{u0}",
      f"v_cvt_pk_bf16_f32 v{Rr + 1}, v{u0}, v{u0}", f"v_lshl_or_b32 v{Rr + 2}, v{vB1}, 16, v{vB1}", f"v_mov_b32 v{Rr + 3}, v{vB1}")
    w = ins(f"ds_write_b128 v{PA + 6}, v[{Rr}:{Rr + 3}]")
    return weave(y + [w], x), w


pr = lambda r: f"v[{r}:{r + 1}]"


def cvt2(dst, tb):
    return I(f"v_cvt_pk_bf16_f32 v{dst}, v{tb}, v{tb + 1}", f"v_cvt_pk_bf16_f32 v{dst + 1}, v{tb + 2}, v{tb + 3}")


def gelu_quad(A, dst, tb, pk=False):
    o = []
    each = lambda f, n=4, s=1: [o.extend(I(f(i))) for i in range(0, n, s)]
    if pk:
        each(lambda i: f"v_pk_mul_f32 {pr(tb + i)}, {pr(A + i)}, {pr(A + i)}", 4, 2)
        each(lambda i: f"v_pk_fma_f32 {pr(tb + i)}, {pr(tb + i)}, {pr(vA3)}, {pr(vA1)} op_sel_hi:[1,0,0]", 4, 2)
        each(lambda i: f"v_pk_mul_f32 {pr(tb + i)}, {pr(tb + i)}, {pr(A + i)}", 4, 2)
        each(lambda i: f"v_exp_f32 v{tb + i}, v{tb + i}")
        each(lambda i: f"v_pk_fma_f32 {pr(tb + i)}, {pr(tb + i)}, {pr(vIrs)}, {pr(vIrs)} op_sel_hi:[1,0,0]", 4, 2)
        each(lambda i: f"v_rcp_f32 v{tb + i}, v{tb + i}")
        each(lambda i: f"v_pk_mul_f32 {pr(tb + i)}, {pr(tb + i)}, {pr(A + i)}", 4, 2)
    else:
        each(lambda i: f"v_mul_f32 v{tb + i}, v{A + i}, v{A + i}")
        each(lambda i: f"v_fma_f32 v{tb + i}, v{tb + i}, v{vA3}, v{vA1}")
        each(lambda i: f"v_mul_f32 v{tb + i}, v{tb + i}, v{A + i}")
        each(lambda i: f"v_exp_f32 v{tb + i}, v{tb + i}")
        each(lambda i: f"v_fma_f32 v{tb + i}, v{tb + i}, v{vIrs}, v{vIrs}")
        each(lambda i: f"v_rcp_f32 v{tb + i}, v{tb + i}")
        each(lambda i: f"v_mul_f32 v{tb + i}, v{tb + i}, v{A + i}")
    return o + cvt2(dst, tb)


def phi_quad(A, dst, tb, pk=False):
    o = []
    each = lambda f, n=4, s=1: [o.extend(I(f(i))) for i in range(0, n, s)]
    if pk:
        each(lambda i: f"v_pk_mul_f32 {pr(tb + i)}, {pr(A + i)}, {pr(vRl1)} op_sel_hi:[1,0]", 4, 2)
        each(lambda i: f"v_pk_fma_f32 {pr(A + i)}, {pr(A + i)}, {pr(vRs1)}, 1.0 op_sel_hi:[1,0,0]", 4, 2)
    else:
        each(lambda i: f"v_mul_f32 v{tb + i}, v{A + i}, v{vRl1}")
        each(lambda i: f"v_fma_f32 v{A + i}, v{A + i}, v{vRs1}, 1.0")
    each(lambda i: f"v_exp_f32_e64 v{tb + i}, v{tb + i} clamp")
    each(lambda i: f"v_max_f32 v{tb + i}, v{tb + i}, v{A + i}")
    if pk:
        each(lambda i: f"v_pk_add_f32 {pr(tb + i)}, {pr(tb + i)}, s[{sEps}:{sEps + 1}] op_sel_hi:[1,0]", 4, 2)
    else:
        each(lambda i: f"v_add_f32 v{tb + i}, s{sEps}, v{tb + i}")
    return o + cvt2(dst, tb)


def lin_quad(A, dst, tb, pk=False):
    o = []
    if pk:
        for i in (0, 2): o += I(f"v_pk_mul_f32 {pr(tb + i)}, {pr(A + i)}, {pr(vRs1)} op_sel_hi:[1,0]")
    else:
        for i in range(4): o += I(f"v_mul_f32 v{tb + i}, v{A + i}, v{vRs1}")
    return o + cvt2(dst, tb)


def gelu_quads(jobs, lo, hi, pk):
    o = []
    for n in range(lo, hi):
        A, name, toks = jobs[n // 4]
        gq, h = n % 4, (n % 4) // 2
        if gq == 0 or n == lo:
            pass
        o += gelu_quad(A + 4 * gq, A + 8 * h + 2 * (gq & 1), ET + 4 * (gq & 1), pk)
        if gq & 1:
            x = ins(f"buffer_store_dwordx4 v[{A + 8 * h}:{A + 8 * h + 3}], v{vHst}, {srd(SWS)}, s{sH4 if name == 'H4' else sHst} offen offset:{512 * h + 1024 * (HUNIT[name] % 4)} sc1")
            o.append(x); toks.append(x)
    return o


def kv_setup():
    o = []
    a = lambda *t: o.extend(I(*t))
    t0, t1, t2 = T0, T1, T2
    a(f"v_and_b32 v{t0}, 31, v{vL}", f"s_lshl_b32 s{sT0}, s{sW}, 5", f"v_add_u32 v{t0}, s{sT0}, v{t0}", f"v_mul_u32_u24 v{t0}, {KVT_LD}, v{t0}",
      f"v_add_u32 v{t0}, {KVT}, v{t0}", f"v_add_u32 v{vOnes}, 320, v{t0}",
      f"v_lshrrev_b32 v{t1}, 5, v{vL}", f"v_lshl_add_u32 v{vKf}, v{t1}, 3, v{t0}")
    a(f"v_bfe_u32 v{t0}, v{vL}, 2, 2", f"v_lshl_add_u32 v{t0}, v{t1}, 3, v{t0}", f"v_mul_u32_u24 v{t0}, {KVT_LD}, v{t0}", f"v_add_u32 v{t0}, {KVT}, v{t0}",
      f"v_bfe_u32 v{t1}, v{vL}, 4, 1", f"v_and_b32 v{t2}, 3, v{vL}", f"v_lshl_add_u32 v{t1}, v{t1}, 2, v{t2}",
      f"s_mul_i32 s{sT0}, s{sW}, 40", f"v_lshl_add_u32 v{vKB}, v{t1}, 3, v{t0}", f"v_add_u32 v{vKB}, s{sT0}, v{vKB}",
      f"v_add_u32 v{vKA}, 160, v{vKB}", f"v_add_u32 v{t0}, 320, v{t0}", f"v_cmp_eq_u32 vcc, 5, v{t1}", f"v_cndmask_b32 v{vKA}, v{vKA}, v{t0}, vcc")
    a(f"v_and_b32 v{t0}, 31, v{vL}", f"v_cmp_gt_u32 vcc, 24, v{t0}", f"v_lshlrev_b32 v{t0}, 3, v{t0}", f"v_and_b32 v{t1}, 192, v{vHiM}", f"v_add_u32 v{t0}, v{t0}, v{t1}",
      f"s_lshl_b32 s{sT0}, s{sU}, 2", f"s_add_u32 s{sT0}, s{sT0}, s{sW}", f"s_lshl_b32 s{sT0}, s{sT0}, 4", f"s_add_u32 s{sT0}, s{sT0}, s{sR}", f"s_mul_i32 s{sT0}, s{sT0}, 1280",
      f"s_add_u32 s{sT0}, s{sT0}, {KVP}", f"v_add_u32 v{t0}, s{sT0}, v{t0}", f"v_mov_b32 v{vAt}, {OOB}", f"v_cndmask_b32 v{vAt}, v{vAt}, v{t0}, vcc")
    return o


def kv_epilogue(aset, nshadow):
    blk = I(f"v_mov_b32 v{T2}, 0x3f803f80", f"v_mov_b32 v{T3}, 0x3f803f80")
    ones = ins(f"ds_write_b64 v{vOnes}, v[{T2}:{T3}]")
    blk.append(ones)
    wr, parts, n = [ones], [blk, []], 0
    for t, kind, cb in [(0, "k", 0), (1, "k", 64), (2, "m", 128), (3, "v", 160), (4, "v", 224)]:
        A = acc(aset[t])
        for g in range(4):
            isk = kind == "k" or (kind == "m" and g < 2)
            pk = n >= nshadow
            off = cb + 16 * g if kind != "m" else cb + (16 * g if g < 2 else 160 + 16 * (g - 2))
            x = ins(f"ds_write_b64 v{vKf}, v[{A + 4 * g}:{A + 4 * g + 1}] offset:{off}")
            parts[pk] += (phi_quad if isk else lin_quad)(A + 4 * g, A + 4 * g, ET + 4 * (g & 1), pk) + [x]
            wr.append(x)
            n += 1
    return parts[0], parts[1], wr


def kv_product(wr):
    blk = [ins("s_barrier", after=wr)]
    KA, FR = acc(1), acc(2)
    rd = []
    for j in range(8):
        f = FR + 8 * (j % 4)
        rd.append(I(f"ds_read_b64_tr_b16 v[{f}:{f + 1}], v{vKA} offset:{16 * j * KVT_LD}", f"ds_read_b64_tr_b16 v[{f + 2}:{f + 3}], v{vKA} offset:{(16 * j + 4) * KVT_LD}",
                    f"ds_read_b64_tr_b16 v[{f + 4}:{f + 5}], v{vKB} offset:{16 * j * KVT_LD}", f"ds_read_b64_tr_b16 v[{f + 6}:{f + 7}], v{vKB} offset:{(16 * j + 4) * KVT_LD}"))
    blk += rd[0] + rd[1] + rd[2]
    for j in range(8):
        f = FR + 8 * (j % 4)
        c = "0" if j == 0 else f"v[{KA}:{KA + 15}]"
        blk += I(f"v_mfma_f32_32x32x16_bf16 v[{KA}:{KA + 15}], v[{f + 4}:{f + 7}], v[{f}:{f + 3}], {c}")
        if j + 3 < 8:
            blk += rd[j + 3]
    at = []
    for q in range(3):
        at.append(ins(f"buffer_store_dwordx2 v[{KA + 4 * q}:{KA + 4 * q + 1}], v{vAt}, {srd(SWS)}, 0 offen offset:{384 * q} sc1"))
        blk += cvt2(KA + 4 * q, KA + 4 * q) + at[-1:]
    return blk, at


PQ = 128
OA = [112, 148, 164]


def o_setup():
    o = []
    a = lambda *t: o.extend(I(*t))
    t0, t1, t2, t3 = T0, T1, T2, T3
    a(f"v_subrev_u32 v{vColK}, 8192, v{vColF}")
    a(f"s_lshl_b32 s{sK1}, s{sU}, 2", f"s_add_u32 s{sK1}, s{sK1}, s{sW}", f"s_mul_i32 s{sK1}, s{sK1}, 20480", f"s_add_u32 s{sK1}, s{sK1}, {KVP}",
      f"v_cmp_gt_u32 vcc, 60, v{vL}", f"v_lshlrev_b32 v{t0}, 4, v{vL}", f"v_mov_b32 v{vOl0}, {OOB}", f"v_cndmask_b32 v{vOl0}, v{vOl0}, v{t0}, vcc")
    for i, vw in enumerate((vOw0, vOw1)):
        a(f"v_lshl_add_u32 v{t0}, v{vL}, 1, {i}", f"v_mul_u32_u24 v{t2}, 2731, v{t0}", f"v_lshrrev_b32 v{t2}, 16, v{t2}",
          f"v_mul_u32_u24 v{t1}, 24, v{t2}", f"v_sub_u32 v{t1}, v{t0}, v{t1}",
          f"v_mul_u32_u24 v{t0}, 5, v{t2}", f"v_subrev_u32 v{t0}, 4, v{t0}", f"v_max_i32 v{t0}, v{t0}, v{t1}")
        a(f"s_mul_i32 s{sT0}, s{sW}, 5", f"v_add_u32 v{t2}, s{sT0}, v{t2}",
          f"v_lshrrev_b32 v{t3}, 2, v{t2}", f"v_lshlrev_b32 v{vw}, 5, v{t3}", f"v_and_b32 v{t3}, 1, v{t2}", f"v_lshl_add_u32 v{vw}, v{t3}, 4, v{vw}",
          f"v_bfe_u32 v{t3}, v{t2}, 1, 1", f"v_lshl_add_u32 v{vw}, v{t3}, 3, v{vw}", f"v_add_u32 v{vw}, {AM}, v{vw}")
        v2 = (vOw2, vOw3)[i]
        a(f"s_mul_i32 s{sT0}, s{sW}, 20", f"v_add_u32 v{t2}, s{sT0}, v{t1}",
          f"s_add_u32 s{sT0}, s{sW}, 80", f"v_mov_b32 v{t3}, s{sT0}", f"v_cmp_eq_u32 vcc, 20, v{t1}", f"v_cndmask_b32 v{t2}, v{t2}, v{t3}, vcc",
          f"v_mul_u32_u24 v{t2}, {AM_LD}, v{t2}", f"v_add_u32 v{vw}, v{vw}, v{t2}",
          f"v_add_u32 v{t2}, {4 * AM_LD}, v{vw}", f"v_cndmask_b32 v{v2}, v{vw}, v{t2}, vcc")
        a(f"v_cmp_lt_u32 vcc, 20, v{t0}", f"v_mov_b32 v{t2}, {SCR}", f"v_cndmask_b32 v{vw}, v{vw}, v{t2}, vcc", f"v_cndmask_b32 v{v2}, v{v2}, v{t2}, vcc")
    a(f"v_and_b32 v{t0}, 31, v{vL}", f"v_mul_u32_u24 v{t0}, {AM_LD}, v{t0}", f"v_and_b32 v{t1}, 16, v{vHiM}", f"v_add_u32 v{t0}, v{t0}, v{t1}", f"v_add_u32 v{vAM}, {AM}, v{t0}")
    return o


def am_zero():
    o = I(*[f"v_mov_b32 v{ET + k}, 0" for k in range(4)], f"v_lshlrev_b32 v{ET + 4}, 4, v0", f"v_add_u32 v{ET + 4}, {AM}, v{ET + 4}")
    tk = [ins(f"ds_write_b128 v{ET + 4}, v[{ET}:{ET + 3}] offset:{4096 * k}") for k in range(5)]
    return o + tk, tk


def phi_q(aset, pk, lo, hi):
    o = []
    for n in range(lo, hi):
        A = acc(aset[5 + n // 4]) + 4 * (n % 4)
        o += phi_quad(A, PQ + 2 * n, ET + 4 * (n & 1), pk)
    return o


KL, KS = 48, 112


def o_load():
    g = []
    for r in range(16):
        pre = I(f"s_add_u32 s{sH}, s{sK1}, {5120 * (r // 4)}") if r % 4 == 0 else []
        g.append(pre + I(f"buffer_load_dwordx4 v[{KL + 4 * r}:{KL + 4 * r + 3}], v{vOl0}, {srd(SWS)}, s{sH} offen offset:{1280 * (r % 4)} sc1"))
    return poll_check(vColK, L_KP, "kv", dst=vPoll2) + stamp("kvseen"), g


def o_write():
    o = []
    for r in range(16):
        for k in range(8):
            o += I(f"v_dot2_f32_bf16 v{KS + k}, v{KL + 4 * r + k // 2}, s{sOne1 if k & 1 else sOne0}, {'0' if r == 0 else 'v%d' % (KS + k)}")
    o += cvt2(KS, KS) + cvt2(KS + 2, KS + 4)
    wr = [ins(f"ds_write_b64 v{vw}, v[{KS + 2 * i}:{KS + 2 * i + 1}]") for i, vw in ((0, vOw0), (0, vOw2), (1, vOw1), (1, vOw3))]
    return o + wr, wr


def o_steps():
    seq = [(T, k) for T in (2, 0, 1) for k in range(5)]
    fr = lambda n: r4([("v", ET), ("v", ET + 4), ("v", T0)][n % 3])
    rd = lambda n: I(f"ds_read_b128 {fr(n)}, v{vAM} offset:{seq[n][0] * 32 * AM_LD + 32 * seq[n][1]}")
    steps = []
    for n, (T, k) in enumerate(seq):
        pre = []
        if n == 0:
            pre = rd(0) + rd(1)
        c = "0" if k == 0 else f"v[{OA[T]}:{OA[T] + 15}]"
        m = ins(f"v_mfma_f32_32x32x16_bf16 v[{OA[T]}:{OA[T] + 15}], {fr(n)}, v[{PQ + 4 * k}:{PQ + 4 * k + 3}], {c}")
        steps.append(dict(pre=pre, mfma=m, post=rd(n + 2) if n + 2 < 15 else [], budget=0))
    return steps


def o_finish(toks):
    o = []
    a = lambda *t: o.extend(I(*t))
    rc = ET
    for h in range(4): a(f"v_add_f32 v{rc + h}, s{sEps}, v{OA[2] + 8 + h}")
    for h in range(4): a(f"v_rcp_f32 v{rc + h}, v{rc + h}")
    a(f"v_bfi_b32 v{rc + 4}, v{vHiM}, v{rc + 1}, v{rc}", f"v_bfi_b32 v{rc + 5}, v{vHiM}, v{rc + 3}, v{rc + 2}")
    for i in (4, 0, 1, 2, 3):
        A = OA[i >> 1] + 8 * (i & 1)
        for gq in range(2):
            e0 = 16 * i + 8 * gq
            rr = {16: rc + 4, 56: rc + 5}.get(e0, rc + e0 // 20)
            sel = "op_sel:[0,1] op_sel_hi:[1,1]" if rr & 1 else "op_sel_hi:[1,0]"
            for k in (0, 2): a(f"v_pk_mul_f32 {pr(A + 4 * gq + k)}, {pr(A + 4 * gq + k)}, {pr(rr & ~1)} {sel}")
            o += cvt2(A + 2 * gq, A + 4 * gq)
        x = ins(f"buffer_store_dwordx4 v[{A}:{A + 3}], v{vHst}, {srd(SWS)}, s{sOst} offen offset:{512 * i} sc1")
        o.append(x); toks.append(x)
    return o


def p2_setup(RA):
    o = []
    a = lambda *t: o.extend(I(*t))
    t0, t1, t2 = T0, T1, T2
    a(f"s_and_b32 s{sT0}, s2, 1", f"s_lshl_b32 s{sT0}, s{sT0}, 3", f"s_and_b32 s{sT1}, s2, 4", f"s_add_u32 s{sT0}, s{sT0}, s{sT1}",
      *([f"s_bfe_u32 s{sT1}, s2, 0x20003", f"s_add_u32 s{sR2}, s{sT0}, s{sT1}", f"s_lshr_b32 s{sT1}, s2, 5"] if OPT["map2"] == 0 else
        [f"s_lshr_b32 s{sT1}, s2, 6", f"s_bfe_u32 s{sT2}, s2, {0x10003 if OPT['map2'] == 1 else 0x10008}", f"s_xor_b32 s{sT1}, s{sT1}, s{sT2}", f"s_add_u32 s{sR2}, s{sT0}, s{sT1}",
         f"s_bfe_u32 s{sT1}, s2, 0x30003"]),
      f"s_mul_i32 s{sJ160}, s{sT1}, 160", f"s_mov_b32 s{sD2h}, s{sT1}",
      f"s_bfe_u32 s{sT2}, s2, 0x10001",
      f"s_lshl_b32 s{sE}, s{sT2}, 2", f"s_add_u32 s{sE}, s{sE}, s{sW}",
      f"s_and_b32 s{sT0}, s{sW}, 1", f"s_lshl_b32 s{sT0}, s{sT0}, 1", f"s_mul_i32 s{sBq}, s{sE}, 6", f"s_sub_u32 s{sBq}, s{sBq}, s{sT0}",
      f"s_sub_u32 s{sBk}, s{sBq}, s{sT0}", f"s_add_u32 s{sBq}, s{sBq}, 4",
      f"s_sub_u32 s{sB6}, s{sE}, s{sT2}", f"s_add_u32 s{sB6}, s{sB6}, 48", f"s_cmp_eq_u32 s{sW}, 3", f"s_cselect_b32 s{sL6}, {OOB}, 0",
      f"s_lshl_b32 s{sT0}, s{sR2}, 1", f"s_add_u32 s{sT1}, s{sT0}, s{sT2}",
      f"s_mul_i32 s{sHB}, s{sT1}, {4 * NB * 1024}", f"s_add_u32 s{sHB}, s{sHB}, {HB}",
      f"s_lshl_b32 s{sRow}, s{sT1}, 2", f"s_add_u32 s{sRow}, s{sRow}, s{sW}", f"s_mul_i32 s{sRow}, s{sRow}, {16 * LDX}", f"s_add_u32 s{sRow}, s{sRow}, s{sJ160}",
      f"s_xor_b32 s{sT1}, s{sT1}, 1", f"s_mul_i32 s{sHA}, s{sT1}, {4 * NB * 1024}", f"s_add_u32 s{sHA}, s{sHA}, {HB}")
    a(f"s_add_u32 s{sT0}, s{sBq}, 20", f"s_lshl_b32 s{sHq}, s{sT0}, 10", f"s_add_u32 s{sT0}, s{sBk}, 20", f"s_lshl_b32 s{sHk}, s{sT0}, 10",
      f"s_add_u32 s{sT0}, s{sB6}, 20", f"s_lshl_b32 s{sH6}, s{sT0}, 10", f"s_or_b32 s{sH6}, s{sH6}, s{sL6}", f"s_lshl_b32 s{sHo}, s{sW}, 10",
      f"s_mul_i32 s{sWq}, s{sBq}, {32 * LDX}", f"s_add_u32 s{sWq}, s{sWq}, s{sJ160}", f"s_mul_i32 s{sWk}, s{sBk}, {32 * LDX}", f"s_add_u32 s{sWk}, s{sWk}, s{sJ160}",
      f"s_mul_i32 s{sW6}, s{sB6}, {32 * LDX}", f"s_add_u32 s{sW6}, s{sW6}, s{sJ160}", f"s_or_b32 s{sW6}, s{sW6}, s{sL6}", f"s_mul_i32 s{sWo}, s{sW}, {32 * LDX}", f"s_add_u32 s{sWo}, s{sWo}, s{sJ160}")
    a(f"v_mul_u32_u24 v{T3}, 6554, v{vL}", f"s_mov_b32 s{sT1}, {LDX - 160}", f"s_mul_i32 s{sT0}, s{sW}, 5632", f"s_add_u32 s{sT0}, s{sT0}, {FIN}",
      f"v_lshl_add_u32 v{t2}, v{vL}, 5, s{sT0}")
    for i in range(5):
        o += row10(i, t1) + I(f"v_mad_u32_u24 v{vW2[i]}, v{t1}, s{sT1}, v{vL16}")
        if i < 3:
            a(f"v_lshl_add_u32 v{vTr[i]}, v{t1}, 4, v{t2}")
    a(f"v_add_u32 v{vW2[4]}, 4096, v{vW2[4]}")
    a(f"v_and_b32 v{t1}, 15, v{vL}", f"v_mul_u32_u24 v{t1}, 336, v{t1}", f"v_and_b32 v{t2}, 48, v{vL}", f"v_add3_u32 v{vTw}, v{t1}, v{t2}, s{sT0}")
    for t in range(4):
        a(f"s_add_u32 s{sT0}, s{sW}, {t}", f"s_and_b32 s{sT0}, s{sT0}, 3", f"s_mul_i32 s{sT0}, s{sT0}, {NB * 1024}", f"s_add_u32 s{sT0}, s{sT0}, s{sHB}",
          f"v_add_u32 v{vH['B'][t]}, s{sT0}, v{vL16}")
    a(f"v_lshrrev_b32 v{t0}, 5, v{vL}", f"v_lshlrev_b32 v{t0}, 4, v{t0}", f"v_bfe_u32 v{t1}, v{vL}, 4, 1", f"v_lshl_add_u32 v{t0}, v{t1}, 2, v{t0}",
      f"v_bfe_u32 v{t1}, v{vL}, 2, 2", f"v_add_u32 v{t0}, v{t0}, v{t1}", f"v_mul_u32_u24 v{t0}, 160, v{t0}", f"v_and_b32 v{t1}, 3, v{vL}",
      f"v_lshl_add_u32 v{t0}, v{t1}, 3, v{t0}", f"v_add_u32 v{vT2[0]}, s{sW5}, v{t0}",
      f"v_add_u32 v{vT2[1]}, 0x10000, v{vT2[0]}", f"v_add_u32 v{vT2[2]}, 0x20000, v{vT2[0]}")
    o += flag_sc_row(sR) + I(f"v_subrev_u32 v{vRow2}, s{sT0}, v{vRowF}") + flag_sc_row(sR2) + I(f"v_add_u32 v{vRow2}, s{sT0}, v{vRow2}")
    a(f"v_and_b32 v{vRow2K}, 0xffffdfff, v{vRow2}", f"v_or_b32 v{vRow2}, 0x2000, v{vRow2}")
    a(f"s_mov_b32 s{sRot}, 0")
    a(f"v_add_u32 v{vRW[0]}, s{sW5}, v{vL16}", f"v_add_u32 v{vRW[1]}, 0x10000, v{vRW[0]}", f"v_add_u32 v{vRW[2]}, 0x20000, v{vRW[0]}")
    for t in range(1, 4):
        a(f"s_sub_u32 s{sT0}, s{sW}, {t}", f"s_and_b32 s{sT0}, s{sT0}, 3", f"s_mul_i32 s{sT0}, s{sT0}, 5120", f"s_add_u32 s{sT0}, s{sT0}, {RA[t - 1]}",
          f"v_add_u32 v{vRR[t - 1]}, s{sT0}, v{vL16}")
    a(f"s_xor_b32 s{sT0}, s2, 2", f"s_lshl_b32 s{sT1}, s{sT0}, 9", f"s_lshl_b32 s{sT2}, s{sW}, 7", f"s_add_u32 s{sT1}, s{sT1}, s{sT2}", f"v_mov_b32 v{vPar}, s{sT1}")
    a(f"s_lshl_b32 s{sXc}, s2, 2", f"s_add_u32 s{sXc}, s{sXc}, s{sW}", f"s_mul_i32 s{sXc}, s{sXc}, 3072", f"s_add_u32 s{sXc}, s{sXc}, {XCH}")
    a(f"v_and_b32 v{vFo2}, {OOB}, v{vHiM}", f"v_or_b32 v{vFo2}, v{vFo2}, v{vW2[2]}")
    a(f"v_lshrrev_b32 v{t0}, 4, v{vL}", f"v_lshlrev_b32 v{t0}, 3, v{t0}", f"v_add_u32 v{vFo[0]}, s{sJ160}, v{t0}")
    return o


FIN = 141312


def tw_setup():
    if OPT["mtq"]:
        return I(f"s_and_b32 s{sT0}, s2, 63", f"s_lshr_b32 s{sT1}, s2, 7", f"s_lshl_b32 s{sT1}, s{sT1}, 6", f"s_add_u32 s{sT0}, s{sT0}, s{sT1}",
                 f"s_lshl_b32 s{sT0}, s{sT0}, 2", f"s_add_u32 s{sT0}, s{sT0}, s{sW}", f"s_mul_i32 s{sTa}, s{sT0}, {34 * 128}", f"s_mul_i32 s{sTb}, s{sT0}, {13 * 128}",
                 f"v_lshlrev_b32 v{vTW}, 7, v{vL}")
    return I(f"s_lshl_b32 s{sT0}, s2, 2", f"s_add_u32 s{sT0}, s{sT0}, s{sW}", f"s_mul_i32 s{sTa}, s{sT0}, {17 * 128}", f"s_mul_i32 s{sTb}, s{sT0}, {7 * 128}",
             f"v_lshlrev_b32 v{vTW}, 7, v{vL}")


def masked(n, *body):
    lo, hi = ((1 << n) - 1) & 0xffffffff, ((1 << n) - 1) >> 32
    pre = [f"s_mov_b32 exec_hi, {hi}"] + ([f"s_mov_b32 exec_lo, {lo}"] if n < 32 else [])
    return [Bundle(I(*pre, *body, "s_mov_b64 exec, -1"))]


def mall_touch(kv):
    if not OPT["touch_w"] or (kv and OPT["mtq"]):
        return []
    return [masked(n, f"buffer_load_dword v{vTd}, v{vTW}, {srd(sr)}, s{so} offen") for sr, so, n in ((SW2, sTa, 34 if OPT["mtq"] else 17), (SWO, sTb, 13 if OPT["mtq"] else 7))]


def tlb_warm(shift):
    o = I(f"v_lshlrev_b32 v178, {shift}, v{vL}")
    for sr in (SWS, SOUT, SW2, SWO):
        o += I(f"buffer_load_dword v{vTd}, v178, {srd(sr)}, 0 offen")
    return [Bundle(o)]


def sprinkle(valu, groups, lo=0.0, hi=1.0):
    valu, out, k = bundled(valu), [], 0
    for i, x in enumerate(valu):
        while k < len(groups) and i >= len(valu) * (lo + (hi - lo) * k / len(groups)):
            out += groups[k]
            k += 1
        out.append(x)
    return out + [y for g in groups[k:] for y in g]


def b2_load():
    return [I(f"buffer_load_dwordx2 v[{accB(0, f)[1] + 2}:{accB(0, f)[1] + 3}], v{vFo[0]}, {srd(SB2)}, 0 offen offset:{32 * f}") for f in range(5)]


def b2_unpack():
    o = []
    for f in range(5):
        d = accB(0, f)[1]
        o += I(f"v_lshlrev_b32 v{d}, 16, v{d + 2}", f"v_and_b32 v{d + 1}, 0xffff0000, v{d + 2}", f"v_lshlrev_b32 v{d + 2}, 16, v{d + 3}", f"v_and_b32 v{d + 3}, 0xffff0000, v{d + 3}")
    return o


def ha_setup():
    o = I(f"s_sub_u32 s{sT0}, s{sHA}, s{sHB}")
    return [Bundle(o + I(*[f"v_add_u32 v{vH['A'][t]}, s{sT0}, v{vH['B'][t]}" for t in range(4)]))]


class Program:
    def __init__(s, kv):
        s.kv = kv
        if kv:
            s.tiles, s.T = ["K0", "K1", "MX", "V0", "V1", "Ha", "Hb"], 5
            s.aset = {t: t for t in range(7)}
        else:
            s.tiles, s.T = ["H0", "H1", "H2", "H3", "H4", "Q0", "Q1", "QM"], 4
            s.aset = {t: t for t in range(8)}
        s.spine, s.head, s.sides = [], [], []

    def at(s, idx):
        return s.head if idx < 0 else s.spine[idx]["pre"]

    def pin(s, idx, g):
        st = s.spine[max(idx, 0)]
        if st.get("pinned"):
            st["post"].extend(g)
        else:
            st["pre2"] = g[:-1]
            st["post"].append(g[-1])
        st["pinned"] = True
        st["budget"] -= len(g)

    def spread(s, gs, lo, hi):
        last = lo
        for i, g in enumerate(gs):
            last = lo + (i * max(hi - lo, 1)) // len(gs)
            s.pin(last, g)
        return last

    def w2_dma(s, kind, i, z):
        if kind == "E":
            base, k0, sr = (sWq, i, SW2) if i < 4 else (sW6, 0, SW2) if i == 4 else (sWk, i - 5, SW2)
        else:
            base, k0, sr = sWo, 4 * i, SWO
        x, so = [], base
        if OPT["rot2"] and i != 4:
            m, mul = (3, 1) if kind == "E" and i < 4 else (1, 1) if kind == "E" else (3, 4)
            x = (I(f"s_and_b32 s{sD2w}, s{sRot}, 1", f"s_xor_b32 s{sD2w}, s{sD2w}, {k0}") if m == 1 else I(f"s_xor_b32 s{sD2w}, s{sRot}, {k0 // mul}"))
            x += I(f"s_mul_i32 s{sD2w}, s{sD2w}, {mul * 32 * LDX}", f"s_add_u32 s{sD2w}, s{sD2w}, s{base}")
            so = sD2w
        elif k0:
            x, so = I(f"s_add_u32 s{sD2w}, s{base}, {k0 * 32 * LDX}"), sD2w
        after = s.zrd.get(z, [])
        gs = []
        for k in range(5):
            d = ins(f"buffer_load_dwordx4 v{vW2[k]}, {srd(sr)}, s{so} offen offset:{1024 * (k % 4)} lds", after=after if k == 0 else ())
            gs.append((x if k == 0 else []) + I(f"s_add_u32 m0, s{sW5}, {z + (4096 if k == 4 else 0)}") + [d])
        s.w2tok[(kind, i)] = [g[-1] for g in gs]
        s.w2z[(kind, i)] = z
        if OPT.get("lat") == f"{kind}{i}":
            x = stamp("lat0") + I("s_waitcnt vmcnt(0)", "s_nop 15", "s_nop 15") + stamp("lat1") + [y for g in gs for y in g] + I("s_waitcnt vmcnt(0)") + stamp("lat2") + I("s_nop 15", "s_nop 15", "s_nop 15", "s_nop 15")
            return [[Bundle(x)]]
        return gs

    def w2_reads(s, kind, i):
        x = []
        z = s.w2z[(kind, i)]
        for f in range(5):
            k, r = wfrag(kind, i, f)
            for h in range(2):
                ad = z + 32 * f + 1280 * h
                x.append(ins(f"ds_read_b64_tr_b16 {k}[{r + 2 * h}:{r + 2 * h + 1}], v{vT2[ad >> 16]} offset:{ad & 0xffff}", after=s.w2tok[(kind, i)]))
        s.zrd[z] = x
        return x

    def h_load(s, n, blk):
        kind, i = blk[0], int(blk[1])
        x = []
        if i == 4:
            x, so, imm = (I(f"s_add_u32 s{sD2h}, s{sHo}, 16384"), sD2h, 0) if kind == "O" else ([], sH6, 0)
        elif kind == "O":
            x, so, imm = I(f"s_add_u32 s{sD2h}, s{sHo}, {4096 * i}"), sD2h, 0
        elif not OPT["rot2"]:
            so, imm = (sHq, 1024 * i) if i < 4 else (sHk, 1024 * (i - 5))
        elif i < 4:
            x, so, imm = I(f"s_xor_b32 s{sD2h}, s{sR10}, {1024 * i}", f"s_add_u32 s{sD2h}, s{sD2h}, s{sHq}"), sD2h, 0
        else:
            x, so, imm = I(f"s_and_b32 s{sD2h}, s{sR10}, 1024", f"s_xor_b32 s{sD2h}, s{sD2h}, {1024 * (i - 5)}", f"s_add_u32 s{sD2h}, s{sD2h}, s{sHk}"), sD2h, 0
        v = vH["A" if kind == "A" else "B"]
        return [(x if t == 1 else []) + I(f"buffer_load_dwordx4 a[{aH(n, t)}:{aH(n, t) + 3}], v{v[t]}, {srd(SWS)}, s{so} offen offset:{imm} sc1") for t in (1, 2, 3, 0)]

    def build(s, xs):
        kv, T, tiles = s.kv, s.T, s.tiles
        o = []
        a = lambda *t: o.extend(I(*t))
        if kv:
            a(f"s_lshl_b32 s{sT0}, s{sP}, 8", f"s_sub_u32 s{sU64}, s{sU64}, s{sT0}", f"s_add_u32 s{sKq}, s{sKq}, 1280", f"s_mov_b32 s{sLast}, 0", f"s_mov_b32 s{sU4}, 0")
            o += wk_setup(True)
        else:
            a(f"s_lshl_b32 s{sT0}, s{sP}, 7", f"s_sub_u32 s{sU64}, s{sU64}, s{sT0}", f"s_add_u32 s{sU64}, s{sU64}, 256")
            o += wp_setup()
        dma = lambda pre, m0, v, sr, imm: pre + I(f"s_add_u32 m0, {m0}", f"buffer_load_dwordx4 v{v}, {srd(sr)}, s{sDw} offen offset:{imm} lds")
        so = lambda base, off, last=False: I(f"s_add_u32 s{sDw}, s{base}, {off}") + (I(f"s_or_b32 s{sDw}, s{sDw}, s{sLast}") if last else [])
        two = lambda regs, ad: (regs[0], ad) if ad < 0x8000 else (regs[1], ad - 0x8000)

        def pair_dma(k, bases):
            return [dma(so(sU64, k * 64 * LD1) + swap(sDw, sSw1, k) if (p, i) == (0, 0) else [], f"s{sW2k}, {b - 128 * p}", vWp[i], SW1, 128 * p + 1024 * i) for p, b in enumerate(bases) for i in range(2)]

        pair_step = lambda t, k, j, b, shift: dict(t=t, k=k, j=j, v=vTP[(t - (5 if kv else 0)) & 1], o1=b + 2048 * j - shift, d=512)
        stages = []
        for n in range(10):
            if kv:
                sl = (n % 4) * SLOT
                w = [dma(so(sKw, n * 64 * LDQ) + swap(sDw, sSwQ, n) if i == 0 else [], f"s{sW5}, {sl + 1024 * i}", vWk[i], SQKV, 0) for i in range(5)]
                st = []
                for t, (regs, col) in enumerate(((vTK, 0), (vTK, 64), (vTM, 0), (vTK, 2560), (vTK, 2624))):
                    for j in range(4):
                        v, off = two(regs, sl + 5120 * j + col)
                        st.append(dict(t=t, k=n, j=j, v=v, o1=off, d=640))
            else:
                sl = (n % 4) * 16384
                w = pair_dma(n, [sl, sl + 8192])
                st = [pair_step(t, n, j, sl + 8192 * (t >> 1), 0) for t in range(4) for j in range(4)]
            stages.append(dict(w=(dma_x(n) if n >= len(xs) else []) + w, steps=st, issue=n - 2, xtok=[g[-1] for g in xs[n]] if n < len(xs) else []))
        stages[9]["steps"] += [dict(t=t, extra=True) for t in range(T)]
        if kv:
            for m in range(10):
                b = RING2 + 8192 * m if m < 5 else 8192 * (m - 5)
                st = [pair_step(t, m, j, b, 0x8000 if m < 5 else 0) for t in (5, 6) for j in range(4)]
                for x in st:
                    x["v"] += 0 if m < 5 else 2
                stages.append(dict(w=pair_dma(m, [b]), steps=st, issue=8 if m < 2 else 9 if m < 5 else None))
            stages[-1]["steps"].insert(4, dict(t=5, extra=True))
            stages[-1]["steps"].append(dict(t=6, extra=True))
        else:
            for gq in range(5):
                w, st = [], []
                for m in (2 * gq, 2 * gq + 1):
                    w.append(dma(so(sU4, m * 64 * LD1) + swap(sDw, sSw1, m) + I(f"s_or_b32 s{sDw}, s{sDw}, s{sLast}"), f"s{sWL}, {0x8000 + 4096 * m}", vW1, SW1, 0))
                    st += [dict(t=4, k=m, j=j, v=vTR, o1=4096 * m + 1024 * j, d=256) for j in range(4)]
                stages.append(dict(w=w, steps=st, issue=8 if gq < 2 else 9))
            stages[-1]["steps"].append(dict(t=4, extra=True))
            for qs in range(5):
                b = (qs % 4) * SLOT
                w = [dma(so(sKw, qs * 128 * LDQ) if i == 0 else [], f"s{sW5}, {b + (4096 if i == 4 else 0)}", vWk[i], SQKV, 1024 * (i % 4)) for i in range(5)]
                st = []
                for kk in range(2):
                    for t, regs, col in ((5, vTK, 0), (6, vTK, 64), (7, vTM, 0)):
                        for j in range(4):
                            v, off = two(regs, b + 2560 * (4 * kk + j) + col)
                            st.append(dict(t=t, k=2 * qs + kk, j=j, v=v, o1=off, d=640))
                        if qs == 4 and kk == 1:
                            st.append(dict(t=t, extra=True))
                stages.append(dict(w=w, steps=st, issue=(11, 12, 15, 16, 17)[qs]))
        w0 = [x for g in stages[0]["w"] for x in g]
        if not OPT["s0first"]:
            o += stamp("prew0") + w0 + stamp("w0")
        if kv:
            o += nonce_publish()
        a(f"s_lshl_b32 s{sWL}, s{sW}, 10")
        if not kv:
            a(f"s_lshr_b32 s{sT0}, s{sU}, 2", f"s_sub_u32 s{sT0}, s{sU}, s{sT0}", f"s_add_u32 s{sT0}, s{sT0}, 48", f"s_min_u32 s{sT0}, s{sT0}, 53", f"s_lshl_b32 s{sU4}, s{sT0}, 6",
              f"s_and_b32 s{sT0}, s{sU}, 3", f"s_cmp_eq_u32 s{sT0}, 3", f"s_cselect_b32 s{sLast}, {OOB}, 0")
        o += s0_addr(tiles)
        X = OPT["nos0"] or ()
        o += stamp("pres0")
        s0late = s0_mem() if OPT["s0late"] else []
        for g in ([] if OPT["s0late"] else s0_mem()): o += g
        if OPT["s0first"]:
            o += w0
        o += x_read_setup() + (tk_setup(True) if kv else tp_setup(0))
        if OPT["wsoff"]:
            a(f"s_add_u32 s{P_WS}, s{P_WS}, {OPT['wsoff'] << 20}", f"s_addc_u32 s{P_WS + 1}, s{P_WS + 1}, 0")
        o += make_srd(SWS, P_WS, WS_SIZE) + I(f"s_mov_b32 s{sOne0}, 0x3f80", f"s_mov_b32 s{sOne1}, 0x3f800000")
        first_mem = stages[1]["w"]
        if OPT["dma1_early"]:
            for g in first_mem: o += g
            first_mem = []
        s.prepos = len(o)
        o += stamp("issued")
        steps, first = [], {}
        for n, st in enumerate(stages):
            first[n] = len(steps)
            steps += st["steps"]
        n1 = len(steps)
        first[len(stages)] = n1
        end1 = first[10]
        s.spine = spine = [dict(pre=[], post=[], budget=OPT["b1p"] if q < end1 else OPT["b1"]) for q in range(n1)]
        reads, done, xfree = {}, {}, {}
        for q, st in enumerate(steps):
            fr = aW + 4 * (q % NRING)
            A = acc(s.aset[st["t"]])
            if st.get("extra"):
                reads[q] = I(f"ds_read_b128 a[{fr}:{fr + 3}], v{vEXr} offset:{512 * st['t']}")
                spine[q]["mfma"] = ins(f"v_mfma_f32_32x32x16_bf16 v[{A}:{A + 15}], a[{fr}:{fr + 3}], v[{vXE}:{vXE + 3}], v[{A}:{A + 15}]")
                done[tiles[st["t"]]] = q
            else:
                assert 0 <= st["o1"] and st["o1"] + st["d"] < 65536
                reads[q] = I(f"ds_read_b64_tr_b16 a[{fr}:{fr + 1}], v{st['v']} offset:{st['o1']}", f"ds_read_b64_tr_b16 a[{fr + 2}:{fr + 3}], v{st['v']} offset:{st['o1'] + st['d']}")
                xa = aX + 16 * st["k"] + 4 * st["j"]
                c = "0" if (st["k"] == 0 and st["j"] == 0) else f"v[{A}:{A + 15}]"
                spine[q]["mfma"] = ins(f"v_mfma_f32_32x32x16_bf16 v[{A}:{A + 15}], a[{fr}:{fr + 3}], a[{xa}:{xa + 3}], {c}")
                xfree[xa] = q
        seq = OPT["seq"].split()
        ngap = max(n for n, b in enumerate(seq) if b[0] == "A") + 1
        s.w2tok, s.w2z, s.zrd = {}, {}, {}
        p2first = {}
        s.gapbar = ins("s_barrier")
        if not kv:
            ow, owr = o_write()
            spine.append(dict(pre=[], post=[ins("s_barrier", after=owr)], mfma=None, budget=0))
            spine += o_steps()
            s.otk = []
            p2first["ofin"] = len(spine)
            spine.append(dict(pre=o_finish(s.otk) + stamp("ofin"), post=[ins("s_barrier")], mfma=None, budget=0))
        for n, blk in enumerate(seq):
            if n == ngap:
                p2first["gap"] = len(spine)
                spine.append(dict(pre=[], post=[s.gapbar], mfma=None, budget=0))
            p2first[n] = len(spine)
            kind, i = blk[0], int(blk[1])
            for t in (1, 2, 3, 0):
                for f in range(5):
                    d = ("v", accA(t, f)) if kind == "A" else accB(t, f)
                    zero = blk == "A0" or (blk == "B0" and t != 0)
                    assert seq.index("A0") == 0 and seq.index("B0") == min(k for k, b in enumerate(seq) if b[0] != "A")
                    m = ins(f"v_mfma_f32_16x16x32_bf16 {r4(d)}, {r4(wfrag('O' if kind == 'O' else 'E', i, f))}, a[{aH(n, t)}:{aH(n, t) + 3}], {'0' if zero else r4(d)}")
                    spine.append(dict(pre=[], post=[], mfma=m, budget=OPT["b2"]))
        nend = len(spine)
        p2first[len(seq)] = nend
        spine.append(dict(pre=[], post=[], mfma=None, budget=0))
        last_dma, bar = {}, {}
        for n in range(len(stages)):
            pos = first[n] - LOOK
            bar[n] = b = ins("s_barrier", after=[g[-1] for g in stages[n]["w"]] + stages[n].get("xtok", []))
            blk = [b] + (stamp(f"st{n}") if n in OPT["stages"] else [])
            if n < 10:
                for j in range(4):
                    xa = aX + 16 * n + 4 * j
                    x = I(f"ds_read_b128 a[{xa}:{xa + 3}], v{vXR[j]} offset:{(n % 3) * 4096}")
                    if n and OPT["xpost"]:
                        spine[pos + j]["post"] += x
                        spine[pos + j]["budget"] -= 1
                    else:
                        blk += x
            s.at(pos).extend(blk)
            gs = list(first_mem) + s0late if n == 0 else []
            gs += [g for st in stages[2:] if st["issue"] == n for g in st["w"]]
            if n == OPT["s0ld"]:
                gs += mall_touch(kv)
            if gs:
                lo = max(pos + 1, 0)
                hi = first[n + 1] - LOOK
                last_dma[n] = s.spread(gs, lo, lo + int((hi - lo) * (1.0 if n == 0 else OPT["dspan1"] if n < 10 else OPT["dspan"])))
        for q in range(n1):
            if q < LOOK:
                s.head.extend(reads[q])
            else:
                spine[q - LOOK]["post"][0:0] = reads[q]
            if q % OPT["bt"] == 0:
                for z in range(q + 1, min(q + OPT["bt"], n1)):
                    spine[q]["mfma"].after += reads[z]
        S = OPT["s0k"] if kv else OPT["s0"]
        sides = s.sides
        s0m, s0st = s0_produce(kv)
        for q in range(first[S[0] + 1] - LOOK):
            spine[q]["budget"] += OPT["b0"] - OPT["b1p"]
        if "math" not in X:
            sides.append(side(s0m, start=OPT["s0start"] * T if S[0] == 0 else first[S[0]] - LOOK, end=last_dma[S[0]], name="s0math"))
        spine[last_dma[S[0]]]["post"] += I(f"buffer_load_dword v{vPoll2}, v{vPoll2}, {srd(SDBG)}, 0 offen sc1") + (s0st if "store" not in X else []) + stamp("s0b")
        later = (wp_setup() + tp_setup(0x8000) + I(f"v_subrev_u32 v{vTP[0] + 2}, 0x8000, v{vTP[0]}", f"v_subrev_u32 v{vTP[1] + 2}, 0x8000, v{vTP[1]}")) if kv else (w1_setup() + tr_setup(0x8000) + wk_setup(False) + tk_setup(False))
        s.RA, s.RB = ([Z1, Z2, Z0], [ZB, Z5, Z6]) if kv else ([Z2, Z5, ZA], [ZB, Z6, Z1])
        allset = bundled(late_setup() + tw_setup() + s0_consume_addr() + later + p2_setup(s.RA) + (kv_setup() if kv else o_setup()))
        npre = OPT["npre"][kv]
        o[s.prepos:s.prepos] = allset[:npre]
        zero = [x for x in allset[:npre] if getattr(x, "text", "").startswith("ds_write_b32")]
        assert len(zero) == 1
        bar[0].after += zero
        n_l = len(bundled(late_setup() + tw_setup() + s0_consume_addr()))
        ls = side(allset[npre:max(n_l, npre)], start=0, end=last_dma[1], name="late")
        sides.append(ls)
        if "sig" not in X:
            spine[last_dma[S[1]]]["post"] += nonce_check(vPoll2) + signal_now(L_S0, s0st)
        p2s = side(allset[max(n_l, npre):], start=0, follow=ls, end=last_dma[OPT["b2at"]], name="p2setup")
        sides.append(p2s)
        if "poll" not in X:
            spine[last_dma[S[2]]]["post"] += [poll_issue(vRowF, L_S0, vPoll), poll_issue(vColF, L_S0, vPoll2)]
            cl = s0_consume_loads()
            spine[last_dma[S[3]]]["post"] += cl[:-5]
            s.spread([[x] for x in cl[-5:]], last_dma[S[3]], last_dma[S[3]] + OPT["csp"])
        assert S[4] > S[3]
        s.spread(bias_loads(), last_dma[OPT['b2at']] + 1, last_dma[OPT['b2at']] + 7)
        cm, extok = s0_consume_math()
        s.b2 = b2_unpack() + ha_setup()
        exbar = end1 - T - LOOK - 1
        cms = side(cm, start=last_dma[S[4]] + 1, end=exbar - 1, follow=p2s, name="s0use")
        sides.append(cms)
        spine[exbar]["pre"].insert(0, ins("s_barrier", after=[extok]))
        spine[end1]["pre"] = stamp("pass1") + spine[end1]["pre"]
        spine[n1]["pre"] += stamp("mfma1")
        b2s = side(s.b2, start=exbar + 1, end=end1, follow=cms, name="b2")
        sides.append(b2s)
        flat = lambda gs: [x for g in gs for x in g]
        W = s.w2_dma
        gap = p2first["gap"]

        def RD(kind, i, lo, step=1):
            if kind == "E":
                assert lo > max(xfree[xa] for xa in range(20 * i, 20 * i + 20, 4)), (i, lo)
            for k, x in enumerate(s.w2_reads(kind, i)):
                spine[lo + k * step]["post"].append(x)
                spine[lo + k * step]["budget"] -= 1

        CP = dict(A0=(vRow2, L_HQ, "q"), A5=(vRow2K, L_HB, "kv"), O0=(vRow2, L_O, "q"))

        def cp(n, kl=None, ql=None):
            x = poll_check(*CP[seq[n]]) + stamp("cp" + seq[n])
            if OPT["touch_h"]:
                x += I(f"buffer_load_dword v{vTd}, v{vTch[dict(A0=0, A5=1, O0=2)[seq[n]]]}, {srd(SWS)}, 0 offen sc1")
            return x

        HL = lambda n: s.h_load(n, seq[n])
        if OPT["tlb"]:
            spine[first[OPT["tlb"][0]]]["post"] += tlb_warm(OPT["tlb"][1])
        k1 = len(stamp("pass1"))
        f = first
        if kv:
            epi0, epi, wr = kv_epilogue(s.aset, 0)
            prod, at = kv_product(wr)
            ha, ft = [], []
            rest = [g for m in range(15, 20) for g in stages[m]["w"]]
            spine[end1]["pre"][k1:k1] = [ins("s_barrier")] + sprinkle(epi0 + epi, rest + W("E", 0, Z0), 0, 0.9) + prod + stamp("kvdone")
            s.spread(W("E", 1, ZA) + W("E", 2, ZB), f[11], f[13] + 4)
            RD("E", 0, f[12] + 4)
            s.spread(W("E", 3, Z5) + W("E", 4, Z0), f[14], f[16])
            s.spread(W("E", 5, Z6), f[16], f[17] + 4)
            RD("E", 1, f[17]); RD("E", 2, n1 - 11)
            s.spread(W("E", 6, ZA), f[18] + 4, n1 - 2)
            jobs = [(acc(s.aset[5]), "Ha", ha), (acc(s.aset[6]), "Hb", ha)]
            one = lambda xs: [[x] for x in xs]
            if OPT["kvo"]:
                e1 = sprinkle(gelu_quads(jobs, 0, 8, True), one(s.w2_reads("E", 3) + s.w2_reads("E", 4) + s.w2_reads("E", 5))) + stamp("expo")
                x = s.w2_reads("E", 6)
                wo = W("O", 1, ZB) + W("O", 2, Z5) + W("O", 3, Z6) + W("O", 0, ZA)
                e1 += x + flat(wo[:OPT["sigpos"]]) + signal_now(L_HB, ha) + stamp("sigT") + flat(wo[OPT["sigpos"]:])
                e1 += [poll_issue(vRow2, L_HQ)] + cp(0, L_S0, L_HQ) + flat(HL(0) + HL(1) + HL(2) + HL(3))
            else:
                spine[n1 - 20]["post"].append(poll_issue(vRow2, L_HQ))
                e1 = sprinkle(gelu_quads(jobs, 0, 8, True), one(s.w2_reads("E", 3))) + stamp("expo")
                e1 += flat(W("O", 1, ZB)) + signal_now(L_HB, ha) + stamp("sigT") + cp(0, L_S0, L_HQ) + flat(HL(0) + HL(1) + HL(2) + HL(3))
                RD("E", 4, p2first[0], 2); RD("E", 5, p2first[2], 2); RD("E", 6, p2first[4], 2)
                s.spread(W("O", 2, Z5), p2first[1], p2first[3])
                s.spread(W("O", 3, Z6), p2first[3] + 1, p2first[5])
                s.spread(W("O", 0, ZA), p2first[5] + 1, p2first[7])
            s.sig = [(end1, L_KP, at, OPT["lagkp"])]
            zo4 = ZA
        else:
            tk = []
            jobs = [(acc(t), tiles[t], tk) for t in range(5)]
            nx = OPT["nx"]
            spine[end1]["pre"][k1:k1] = sprinkle(gelu_quads(jobs, 0, nx, True), W("E", 0, Z0) + W("E", 1, ZB), 0, 0.9) + stamp("x1")
            g3 = side(gelu_quads(jobs, nx, 16, False), start=end1, name="gelu3")
            g4 = side(gelu_quads(jobs, 16, 20, False), start=done["H4"] + 2, follow=g3, end=n1 - OPT["gend"], name="gelu4")
            sides += [g3, g4]
            s.spread(W("E", 2, ZA), f[13], f[15] - 5)
            RD("E", 0, f[16]); s.spread(W("E", 3, Z0), f[16] + 11, f[16] + 19)
            RD("E", 1, f[16] + 13); s.spread(W("E", 4, ZB), f[17] + 6, f[17] + 16)
            RD("E", 2, f[17] + 4)
            z, ztok = am_zero()
            bar[18].after += s.zrd[ZA]
            sides.append(side(z, start=f[18] - LOOK + 1, end=f[19] - LOOK - 1, follow=g4, name="amzero"))
            bar[19].after += ztok
            s.spread(W("E", 5, Z2), f[18], f[18] + 10)
            RD("E", 3, f[18] + 4)
            RD("E", 4, f[19] + 2)
            ko = n1 - OPT["hearly"]
            spine[ko - OPT["hpoll"]]["post"].append(poll_issue(vColK, L_KP, vPoll2))
            kc, kl = o_load()
            spine[ko]["post"] += kc
            s.spread(kl, ko + 1, n1 - 1)
            spine[n1 - 1]["post"].append(poll_issue(vRow2, L_HQ))
            np0 = OPT["np0"]
            zo = [Z0, ZB, Z6, Z1]
            otb = OPT["otb"]
            wo = [W("O", i, zo[i]) for i in range(4)]
            if OPT["tb"] == 0:
                e1 = sprinkle(phi_q(s.aset, True, 0, np0) + ow, W("E", 6, Z5) + (wo[0] if otb > 0 else []), 0.3, 1.0) + cp(0, L_S0, L_HQ)
                e1 += sprinkle(phi_q(s.aset, True, np0, 10), HL(0) + HL(1) + HL(2)) + stamp("gap")
                s.spread(HL(3) + flat(wo[1:min(otb, 3)]), n1 + 1, n1 + 16)
                if otb > 3:
                    st = spine[p2first["ofin"]]
                    st["pre"] = sprinkle(st["pre"], wo[3])
                RD("E", 5, p2first[0], 2); RD("E", 6, p2first[2], 2)
            else:
                lo = OPT["tb"] / 10
                e1 = phi_q(s.aset, True, 0, 10) + stamp("q_phi") + ow[:int(128 * lo)] + cp(0, L_S0, L_HQ) + sprinkle(ow[int(128 * lo):], HL(0) + HL(1)) + stamp("gap")
                s.spread(HL(2) + HL(3) + W("E", 6, Z5), n1 + 1, n1 + 16)
                if otb:
                    st = spine[p2first["ofin"]]
                    st["pre"] = sprinkle(st["pre"], flat(wo[:otb]))
                RD("E", 5, p2first[0], 2); RD("E", 6, p2first[4], 2)
            for k, i in enumerate(range(otb, 4)):
                s.spread(wo[i], p2first[OPT["ost"] + 3 * k], p2first[OPT["ost"] + 3 * k + 3])
            zo4 = Z0
            s.sig = [(g4, L_HQ, tk, OPT["lag"]), (p2first["ofin"], L_O, s.otk, OPT["lag"])]
        spine[n1]["pre"] = [ins("s_barrier")] + stamp("tee") + e1 + spine[n1]["pre"]
        s.n1 = n1
        for n in range(HR, len(seq)):
            p = p2first[n - HR] + 4
            if seq[n] in ("A5", "O0"):
                spine[p2first[n - HR - OPT["pback"]] + 3]["post"].append(poll_issue(*CP[seq[n]][:2]))
                spine[p]["pre"] += cp(n, L_HB, L_HQ if seq[n] == "A5" else L_O)
            elif n % 2 == 0 or OPT.get("allst"):
                spine[p]["pre"] += stamp("ld" + seq[n])
            for k, g in enumerate(HL(n)):
                s.pin(p + 5 * k, g)
        o0 = seq.index("O0")
        for i in range(5):
            RD("O", i, p2first[o0 + i - 1], 2)
            if i == 0:
                s.spread(W("O", 4, zo4), p2first[o0] + 1, p2first[o0 + 1])
        return o, seq, p2first, nend

    def finish(s, o, seq, p2first, nend):
        kv, spine, sides = s.kv, s.spine, s.sides
        a = lambda *t: o.extend(I(*t))
        aend = p2first["gap"]
        b0, rend = aend + 1 + OPT["gdel"], aend + 1 + OPT["ybar"]
        if OPT["gdel"]:
            spine[aend]["post"].remove(s.gapbar)
            spine[b0]["pre"].append(s.gapbar)
        RA, RB = s.RA, s.RB

        def red_write(get, R):
            x = []
            for t in (1, 2, 3):
                for f in range(5):
                    ad = R[t - 1] + 1024 * f
                    x.append(ins(f"ds_write_b128 v{vRW[ad >> 16]}, {r4(get(t, f))} offset:{ad & 0xffff}"))
            return x

        def red_read():
            x = []
            for t in (1, 2, 3):
                for f in range(5):
                    d = accA(t, f)
                    x += I(f"ds_read_b128 v[{d}:{d + 3}], v{vRR[t - 1]} offset:{1024 * f}")
            return x

        def red_add(own, pk):
            x = []
            for t in (1, 2, 3):
                for f in range(5):
                    for r in range(0, 4, 2 if pk else 1):
                        d, e = own(f) + r, accA(t, f) + r
                        x += I(f"v_pk_add_f32 {pr(d)}, {pr(d)}, {pr(e)}" if pk else f"v_add_f32 v{d}, v{d}, v{e}")
            return x

        wA = red_write(lambda t, f: ("v", accA(t, f)), RA)
        for q in list(range(aend - 15, aend)) + list(range(b0, rend)):
            spine[q]["budget"] += OPT["bred"]
        for k in range(3):
            sides.insert(k, side(wA[5 * k:5 * k + 5], start=aend - 12 + 5 * k, end=aend + OPT["gdel"] // 2, name=f"redAw{k}"))
        s.gapbar.after += wA
        xt = []
        xs = red_read() + red_add(lambda f: accA(0, f), False)
        P = accA(1, 0)
        for f in range(5):
            xs += cvt2(P + 2 * f, accA(0, f))
        for k, n in ((0, 4), (4, 4), (8, 4)):
            x = ins(f"buffer_store_dwordx{n} v[{P + k}:{P + k + n - 1}], v{vL16}, {srd(SWS)}, s{sXc} offen offset:{256 * k} sc1")
            xs.append(x); xt.append(x)
        xsd = side(xs, start=b0, end=rend, name="redA")
        sides.insert(3, xsd)
        s.sig.append((xsd, L_XCH, xt, OPT["lag"]))
        XR, PX = 152, 164
        fo = [(vW2[0], 0), (vW2[1], 1024), (vFo2, 2048)]
        s.spread([I(f"buffer_load_dwordx4 v[{XR + 4 * i}:{XR + 4 * i + 3}], v{fo[i][0]}, {srd(SX)}, s{sRow} offen offset:{fo[i][1]}") for i in range(3)], nend - 80, nend - 70)
        spine[nend - OPT["xch"] - 25]["post"].append(poll_issue(vPar, L_XCH))
        px = poll_check(vPar, L_XCH, "kv" if kv else "q") + stamp("xch") + I(f"s_xor_b32 s{sT0}, s2, 2", f"s_sub_u32 s{sT0}, s{sT0}, s2", f"s_mul_i32 s{sT0}, s{sT0}, 12288", f"s_add_u32 s{sXc}, s{sXc}, s{sT0}")
        for k, n in ((0, 4), (4, 4), (8, 4)):
            px += I(f"buffer_load_dwordx{n} v[{PX + k}:{PX + k + n - 1}], v{vL16}, {srd(SWS)}, s{sXc} offen offset:{256 * k} sc1")
        spine[nend - OPT["xch"]]["post"] += px
        wB = red_write(accB, RB)
        for q in range(nend - 14, nend):
            spine[q]["budget"] += 0.6
        for k in range(3):
            sides.insert(k, side(wB[5 * k:5 * k + 5], start=nend - 12 + 5 * k, end=nend, name=f"redBw{k}"))
        sides.append(side(I(*[f"v_add_u32 v{vRR[t]}, {(RB[t] - RA[t]) & 0xffffffff}, v{vRR[t]}" for t in range(3)]), start=rend + 1, end=nend - 20, name="rr"))
        for st in spine:
            st["pre"].extend(st.pop("pre2", []))
        if OPT.get("fine") and not kv:
            for q in range(*OPT["fine"]):
                spine[q]["pre"] = stamp(f"q{q}") + spine[q]["pre"]
        import copy
        dry = copy.deepcopy(sides)
        merge(spine, dry, 0)
        ends = {d["name"]: d.get("done", 0) if not d.get("late") else (d["end"] or nend) for d in dry}
        if OPT["verbose"]:
            print("KV" if kv else "Q", {d["name"]: (d["start"], ends[d["name"]], d.get("late", 0)) for d in dry}, "p2first", p2first)
        n1 = s.n1
        for sd, level, tk, lag in s.sig:
            idx, t = (sd if isinstance(sd, int) else ends[sd["name"]]), 0
            while t < lag and idx < nend - 1:
                t += 36 if idx < n1 else 18
                idx += 1
            if idx == n1:
                idx -= 1
            arrive, pub = signal(level, tk)
            late = min(idx + (3 if idx < n1 else 6), nend - 1) if arrive else idx
            if idx < n1 <= late:
                late = n1 - 1
            spine[idx]["post"] += arrive
            spine[late]["post"] += pub
        o = drop_m0(o + s.head + merge(spine, sides, 0))
        if OPT.get("jitter"):
            import random
            rnd, o2 = random.Random(OPT["jitter"]), []
            for i, y in enumerate(o):
                prev = o[i - 1] if i else y
                ok = not (("scc", 0) in prev.wr and ("scc", 0) in y.rd) and y.kind in ("barrier", "vmem", "dma", "ds") and i > 60
                live = any(("scc", 0) in z.rd for z in o[i:i + 3])
                if ok and not live and rnd.random() < (0.5 if y.kind == "barrier" or isinstance(y.note, tuple) else 0.03):
                    l = uid("jit")
                    o2 += I(f"s_lshl_b32 s{sTS}, s2, 2", f"s_add_u32 s{sTS}, s{sTS}, s{sW}", f"s_mul_i32 s{sTS}, s{sTS}, {rnd.randrange(1 << 20) | 1}",
                            f"s_bfe_u32 s{sTS}, s{sTS}, {0x30000 + rnd.randrange(4, 12)}", f"s_cmp_lg_u32 s{sTS}, 0", f"s_cbranch_scc1 {l}", f"s_sleep {rnd.choice((4, 16, 60))}", f"{l}:")
                o2.append(y)
            o = o2
        XX = OPT["x"]
        if "nohst" in XX:
            o = [y for y in o if not (y.text.startswith("buffer_store_dwordx4") and f"v{vHst}," in y.text)]
        if "now2" in XX:
            o = [y for y in o if not (y.kind == "dma" and (srd(SW2) in y.text or srd(SWO) in y.text))]
        if "nochk" in XX:
            o = [y for y in o if not (isinstance(y.note, tuple) and y.note[0] == "chk" and max(y.note[1:3]) > 1)]
        if "nopoll" in XX:
            o = [y for y in o if not (y.text.startswith("buffer_load_dword v") and (f"v{vRow2}," in y.text or f"v{vPar}," in y.text))]
        if "noH" in XX:
            o = [y for y in o if not y.text.startswith("buffer_load_dwordx4 a[")]
        if "nosc1H" in XX:
            for y in o:
                if y.text.startswith("buffer_load_dwordx4 a["):
                    y.text = y.text.replace(" sc1", "")
        if "nononce" in XX:
            o = [y for y in o if srd(SDBG) not in y.text]
        if "nosig" in XX:
            o = [y for y in o if not (isinstance(y.note, tuple) and y.note[0] == "sig" and y.note[1] > 1)]
        if "noat" in XX:
            o = [y for y in o if not y.text.startswith("buffer_atomic")]
        if "nomf2" in XX:
            o = [y for y in o if "16x16x32" not in y.text]
        if "nomf1" in XX:
            o = [y for y in o if "32x32x16" not in y.text]
        if "novalu" in XX:
            o = [y for y in o if not (y.kind in ("valu", "trans") and y.text.split()[0] in ("v_pk_mul_f32", "v_pk_fma_f32", "v_exp_f32", "v_rcp_f32", "v_exp_f32_e64", "v_max_f32", "v_pk_add_f32", "v_fma_f32", "v_mul_f32", "v_dot2_f32_bf16", "v_add_f32"))]
        if "notr" in XX:
            o = [y for y in o if not y.text.startswith("ds_read_b64_tr")]
        if "nowdma" in XX:
            o = [y for y in o if not (y.kind == "dma" and (srd(SW1) in y.text or srd(SQKV) in y.text))]
        if "noxdma" in XX:
            o = [y for y in o if not (y.kind == "dma" and srd(SX) in y.text)]
        import re as _re
        if "fake16" in XX:
            o2, cnt = [], 0
            for y in o:
                m = _re.match(r"v_mfma_f32_32x32x16_bf16 v\[(\d+):\d+\], (a\[\d+:\d+\]), a\[(\d+):\d+\], (.*)", y.text)
                if m:
                    A, w, xa, c = int(m.group(1)), m.group(2), int(m.group(3)), m.group(4)
                    j = (xa >> 2) & 1
                    for h in range(2):
                        d = A + 8 * j + 4 * h
                        z = ins(f"v_mfma_f32_16x16x32_bf16 v[{d}:{d + 3}], {w}, a[{xa ^ (4 * h)}:{(xa ^ (4 * h)) + 3}], {'0' if xa < 8 else 'v[%d:%d]' % (d, d + 3)}")
                        z.after = y.after if h == 0 else []
                        o2.append(z)
                else:
                    o2.append(y)
            o = o2
        for y in o:
            if "lin2" in XX and y.kind == "dma" and any(srd(z) in y.text for z in (SW2, SWO)):
                y.text = _re.sub(r"dwordx4 v\d+,", f"dwordx4 v{vL16},", y.text)
            if "nokvl" in XX and y.text.startswith("buffer_load_dwordx4 v") and f", v{vOl0}," in y.text and not kv:
                y.text = "s_nop 0"; y.kind = "nop"; y.q = None; y.wr = set(); y.rd = set()
        for y in o:
            hot = (("hot1" in XX and y.kind == "dma" and any(srd(z) in y.text for z in (SX, SQKV, SW1))) or
                   ("hot2" in XX and y.kind == "dma" and any(srd(z) in y.text for z in (SW2, SWO))) or
                   ("hotH" in XX and y.text.startswith("buffer_load_dwordx4 a[")))
            if hot:
                y.text = _re.sub(r"\], s\d+ offen", "], 0 offen", y.text)
        if "notrans" in XX:
            o = [y for y in o if y.kind != "trans"]
        if OPT["stop"]:
            cut = [i for i, x in enumerate(o) if getattr(x, "kind", "") == "stamp" and x.text in (OPT["stop"], "rt_" + OPT["stop"])][0]
            o = o[:cut + 1] + I("s_waitcnt vmcnt(0) lgkmcnt(0)")
            return s.tail(o)
        o += stamp("mfma2")
        o.append(ins("s_barrier", after=wB))
        own = lambda f: accB(0, f)[1]
        o += red_read()
        for f in range(5):
            for r in range(4):
                a(f"v_dot2_f32_bf16 v{own(f) + r}, v{PX + 2 * f + r // 2}, s{sOne1 if r & 1 else sOne0}, v{own(f) + r}")
        o += red_add(own, True)
        for f in range(5):
            a(f"ds_write_b128 v{vTw}, v[{own(f)}:{own(f) + 3}] offset:{64 * f}")
        FO = 48

        def fin_store(i):
            x = I(*[f"v_cvt_pk_bf16_f32 v{FO + 8 * i + k}, v{FO + 8 * i + 2 * k}, v{FO + 8 * i + 2 * k + 1}" for k in range(4)])
            return x + I(f"buffer_store_dwordx4 v[{FO + 8 * i}:{FO + 8 * i + 3}], v{fo[i][0]}, {srd(SOUT)}, s{sRow} offen offset:{fo[i][1]} {OPT['outf']}")

        for i in range(3):
            for h in range(2):
                a(f"ds_read_b128 v[{FO + 8 * i + 4 * h}:{FO + 8 * i + 4 * h + 3}], v{vTr[i]} offset:{16 * h + 2048 * i}")
        for i in range(3):
            for k in range(4):
                d = FO + 8 * i + 2 * k
                a(f"v_dot2_f32_bf16 v{d}, v{XR + 4 * i + k}, s{sOne0}, v{d}", f"v_dot2_f32_bf16 v{d + 1}, v{XR + 4 * i + k}, s{sOne1}, v{d + 1}")
            if i:
                o += fin_store(i - 1)
        o += I("s_nop 1") + fin_store(2)
        return s.tail(o)

    def tail(s, o):
        if OPT["prof"]:
            o += stamp("end") + stamp("rt1")
            last = Ins("x", "stamp"); last.note = "last"
            o.append(last)
            o += I(f"s_lshl_b32 s{sT0}, s2, 2", f"s_add_u32 s{sT0}, s{sT0}, s{sW}", f"s_lshl_b32 s{sT0}, s{sT0}, 8", f"s_add_u32 s{sT0}, s{sT0}, {TS}",
                   f"v_lshlrev_b32 v30, 2, v{vL}", f"buffer_store_dword v31, v30, {srd(SWS)}, s{sT0} offen")
        return o + I("s_endpgm")


def check_no_deadlock(progs):
    ev = [[x.note for x in p if isinstance(x.note, tuple)] for p in progs]
    pos, lvl = [0, 0], [0, 0]
    moved = True
    while moved:
        moved = False
        for k in (0, 1):
            while pos[k] < len(ev[k]):
                e = ev[k][pos[k]]
                if e[0] == "sig":
                    assert e[1] > lvl[k], (k, e, lvl)
                    lvl[k] = e[1]
                elif lvl[0] < e[1] or lvl[1] < e[2]:
                    break
                pos[k] += 1
                moved = True
    assert pos == [len(e) for e in ev], f"circular wait: KV stuck at {ev[0][pos[0]:pos[0] + 1]}, Q at {ev[1][pos[1]:pos[1] + 1]}"


def drop_m0(items):
    out, cur = [], None
    for x in items:
        for y in (x.items if isinstance(x, Bundle) else [x]):
            if y.kind == "vmem" and y.wr == {("v", vTd)}:
                y.wr = set()
            if ("m0", 0) in y.wr:
                if y.text == cur:
                    continue
                cur = y.text
            out.append(y)
    return out


def build():
    st = {}
    pro, xs = prologue()
    pro += I("s_bitcmp1_b32 s2, 6", "s_cbranch_scc1 L_q")
    progs = []
    for kv in (True, False):
        p = Program(kv)
        body = p.finish(*p.build(xs))
        full = pro + ([] if kv else I("L_q:")) + body
        if OPT["prof"]:
            full = resolve_stamps(full, ts_names, sTS, 31)
        progs.append(finalize(full, stats=st))
    a_kv, a_q = progs
    if not OPT["stop"] and not OPT["x"]:
        check_no_deadlock(progs)
    iq = [i for i, x in enumerate(a_q) if x.text == "L_q:"][0]
    assert [x.text for x in a_q[:iq]] == [x.text for x in a_kv[:iq]]
    body = a_kv + a_q[iq:] + I("L_end:", "s_endpgm")
    used = {x.text.split()[1] for x in body if x.kind == "branch"}
    for sp in slow_paths:
        if sp[0].text[:-1] in used:
            body += finalize(sp)
    txt = text_of(body)
    ref = open("parallel_sum__linear_attn_block__mixer_channel_mlp__prompt.s.ref").read().split("\n")
    hdr = [l for l in ref if l.startswith(";") and "@launch" not in l and not l.startswith("; Override") and not l.startswith("; grid=")]
    src = "\n".join(hdr) + f"""
; @launch grid=(256,1,1) block=(256,1,1) lds={LDS_SIZE}
.amdgcn_target "amdgcn-amd-amdhsa--gfx950"
.text
.globl {NAME}
.p2align 8
.type {NAME},@function
{NAME}:
{txt}
L_code_end:
.fill 65536 / 4, 4, 0xbf810000
.section .rodata,"a"
.p2align 6
.amdhsa_kernel {NAME}
  .amdhsa_next_free_vgpr 512
  .amdhsa_next_free_sgpr 102
  .amdhsa_accum_offset 256
  .amdhsa_group_segment_fixed_size 0
  .amdhsa_kernarg_size 88
  .amdhsa_user_sgpr_count 2
  .amdhsa_user_sgpr_kernarg_segment_ptr 1
  .amdhsa_system_sgpr_workgroup_id_x 1
.end_amdhsa_kernel
"""
    return src, st, len(a_kv), len(a_q)


if __name__ == "__main__":
    out = sys.argv[1]
    for kvp in sys.argv[2:]:
        k, v = kvp.split("=", 1)
        OPT[k] = eval(v) if v[0] in "0123456789TFN-([" else v
    LOOK = OPT["look"]
    src, st, n1, n2 = build()
    open(out, "w").write(src)
    if OPT["prof"]:
        open(out + ".ts", "w").write("\n".join(ts_names))
    print("instructions", n1, n2, st)
```

```python
import sys, os, struct
sys.path.insert(0, os.path.dirname(os.path.abspath(__file__)))
from asmlib import *

NAME = "parallel_sum__linear_attn_block__mixer_channel_mlp__prompt_kernel"
OPT = dict(prof=False, only=None, b1=3.0, b1p=4.5, touch_w=True, hbsig=10, hop=4, hopp=30, hopq=(3, 7), lagkp=700, nx=14, gend=70, hpoll=30, lback=4, ybar=54, twa=(2, 9), twb=((10, 18), (10, 18)), bred=0.7, xch=6, g01end=30, oload=36, gpoll=30, kvsig=4, hearly=30, ost=0, wavesig=(6,), bt=2, dspan1=1.0, look=5, hb=1, pg=0, zpad=False, sw1=False, rot2=False, rotk=False, tb=0, mtq=False, csp=6, b2at=2, xpost=True, wsoff=0, ft=False, map2=1, s0late=False, npre=(100, 100), l2='', l2at=((1, 4), (4, 8)), l2late=6, otb=1, kvo=True, outf='', np0=3, tlb=None, seq="A0 A1 A2 A3 A4 B0 B1 A5 A6 B2 B3 B4 B5 B6 O0 O1 O2 O3 O4", plag=700, pback=2, touch_h=False, b0=40, lag=1000, nphi=7, b2=1.6, touch_code=True, tq=4, s0=(0, 1, 6, 7, 8), s0k=(0, 1, 5, 6, 7), gdel=8, sigpos=2, s0ld=2, s0start=2, xearly=1, s0first=False, sleep=4, dma1_early=False, dspan=0.4,
           nsq=10, nsk=2, stages=(0, 1, 2, 3, 4, 5, 6, 7, 8, 9), verbose=False, x=(), stop=None, nos0=False)

LDQ, LD1, LDX = 3840, 3456, 1280
FLAGS, STATS, CSUM, KVF, XCH, KVP, HB, TS = 0x500000, 0x600000, 0x10000, 0x60000, 0x80000, 0x400000, 0x800000, 0x1200000
WS_SIZE = 0x1400000
OOB = 0x40000000
NB = 74
SLOT = 20480
RING2, NR2 = 2 * SLOT, 10
XS, EX, SCR, LDS_SIZE = 81920, 131072, 135168, 163840
KVT, KVT_LD = XS, 328
AM, AM_LD = XS, 176
Z0, Z1, Z2, Z5, Z6, ZA, ZB = 143360, 0, SLOT, 2 * SLOT, 3 * SLOT, XS, XS + SLOT
P_X, P_QKV, P_WO, P_BX, P_W1, P_B1, P_W2, P_B2 = 4, 6, 8, 10, 12, 14, 16, 18
P_OUT, P_DBG, P_WS = 20, 22, 24
sR2, sJ160, sBq, sBk, sE, sHA, sHB, sL6, sRow, sB6, sD2w, sD2h, sXc = range(4, 17)
sHq, sHk, sH6, sHo, sWq, sWk, sW6, sWo = range(17, 25)
sOne0, sOne1 = 88, 89
sKw, sW2k, sH4 = 90, 91, 95
sTa, sTb, sTc, sTe = 96, 97, 98, 72
sK1, sK2 = 99, 77
SX, SQKV, SW1, SWO, SW2, SWS, SOUT, SB1, SB2, SDBG = 28, 32, 36, 40, 44, 48, 52, 56, 60, 64
sW, sR, sU, sG, sP, sUnit, sNonce, sWL = 68, 69, 70, 71, 72, 73, 74, 75
sXo, sKq, sH, sT0, sT1, sT2, sT3, sLast = 76, 77, 78, 79, 80, 81, 82, 83
sEps, sHst, sXw, sCnt = 84, 85, 86, 87
sA_lo, sA_hi, sB_lo, sB_hi, sLdA, sLdB, sOffA, sOffB, sMixA, sMixB = 40, 41, 42, 43, 44, 45, 46, 47, 52, 53
sBA, sBB, sW5 = 92, 93, 94
sDx, sDw, sU64, sTS, sOst = 100, 101, 3, 26, 25
sSwX, sSwQ, sSw1 = 98, 0, 1
sRot, sR10 = 7, 6
sU4 = 73
srd = lambda b: f"s[{b}:{b + 3}]"
vL = 1
vX = [2, 3, 4, 5]
vXR = [6, 7, 8, 9]
vWk = [10, 11, 12, 13, 14]
vWp = [46, 47]
vTK, vTM, vTP, vW1, vTR = [208, 209], [210, 211], [212, 213], 214, 215
vHst, vFl, vRowF, vColF, vEXr = 15, 16, 17, 18, 19
vKf, vK2, vKA, vKB, vAt, vOnes = 20, 21, 22, 23, 24, 25
vAM, vOl0, vOl1, vOw0, vOw1, vOw2, vOw3 = 20, 21, 22, 23, 24, 25, 177
vColK, vB1 = 176, 178
vCnt, vOne, vFl0 = 200, 201, 206
vFd, vPoll, vLvl, vHiM = 26, 27, 28, 29
vRs1, vRl1, vA1, vA3, vIrs = 32, 34, 36, 38, 44
vRow2K, vPar, vL16, vTd = 33, 35, 37, 39
vXE = 40
vPoll2 = 45
acc = lambda i: 48 + 16 * i
TMP = 176
vW2 = [180, 181, 182, 183, 184]
vH = {'B': [185, 186, 187, 188], 'A': [2, 3, 4, 5]}
vT2 = [189, 190, 191]
vRW = [192, 193, 207]
vRR = [194, 195, 196]
vFo2, vTw = 197, 198
vFo = [199]
vTch = [200, 201, 206]
vTr = [202, 203, 204]
vRow2 = 205
vTW = 179
ET = 244
T0, T1, T2, T3 = 252, 253, 254, 255
aX, aW, NRING, LOOK = 0, 160, 8, 5
accA = lambda t, f: (48 + 4 * (5 * t + f)) if 5 * t + f < 16 else (208 + 4 * (5 * t + f - 16))


def accB(t, f):
    if t == 0:
        return ("v", 224 + 4 * f)
    g = 5 * (t - 1) + f
    return ("a", 140 + 4 * g) if g < 13 else ("v", 6 + 4 * (g - 13))


HR = 4
aH = lambda n, t: 192 + 16 * (n % HR) + 4 * t
wfrag = lambda kind, i, f: ("a", 20 * i + 4 * f) if kind == "E" else ("v", 112 + 20 * (i % 2) + 4 * f)
r4 = lambda x: f"{x[0]}[{x[1]}:{x[1] + 3}]"
f2u = lambda f: struct.unpack("<I", struct.pack("<f", f))[0]
LOG2E = 1.4426950408889634
C1 = -2.0 * 0.7978845608028654 * LOG2E
C3 = C1 * 0.044715
L_S0, L_KP, L_KV, L_HB = 1, 2, 3, 4
L_HQ, L_O, L_XCH = 2, 5, 6

slow_paths, ts_names, _uid = [], [], [0]


def uid(p):
    _uid[0] += 1
    return f"L_{p}{_uid[0]}"


def I(*ts):
    return [ins(t) for t in ts]


def stamp(name):
    if not OPT["prof"]:
        return []
    if OPT.get("fine"):
        if name not in ("rt0", "rt1", "start", "end") and not name.startswith("q"):
            return []
    elif OPT["only"] == "clk":
        if name not in ("rt0", "rt1", "start", "end"):
            return []
    elif OPT["only"] is not None:
        if name.startswith("rt") or (OPT["only"] != "all" and name not in OPT["only"]):
            return []
        name = "rt_" + name
    if name not in ts_names:
        ts_names.append(name)
    return [Ins(name, "stamp")]


def make_srd(b, ptr, nbytes):
    return I(f"s_mov_b32 s{b}, s{ptr}", f"s_mov_b32 s{b + 1}, s{ptr + 1}", f"s_mov_b32 s{b + 2}, {nbytes}", f"s_mov_b32 s{b + 3}, 0x20000")


fl = lambda level: FLAGS + 32768 * level


CNT = SCR + 512


def signal(level, toks):
    if level in OPT["wavesig"]:
        o = I(f"s_add_u32 s{sT3}, s{sNonce}, {level}", f"v_mov_b32 v{vFd}, s{sT3}", f"s_mov_b32 s{sT3}, {fl(level)}")
        st = ins(f"buffer_store_dword v{vFd}, v{vFl}, {srd(SWS)}, s{sT3} offen sc1", after=toks)
        st.note = ("sig", level)
        return [], [Bundle(o + [st])]
    add = ins(f"ds_add_rtn_u32 v{vFd}, v{vCnt}, v{vOne} offset:{4 * level}")
    arrive = [Bundle([Ins("", "pseudo", after=toks)] + I("s_mov_b64 exec, 1") + [add] + I("s_mov_b64 exec, -1"))]
    skip = uid("sig")
    st = ins(f"buffer_store_dword v{vFd}, v{vFl0}, {srd(SWS)}, s{sT3} offen sc1")
    st.ghost = True
    st.note = ("sig", level)
    pub = I(f"v_readfirstlane_b32 s{sT3}, v{vFd}", f"s_cmp_lg_u32 s{sT3}, 3", f"s_cbranch_scc1 {skip}",
            f"s_add_u32 s{sT3}, s{sNonce}, {level}", f"v_mov_b32 v{vFd}, s{sT3}", f"s_mov_b32 s{sT3}, {fl(level)}") + [st] + I(f"{skip}:")
    return arrive, [Bundle(pub)]


def signal_now(level, toks):
    a, p = signal(level, toks)
    return a + p


def poll_issue(vaddr, level, dst=vPoll):
    return Bundle(I(f"s_mov_b32 s{sT3}, {fl(level)}", f"buffer_load_dword v{dst}, v{vaddr}, {srd(SWS)}, s{sT3} offen sc1"))


def poll_check(vaddr, level, who, dst=vPoll):
    slow, back, loop = uid("slow"), uid("back"), uid("loop")
    test = lambda: I(f"s_add_u32 s{sT3}, s{sNonce}, {level}", f"v_cmp_ne_u32 vcc, s{sT3}, v{dst}")
    sp = I(f"{slow}:", f"s_mov_b32 s{sCnt}, 20000", f"{loop}:", f"s_sleep {OPT['sleep']}") + [poll_issue(vaddr, level, dst)] + I("s_waitcnt vmcnt(0)") + test()
    sp += I(f"s_cbranch_vccz {back}", f"s_sub_u32 s{sCnt}, s{sCnt}, 1", f"s_cmp_lg_u32 s{sCnt}, 0", f"s_cbranch_scc1 {loop}", f"s_branch {back}")
    slow_paths.append(sp)
    br = ins(f"s_cbranch_vccnz {slow}")
    br.note = ("chk", level if who != "q" else 0, level if who != "kv" else 0, who)
    return [Bundle(test() + [br] + I(f"{back}:"))]


def nonce_check(dst):
    slow, back, loop = uid("nslow"), uid("nback"), uid("nloop")
    sp = I(f"{slow}:", f"s_mov_b32 s{sCnt}, 20000", f"{loop}:", f"s_sleep {OPT['sleep']}", f"v_mov_b32 v{dst}, 0",
           f"buffer_load_dword v{dst}, v{dst}, {srd(SDBG)}, 0 offen sc1", "s_waitcnt vmcnt(0)",
           f"v_readfirstlane_b32 s{sNonce}, v{dst}", f"s_cmp_lg_u32 s{sNonce}, 0", f"s_cbranch_scc1 {back}",
           f"s_sub_u32 s{sCnt}, s{sCnt}, 1", f"s_cmp_lg_u32 s{sCnt}, 0", f"s_cbranch_scc1 {loop}", f"s_branch {back}")
    slow_paths.append(sp)
    return [Bundle(I(f"v_readfirstlane_b32 s{sNonce}, v{dst}", f"s_cmp_eq_u32 s{sNonce}, 0", f"s_cbranch_scc1 {slow}", f"{back}:"))]


def flag_sc_row(sr):
    return I(f"s_lshr_b32 s{sT0}, s{sr}, 3", f"s_and_b32 s{sT1}, s{sr}, 7", f"s_lshl_b32 s{sT1}, s{sT1}, 3", f"s_add_u32 s{sT0}, s{sT0}, s{sT1}", f"s_lshl_b32 s{sT0}, s{sT0}, 7")


def flag_addr_row(dst, sr, t2, t3):
    return flag_sc_row(sr) + I(f"v_and_b32 v{t2}, 48, v{vL}", f"v_lshlrev_b32 v{t2}, 4, v{t2}", f"v_bfe_u32 v{t3}, v{vL}, 2, 2", f"v_lshl_add_u32 v{t2}, v{t3}, 13, v{t2}",
                               f"v_add_u32 v{dst}, s{sT0}, v{t2}")


def flag_addr_col(dst, sg, t2, t3):
    return I(f"s_lshr_b32 s{sT0}, s{sg}, 2", f"s_lshl_b32 s{sT0}, s{sT0}, 8", f"s_and_b32 s{sT1}, s{sg}, 3", f"s_lshl_b32 s{sT1}, s{sT1}, 13", f"s_add_u32 s{sT0}, s{sT0}, s{sT1}",
             f"v_and_b32 v{t2}, 32, v{vL}", f"v_lshlrev_b32 v{t2}, 2, v{t2}", f"v_bfe_u32 v{t3}, v{vL}, 2, 3", f"v_lshl_add_u32 v{t2}, v{t3}, 10, v{t2}",
             f"v_add_u32 v{dst}, s{sT0}, v{t2}")


def swap(dst, sw, n):
    return I(f"s_{'sub' if n & 1 else 'add'}_u32 s{dst}, s{dst}, s{sw}") if OPT["sw1"] else []


def dma_x(n):
    g = []
    for i in range(4):
        pre = I(f"s_add_u32 s{sDx}, s{sXo}, {128 * n}") + swap(sDx, sSwX, n) if i == 0 else []
        g.append(pre + I(f"s_add_u32 m0, s{sXw}, {(n % 3) * 4096}", f"buffer_load_dwordx4 v{vX[i]}, {srd(SX)}, s{sDx} offen offset:{1024 * i} lds"))
    return g


def prologue():
    o = []
    a = lambda *t: o.extend(I(*t))
    a("s_cmp_ge_u32 s2, 256", "s_cbranch_scc1 L_end")
    a("s_load_dwordx16 s[4:19], s[0:1], 0", "s_load_dwordx4 s[20:23], s[0:1], 64", "s_load_dwordx2 s[24:25], s[0:1], 80")
    a(f"s_memrealtime s[{sNonce}:{sNonce + 1}]")
    if OPT["touch_code"]:
        o += touch_code()
        o[-2].wr = set()
    if OPT["prof"]:
        a("v_mov_b32 v31, 0")
        if OPT.get("kst"):
            a("s_memtime s[42:43]", "s_memrealtime s[44:45]")
            ts_names.extend(["rt0", "start"])
        else:
            o += stamp("rt0") + stamp("start")
    t0, t1, t2 = T0, T1, T2
    a(f"v_lshrrev_b32 v{t0}, 6, v0", f"v_and_b32 v{vL}, 63, v0", f"v_readfirstlane_b32 s{sW}, v{t0}", f"v_lshlrev_b32 v{vL16}, 4, v{vL}")
    a(f"s_and_b32 s{sT0}, s2, 1", f"s_lshl_b32 s{sT0}, s{sT0}, 3", f"s_bfe_u32 s{sT1}, s2, 0x30003", f"s_add_u32 s{sR}, s{sT0}, s{sT1}")
    a(f"v_lshrrev_b32 v{t0}, 3, v{vL}", f"v_lshrrev_b32 v{t1}, 4, v{vL}", f"v_and_b32 v{t2}, 7, v{vL}", f"v_xor_b32 v{t2}, v{t2}, v{t1}",
      f"v_lshlrev_b32 v{t2}, 4, v{t2}", f"v_mul_u32_u24 v{t0}, {LDX}, v{t0}", f"v_add_u32 v{vX[0]}, v{t0}, v{t2}",
      f"v_xor_b32 v{vX[1]}, 64, v{vX[0]}", f"v_add_u32 v{vX[1]}, {8 * LDX - 1024}, v{vX[1]}",
      f"v_add_u32 v{vX[2]}, {16 * LDX - 2048}, v{vX[0]}", f"v_add_u32 v{vX[3]}, {16 * LDX - 2048}, v{vX[1]}")
    a(f"s_lshl_b32 s{sT0}, s{sR}, 2", f"s_add_u32 s{sT0}, s{sT0}, s{sW}", f"s_mul_i32 s{sXo}, s{sT0}, {32 * LDX}")
    a(f"s_mul_i32 s{sXw}, s{sW}, 12288", f"s_add_u32 s{sXw}, s{sXw}, {XS}", f"s_mul_i32 s{sW5}, s{sW}, 5120")
    a("s_mov_b32 s30, 2621440", "s_mov_b32 s31, 0x20000")
    a(f"s_bfe_u32 s{sT0}, s2, 0x20001", f"s_lshr_b32 s{sT1}, s2, 6",
      f"s_lshl_b32 s{sG}, s{sT0}, 2", f"s_add_u32 s{sG}, s{sG}, s{sT1}", f"s_lshr_b32 s{sP}, s{sT1}, 1",
      f"s_lshl_b32 s{sU}, s{sT0}, 1", f"s_add_u32 s{sU}, s{sU}, s{sP}",
      f"s_mul_i32 s{sKq}, s{sU}, 160", f"s_mul_i32 s{sU64}, s{sU}, 384")
    if OPT["sw1"]:
        a(f"s_xor_b32 s{sT0}, s{sR}, s{sP}", f"s_and_b32 s{sT0}, s{sT0}, 1", f"s_lshl_b32 s{sSwX}, s{sT0}, 7")
    assert (SX, SQKV, SW1) == (28, 32, 36)
    if OPT.get("kst"):
        a("s_memtime s[40:41]")
    a("s_waitcnt lgkmcnt(0)", f"s_mov_b32 s28, s{P_X}", f"s_mov_b32 s29, s{P_X + 1}")
    if OPT.get("kst"):
        ts_names.append("prek")
        a(f"v_writelane_b32 v31, s40, {len(ts_names) - 1}", "v_writelane_b32 v31, s44, 0", "v_writelane_b32 v31, s42, 1")
    o += stamp("karg")
    xs = [dma_x(n) for n in range(OPT["xearly"])]
    for x in xs[:1]:
        for g in x:
            o += g
    o += make_srd(SQKV, P_QKV, 640 * LDQ) + make_srd(SW1, P_W1, 640 * LD1)
    if OPT["sw1"]:
        a(f"s_mul_i32 s{sSwQ}, s{sSwX}, {LDQ // 2}", f"s_mul_i32 s{sSw1}, s{sSwX}, {LD1 // 2}")
    if OPT["ft"]:
        o += first_touch()
    if OPT["pg"]:
        x = I(f"v_lshlrev_b32 v{T0}, 21, v{vL}", "s_mov_b64 exec, 3", f"buffer_load_dword v{vTd}, v{T0}, {srd(SQKV)}, 0 offen", f"buffer_load_dword v{vTd}, v{T0}, {srd(SW1)}, 0 offen")
        if OPT["pg"] > 1:
            x += I(f"global_load_dword v{vTd}, v{T0}, s[{P_WS}:{P_WS + 1}]", f"global_load_dword v{vTd}, v{T0}, s[{P_W2}:{P_W2 + 1}]")
        x += I("s_mov_b64 exec, -1")
        for y in x:
            if y.kind == "vmem":
                y.wr = set()
        o += x
    for x in xs[1:]:
        for g in x:
            o += g
    return o, xs


def nonce_publish():
    o = I(f"s_or_b32 s{sT0}, s2, s{sW}", f"s_cmp_lg_u32 s{sT0}, 0", "s_cbranch_scc1 L_nn",
          f"s_max_u32 s{sT0}, s{sNonce}, 1", f"v_mov_b32 v{T0}, s{sT0}", f"v_lshlrev_b32 v{T1}, 2, v{vL}",
          f"global_store_dword v{T1}, v{T0}, s[{P_DBG}:{P_DBG + 1}] sc1")
    o[-1].ghost = True
    return o + I("L_nn:")


def row10(i, dst):
    return (I(f"v_add_u32 v{dst}, {64 * i * 6554}, v{T3}") if i else []) + I(f"v_lshrrev_b32 v{dst}, 16, v{dst if i else T3}")


def wk_setup(kv):
    o = I(f"v_mul_u32_u24 v{T3}, 6554, v{vL}", f"s_mov_b32 s{sT1}, {LDQ - 160}")
    back = 16 * LDQ - 1280
    for i in range(5):
        o += row10(i, T1) + I(f"v_mad_u32_u24 v{vWk[i]}, v{T1}, s{sT1}, v{vL16}")
        add = (1024 * i - (back if i > 2 else 0)) if kv else (4096 if i == 4 else 0)
        if add:
            o += I(f"v_add_u32 v{vWk[i]}, {add & 0xffffffff}, v{vWk[i]}")
        if kv and i == 2:
            o += I(f"v_lshrrev_b32 v{T1}, 4, v{T1}", f"v_mul_u32_u24 v{T1}, {back}, v{T1}", f"v_sub_u32 v{vWk[i]}, v{vWk[i]}, v{T1}")
    return o + I(f"s_mul_i32 s{sT0}, s{sW}, {(16 if kv else 32) * LDQ}", f"s_add_u32 s{sKw}, s{sKq}, s{sT0}")


def wp_setup():
    return I(f"v_lshrrev_b32 v{T0}, 3, v{vL}", f"s_lshl_b32 s{sT0}, s{sW}, 4", f"v_add_u32 v{T0}, s{sT0}, v{T0}", f"v_mul_u32_u24 v{T0}, {LD1}, v{T0}",
             f"v_bfe_u32 v{T1}, v{vL}, 4, 1", f"v_lshlrev_b32 v{T1}, 2, v{T1}", f"v_and_b32 v{T2}, 7, v{vL}", f"v_xor_b32 v{T1}, v{T1}, v{T2}",
             f"v_lshl_add_u32 v{vWp[0]}, v{T1}, 4, v{T0}", f"v_add_u32 v{vWp[1]}, {8 * LD1 - 1024}, v{vWp[0]}", f"s_lshl_b32 s{sW2k}, s{sW}, 11")


def w1_setup():
    return I(f"v_lshrrev_b32 v{T0}, 2, v0", f"v_and_b32 v{T1}, 3, v{vL}", f"v_mul_u32_u24 v{T0}, {LD1}, v{T0}", f"v_lshl_add_u32 v{vW1}, v{T1}, 4, v{T0}")


def x_read_setup():
    o = I(f"v_and_b32 v{T0}, 31, v{vL}", f"v_lshrrev_b32 v{T1}, 5, v{vL}", f"v_bfe_u32 v{T2}, v{vL}, 1, 3", f"v_xor_b32 v{T2}, v{T2}, v{T1}",
          f"v_lshlrev_b32 v{T2}, 4, v{T2}", f"v_lshl_add_u32 v{T2}, v{T0}, 7, v{T2}")
    for j in range(4):
        o += I(f"v_xor_b32 v{vXR[j]}, {32 * j}, v{T2}", f"v_add_u32 v{vXR[j]}, s{sXw}, v{vXR[j]}")
    return o


def tr_parts():
    return I(f"v_lshrrev_b32 v{T1}, 5, v{vL}", f"v_bfe_u32 v{T0}, v{vL}, 2, 2", f"v_lshl_add_u32 v{T0}, v{T1}, 3, v{T0}",
             f"v_bfe_u32 v{T1}, v{vL}, 4, 1", f"v_and_b32 v{T2}, 3, v{vL}", f"v_lshlrev_b32 v{T2}, 3, v{T2}")


def tk_setup(kv):
    o = tr_parts() + I(f"v_mul_u32_u24 v{T0}, 160, v{T0}", f"v_add_u32 v{T0}, v{T0}, v{T2}", f"v_lshl_add_u32 v{vTK[0]}, v{T1}, 5, v{T0}", f"v_add_u32 v{vTM[0]}, 128, v{T0}")
    if kv or OPT["zpad"]:
        o += I(f"v_mul_u32_u24 v{T1}, {2560 if kv else LDS_SIZE}, v{T1}", f"v_add_u32 v{vTM[0]}, v{vTM[0]}, v{T1}")
    return o + I(f"v_add_u32 v{vTK[1]}, 0x8000, v{vTK[0]}", f"v_add_u32 v{vTM[1]}, 0x8000, v{vTM[0]}")


def tp_setup(base):
    return tr_parts() + I(f"v_lshl_add_u32 v{T2}, v{T1}, 5, v{T2}", f"v_lshl_add_u32 v{T2}, v{T0}, 7, v{T2}", f"v_bfe_u32 v{T1}, v{vL}, 3, 1",
                          f"v_lshl_add_u32 v{T2}, v{T1}, 6, v{T2}", f"v_add_u32 v{vTP[0]}, {base}, v{T2}", f"v_xor_b32 v{vTP[1]}, 64, v{vTP[0]}")


def tr_setup(base):
    return tr_parts() + I(f"v_lshl_add_u32 v{T2}, v{T1}, 5, v{T2}", f"v_lshl_add_u32 v{T2}, v{T0}, 6, v{T2}", f"v_add_u32 v{vTR}, {base}, v{T2}")


def late_setup():
    o = []
    a = lambda *t: o.extend(I(*t))
    t0, t1, t2, t3 = T0, T1, T2, T3
    o += make_srd(SDBG, P_DBG, 256)
    a(f"v_mov_b32 v{vPoll2}, 0")
    o += make_srd(SB1, P_B1, 1728 * 2)
    o += make_srd(SWO, P_WO, 640 * LDX) + make_srd(SW2, P_W2, 1728 * LDX) + make_srd(SOUT, P_OUT, 2048 * LDX) + make_srd(SB2, P_B2, 1280)
    a(f"v_and_b32 v{t0}, 31, v{vL}", f"v_lshrrev_b32 v{t1}, 5, v{vL}")
    a(f"v_lshlrev_b32 v{vEXr}, 4, v{t0}", f"v_add_u32 v{vEXr}, {EX}, v{vEXr}", f"v_sub_u32 v{vHiM}, 0, v{t1}")
    a(f"v_bfe_u32 v{t2}, v{vL}, 4, 1", f"v_mul_u32_u24 v{t2}, {NB * 1024}, v{t2}", f"v_and_b32 v{t3}, 15, v{vL}",
      f"v_lshl_add_u32 v{t3}, v{t1}, 4, v{t3}", f"v_lshl_add_u32 v{vHst}, v{t3}, 4, v{t2}")
    a(f"s_lshl_b32 s{sT0}, s{sR}, 2", f"s_add_u32 s{sT0}, s{sT0}, s{sW}", f"s_mul_i32 s{sHst}, s{sT0}, {2 * NB * 1024}", f"s_add_u32 s{sHst}, s{sHst}, {HB}",
      f"s_mul_i32 s{sOst}, s{sU}, 2560", f"s_add_u32 s{sOst}, s{sOst}, s{sHst}",
      f"s_add_u32 s{sHst}, s{sHst}, {20 * 1024}", f"s_lshl_b32 s{sT0}, s{sU4}, 4", f"s_add_u32 s{sH4}, s{sHst}, s{sT0}", f"s_or_b32 s{sH4}, s{sH4}, s{sLast}",
      f"s_lshl_b32 s{sT0}, s{sU64}, 4", f"s_add_u32 s{sHst}, s{sHst}, s{sT0}")
    a(f"s_lshl_b32 s{sT0}, s2, 7", f"v_and_b32 v{t2}, {OOB}, v{vHiM}", f"v_lshl_add_u32 v{t2}, v{t0}, 2, v{t2}", f"v_add_u32 v{vFl0}, s{sT0}, v{t2}",
      f"s_lshl_b32 s{sT0}, s2, 9", f"s_lshl_b32 s{sT1}, s{sW}, 7", f"s_add_u32 s{sT0}, s{sT0}, s{sT1}", f"v_add_u32 v{vFl}, s{sT0}, v{t2}",
      f"v_mov_b32 v{vOne}, 0", f"v_lshlrev_b32 v{vCnt}, 2, v{vL}", f"v_add_u32 v{vCnt}, {CNT}, v{vCnt}", f"ds_write_b32 v{vCnt}, v{vOne}", f"v_mov_b32 v{vOne}, 1")
    a(f"s_mov_b32 s{sEps}, {f2u(1e-6)}")
    return o


def touch_code():
    return I(f"s_getpc_b64 s[{sT0 + 1}:{sT0 + 2}]", f"s_and_b32 s{sT0}, s2, 0xf8", f"s_lshl_b32 s{sT0}, s{sT0}, 8", f"v_and_b32 v{T1}, 0xc3, v0", f"v_lshrrev_b32 v{T2}, 4, v{T1}",
             f"v_and_or_b32 v{T1}, v{T1}, 3, v{T2}", f"v_lshl_add_u32 v{T1}, v{T1}, 7, s{sT0}", "s_mov_b64 exec, 15",
             f"global_load_dword v{vTd}, v{T1}, s[{sT0 + 1}:{sT0 + 2}]", "s_mov_b64 exec, -1")


def first_touch():
    o = I(f"s_lshl_b32 s{sT0}, s2, 2", f"s_add_u32 s{sT0}, s{sT0}, s{sW}", f"s_lshl_b32 s{sT1}, s{sT0}, 7", f"s_mul_i32 s{sT0}, s{sT0}, {2 * LDX}",
          f"v_lshlrev_b32 v{T0}, 17, v{vL}", f"v_lshrrev_b32 v{T1}, 1, v{vL}", f"v_and_b32 v{T2}, 1, v{vL}", f"v_mul_u32_u24 v{T2}, {LDX}, v{T2}", f"v_lshl_add_u32 v{T1}, v{T1}, 7, v{T2}",
          "s_mov_b64 exec, 0xfffff",
          f"buffer_load_dword v{vTd}, v{T0}, {srd(SQKV)}, s{sT1} offen", f"buffer_load_dword v{vTd}, v{T0}, {srd(SW1)}, s{sT1} offen",
          f"buffer_load_dword v{vTd}, v{T1}, {srd(SX)}, s{sT0} offen", "s_mov_b64 exec, -1")
    for x in o:
        if x.kind == "vmem":
            x.wr = set()
    return o


CB = 128
ST, CS, CAD, SAD, SST = CB, CB + 10, CB + 30, CB + 45, CB + 44
PA = 216


def s0_wave_params(tiles):
    o = []
    done = uid("s0p")
    for w in range(4):
        nxt = uid("s0p")
        if w < 3:
            o += I(f"s_cmp_lg_u32 s{sW}, {w}", f"s_cbranch_scc1 {nxt}")
        for name, (lo, hi, ld, off, mx, sb) in zip((tiles + ["--"])[2 * w:2 * w + 2], ((sA_lo, sA_hi, sLdA, sOffA, sMixA, sBA), (sB_lo, sB_hi, sLdB, sOffB, sMixB, sBB))):
            ish = name[0] in "H-"
            p = P_W1 if ish else P_QKV
            o += I(f"s_mov_b32 s{lo}, s{p}", f"s_mov_b32 s{hi}, s{p + 1}", f"s_mov_b32 s{ld}, {LD1 if ish else LDQ}",
                   f"s_mov_b32 s{mx}, {dict(MX=1248, QM=-32).get(name, 0)}")
            if not ish:
                o += I(f"s_add_u32 s{off}, s{sKq}, {QCOL[name]}", f"s_mov_b32 s{sb}, {OOB}")
            elif name == "--":
                o += I(f"s_mov_b32 s{off}, 0", f"s_mov_b32 s{sb}, {OOB}")
            elif name == "H4":
                o += I(f"s_or_b32 s{sb}, s{sU4}, s{sLast}", f"s_mov_b32 s{off}, s{sU4}")
            else:
                o += I(f"s_add_u32 s{off}, s{sU64}, {64 * HUNIT[name]}", f"s_mov_b32 s{sb}, s{off}")
        if w < 3:
            o += I(f"s_branch {done}", f"{nxt}:")
    o += I(f"{done}:")
    return o


QCOL = {"K0": 0, "K1": 64, "MX": 128, "V0": 1280, "V1": 1344, "Q0": 0, "Q1": 64, "QM": 128}
HUNIT = {"Ha": 0, "Hb": 1, "H0": 0, "H1": 1, "H2": 2, "H3": 3, "H4": 4}


def s0_addr(tiles):
    o = []
    a = lambda *t: o.extend(I(*t))
    t0, t1, t2, t3 = T0, T1, T2, T3
    a(f"s_lshl_b32 s{sT0}, s{sR}, 7", f"s_lshl_b32 s{sT1}, s{sG}, 3", f"s_add_u32 s{sT0}, s{sT0}, s{sT1}", f"s_lshl_b32 s{sT1}, s{sW}, 1",
      f"s_add_u32 s{sT2}, s{sT0}, s{sT1}", f"s_mul_i32 s{sH}, s{sT2}, {LDX}",
      f"v_lshrrev_b32 v{t0}, 5, v{vL}", f"v_mul_u32_u24 v{t1}, {LDX}, v{t0}", f"v_and_b32 v{t2}, 31, v{vL}", f"v_lshl_add_u32 v{SAD}, v{t2}, 3, v{t1}",
      f"v_add_u32 v{SST}, s{sT2}, v{t0}")
    o += s0_wave_params(tiles)
    ad, ld = CAD, CB + 46
    a(f"v_and_b32 v{t0}, 4, v{vL}", f"v_cmp_ne_u32 vcc, 0, v{t0}",
      f"v_mov_b32 v{ld}, s{sLdA}", f"v_mov_b32 v{t1}, s{sLdB}", f"v_cndmask_b32 v{ld}, v{ld}, v{t1}, vcc", f"v_mov_b32 v{ld + 1}, 0",
      f"v_mov_b32 v{t2}, s{sOffA}", f"v_mov_b32 v{t1}, s{sOffB}", f"v_cndmask_b32 v{t2}, v{t2}, v{t1}, vcc",
      f"v_mov_b32 v{t3}, s{sMixA}", f"v_mov_b32 v{t1}, s{sMixB}", f"v_cndmask_b32 v{t3}, v{t3}, v{t1}, vcc",
      f"v_mov_b32 v{ad}, s{sA_lo}", f"v_mov_b32 v{t1}, s{sB_lo}", f"v_cndmask_b32 v{ad}, v{ad}, v{t1}, vcc",
      f"v_mov_b32 v{ad + 1}, s{sA_hi}", f"v_mov_b32 v{t1}, s{sB_hi}", f"v_cndmask_b32 v{ad + 1}, v{ad + 1}, v{t1}, vcc",
      f"v_bfe_u32 v{t0}, v{vL}, 1, 1", f"v_mad_i32_i24 v{t2}, v{t0}, v{t3}, v{t2}",
      f"v_and_b32 v{t0}, 3, v{vL}", f"v_lshl_add_u32 v{t2}, v{t0}, 4, v{t2}",
      f"v_lshrrev_b32 v{t0}, 3, v{vL}", f"v_mul_u32_u24 v{t0}, 5, v{t0}", f"s_mul_i32 s{sT0}, s{sR}, 40", f"v_add_u32 v{t0}, s{sT0}, v{t0}",
      f"v_mad_u32_u24 v{t2}, v{t0}, v{ld}, v{t2}", f"v_mov_b32 v{t3}, 0",
      f"v_lshl_add_u64 v[{ad}:{ad + 1}], v[{t2}:{t3}], 0, v[{ad}:{ad + 1}]")
    for i in range(4):
        a(f"v_lshl_add_u64 v[{ad + 2 * i + 2}:{ad + 2 * i + 3}], v[{ld}:{ld + 1}], 0, v[{ad + 2 * i}:{ad + 2 * i + 1}]")
    return o


def s0_mem():
    o = [I(f"buffer_load_dwordx2 v[{ST + 2 * m}:{ST + 2 * m + 1}], v{SAD}, {srd(SX)}, s{sH} offen offset:{256 * m}") for m in range(5)]
    o += [I(f"global_load_dwordx4 v[{CS + 4 * i}:{CS + 4 * i + 3}], v[{CAD + 2 * i}:{CAD + 2 * i + 1}], off") for i in range(5)]
    return o


def reduce32(x, t):
    o = []
    for n in (8, 4, 2, 1):
        o += I(f"v_add_f32_dpp v{x}, v{x}, v{x} row_ror:{n} row_mask:0xf bank_mask:0xf")
    return o + I(f"v_mov_b32 v{t}, v{x}", f"v_permlane16_swap_b32 v{x}, v{t}", f"v_add_f32 v{x}, v{x}, v{t}")


def weave(*streams):
    out, streams = [], [list(s) for s in streams]
    while any(streams):
        for s in streams:
            if s:
                out.append(s.pop(0))
    return out


def s0_produce(kv):
    st, cs, stores = [], [], []
    a = lambda *t: st.extend(I(*t))
    s0, s1, t = CB + 40, CB + 41, CB + 42
    a(f"s_mov_b32 s{sCnt}, 0x3f803f80")
    for m in range(10):
        a(f"v_dot2_f32_bf16 v{s0}, v{ST + m}, s{sCnt}, {'0' if m == 0 else 'v%d' % s0}", f"v_dot2_f32_bf16 v{s1}, v{ST + m}, v{ST + m}, {'0' if m == 0 else 'v%d' % s1}")
    a(f"v_lshlrev_b32 v{SST}, 6, v{SST}", f"v_add_u32 v{SST}, {STATS}, v{SST}", f"v_and_b32 v{t}, 7, v{vL}", f"v_lshl_add_u32 v{SST}, v{t}, 3, v{SST}",
      f"v_bfe_u32 v{t}, v{vL}, 3, 2", f"v_min_u32 v{t}, 1, v{t}", f"v_lshl_add_u32 v{SST}, v{t}, 30, v{SST}")
    red = weave(reduce32(s0, t), reduce32(s1, CB + 43))
    red += I(f"v_mul_f32 v{s0}, {f2u(1 / 640)}, v{s0}", f"v_mul_f32 v{s1}, {f2u(1 / 640)}, v{s1}", f"v_fma_f32 v{s1}, -v{s0}, v{s0}, v{s1}", f"v_max_f32 v{s1}, 0, v{s1}")
    stores.append(ins(f"buffer_store_dwordx2 v[{s0}:{s1}], v{SST}, {srd(SWS)}, 0 offen sc1"))
    a = lambda *t: cs.extend(I(*t))
    A, ta, tb = CAD, CB + 46, CB + 47
    for i in range(5):
        for k in range(4):
            for h in range(2):
                d = A + 2 * k + h
                a(f"v_dot2_f32_bf16 v{d}, v{CS + 4 * i + k}, s{sOne1 if h else sOne0}, {'0' if i == 0 else 'v%d' % d}")
    n1 = len(cs)
    a(f"v_and_b32 v{ta}, 7, v{vL}", f"v_lshlrev_b32 v{ta}, 3, v{ta}", f"v_lshrrev_b32 v{tb}, 4, v{vL}", f"v_lshl_add_u32 v{ta}, v{tb}, 6, v{ta}")
    for i in range(4):
        a(f"v_permlane32_swap_b32 v{A + i}, v{A + i + 4}")
    for i in range(4):
        a(f"v_add_f32 v{A + i}, v{A + i}, v{A + i + 4}")
    for i in range(2):
        a(f"v_permlane16_swap_b32 v{A + i}, v{A + i + 2}")
    for i in range(2):
        a(f"v_add_f32 v{A + i}, v{A + i}, v{A + i + 2}")
    a(f"v_bfe_u32 v{tb}, v{vL}, 3, 1", f"v_lshl_add_u32 v{ta}, v{tb}, 30, v{ta}")
    for i in range(2):
        a(f"v_add_f32_dpp v{A + i}, v{A + i}, v{A + i} row_ror:8 row_mask:0xf bank_mask:0xf")
    a(f"s_lshl_b32 s{sH}, s{sG}, 4", f"s_add_u32 s{sH}, s{sH}, s{sR}", f"s_lshl_b32 s{sH}, s{sH}, 2", f"s_add_u32 s{sH}, s{sH}, s{sW}",
      f"s_lshl_b32 s{sH}, s{sH}, 8", f"s_add_u32 s{sH}, s{sH}, {CSUM}", f"v_add_u32 v{ta}, s{sH}, v{ta}")
    stores.append(ins(f"buffer_store_dwordx2 v[{A}:{A + 1}], v{ta}, {srd(SWS)}, 0 offen sc1"))
    return st + cs[:n1] + weave(red, bundled(cs[n1:])), stores


def s0_consume_loads():
    o = stamp("prepoll") + poll_check(vRowF, L_S0, "both", dst=vPoll) + poll_check(vColF, L_S0, "both", dst=vPoll2) + stamp("polled")
    a = lambda *t: o.extend(I(*t))
    a(f"buffer_load_dwordx2 v[{CB}:{CB + 1}], v{PA}, {srd(SWS)}, 0 offen sc1")
    for m in range(4):
        a(f"buffer_load_dwordx4 v[{CB + 4 + 4 * m}:{CB + 7 + 4 * m}], v{PA + 1 + m}, {srd(SWS)}, 0 offen sc1")
    return o


def bias_loads():
    return [I(f"buffer_load_ushort v{vB1}, v{PA + 5}, {srd(SB1)}, 0 offen")] + b2_load()


def s0_consume_addr():
    o = []
    a = lambda *t: o.extend(I(*t))
    t0, t1 = T0, T1
    o += flag_addr_row(vRowF, sR, t0, t1) + flag_addr_col(vColF, sG, t0, t1)
    a(f"v_and_b32 v{t0}, 31, v{vL}", f"v_lshlrev_b32 v{t0}, 6, v{t0}", f"s_lshl_b32 s{sT0}, s{sR}, 2", f"s_add_u32 s{sT0}, s{sT0}, s{sW}",
      f"s_lshl_b32 s{sT0}, s{sT0}, 11", f"s_add_u32 s{sT0}, s{sT0}, {STATS}", f"v_add_u32 v{PA}, s{sT0}, v{t0}")
    a(f"v_lshrrev_b32 v{t0}, 4, v{vL}", f"v_lshlrev_b32 v{t0}, 10, v{t0}", f"v_and_b32 v{t1}, 15, v{vL}", f"v_lshl_add_u32 v{t0}, v{t1}, 4, v{t0}",
      f"s_lshl_b32 s{sT0}, s{sG}, 14", f"s_lshl_b32 s{sT1}, s{sW}, 8", f"s_add_u32 s{sT0}, s{sT0}, s{sT1}", f"s_add_u32 s{sT0}, s{sT0}, {CSUM}",
      f"v_add_u32 v{PA + 1}, s{sT0}, v{t0}")
    for m in range(1, 4):
        a(f"v_add_u32 v{PA + 1 + m}, {4096 * m}, v{PA + 1}")
    p = PA + 6
    a(f"v_and_b32 v{p}, 3, v{vL}", f"v_lshlrev_b32 v{p}, 4, v{p}", f"v_lshrrev_b32 v{t0}, 5, v{vL}", f"v_lshl_add_u32 v{p}, v{t0}, 3, v{p}",
      f"v_bfe_u32 v{t0}, v{vL}, 2, 2", f"v_lshl_add_u32 v{p}, v{t0}, 1, v{p}", f"v_bfe_u32 v{t0}, v{vL}, 4, 1", f"v_add_u32 v{p}, v{p}, v{t0}",
      f"v_cmp_le_u32 vcc, 32, v{p}", f"v_mov_b32 v{t0}, s{sBA}", f"v_mov_b32 v{t1}, s{sBB}", f"v_cndmask_b32 v{t0}, v{t0}, v{t1}, vcc",
      f"v_and_b32 v{t1}, 31, v{p}", f"v_lshl_add_u32 v{PA + 5}, v{t1}, 1, v{t0}",
      f"v_lshlrev_b32 v{p}, 4, v{p}", f"v_add_u32 v{p}, s{sWL}, v{p}", f"v_add_u32 v{p}, {EX}, v{p}")
    return o


def s0_consume_math():
    x, y = [], []
    a = lambda *t: x.extend(I(*t))
    m, var = CB, CB + 1
    t0, t1, t2, t3 = CB + 28, CB + 29, CB + 30, CB + 31
    e5 = f2u(1e-5)
    a(f"v_add_f32 v{t0}, {e5}, v{var}", f"v_rsq_f32 v{vRs1}, v{t0}", f"v_mul_f32 v{t1}, v{var}, v{vRs1}", f"v_mul_f32 v{t1}, v{t1}, v{vRs1}",
      f"v_add_f32 v{t1}, {e5}, v{t1}", f"v_rsq_f32 v{t1}, v{t1}", f"v_mul_f32 v{vRl1}, {f2u(LOG2E)}, v{vRs1}", f"v_mul_f32 v{t1}, v{t1}, v{vRs1}",
      f"v_rcp_f32 v{vIrs}, v{t1}", f"v_mul_f32 v{vA1}, {f2u(C1)}, v{t1}", f"v_mul_f32 v{t2}, v{t1}, v{t1}", f"v_mul_f32 v{t2}, v{t2}, v{t1}",
      f"v_mul_f32 v{vA3}, {f2u(C3)}, v{t2}")
    a(f"v_sub_f32 v{m}, 0, v{m}", f"v_cvt_pk_bf16_f32 v{t0}, v{m}, v{m}", f"v_and_b32 v{t0}, 0xffff0000, v{t0}", f"v_sub_f32 v{t2}, v{m}, v{t0}",
      f"v_cvt_pk_bf16_f32 v{vXE}, v{t0}, v{t2}",
      f"v_cvt_pk_bf16_f32 v{t0}, v{vIrs}, v{vIrs}", f"v_and_b32 v{t0}, 0xffff0000, v{t0}", f"v_sub_f32 v{t2}, v{vIrs}, v{t0}",
      f"v_cvt_pk_bf16_f32 v{vXE + 2}, v{t0}, v{t2}", f"v_and_b32 v{t0}, 0xffff0000, v{vXE + 2}", f"v_sub_f32 v{t2}, v{t2}, v{t0}",
      f"v_cvt_pk_bf16_f32 v{vXE + 3}, v{t2}, 0",
      f"v_not_b32 v{t3}, v{vHiM}", f"v_and_b32 v{vXE}, v{vXE}, v{t3}", f"v_and_b32 v{vXE + 2}, v{vXE + 2}, v{t3}", f"v_and_b32 v{vXE + 3}, v{vXE + 3}, v{t3}",
      f"v_mov_b32 v{vXE + 1}, v{vXE}")
    a = lambda *t: y.extend(I(*t))
    B, u0 = CB + 4, CB + 32
    for mm in range(1, 4):
        for k in range(4):
            a(f"v_add_f32 v{B + k}, v{B + k}, v{B + 4 * mm + k}")
    a(f"v_permlane32_swap_b32 v{B}, v{B + 2}", f"v_permlane32_swap_b32 v{B + 1}, v{B + 3}",
      f"v_add_f32 v{B}, v{B}, v{B + 2}", f"v_add_f32 v{B + 1}, v{B + 1}, v{B + 3}",
      f"v_permlane16_swap_b32 v{B}, v{B + 1}", f"v_add_f32 v{B}, v{B}, v{B + 1}")
    Rr = CB + 24
    a(f"v_cvt_pk_bf16_f32 v{Rr}, v{B}, v{B}", f"v_and_b32 v{u0}, 0xffff0000, v{Rr}", f"v_sub_f32 v{u0}, v{B}, v{u0}",
      f"v_cvt_pk_bf16_f32 v{Rr + 1}, v{u0}, v{u0}", f"v_lshl_or_b32 v{Rr + 2}, v{vB1}, 16, v{vB1}", f"v_mov_b32 v{Rr + 3}, v{vB1}")
    w = ins(f"ds_write_b128 v{PA + 6}, v[{Rr}:{Rr + 3}]")
    return weave(y + [w], x), w


pr = lambda r: f"v[{r}:{r + 1}]"


def cvt2(dst, tb):
    return I(f"v_cvt_pk_bf16_f32 v{dst}, v{tb}, v{tb + 1}", f"v_cvt_pk_bf16_f32 v{dst + 1}, v{tb + 2}, v{tb + 3}")


def gelu_quad(A, dst, tb, pk=False):
    o = []
    each = lambda f, n=4, s=1: [o.extend(I(f(i))) for i in range(0, n, s)]
    if pk:
        each(lambda i: f"v_pk_mul_f32 {pr(tb + i)}, {pr(A + i)}, {pr(A + i)}", 4, 2)
        each(lambda i: f"v_pk_fma_f32 {pr(tb + i)}, {pr(tb + i)}, {pr(vA3)}, {pr(vA1)} op_sel_hi:[1,0,0]", 4, 2)
        each(lambda i: f"v_pk_mul_f32 {pr(tb + i)}, {pr(tb + i)}, {pr(A + i)}", 4, 2)
        each(lambda i: f"v_exp_f32 v{tb + i}, v{tb + i}")
        each(lambda i: f"v_pk_fma_f32 {pr(tb + i)}, {pr(tb + i)}, {pr(vIrs)}, {pr(vIrs)} op_sel_hi:[1,0,0]", 4, 2)
        each(lambda i: f"v_rcp_f32 v{tb + i}, v{tb + i}")
        each(lambda i: f"v_pk_mul_f32 {pr(tb + i)}, {pr(tb + i)}, {pr(A + i)}", 4, 2)
    else:
        each(lambda i: f"v_mul_f32 v{tb + i}, v{A + i}, v{A + i}")
        each(lambda i: f"v_fma_f32 v{tb + i}, v{tb + i}, v{vA3}, v{vA1}")
        each(lambda i: f"v_mul_f32 v{tb + i}, v{tb + i}, v{A + i}")
        each(lambda i: f"v_exp_f32 v{tb + i}, v{tb + i}")
        each(lambda i: f"v_fma_f32 v{tb + i}, v{tb + i}, v{vIrs}, v{vIrs}")
        each(lambda i: f"v_rcp_f32 v{tb + i}, v{tb + i}")
        each(lambda i: f"v_mul_f32 v{tb + i}, v{tb + i}, v{A + i}")
    return o + cvt2(dst, tb)


def phi_quad(A, dst, tb, pk=False):
    o = []
    each = lambda f, n=4, s=1: [o.extend(I(f(i))) for i in range(0, n, s)]
    if pk:
        each(lambda i: f"v_pk_mul_f32 {pr(tb + i)}, {pr(A + i)}, {pr(vRl1)} op_sel_hi:[1,0]", 4, 2)
        each(lambda i: f"v_pk_fma_f32 {pr(A + i)}, {pr(A + i)}, {pr(vRs1)}, 1.0 op_sel_hi:[1,0,0]", 4, 2)
    else:
        each(lambda i: f"v_mul_f32 v{tb + i}, v{A + i}, v{vRl1}")
        each(lambda i: f"v_fma_f32 v{A + i}, v{A + i}, v{vRs1}, 1.0")
    each(lambda i: f"v_exp_f32_e64 v{tb + i}, v{tb + i} clamp")
    each(lambda i: f"v_max_f32 v{tb + i}, v{tb + i}, v{A + i}")
    if pk:
        each(lambda i: f"v_pk_add_f32 {pr(tb + i)}, {pr(tb + i)}, s[{sEps}:{sEps + 1}] op_sel_hi:[1,0]", 4, 2)
    else:
        each(lambda i: f"v_add_f32 v{tb + i}, s{sEps}, v{tb + i}")
    return o + cvt2(dst, tb)


def lin_quad(A, dst, tb, pk=False):
    o = []
    if pk:
        for i in (0, 2): o += I(f"v_pk_mul_f32 {pr(tb + i)}, {pr(A + i)}, {pr(vRs1)} op_sel_hi:[1,0]")
    else:
        for i in range(4): o += I(f"v_mul_f32 v{tb + i}, v{A + i}, v{vRs1}")
    return o + cvt2(dst, tb)


def gelu_quads(jobs, lo, hi, pk):
    o = []
    for n in range(lo, hi):
        A, name, toks = jobs[n // 4]
        gq, h = n % 4, (n % 4) // 2
        if gq == 0 or n == lo:
            pass
        o += gelu_quad(A + 4 * gq, A + 8 * h + 2 * (gq & 1), ET + 4 * (gq & 1), pk)
        if gq & 1:
            x = ins(f"buffer_store_dwordx4 v[{A + 8 * h}:{A + 8 * h + 3}], v{vHst}, {srd(SWS)}, s{sH4 if name == 'H4' else sHst} offen offset:{512 * h + 1024 * (HUNIT[name] % 4)} sc1")
            o.append(x); toks.append(x)
    return o


def kv_setup():
    o = []
    a = lambda *t: o.extend(I(*t))
    t0, t1, t2 = T0, T1, T2
    a(f"v_and_b32 v{t0}, 31, v{vL}", f"s_lshl_b32 s{sT0}, s{sW}, 5", f"v_add_u32 v{t0}, s{sT0}, v{t0}", f"v_mul_u32_u24 v{t0}, {KVT_LD}, v{t0}",
      f"v_add_u32 v{t0}, {KVT}, v{t0}", f"v_add_u32 v{vOnes}, 320, v{t0}",
      f"v_lshrrev_b32 v{t1}, 5, v{vL}", f"v_lshl_add_u32 v{vKf}, v{t1}, 3, v{t0}")
    a(f"v_bfe_u32 v{t0}, v{vL}, 2, 2", f"v_lshl_add_u32 v{t0}, v{t1}, 3, v{t0}", f"v_mul_u32_u24 v{t0}, {KVT_LD}, v{t0}", f"v_add_u32 v{t0}, {KVT}, v{t0}",
      f"v_bfe_u32 v{t1}, v{vL}, 4, 1", f"v_and_b32 v{t2}, 3, v{vL}", f"v_lshl_add_u32 v{t1}, v{t1}, 2, v{t2}",
      f"s_mul_i32 s{sT0}, s{sW}, 40", f"v_lshl_add_u32 v{vKB}, v{t1}, 3, v{t0}", f"v_add_u32 v{vKB}, s{sT0}, v{vKB}",
      f"v_add_u32 v{vKA}, 160, v{vKB}", f"v_add_u32 v{t0}, 320, v{t0}", f"v_cmp_eq_u32 vcc, 5, v{t1}", f"v_cndmask_b32 v{vKA}, v{vKA}, v{t0}, vcc")
    a(f"v_and_b32 v{t0}, 31, v{vL}", f"v_cmp_gt_u32 vcc, 24, v{t0}", f"v_lshlrev_b32 v{t0}, 3, v{t0}", f"v_and_b32 v{t1}, 192, v{vHiM}", f"v_add_u32 v{t0}, v{t0}, v{t1}",
      f"s_lshl_b32 s{sT0}, s{sU}, 2", f"s_add_u32 s{sT0}, s{sT0}, s{sW}", f"s_lshl_b32 s{sT0}, s{sT0}, 4", f"s_add_u32 s{sT0}, s{sT0}, s{sR}", f"s_mul_i32 s{sT0}, s{sT0}, 1280",
      f"s_add_u32 s{sT0}, s{sT0}, {KVP}", f"v_add_u32 v{t0}, s{sT0}, v{t0}", f"v_mov_b32 v{vAt}, {OOB}", f"v_cndmask_b32 v{vAt}, v{vAt}, v{t0}, vcc")
    return o


def kv_epilogue(aset, nshadow):
    blk = I(f"v_mov_b32 v{T2}, 0x3f803f80", f"v_mov_b32 v{T3}, 0x3f803f80")
    ones = ins(f"ds_write_b64 v{vOnes}, v[{T2}:{T3}]")
    blk.append(ones)
    wr, parts, n = [ones], [blk, []], 0
    for t, kind, cb in [(0, "k", 0), (1, "k", 64), (2, "m", 128), (3, "v", 160), (4, "v", 224)]:
        A = acc(aset[t])
        for g in range(4):
            isk = kind == "k" or (kind == "m" and g < 2)
            pk = n >= nshadow
            off = cb + 16 * g if kind != "m" else cb + (16 * g if g < 2 else 160 + 16 * (g - 2))
            x = ins(f"ds_write_b64 v{vKf}, v[{A + 4 * g}:{A + 4 * g + 1}] offset:{off}")
            parts[pk] += (phi_quad if isk else lin_quad)(A + 4 * g, A + 4 * g, ET + 4 * (g & 1), pk) + [x]
            wr.append(x)
            n += 1
    return parts[0], parts[1], wr


def kv_product(wr):
    blk = [ins("s_barrier", after=wr)]
    KA, FR = acc(1), acc(2)
    rd = []
    for j in range(8):
        f = FR + 8 * (j % 4)
        rd.append(I(f"ds_read_b64_tr_b16 v[{f}:{f + 1}], v{vKA} offset:{16 * j * KVT_LD}", f"ds_read_b64_tr_b16 v[{f + 2}:{f + 3}], v{vKA} offset:{(16 * j + 4) * KVT_LD}",
                    f"ds_read_b64_tr_b16 v[{f + 4}:{f + 5}], v{vKB} offset:{16 * j * KVT_LD}", f"ds_read_b64_tr_b16 v[{f + 6}:{f + 7}], v{vKB} offset:{(16 * j + 4) * KVT_LD}"))
    blk += rd[0] + rd[1] + rd[2]
    for j in range(8):
        f = FR + 8 * (j % 4)
        c = "0" if j == 0 else f"v[{KA}:{KA + 15}]"
        blk += I(f"v_mfma_f32_32x32x16_bf16 v[{KA}:{KA + 15}], v[{f + 4}:{f + 7}], v[{f}:{f + 3}], {c}")
        if j + 3 < 8:
            blk += rd[j + 3]
    at = []
    for q in range(3):
        at.append(ins(f"buffer_store_dwordx2 v[{KA + 4 * q}:{KA + 4 * q + 1}], v{vAt}, {srd(SWS)}, 0 offen offset:{384 * q} sc1"))
        blk += cvt2(KA + 4 * q, KA + 4 * q) + at[-1:]
    return blk, at


PQ = 128
OA = [112, 148, 164]


def o_setup():
    o = []
    a = lambda *t: o.extend(I(*t))
    t0, t1, t2, t3 = T0, T1, T2, T3
    a(f"v_subrev_u32 v{vColK}, 8192, v{vColF}")
    a(f"s_lshl_b32 s{sK1}, s{sU}, 2", f"s_add_u32 s{sK1}, s{sK1}, s{sW}", f"s_mul_i32 s{sK1}, s{sK1}, 20480", f"s_add_u32 s{sK1}, s{sK1}, {KVP}",
      f"v_cmp_gt_u32 vcc, 60, v{vL}", f"v_lshlrev_b32 v{t0}, 4, v{vL}", f"v_mov_b32 v{vOl0}, {OOB}", f"v_cndmask_b32 v{vOl0}, v{vOl0}, v{t0}, vcc")
    for i, vw in enumerate((vOw0, vOw1)):
        a(f"v_lshl_add_u32 v{t0}, v{vL}, 1, {i}", f"v_mul_u32_u24 v{t2}, 2731, v{t0}", f"v_lshrrev_b32 v{t2}, 16, v{t2}",
          f"v_mul_u32_u24 v{t1}, 24, v{t2}", f"v_sub_u32 v{t1}, v{t0}, v{t1}",
          f"v_mul_u32_u24 v{t0}, 5, v{t2}", f"v_subrev_u32 v{t0}, 4, v{t0}", f"v_max_i32 v{t0}, v{t0}, v{t1}")
        a(f"s_mul_i32 s{sT0}, s{sW}, 5", f"v_add_u32 v{t2}, s{sT0}, v{t2}",
          f"v_lshrrev_b32 v{t3}, 2, v{t2}", f"v_lshlrev_b32 v{vw}, 5, v{t3}", f"v_and_b32 v{t3}, 1, v{t2}", f"v_lshl_add_u32 v{vw}, v{t3}, 4, v{vw}",
          f"v_bfe_u32 v{t3}, v{t2}, 1, 1", f"v_lshl_add_u32 v{vw}, v{t3}, 3, v{vw}", f"v_add_u32 v{vw}, {AM}, v{vw}")
        v2 = (vOw2, vOw3)[i]
        a(f"s_mul_i32 s{sT0}, s{sW}, 20", f"v_add_u32 v{t2}, s{sT0}, v{t1}",
          f"s_add_u32 s{sT0}, s{sW}, 80", f"v_mov_b32 v{t3}, s{sT0}", f"v_cmp_eq_u32 vcc, 20, v{t1}", f"v_cndmask_b32 v{t2}, v{t2}, v{t3}, vcc",
          f"v_mul_u32_u24 v{t2}, {AM_LD}, v{t2}", f"v_add_u32 v{vw}, v{vw}, v{t2}",
          f"v_add_u32 v{t2}, {4 * AM_LD}, v{vw}", f"v_cndmask_b32 v{v2}, v{vw}, v{t2}, vcc")
        a(f"v_cmp_lt_u32 vcc, 20, v{t0}", f"v_mov_b32 v{t2}, {SCR}", f"v_cndmask_b32 v{vw}, v{vw}, v{t2}, vcc", f"v_cndmask_b32 v{v2}, v{v2}, v{t2}, vcc")
    a(f"v_and_b32 v{t0}, 31, v{vL}", f"v_mul_u32_u24 v{t0}, {AM_LD}, v{t0}", f"v_and_b32 v{t1}, 16, v{vHiM}", f"v_add_u32 v{t0}, v{t0}, v{t1}", f"v_add_u32 v{vAM}, {AM}, v{t0}")
    return o


def am_zero():
    o = I(*[f"v_mov_b32 v{ET + k}, 0" for k in range(4)], f"v_lshlrev_b32 v{ET + 4}, 4, v0", f"v_add_u32 v{ET + 4}, {AM}, v{ET + 4}")
    tk = [ins(f"ds_write_b128 v{ET + 4}, v[{ET}:{ET + 3}] offset:{4096 * k}") for k in range(5)]
    return o + tk, tk


def phi_q(aset, pk, lo, hi):
    o = []
    for n in range(lo, hi):
        A = acc(aset[5 + n // 4]) + 4 * (n % 4)
        o += phi_quad(A, PQ + 2 * n, ET + 4 * (n & 1), pk)
    return o


KL, KS = 48, 112


def o_load():
    g = []
    for r in range(16):
        pre = I(f"s_add_u32 s{sH}, s{sK1}, {5120 * (r // 4)}") if r % 4 == 0 else []
        g.append(pre + I(f"buffer_load_dwordx4 v[{KL + 4 * r}:{KL + 4 * r + 3}], v{vOl0}, {srd(SWS)}, s{sH} offen offset:{1280 * (r % 4)} sc1"))
    return poll_check(vColK, L_KP, "kv", dst=vPoll2) + stamp("kvseen"), g


def o_write():
    o = []
    for r in range(16):
        for k in range(8):
            o += I(f"v_dot2_f32_bf16 v{KS + k}, v{KL + 4 * r + k // 2}, s{sOne1 if k & 1 else sOne0}, {'0' if r == 0 else 'v%d' % (KS + k)}")
    o += cvt2(KS, KS) + cvt2(KS + 2, KS + 4)
    wr = [ins(f"ds_write_b64 v{vw}, v[{KS + 2 * i}:{KS + 2 * i + 1}]") for i, vw in ((0, vOw0), (0, vOw2), (1, vOw1), (1, vOw3))]
    return o + wr, wr


def o_steps():
    seq = [(T, k) for T in (2, 0, 1) for k in range(5)]
    fr = lambda n: r4([("v", ET), ("v", ET + 4), ("v", T0)][n % 3])
    rd = lambda n: I(f"ds_read_b128 {fr(n)}, v{vAM} offset:{seq[n][0] * 32 * AM_LD + 32 * seq[n][1]}")
    steps = []
    for n, (T, k) in enumerate(seq):
        pre = []
        if n == 0:
            pre = rd(0) + rd(1)
        c = "0" if k == 0 else f"v[{OA[T]}:{OA[T] + 15}]"
        m = ins(f"v_mfma_f32_32x32x16_bf16 v[{OA[T]}:{OA[T] + 15}], {fr(n)}, v[{PQ + 4 * k}:{PQ + 4 * k + 3}], {c}")
        steps.append(dict(pre=pre, mfma=m, post=rd(n + 2) if n + 2 < 15 else [], budget=0))
    return steps


def o_finish(toks):
    o = []
    a = lambda *t: o.extend(I(*t))
    rc = ET
    for h in range(4): a(f"v_add_f32 v{rc + h}, s{sEps}, v{OA[2] + 8 + h}")
    for h in range(4): a(f"v_rcp_f32 v{rc + h}, v{rc + h}")
    a(f"v_bfi_b32 v{rc + 4}, v{vHiM}, v{rc + 1}, v{rc}", f"v_bfi_b32 v{rc + 5}, v{vHiM}, v{rc + 3}, v{rc + 2}")
    for i in (4, 0, 1, 2, 3):
        A = OA[i >> 1] + 8 * (i & 1)
        for gq in range(2):
            e0 = 16 * i + 8 * gq
            rr = {16: rc + 4, 56: rc + 5}.get(e0, rc + e0 // 20)
            sel = "op_sel:[0,1] op_sel_hi:[1,1]" if rr & 1 else "op_sel_hi:[1,0]"
            for k in (0, 2): a(f"v_pk_mul_f32 {pr(A + 4 * gq + k)}, {pr(A + 4 * gq + k)}, {pr(rr & ~1)} {sel}")
            o += cvt2(A + 2 * gq, A + 4 * gq)
        x = ins(f"buffer_store_dwordx4 v[{A}:{A + 3}], v{vHst}, {srd(SWS)}, s{sOst} offen offset:{512 * i} sc1")
        o.append(x); toks.append(x)
    return o


def p2_setup(RA):
    o = []
    a = lambda *t: o.extend(I(*t))
    t0, t1, t2 = T0, T1, T2
    a(f"s_and_b32 s{sT0}, s2, 1", f"s_lshl_b32 s{sT0}, s{sT0}, 3", f"s_and_b32 s{sT1}, s2, 4", f"s_add_u32 s{sT0}, s{sT0}, s{sT1}",
      *([f"s_bfe_u32 s{sT1}, s2, 0x20003", f"s_add_u32 s{sR2}, s{sT0}, s{sT1}", f"s_lshr_b32 s{sT1}, s2, 5"] if OPT["map2"] == 0 else
        [f"s_lshr_b32 s{sT1}, s2, 6", f"s_bfe_u32 s{sT2}, s2, {0x10003 if OPT['map2'] == 1 else 0x10008}", f"s_xor_b32 s{sT1}, s{sT1}, s{sT2}", f"s_add_u32 s{sR2}, s{sT0}, s{sT1}",
         f"s_bfe_u32 s{sT1}, s2, 0x30003"]),
      f"s_mul_i32 s{sJ160}, s{sT1}, 160", f"s_mov_b32 s{sD2h}, s{sT1}",
      f"s_bfe_u32 s{sT2}, s2, 0x10001",
      f"s_lshl_b32 s{sE}, s{sT2}, 2", f"s_add_u32 s{sE}, s{sE}, s{sW}",
      f"s_and_b32 s{sT0}, s{sW}, 1", f"s_lshl_b32 s{sT0}, s{sT0}, 1", f"s_mul_i32 s{sBq}, s{sE}, 6", f"s_sub_u32 s{sBq}, s{sBq}, s{sT0}",
      f"s_sub_u32 s{sBk}, s{sBq}, s{sT0}", f"s_add_u32 s{sBq}, s{sBq}, 4",
      f"s_sub_u32 s{sB6}, s{sE}, s{sT2}", f"s_add_u32 s{sB6}, s{sB6}, 48", f"s_cmp_eq_u32 s{sW}, 3", f"s_cselect_b32 s{sL6}, {OOB}, 0",
      f"s_lshl_b32 s{sT0}, s{sR2}, 1", f"s_add_u32 s{sT1}, s{sT0}, s{sT2}",
      f"s_mul_i32 s{sHB}, s{sT1}, {4 * NB * 1024}", f"s_add_u32 s{sHB}, s{sHB}, {HB}",
      f"s_lshl_b32 s{sRow}, s{sT1}, 2", f"s_add_u32 s{sRow}, s{sRow}, s{sW}", f"s_mul_i32 s{sRow}, s{sRow}, {16 * LDX}", f"s_add_u32 s{sRow}, s{sRow}, s{sJ160}",
      f"s_xor_b32 s{sT1}, s{sT1}, 1", f"s_mul_i32 s{sHA}, s{sT1}, {4 * NB * 1024}", f"s_add_u32 s{sHA}, s{sHA}, {HB}")
    a(f"s_add_u32 s{sT0}, s{sBq}, 20", f"s_lshl_b32 s{sHq}, s{sT0}, 10", f"s_add_u32 s{sT0}, s{sBk}, 20", f"s_lshl_b32 s{sHk}, s{sT0}, 10",
      f"s_add_u32 s{sT0}, s{sB6}, 20", f"s_lshl_b32 s{sH6}, s{sT0}, 10", f"s_or_b32 s{sH6}, s{sH6}, s{sL6}", f"s_lshl_b32 s{sHo}, s{sW}, 10",
      f"s_mul_i32 s{sWq}, s{sBq}, {32 * LDX}", f"s_add_u32 s{sWq}, s{sWq}, s{sJ160}", f"s_mul_i32 s{sWk}, s{sBk}, {32 * LDX}", f"s_add_u32 s{sWk}, s{sWk}, s{sJ160}",
      f"s_mul_i32 s{sW6}, s{sB6}, {32 * LDX}", f"s_add_u32 s{sW6}, s{sW6}, s{sJ160}", f"s_or_b32 s{sW6}, s{sW6}, s{sL6}", f"s_mul_i32 s{sWo}, s{sW}, {32 * LDX}", f"s_add_u32 s{sWo}, s{sWo}, s{sJ160}")
    a(f"v_mul_u32_u24 v{T3}, 6554, v{vL}", f"s_mov_b32 s{sT1}, {LDX - 160}", f"s_mul_i32 s{sT0}, s{sW}, 5632", f"s_add_u32 s{sT0}, s{sT0}, {FIN}",
      f"v_lshl_add_u32 v{t2}, v{vL}, 5, s{sT0}")
    for i in range(5):
        o += row10(i, t1) + I(f"v_mad_u32_u24 v{vW2[i]}, v{t1}, s{sT1}, v{vL16}")
        if i < 3:
            a(f"v_lshl_add_u32 v{vTr[i]}, v{t1}, 4, v{t2}")
    a(f"v_add_u32 v{vW2[4]}, 4096, v{vW2[4]}")
    a(f"v_and_b32 v{t1}, 15, v{vL}", f"v_mul_u32_u24 v{t1}, 336, v{t1}", f"v_and_b32 v{t2}, 48, v{vL}", f"v_add3_u32 v{vTw}, v{t1}, v{t2}, s{sT0}")
    for t in range(4):
        a(f"s_add_u32 s{sT0}, s{sW}, {t}", f"s_and_b32 s{sT0}, s{sT0}, 3", f"s_mul_i32 s{sT0}, s{sT0}, {NB * 1024}", f"s_add_u32 s{sT0}, s{sT0}, s{sHB}",
          f"v_add_u32 v{vH['B'][t]}, s{sT0}, v{vL16}")
    a(f"v_lshrrev_b32 v{t0}, 5, v{vL}", f"v_lshlrev_b32 v{t0}, 4, v{t0}", f"v_bfe_u32 v{t1}, v{vL}, 4, 1", f"v_lshl_add_u32 v{t0}, v{t1}, 2, v{t0}",
      f"v_bfe_u32 v{t1}, v{vL}, 2, 2", f"v_add_u32 v{t0}, v{t0}, v{t1}", f"v_mul_u32_u24 v{t0}, 160, v{t0}", f"v_and_b32 v{t1}, 3, v{vL}",
      f"v_lshl_add_u32 v{t0}, v{t1}, 3, v{t0}", f"v_add_u32 v{vT2[0]}, s{sW5}, v{t0}",
      f"v_add_u32 v{vT2[1]}, 0x10000, v{vT2[0]}", f"v_add_u32 v{vT2[2]}, 0x20000, v{vT2[0]}")
    o += flag_sc_row(sR) + I(f"v_subrev_u32 v{vRow2}, s{sT0}, v{vRowF}") + flag_sc_row(sR2) + I(f"v_add_u32 v{vRow2}, s{sT0}, v{vRow2}")
    a(f"v_and_b32 v{vRow2K}, 0xffffdfff, v{vRow2}", f"v_or_b32 v{vRow2}, 0x2000, v{vRow2}")
    a(f"s_mov_b32 s{sRot}, 0")
    a(f"v_add_u32 v{vRW[0]}, s{sW5}, v{vL16}", f"v_add_u32 v{vRW[1]}, 0x10000, v{vRW[0]}", f"v_add_u32 v{vRW[2]}, 0x20000, v{vRW[0]}")
    for t in range(1, 4):
        a(f"s_sub_u32 s{sT0}, s{sW}, {t}", f"s_and_b32 s{sT0}, s{sT0}, 3", f"s_mul_i32 s{sT0}, s{sT0}, 5120", f"s_add_u32 s{sT0}, s{sT0}, {RA[t - 1]}",
          f"v_add_u32 v{vRR[t - 1]}, s{sT0}, v{vL16}")
    a(f"s_xor_b32 s{sT0}, s2, 2", f"s_lshl_b32 s{sT1}, s{sT0}, 9", f"s_lshl_b32 s{sT2}, s{sW}, 7", f"s_add_u32 s{sT1}, s{sT1}, s{sT2}", f"v_mov_b32 v{vPar}, s{sT1}")
    a(f"s_lshl_b32 s{sXc}, s2, 2", f"s_add_u32 s{sXc}, s{sXc}, s{sW}", f"s_mul_i32 s{sXc}, s{sXc}, 3072", f"s_add_u32 s{sXc}, s{sXc}, {XCH}")
    a(f"v_and_b32 v{vFo2}, {OOB}, v{vHiM}", f"v_or_b32 v{vFo2}, v{vFo2}, v{vW2[2]}")
    a(f"v_lshrrev_b32 v{t0}, 4, v{vL}", f"v_lshlrev_b32 v{t0}, 3, v{t0}", f"v_add_u32 v{vFo[0]}, s{sJ160}, v{t0}")
    return o


FIN = 141312


def tw_setup():
    if OPT["mtq"]:
        return I(f"s_and_b32 s{sT0}, s2, 63", f"s_lshr_b32 s{sT1}, s2, 7", f"s_lshl_b32 s{sT1}, s{sT1}, 6", f"s_add_u32 s{sT0}, s{sT0}, s{sT1}",
                 f"s_lshl_b32 s{sT0}, s{sT0}, 2", f"s_add_u32 s{sT0}, s{sT0}, s{sW}", f"s_mul_i32 s{sTa}, s{sT0}, {34 * 128}", f"s_mul_i32 s{sTb}, s{sT0}, {13 * 128}",
                 f"v_lshlrev_b32 v{vTW}, 7, v{vL}")
    return I(f"s_lshl_b32 s{sT0}, s2, 2", f"s_add_u32 s{sT0}, s{sT0}, s{sW}", f"s_mul_i32 s{sTa}, s{sT0}, {17 * 128}", f"s_mul_i32 s{sTb}, s{sT0}, {7 * 128}",
             f"v_lshlrev_b32 v{vTW}, 7, v{vL}")


def masked(n, *body):
    lo, hi = ((1 << n) - 1) & 0xffffffff, ((1 << n) - 1) >> 32
    pre = [f"s_mov_b32 exec_hi, {hi}"] + ([f"s_mov_b32 exec_lo, {lo}"] if n < 32 else [])
    return [Bundle(I(*pre, *body, "s_mov_b64 exec, -1"))]


def mall_touch(kv):
    if not OPT["touch_w"] or (kv and OPT["mtq"]):
        return []
    return [masked(n, f"buffer_load_dword v{vTd}, v{vTW}, {srd(sr)}, s{so} offen") for sr, so, n in ((SW2, sTa, 34 if OPT["mtq"] else 17), (SWO, sTb, 13 if OPT["mtq"] else 7))]


def tlb_warm(shift):
    o = I(f"v_lshlrev_b32 v178, {shift}, v{vL}")
    for sr in (SWS, SOUT, SW2, SWO):
        o += I(f"buffer_load_dword v{vTd}, v178, {srd(sr)}, 0 offen")
    return [Bundle(o)]


def sprinkle(valu, groups, lo=0.0, hi=1.0):
    valu, out, k = bundled(valu), [], 0
    for i, x in enumerate(valu):
        while k < len(groups) and i >= len(valu) * (lo + (hi - lo) * k / len(groups)):
            out += groups[k]
            k += 1
        out.append(x)
    return out + [y for g in groups[k:] for y in g]


def b2_load():
    return [I(f"buffer_load_dwordx2 v[{accB(0, f)[1] + 2}:{accB(0, f)[1] + 3}], v{vFo[0]}, {srd(SB2)}, 0 offen offset:{32 * f}") for f in range(5)]


def b2_unpack():
    o = []
    for f in range(5):
        d = accB(0, f)[1]
        o += I(f"v_lshlrev_b32 v{d}, 16, v{d + 2}", f"v_and_b32 v{d + 1}, 0xffff0000, v{d + 2}", f"v_lshlrev_b32 v{d + 2}, 16, v{d + 3}", f"v_and_b32 v{d + 3}, 0xffff0000, v{d + 3}")
    return o


def ha_setup():
    o = I(f"s_sub_u32 s{sT0}, s{sHA}, s{sHB}")
    return [Bundle(o + I(*[f"v_add_u32 v{vH['A'][t]}, s{sT0}, v{vH['B'][t]}" for t in range(4)]))]


class Program:
    def __init__(s, kv):
        s.kv = kv
        if kv:
            s.tiles, s.T = ["K0", "K1", "MX", "V0", "V1", "Ha", "Hb"], 5
            s.aset = {t: t for t in range(7)}
        else:
            s.tiles, s.T = ["H0", "H1", "H2", "H3", "H4", "Q0", "Q1", "QM"], 4
            s.aset = {t: t for t in range(8)}
        s.spine, s.head, s.sides = [], [], []

    def at(s, idx):
        return s.head if idx < 0 else s.spine[idx]["pre"]

    def pin(s, idx, g):
        st = s.spine[max(idx, 0)]
        if st.get("pinned"):
            st["post"].extend(g)
        else:
            st["pre2"] = g[:-1]
            st["post"].append(g[-1])
        st["pinned"] = True
        st["budget"] -= len(g)

    def spread(s, gs, lo, hi):
        last = lo
        for i, g in enumerate(gs):
            last = lo + (i * max(hi - lo, 1)) // len(gs)
            s.pin(last, g)
        return last

    def w2_dma(s, kind, i, z):
        if kind == "E":
            base, k0, sr = (sWq, i, SW2) if i < 4 else (sW6, 0, SW2) if i == 4 else (sWk, i - 5, SW2)
        else:
            base, k0, sr = sWo, 4 * i, SWO
        x, so = [], base
        if OPT["rot2"] and i != 4:
            m, mul = (3, 1) if kind == "E" and i < 4 else (1, 1) if kind == "E" else (3, 4)
            x = (I(f"s_and_b32 s{sD2w}, s{sRot}, 1", f"s_xor_b32 s{sD2w}, s{sD2w}, {k0}") if m == 1 else I(f"s_xor_b32 s{sD2w}, s{sRot}, {k0 // mul}"))
            x += I(f"s_mul_i32 s{sD2w}, s{sD2w}, {mul * 32 * LDX}", f"s_add_u32 s{sD2w}, s{sD2w}, s{base}")
            so = sD2w
        elif k0:
            x, so = I(f"s_add_u32 s{sD2w}, s{base}, {k0 * 32 * LDX}"), sD2w
        after = s.zrd.get(z, [])
        gs = []
        for k in range(5):
            d = ins(f"buffer_load_dwordx4 v{vW2[k]}, {srd(sr)}, s{so} offen offset:{1024 * (k % 4)} lds", after=after if k == 0 else ())
            gs.append((x if k == 0 else []) + I(f"s_add_u32 m0, s{sW5}, {z + (4096 if k == 4 else 0)}") + [d])
        s.w2tok[(kind, i)] = [g[-1] for g in gs]
        s.w2z[(kind, i)] = z
        if OPT.get("lat") == f"{kind}{i}":
            x = stamp("lat0") + I("s_waitcnt vmcnt(0)", "s_nop 15", "s_nop 15") + stamp("lat1") + [y for g in gs for y in g] + I("s_waitcnt vmcnt(0)") + stamp("lat2") + I("s_nop 15", "s_nop 15", "s_nop 15", "s_nop 15")
            return [[Bundle(x)]]
        return gs

    def w2_reads(s, kind, i):
        x = []
        z = s.w2z[(kind, i)]
        for f in range(5):
            k, r = wfrag(kind, i, f)
            for h in range(2):
                ad = z + 32 * f + 1280 * h
                x.append(ins(f"ds_read_b64_tr_b16 {k}[{r + 2 * h}:{r + 2 * h + 1}], v{vT2[ad >> 16]} offset:{ad & 0xffff}", after=s.w2tok[(kind, i)]))
        s.zrd[z] = x
        return x

    def h_load(s, n, blk):
        kind, i = blk[0], int(blk[1])
        x = []
        if i == 4:
            x, so, imm = (I(f"s_add_u32 s{sD2h}, s{sHo}, 16384"), sD2h, 0) if kind == "O" else ([], sH6, 0)
        elif kind == "O":
            x, so, imm = I(f"s_add_u32 s{sD2h}, s{sHo}, {4096 * i}"), sD2h, 0
        elif not OPT["rot2"]:
            so, imm = (sHq, 1024 * i) if i < 4 else (sHk, 1024 * (i - 5))
        elif i < 4:
            x, so, imm = I(f"s_xor_b32 s{sD2h}, s{sR10}, {1024 * i}", f"s_add_u32 s{sD2h}, s{sD2h}, s{sHq}"), sD2h, 0
        else:
            x, so, imm = I(f"s_and_b32 s{sD2h}, s{sR10}, 1024", f"s_xor_b32 s{sD2h}, s{sD2h}, {1024 * (i - 5)}", f"s_add_u32 s{sD2h}, s{sD2h}, s{sHk}"), sD2h, 0
        v = vH["A" if kind == "A" else "B"]
        return [(x if t == 1 else []) + I(f"buffer_load_dwordx4 a[{aH(n, t)}:{aH(n, t) + 3}], v{v[t]}, {srd(SWS)}, s{so} offen offset:{imm} sc1") for t in (1, 2, 3, 0)]

    def build(s, xs):
        kv, T, tiles = s.kv, s.T, s.tiles
        o = []
        a = lambda *t: o.extend(I(*t))
        if kv:
            a(f"s_lshl_b32 s{sT0}, s{sP}, 8", f"s_sub_u32 s{sU64}, s{sU64}, s{sT0}", f"s_add_u32 s{sKq}, s{sKq}, 1280", f"s_mov_b32 s{sLast}, 0", f"s_mov_b32 s{sU4}, 0")
            o += wk_setup(True)
        else:
            a(f"s_lshl_b32 s{sT0}, s{sP}, 7", f"s_sub_u32 s{sU64}, s{sU64}, s{sT0}", f"s_add_u32 s{sU64}, s{sU64}, 256")
            o += wp_setup()
        dma = lambda pre, m0, v, sr, imm: pre + I(f"s_add_u32 m0, {m0}", f"buffer_load_dwordx4 v{v}, {srd(sr)}, s{sDw} offen offset:{imm} lds")
        so = lambda base, off, last=False: I(f"s_add_u32 s{sDw}, s{base}, {off}") + (I(f"s_or_b32 s{sDw}, s{sDw}, s{sLast}") if last else [])
        two = lambda regs, ad: (regs[0], ad) if ad < 0x8000 else (regs[1], ad - 0x8000)

        def pair_dma(k, bases):
            return [dma(so(sU64, k * 64 * LD1) + swap(sDw, sSw1, k) if (p, i) == (0, 0) else [], f"s{sW2k}, {b - 128 * p}", vWp[i], SW1, 128 * p + 1024 * i) for p, b in enumerate(bases) for i in range(2)]

        pair_step = lambda t, k, j, b, shift: dict(t=t, k=k, j=j, v=vTP[(t - (5 if kv else 0)) & 1], o1=b + 2048 * j - shift, d=512)
        stages = []
        for n in range(10):
            if kv:
                sl = (n % 4) * SLOT
                w = [dma(so(sKw, n * 64 * LDQ) + swap(sDw, sSwQ, n) if i == 0 else [], f"s{sW5}, {sl + 1024 * i}", vWk[i], SQKV, 0) for i in range(5)]
                st = []
                for t, (regs, col) in enumerate(((vTK, 0), (vTK, 64), (vTM, 0), (vTK, 2560), (vTK, 2624))):
                    for j in range(4):
                        v, off = two(regs, sl + 5120 * j + col)
                        st.append(dict(t=t, k=n, j=j, v=v, o1=off, d=640))
            else:
                sl = (n % 4) * 16384
                w = pair_dma(n, [sl, sl + 8192])
                st = [pair_step(t, n, j, sl + 8192 * (t >> 1), 0) for t in range(4) for j in range(4)]
            stages.append(dict(w=(dma_x(n) if n >= len(xs) else []) + w, steps=st, issue=n - 2, xtok=[g[-1] for g in xs[n]] if n < len(xs) else []))
        stages[9]["steps"] += [dict(t=t, extra=True) for t in range(T)]
        if kv:
            for m in range(10):
                b = RING2 + 8192 * m if m < 5 else 8192 * (m - 5)
                st = [pair_step(t, m, j, b, 0x8000 if m < 5 else 0) for t in (5, 6) for j in range(4)]
                for x in st:
                    x["v"] += 0 if m < 5 else 2
                stages.append(dict(w=pair_dma(m, [b]), steps=st, issue=8 if m < 2 else 9 if m < 5 else None))
            stages[-1]["steps"].insert(4, dict(t=5, extra=True))
            stages[-1]["steps"].append(dict(t=6, extra=True))
        else:
            for gq in range(5):
                w, st = [], []
                for m in (2 * gq, 2 * gq + 1):
                    w.append(dma(so(sU4, m * 64 * LD1) + swap(sDw, sSw1, m) + I(f"s_or_b32 s{sDw}, s{sDw}, s{sLast}"), f"s{sWL}, {0x8000 + 4096 * m}", vW1, SW1, 0))
                    st += [dict(t=4, k=m, j=j, v=vTR, o1=4096 * m + 1024 * j, d=256) for j in range(4)]
                stages.append(dict(w=w, steps=st, issue=8 if gq < 2 else 9))
            stages[-1]["steps"].append(dict(t=4, extra=True))
            for qs in range(5):
                b = (qs % 4) * SLOT
                w = [dma(so(sKw, qs * 128 * LDQ) if i == 0 else [], f"s{sW5}, {b + (4096 if i == 4 else 0)}", vWk[i], SQKV, 1024 * (i % 4)) for i in range(5)]
                st = []
                for kk in range(2):
                    for t, regs, col in ((5, vTK, 0), (6, vTK, 64), (7, vTM, 0)):
                        for j in range(4):
                            v, off = two(regs, b + 2560 * (4 * kk + j) + col)
                            st.append(dict(t=t, k=2 * qs + kk, j=j, v=v, o1=off, d=640))
                        if qs == 4 and kk == 1:
                            st.append(dict(t=t, extra=True))
                stages.append(dict(w=w, steps=st, issue=(11, 12, 15, 16, 17)[qs]))
        w0 = [x for g in stages[0]["w"] for x in g]
        if not OPT["s0first"]:
            o += stamp("prew0") + w0 + stamp("w0")
        if kv:
            o += nonce_publish()
        a(f"s_lshl_b32 s{sWL}, s{sW}, 10")
        if not kv:
            a(f"s_lshr_b32 s{sT0}, s{sU}, 2", f"s_sub_u32 s{sT0}, s{sU}, s{sT0}", f"s_add_u32 s{sT0}, s{sT0}, 48", f"s_min_u32 s{sT0}, s{sT0}, 53", f"s_lshl_b32 s{sU4}, s{sT0}, 6",
              f"s_and_b32 s{sT0}, s{sU}, 3", f"s_cmp_eq_u32 s{sT0}, 3", f"s_cselect_b32 s{sLast}, {OOB}, 0")
        o += s0_addr(tiles)
        X = OPT["nos0"] or ()
        o += stamp("pres0")
        s0late = s0_mem() if OPT["s0late"] else []
        for g in ([] if OPT["s0late"] else s0_mem()): o += g
        if OPT["s0first"]:
            o += w0
        o += x_read_setup() + (tk_setup(True) if kv else tp_setup(0))
        if OPT["wsoff"]:
            a(f"s_add_u32 s{P_WS}, s{P_WS}, {OPT['wsoff'] << 20}", f"s_addc_u32 s{P_WS + 1}, s{P_WS + 1}, 0")
        o += make_srd(SWS, P_WS, WS_SIZE) + I(f"s_mov_b32 s{sOne0}, 0x3f80", f"s_mov_b32 s{sOne1}, 0x3f800000")
        first_mem = stages[1]["w"]
        if OPT["dma1_early"]:
            for g in first_mem: o += g
            first_mem = []
        s.prepos = len(o)
        o += stamp("issued")
        steps, first = [], {}
        for n, st in enumerate(stages):
            first[n] = len(steps)
            steps += st["steps"]
        n1 = len(steps)
        first[len(stages)] = n1
        end1 = first[10]
        s.spine = spine = [dict(pre=[], post=[], budget=OPT["b1p"] if q < end1 else OPT["b1"]) for q in range(n1)]
        reads, done, xfree = {}, {}, {}
        for q, st in enumerate(steps):
            fr = aW + 4 * (q % NRING)
            A = acc(s.aset[st["t"]])
            if st.get("extra"):
                reads[q] = I(f"ds_read_b128 a[{fr}:{fr + 3}], v{vEXr} offset:{512 * st['t']}")
                spine[q]["mfma"] = ins(f"v_mfma_f32_32x32x16_bf16 v[{A}:{A + 15}], a[{fr}:{fr + 3}], v[{vXE}:{vXE + 3}], v[{A}:{A + 15}]")
                done[tiles[st["t"]]] = q
            else:
                assert 0 <= st["o1"] and st["o1"] + st["d"] < 65536
                reads[q] = I(f"ds_read_b64_tr_b16 a[{fr}:{fr + 1}], v{st['v']} offset:{st['o1']}", f"ds_read_b64_tr_b16 a[{fr + 2}:{fr + 3}], v{st['v']} offset:{st['o1'] + st['d']}")
                xa = aX + 16 * st["k"] + 4 * st["j"]
                c = "0" if (st["k"] == 0 and st["j"] == 0) else f"v[{A}:{A + 15}]"
                spine[q]["mfma"] = ins(f"v_mfma_f32_32x32x16_bf16 v[{A}:{A + 15}], a[{fr}:{fr + 3}], a[{xa}:{xa + 3}], {c}")
                xfree[xa] = q
        seq = OPT["seq"].split()
        ngap = max(n for n, b in enumerate(seq) if b[0] == "A") + 1
        s.w2tok, s.w2z, s.zrd = {}, {}, {}
        p2first = {}
        s.gapbar = ins("s_barrier")
        if not kv:
            ow, owr = o_write()
            spine.append(dict(pre=[], post=[ins("s_barrier", after=owr)], mfma=None, budget=0))
            spine += o_steps()
            s.otk = []
            p2first["ofin"] = len(spine)
            spine.append(dict(pre=o_finish(s.otk) + stamp("ofin"), post=[ins("s_barrier")], mfma=None, budget=0))
        for n, blk in enumerate(seq):
            if n == ngap:
                p2first["gap"] = len(spine)
                spine.append(dict(pre=[], post=[s.gapbar], mfma=None, budget=0))
            p2first[n] = len(spine)
            kind, i = blk[0], int(blk[1])
            for t in (1, 2, 3, 0):
                for f in range(5):
                    d = ("v", accA(t, f)) if kind == "A" else accB(t, f)
                    zero = blk == "A0" or (blk == "B0" and t != 0)
                    assert seq.index("A0") == 0 and seq.index("B0") == min(k for k, b in enumerate(seq) if b[0] != "A")
                    m = ins(f"v_mfma_f32_16x16x32_bf16 {r4(d)}, {r4(wfrag('O' if kind == 'O' else 'E', i, f))}, a[{aH(n, t)}:{aH(n, t) + 3}], {'0' if zero else r4(d)}")
                    spine.append(dict(pre=[], post=[], mfma=m, budget=OPT["b2"]))
        nend = len(spine)
        p2first[len(seq)] = nend
        spine.append(dict(pre=[], post=[], mfma=None, budget=0))
        last_dma, bar = {}, {}
        for n in range(len(stages)):
            pos = first[n] - LOOK
            bar[n] = b = ins("s_barrier", after=[g[-1] for g in stages[n]["w"]] + stages[n].get("xtok", []))
            blk = [b] + (stamp(f"st{n}") if n in OPT["stages"] else [])
            if n < 10:
                for j in range(4):
                    xa = aX + 16 * n + 4 * j
                    x = I(f"ds_read_b128 a[{xa}:{xa + 3}], v{vXR[j]} offset:{(n % 3) * 4096}")
                    if n and OPT["xpost"]:
                        spine[pos + j]["post"] += x
                        spine[pos + j]["budget"] -= 1
                    else:
                        blk += x
            s.at(pos).extend(blk)
            gs = list(first_mem) + s0late if n == 0 else []
            gs += [g for st in stages[2:] if st["issue"] == n for g in st["w"]]
            if n == OPT["s0ld"]:
                gs += mall_touch(kv)
            if gs:
                lo = max(pos + 1, 0)
                hi = first[n + 1] - LOOK
                last_dma[n] = s.spread(gs, lo, lo + int((hi - lo) * (1.0 if n == 0 else OPT["dspan1"] if n < 10 else OPT["dspan"])))
        for q in range(n1):
            if q < LOOK:
                s.head.extend(reads[q])
            else:
                spine[q - LOOK]["post"][0:0] = reads[q]
            if q % OPT["bt"] == 0:
                for z in range(q + 1, min(q + OPT["bt"], n1)):
                    spine[q]["mfma"].after += reads[z]
        S = OPT["s0k"] if kv else OPT["s0"]
        sides = s.sides
        s0m, s0st = s0_produce(kv)
        for q in range(first[S[0] + 1] - LOOK):
            spine[q]["budget"] += OPT["b0"] - OPT["b1p"]
        if "math" not in X:
            sides.append(side(s0m, start=OPT["s0start"] * T if S[0] == 0 else first[S[0]] - LOOK, end=last_dma[S[0]], name="s0math"))
        spine[last_dma[S[0]]]["post"] += I(f"buffer_load_dword v{vPoll2}, v{vPoll2}, {srd(SDBG)}, 0 offen sc1") + (s0st if "store" not in X else []) + stamp("s0b")
        later = (wp_setup() + tp_setup(0x8000) + I(f"v_subrev_u32 v{vTP[0] + 2}, 0x8000, v{vTP[0]}", f"v_subrev_u32 v{vTP[1] + 2}, 0x8000, v{vTP[1]}")) if kv else (w1_setup() + tr_setup(0x8000) + wk_setup(False) + tk_setup(False))
        s.RA, s.RB = ([Z1, Z2, Z0], [ZB, Z5, Z6]) if kv else ([Z2, Z5, ZA], [ZB, Z6, Z1])
        allset = bundled(late_setup() + tw_setup() + s0_consume_addr() + later + p2_setup(s.RA) + (kv_setup() if kv else o_setup()))
        npre = OPT["npre"][kv]
        o[s.prepos:s.prepos] = allset[:npre]
        zero = [x for x in allset[:npre] if getattr(x, "text", "").startswith("ds_write_b32")]
        assert len(zero) == 1
        bar[0].after += zero
        n_l = len(bundled(late_setup() + tw_setup() + s0_consume_addr()))
        ls = side(allset[npre:max(n_l, npre)], start=0, end=last_dma[1], name="late")
        sides.append(ls)
        if "sig" not in X:
            spine[last_dma[S[1]]]["post"] += nonce_check(vPoll2) + signal_now(L_S0, s0st)
        p2s = side(allset[max(n_l, npre):], start=0, follow=ls, end=last_dma[OPT["b2at"]], name="p2setup")
        sides.append(p2s)
        if "poll" not in X:
            spine[last_dma[S[2]]]["post"] += [poll_issue(vRowF, L_S0, vPoll), poll_issue(vColF, L_S0, vPoll2)]
            cl = s0_consume_loads()
            spine[last_dma[S[3]]]["post"] += cl[:-5]
            s.spread([[x] for x in cl[-5:]], last_dma[S[3]], last_dma[S[3]] + OPT["csp"])
        assert S[4] > S[3]
        s.spread(bias_loads(), last_dma[OPT['b2at']] + 1, last_dma[OPT['b2at']] + 7)
        cm, extok = s0_consume_math()
        s.b2 = b2_unpack() + ha_setup()
        exbar = end1 - T - LOOK - 1
        cms = side(cm, start=last_dma[S[4]] + 1, end=exbar - 1, follow=p2s, name="s0use")
        sides.append(cms)
        spine[exbar]["pre"].insert(0, ins("s_barrier", after=[extok]))
        spine[end1]["pre"] = stamp("pass1") + spine[end1]["pre"]
        spine[n1]["pre"] += stamp("mfma1")
        b2s = side(s.b2, start=exbar + 1, end=end1, follow=cms, name="b2")
        sides.append(b2s)
        flat = lambda gs: [x for g in gs for x in g]
        W = s.w2_dma
        gap = p2first["gap"]

        def RD(kind, i, lo, step=1):
            if kind == "E":
                assert lo > max(xfree[xa] for xa in range(20 * i, 20 * i + 20, 4)), (i, lo)
            for k, x in enumerate(s.w2_reads(kind, i)):
                spine[lo + k * step]["post"].append(x)
                spine[lo + k * step]["budget"] -= 1

        CP = dict(A0=(vRow2, L_HQ, "q"), A5=(vRow2K, L_HB, "kv"), O0=(vRow2, L_O, "q"))

        def cp(n, kl=None, ql=None):
            x = poll_check(*CP[seq[n]]) + stamp("cp" + seq[n])
            if OPT["touch_h"]:
                x += I(f"buffer_load_dword v{vTd}, v{vTch[dict(A0=0, A5=1, O0=2)[seq[n]]]}, {srd(SWS)}, 0 offen sc1")
            return x

        HL = lambda n: s.h_load(n, seq[n])
        if OPT["tlb"]:
            spine[first[OPT["tlb"][0]]]["post"] += tlb_warm(OPT["tlb"][1])
        k1 = len(stamp("pass1"))
        f = first
        if kv:
            epi0, epi, wr = kv_epilogue(s.aset, 0)
            prod, at = kv_product(wr)
            ha, ft = [], []
            rest = [g for m in range(15, 20) for g in stages[m]["w"]]
            spine[end1]["pre"][k1:k1] = [ins("s_barrier")] + sprinkle(epi0 + epi, rest + W("E", 0, Z0), 0, 0.9) + prod + stamp("kvdone")
            s.spread(W("E", 1, ZA) + W("E", 2, ZB), f[11], f[13] + 4)
            RD("E", 0, f[12] + 4)
            s.spread(W("E", 3, Z5) + W("E", 4, Z0), f[14], f[16])
            s.spread(W("E", 5, Z6), f[16], f[17] + 4)
            RD("E", 1, f[17]); RD("E", 2, n1 - 11)
            s.spread(W("E", 6, ZA), f[18] + 4, n1 - 2)
            jobs = [(acc(s.aset[5]), "Ha", ha), (acc(s.aset[6]), "Hb", ha)]
            one = lambda xs: [[x] for x in xs]
            if OPT["kvo"]:
                e1 = sprinkle(gelu_quads(jobs, 0, 8, True), one(s.w2_reads("E", 3) + s.w2_reads("E", 4) + s.w2_reads("E", 5))) + stamp("expo")
                x = s.w2_reads("E", 6)
                wo = W("O", 1, ZB) + W("O", 2, Z5) + W("O", 3, Z6) + W("O", 0, ZA)
                e1 += x + flat(wo[:OPT["sigpos"]]) + signal_now(L_HB, ha) + stamp("sigT") + flat(wo[OPT["sigpos"]:])
                e1 += [poll_issue(vRow2, L_HQ)] + cp(0, L_S0, L_HQ) + flat(HL(0) + HL(1) + HL(2) + HL(3))
            else:
                spine[n1 - 20]["post"].append(poll_issue(vRow2, L_HQ))
                e1 = sprinkle(gelu_quads(jobs, 0, 8, True), one(s.w2_reads("E", 3))) + stamp("expo")
                e1 += flat(W("O", 1, ZB)) + signal_now(L_HB, ha) + stamp("sigT") + cp(0, L_S0, L_HQ) + flat(HL(0) + HL(1) + HL(2) + HL(3))
                RD("E", 4, p2first[0], 2); RD("E", 5, p2first[2], 2); RD("E", 6, p2first[4], 2)
                s.spread(W("O", 2, Z5), p2first[1], p2first[3])
                s.spread(W("O", 3, Z6), p2first[3] + 1, p2first[5])
                s.spread(W("O", 0, ZA), p2first[5] + 1, p2first[7])
            s.sig = [(end1, L_KP, at, OPT["lagkp"])]
            zo4 = ZA
        else:
            tk = []
            jobs = [(acc(t), tiles[t], tk) for t in range(5)]
            nx = OPT["nx"]
            spine[end1]["pre"][k1:k1] = sprinkle(gelu_quads(jobs, 0, nx, True), W("E", 0, Z0) + W("E", 1, ZB), 0, 0.9) + stamp("x1")
            g3 = side(gelu_quads(jobs, nx, 16, False), start=end1, name="gelu3")
            g4 = side(gelu_quads(jobs, 16, 20, False), start=done["H4"] + 2, follow=g3, end=n1 - OPT["gend"], name="gelu4")
            sides += [g3, g4]
            s.spread(W("E", 2, ZA), f[13], f[15] - 5)
            RD("E", 0, f[16]); s.spread(W("E", 3, Z0), f[16] + 11, f[16] + 19)
            RD("E", 1, f[16] + 13); s.spread(W("E", 4, ZB), f[17] + 6, f[17] + 16)
            RD("E", 2, f[17] + 4)
            z, ztok = am_zero()
            bar[18].after += s.zrd[ZA]
            sides.append(side(z, start=f[18] - LOOK + 1, end=f[19] - LOOK - 1, follow=g4, name="amzero"))
            bar[19].after += ztok
            s.spread(W("E", 5, Z2), f[18], f[18] + 10)
            RD("E", 3, f[18] + 4)
            RD("E", 4, f[19] + 2)
            ko = n1 - OPT["hearly"]
            spine[ko - OPT["hpoll"]]["post"].append(poll_issue(vColK, L_KP, vPoll2))
            kc, kl = o_load()
            spine[ko]["post"] += kc
            s.spread(kl, ko + 1, n1 - 1)
            spine[n1 - 1]["post"].append(poll_issue(vRow2, L_HQ))
            np0 = OPT["np0"]
            zo = [Z0, ZB, Z6, Z1]
            otb = OPT["otb"]
            wo = [W("O", i, zo[i]) for i in range(4)]
            if OPT["tb"] == 0:
                e1 = sprinkle(phi_q(s.aset, True, 0, np0) + ow, W("E", 6, Z5) + (wo[0] if otb > 0 else []), 0.3, 1.0) + cp(0, L_S0, L_HQ)
                e1 += sprinkle(phi_q(s.aset, True, np0, 10), HL(0) + HL(1) + HL(2)) + stamp("gap")
                s.spread(HL(3) + flat(wo[1:min(otb, 3)]), n1 + 1, n1 + 16)
                if otb > 3:
                    st = spine[p2first["ofin"]]
                    st["pre"] = sprinkle(st["pre"], wo[3])
                RD("E", 5, p2first[0], 2); RD("E", 6, p2first[2], 2)
            else:
                lo = OPT["tb"] / 10
                e1 = phi_q(s.aset, True, 0, 10) + stamp("q_phi") + ow[:int(128 * lo)] + cp(0, L_S0, L_HQ) + sprinkle(ow[int(128 * lo):], HL(0) + HL(1)) + stamp("gap")
                s.spread(HL(2) + HL(3) + W("E", 6, Z5), n1 + 1, n1 + 16)
                if otb:
                    st = spine[p2first["ofin"]]
                    st["pre"] = sprinkle(st["pre"], flat(wo[:otb]))
                RD("E", 5, p2first[0], 2); RD("E", 6, p2first[4], 2)
            for k, i in enumerate(range(otb, 4)):
                s.spread(wo[i], p2first[OPT["ost"] + 3 * k], p2first[OPT["ost"] + 3 * k + 3])
            zo4 = Z0
            s.sig = [(g4, L_HQ, tk, OPT["lag"]), (p2first["ofin"], L_O, s.otk, OPT["lag"])]
        spine[n1]["pre"] = [ins("s_barrier")] + stamp("tee") + e1 + spine[n1]["pre"]
        s.n1 = n1
        for n in range(HR, len(seq)):
            p = p2first[n - HR] + 4
            if seq[n] in ("A5", "O0"):
                spine[p2first[n - HR - OPT["pback"]] + 3]["post"].append(poll_issue(*CP[seq[n]][:2]))
                spine[p]["pre"] += cp(n, L_HB, L_HQ if seq[n] == "A5" else L_O)
            elif n % 2 == 0 or OPT.get("allst"):
                spine[p]["pre"] += stamp("ld" + seq[n])
            for k, g in enumerate(HL(n)):
                s.pin(p + 5 * k, g)
        o0 = seq.index("O0")
        for i in range(5):
            RD("O", i, p2first[o0 + i - 1], 2)
            if i == 0:
                s.spread(W("O", 4, zo4), p2first[o0] + 1, p2first[o0 + 1])
        return o, seq, p2first, nend

    def finish(s, o, seq, p2first, nend):
        kv, spine, sides = s.kv, s.spine, s.sides
        a = lambda *t: o.extend(I(*t))
        aend = p2first["gap"]
        b0, rend = aend + 1 + OPT["gdel"], aend + 1 + OPT["ybar"]
        if OPT["gdel"]:
            spine[aend]["post"].remove(s.gapbar)
            spine[b0]["pre"].append(s.gapbar)
        RA, RB = s.RA, s.RB

        def red_write(get, R):
            x = []
            for t in (1, 2, 3):
                for f in range(5):
                    ad = R[t - 1] + 1024 * f
                    x.append(ins(f"ds_write_b128 v{vRW[ad >> 16]}, {r4(get(t, f))} offset:{ad & 0xffff}"))
            return x

        def red_read():
            x = []
            for t in (1, 2, 3):
                for f in range(5):
                    d = accA(t, f)
                    x += I(f"ds_read_b128 v[{d}:{d + 3}], v{vRR[t - 1]} offset:{1024 * f}")
            return x

        def red_add(own, pk):
            x = []
            for t in (1, 2, 3):
                for f in range(5):
                    for r in range(0, 4, 2 if pk else 1):
                        d, e = own(f) + r, accA(t, f) + r
                        x += I(f"v_pk_add_f32 {pr(d)}, {pr(d)}, {pr(e)}" if pk else f"v_add_f32 v{d}, v{d}, v{e}")
            return x

        wA = red_write(lambda t, f: ("v", accA(t, f)), RA)
        for q in list(range(aend - 15, aend)) + list(range(b0, rend)):
            spine[q]["budget"] += OPT["bred"]
        for k in range(3):
            sides.insert(k, side(wA[5 * k:5 * k + 5], start=aend - 12 + 5 * k, end=aend + OPT["gdel"] // 2, name=f"redAw{k}"))
        s.gapbar.after += wA
        xt = []
        xs = red_read() + red_add(lambda f: accA(0, f), False)
        P = accA(1, 0)
        for f in range(5):
            xs += cvt2(P + 2 * f, accA(0, f))
        for k, n in ((0, 4), (4, 4), (8, 4)):
            x = ins(f"buffer_store_dwordx{n} v[{P + k}:{P + k + n - 1}], v{vL16}, {srd(SWS)}, s{sXc} offen offset:{256 * k} sc1")
            xs.append(x); xt.append(x)
        xsd = side(xs, start=b0, end=rend, name="redA")
        sides.insert(3, xsd)
        s.sig.append((xsd, L_XCH, xt, OPT["lag"]))
        XR, PX = 152, 164
        fo = [(vW2[0], 0), (vW2[1], 1024), (vFo2, 2048)]
        s.spread([I(f"buffer_load_dwordx4 v[{XR + 4 * i}:{XR + 4 * i + 3}], v{fo[i][0]}, {srd(SX)}, s{sRow} offen offset:{fo[i][1]}") for i in range(3)], nend - 80, nend - 70)
        spine[nend - OPT["xch"] - 25]["post"].append(poll_issue(vPar, L_XCH))
        px = poll_check(vPar, L_XCH, "kv" if kv else "q") + stamp("xch") + I(f"s_xor_b32 s{sT0}, s2, 2", f"s_sub_u32 s{sT0}, s{sT0}, s2", f"s_mul_i32 s{sT0}, s{sT0}, 12288", f"s_add_u32 s{sXc}, s{sXc}, s{sT0}")
        for k, n in ((0, 4), (4, 4), (8, 4)):
            px += I(f"buffer_load_dwordx{n} v[{PX + k}:{PX + k + n - 1}], v{vL16}, {srd(SWS)}, s{sXc} offen offset:{256 * k} sc1")
        spine[nend - OPT["xch"]]["post"] += px
        wB = red_write(accB, RB)
        for q in range(nend - 14, nend):
            spine[q]["budget"] += 0.6
        for k in range(3):
            sides.insert(k, side(wB[5 * k:5 * k + 5], start=nend - 12 + 5 * k, end=nend, name=f"redBw{k}"))
        sides.append(side(I(*[f"v_add_u32 v{vRR[t]}, {(RB[t] - RA[t]) & 0xffffffff}, v{vRR[t]}" for t in range(3)]), start=rend + 1, end=nend - 20, name="rr"))
        for st in spine:
            st["pre"].extend(st.pop("pre2", []))
        if OPT.get("fine") and not kv:
            for q in range(*OPT["fine"]):
                spine[q]["pre"] = stamp(f"q{q}") + spine[q]["pre"]
        import copy
        dry = copy.deepcopy(sides)
        merge(spine, dry, 0)
        ends = {d["name"]: d.get("done", 0) if not d.get("late") else (d["end"] or nend) for d in dry}
        if OPT["verbose"]:
            print("KV" if kv else "Q", {d["name"]: (d["start"], ends[d["name"]], d.get("late", 0)) for d in dry}, "p2first", p2first)
        n1 = s.n1
        for sd, level, tk, lag in s.sig:
            idx, t = (sd if isinstance(sd, int) else ends[sd["name"]]), 0
            while t < lag and idx < nend - 1:
                t += 36 if idx < n1 else 18
                idx += 1
            if idx == n1:
                idx -= 1
            arrive, pub = signal(level, tk)
            late = min(idx + (3 if idx < n1 else 6), nend - 1) if arrive else idx
            if idx < n1 <= late:
                late = n1 - 1
            spine[idx]["post"] += arrive
            spine[late]["post"] += pub
        o = drop_m0(o + s.head + merge(spine, sides, 0))
        if OPT.get("jitter"):
            import random
            rnd, o2 = random.Random(OPT["jitter"]), []
            for i, y in enumerate(o):
                prev = o[i - 1] if i else y
                ok = not (("scc", 0) in prev.wr and ("scc", 0) in y.rd) and y.kind in ("barrier", "vmem", "dma", "ds") and i > 60
                live = any(("scc", 0) in z.rd for z in o[i:i + 3])
                if ok and not live and rnd.random() < (0.5 if y.kind == "barrier" or isinstance(y.note, tuple) else 0.03):
                    l = uid("jit")
                    o2 += I(f"s_lshl_b32 s{sTS}, s2, 2", f"s_add_u32 s{sTS}, s{sTS}, s{sW}", f"s_mul_i32 s{sTS}, s{sTS}, {rnd.randrange(1 << 20) | 1}",
                            f"s_bfe_u32 s{sTS}, s{sTS}, {0x30000 + rnd.randrange(4, 12)}", f"s_cmp_lg_u32 s{sTS}, 0", f"s_cbranch_scc1 {l}", f"s_sleep {rnd.choice((4, 16, 60))}", f"{l}:")
                o2.append(y)
            o = o2
        XX = OPT["x"]
        if "nohst" in XX:
            o = [y for y in o if not (y.text.startswith("buffer_store_dwordx4") and f"v{vHst}," in y.text)]
        if "now2" in XX:
            o = [y for y in o if not (y.kind == "dma" and (srd(SW2) in y.text or srd(SWO) in y.text))]
        if "nochk" in XX:
            o = [y for y in o if not (isinstance(y.note, tuple) and y.note[0] == "chk" and max(y.note[1:3]) > 1)]
        if "nopoll" in XX:
            o = [y for y in o if not (y.text.startswith("buffer_load_dword v") and (f"v{vRow2}," in y.text or f"v{vPar}," in y.text))]
        if "noH" in XX:
            o = [y for y in o if not y.text.startswith("buffer_load_dwordx4 a[")]
        if "nosc1H" in XX:
            for y in o:
                if y.text.startswith("buffer_load_dwordx4 a["):
                    y.text = y.text.replace(" sc1", "")
        if "nononce" in XX:
            o = [y for y in o if srd(SDBG) not in y.text]
        if "nosig" in XX:
            o = [y for y in o if not (isinstance(y.note, tuple) and y.note[0] == "sig" and y.note[1] > 1)]
        if "noat" in XX:
            o = [y for y in o if not y.text.startswith("buffer_atomic")]
        if "nomf2" in XX:
            o = [y for y in o if "16x16x32" not in y.text]
        if "nomf1" in XX:
            o = [y for y in o if "32x32x16" not in y.text]
        if "novalu" in XX:
            o = [y for y in o if not (y.kind in ("valu", "trans") and y.text.split()[0] in ("v_pk_mul_f32", "v_pk_fma_f32", "v_exp_f32", "v_rcp_f32", "v_exp_f32_e64", "v_max_f32", "v_pk_add_f32", "v_fma_f32", "v_mul_f32", "v_dot2_f32_bf16", "v_add_f32"))]
        if "notr" in XX:
            o = [y for y in o if not y.text.startswith("ds_read_b64_tr")]
        if "nowdma" in XX:
            o = [y for y in o if not (y.kind == "dma" and (srd(SW1) in y.text or srd(SQKV) in y.text))]
        if "noxdma" in XX:
            o = [y for y in o if not (y.kind == "dma" and srd(SX) in y.text)]
        import re as _re
        if "fake16" in XX:
            o2, cnt = [], 0
            for y in o:
                m = _re.match(r"v_mfma_f32_32x32x16_bf16 v\[(\d+):\d+\], (a\[\d+:\d+\]), a\[(\d+):\d+\], (.*)", y.text)
                if m:
                    A, w, xa, c = int(m.group(1)), m.group(2), int(m.group(3)), m.group(4)
                    j = (xa >> 2) & 1
                    for h in range(2):
                        d = A + 8 * j + 4 * h
                        z = ins(f"v_mfma_f32_16x16x32_bf16 v[{d}:{d + 3}], {w}, a[{xa ^ (4 * h)}:{(xa ^ (4 * h)) + 3}], {'0' if xa < 8 else 'v[%d:%d]' % (d, d + 3)}")
                        z.after = y.after if h == 0 else []
                        o2.append(z)
                else:
                    o2.append(y)
            o = o2
        for y in o:
            if "lin2" in XX and y.kind == "dma" and any(srd(z) in y.text for z in (SW2, SWO)):
                y.text = _re.sub(r"dwordx4 v\d+,", f"dwordx4 v{vL16},", y.text)
            if "nokvl" in XX and y.text.startswith("buffer_load_dwordx4 v") and f", v{vOl0}," in y.text and not kv:
                y.text = "s_nop 0"; y.kind = "nop"; y.q = None; y.wr = set(); y.rd = set()
        for y in o:
            hot = (("hot1" in XX and y.kind == "dma" and any(srd(z) in y.text for z in (SX, SQKV, SW1))) or
                   ("hot2" in XX and y.kind == "dma" and any(srd(z) in y.text for z in (SW2, SWO))) or
                   ("hotH" in XX and y.text.startswith("buffer_load_dwordx4 a[")))
            if hot:
                y.text = _re.sub(r"\], s\d+ offen", "], 0 offen", y.text)
        if "notrans" in XX:
            o = [y for y in o if y.kind != "trans"]
        if OPT["stop"]:
            cut = [i for i, x in enumerate(o) if getattr(x, "kind", "") == "stamp" and x.text in (OPT["stop"], "rt_" + OPT["stop"])][0]
            o = o[:cut + 1] + I("s_waitcnt vmcnt(0) lgkmcnt(0)")
            return s.tail(o)
        o += stamp("mfma2")
        o.append(ins("s_barrier", after=wB))
        own = lambda f: accB(0, f)[1]
        o += red_read()
        for f in range(5):
            for r in range(4):
                a(f"v_dot2_f32_bf16 v{own(f) + r}, v{PX + 2 * f + r // 2}, s{sOne1 if r & 1 else sOne0}, v{own(f) + r}")
        o += red_add(own, True)
        for f in range(5):
            a(f"ds_write_b128 v{vTw}, v[{own(f)}:{own(f) + 3}] offset:{64 * f}")
        FO = 48

        def fin_store(i):
            x = I(*[f"v_cvt_pk_bf16_f32 v{FO + 8 * i + k}, v{FO + 8 * i + 2 * k}, v{FO + 8 * i + 2 * k + 1}" for k in range(4)])
            return x + I(f"buffer_store_dwordx4 v[{FO + 8 * i}:{FO + 8 * i + 3}], v{fo[i][0]}, {srd(SOUT)}, s{sRow} offen offset:{fo[i][1]} {OPT['outf']}")

        for i in range(3):
            for h in range(2):
                a(f"ds_read_b128 v[{FO + 8 * i + 4 * h}:{FO + 8 * i + 4 * h + 3}], v{vTr[i]} offset:{16 * h + 2048 * i}")
        for i in range(3):
            for k in range(4):
                d = FO + 8 * i + 2 * k
                a(f"v_dot2_f32_bf16 v{d}, v{XR + 4 * i + k}, s{sOne0}, v{d}", f"v_dot2_f32_bf16 v{d + 1}, v{XR + 4 * i + k}, s{sOne1}, v{d + 1}")
            if i:
                o += fin_store(i - 1)
        o += I("s_nop 1") + fin_store(2)
        return s.tail(o)

    def tail(s, o):
        if OPT["prof"]:
            o += stamp("end") + stamp("rt1")
            last = Ins("x", "stamp"); last.note = "last"
            o.append(last)
            o += I(f"s_lshl_b32 s{sT0}, s2, 2", f"s_add_u32 s{sT0}, s{sT0}, s{sW}", f"s_lshl_b32 s{sT0}, s{sT0}, 8", f"s_add_u32 s{sT0}, s{sT0}, {TS}",
                   f"v_lshlrev_b32 v30, 2, v{vL}", f"buffer_store_dword v31, v30, {srd(SWS)}, s{sT0} offen")
        return o + I("s_endpgm")


def check_no_deadlock(progs):
    ev = [[x.note for x in p if isinstance(x.note, tuple)] for p in progs]
    pos, lvl = [0, 0], [0, 0]
    moved = True
    while moved:
        moved = False
        for k in (0, 1):
            while pos[k] < len(ev[k]):
                e = ev[k][pos[k]]
                if e[0] == "sig":
                    assert e[1] > lvl[k], (k, e, lvl)
                    lvl[k] = e[1]
                elif lvl[0] < e[1] or lvl[1] < e[2]:
                    break
                pos[k] += 1
                moved = True
    assert pos == [len(e) for e in ev], f"circular wait: KV stuck at {ev[0][pos[0]:pos[0] + 1]}, Q at {ev[1][pos[1]:pos[1] + 1]}"


def drop_m0(items):
    out, cur = [], None
    for x in items:
        for y in (x.items if isinstance(x, Bundle) else [x]):
            if y.kind == "vmem" and y.wr == {("v", vTd)}:
                y.wr = set()
            if ("m0", 0) in y.wr:
                if y.text == cur:
                    continue
                cur = y.text
            out.append(y)
    return out


def build():
    st = {}
    pro, xs = prologue()
    pro += I("s_bitcmp1_b32 s2, 6", "s_cbranch_scc1 L_q")
    progs = []
    for kv in (True, False):
        p = Program(kv)
        body = p.finish(*p.build(xs))
        full = pro + ([] if kv else I("L_q:")) + body
        if OPT["prof"]:
            full = resolve_stamps(full, ts_names, sTS, 31)
        progs.append(finalize(full, stats=st))
    a_kv, a_q = progs
    if not OPT["stop"] and not OPT["x"]:
        check_no_deadlock(progs)
    iq = [i for i, x in enumerate(a_q) if x.text == "L_q:"][0]
    assert [x.text for x in a_q[:iq]] == [x.text for x in a_kv[:iq]]
    body = a_kv + a_q[iq:] + I("L_end:", "s_endpgm")
    used = {x.text.split()[1] for x in body if x.kind == "branch"}
    for sp in slow_paths:
        if sp[0].text[:-1] in used:
            body += finalize(sp)
    txt = text_of(body)
    ref = open("parallel_sum__linear_attn_block__mixer_channel_mlp__prompt.s.ref").read().split("\n")
    hdr = [l for l in ref if l.startswith(";") and "@launch" not in l and not l.startswith("; Override") and not l.startswith("; grid=")]
    src = "\n".join(hdr) + f"""
; @launch grid=(256,1,1) block=(256,1,1) lds={LDS_SIZE}
.amdgcn_target "amdgcn-amd-amdhsa--gfx950"
.text
.globl {NAME}
.p2align 8
.type {NAME},@function
{NAME}:
{txt}
L_code_end:
.fill 65536 / 4, 4, 0xbf810000
.section .rodata,"a"
.p2align 6
.amdhsa_kernel {NAME}
  .amdhsa_next_free_vgpr 512
  .amdhsa_next_free_sgpr 102
  .amdhsa_accum_offset 256
  .amdhsa_group_segment_fixed_size 0
  .amdhsa_kernarg_size 88
  .amdhsa_user_sgpr_count 2
  .amdhsa_user_sgpr_kernarg_segment_ptr 1
  .amdhsa_system_sgpr_workgroup_id_x 1
.end_amdhsa_kernel
"""
    return src, st, len(a_kv), len(a_q)


if __name__ == "__main__":
    out = sys.argv[1]
    for kvp in sys.argv[2:]:
        k, v = kvp.split("=", 1)
        OPT[k] = eval(v) if v[0] in "0123456789TFN-([" else v
    LOOK = OPT["look"]
    src, st, n1, n2 = build()
    open(out, "w").write(src)
    if OPT["prof"]:
        open(out + ".ts", "w").write("\n".join(ts_names))
    print("instructions", n1, n2, st)
```
